```python
import torch

def _softmax(x, axis=-1):
    return torch.softmax(x, dim=axis)
def _gelu(x):
    return torch.nn.functional.gelu(x, approximate="tanh")
def _silu(x):
    return torch.nn.functional.silu(x)
def _sigmoid(x):
    return torch.sigmoid(x)
def _layernorm(x, axis=-1, eps=1e-5):
    m = x.mean(dim=axis, keepdim=True)
    v = x.var(dim=axis, keepdim=True, unbiased=False)
    return (x - m) / torch.sqrt(v + eps)
def _scatter_add(tgt, idx, src, axis=0):
    return tgt.clone().index_add_(axis, idx, src)
def _segment_sum(src, seg, n):
    out = torch.zeros((n,) + src.shape[1:], dtype=src.dtype)
    return out.index_add_(0, seg, src)
def _pad(x, pw):
    flat = tuple(v for pair in reversed(pw) for v in pair)
    return torch.nn.functional.pad(x, flat)

kernel_name = 'sequential_preLN__sliding_block__mixer_s_mlp__prompt'

def setup_inputs():

    _w = (lambda a: (lambda t: t.to(torch.bfloat16) if t.is_floating_point() else t)(torch.as_tensor(a)))
    def _A_setup():
        B, S, D = 1, 2048, 448
        return {
            "x": _w((lambda *s: torch.randn(*s, dtype=torch.bfloat16) * 0.05)(B, S, D)),
            "wqkv": _w((lambda *s: torch.randn(*s, dtype=torch.bfloat16) * 0.05)(D, 3 * D)),
            "wo": _w((lambda *s: torch.randn(*s, dtype=torch.bfloat16) * 0.05)(D, D)),
        }
    _A_in = _A_setup()

    def _B_setup():
        B, S, D, F = 1, 2048, 448, 1792
        return {
            "x":  _w((lambda *s: torch.randn(*s, dtype=torch.bfloat16) * 0.05)(B, S, D)),
            "w1": _w((lambda *s: torch.randn(*s, dtype=torch.bfloat16) * 3.2)(D, D) * (D ** -0.5)),
            "w2": _w((lambda *s: torch.randn(*s, dtype=torch.bfloat16) * 3.2)(D, D) * (D ** -0.5)),
            "w3": _w((lambda *s: torch.randn(*s, dtype=torch.bfloat16) * 3.2)(D, F) * (D ** -0.5)),
            "w4": _w((lambda *s: torch.randn(*s, dtype=torch.bfloat16) * 3.2)(F, D) * (F ** -0.5)),
        }
    _B_in = _B_setup()

    return {
        "A_x": _A_in["x"],
        "A_wqkv": _A_in["wqkv"],
        "A_wo": _A_in["wo"],
        "B_x": _B_in["x"],
        "B_w1": _B_in["w1"],
        "B_w2": _B_in["w2"],
        "B_w3": _B_in["w3"],
        "B_w4": _B_in["w4"],
    }

def reference(A_x, A_wqkv, A_wo, B_x, B_w1, B_w2, B_w3, B_w4):
    def _A_ref(x, wqkv, wo):
        B, S, D = x.shape
        H = 16; Dh = D // H; W = 256
        qkv = (lambda x, *d: x.permute(*d))((x @ wqkv).reshape(B, S, 3, H, Dh), 2, 0, 3, 1, 4)
        q, k, v = qkv[0], qkv[1], qkv[2]
        scores = torch.einsum("bhqd,bhkd->bhqk", q, k) * (Dh ** -0.5)
        idx = torch.arange(S)
        mask = (idx[:, None] - idx[None, :] >= 0) & (idx[:, None] - idx[None, :] < W)
        scores = torch.where(mask[None, None], scores, -1e9)
        p = _softmax(scores, axis=-1)
        o = torch.einsum("bhqk,bhkd->bhqd", p, v)
        return (lambda x, *d: x.permute(*d))(o, 0, 2, 1, 3).reshape(B, S, D) @ wo

    def _B_ref(x, w1, w2, w3, w4):
        B, S, D = x.shape
        h = _gelu(_layernorm(x, axis=-1) @ w1)
        c = D // 4
        g0 = _pad(h[:, :, 0*c:1*c], ((0, 0), (1, 0), (0, 0)))[:, :S, :]
        g1 = _pad(h[:, :, 1*c:2*c], ((0, 0), (0, 1), (0, 0)))[:, 1:, :]
        g2 = _pad(h[:, :, 2*c:3*c], ((0, 0), (2, 0), (0, 0)))[:, :S, :]
        g3 = _pad(h[:, :, 3*c:   ], ((0, 0), (0, 2), (0, 0)))[:, 2:, :]
        hs = torch.concatenate([g0, g1, g2, g3], axis=-1) @ w2
        x1 = x + hs
        h2 = _gelu(_layernorm(x1, axis=-1) @ w3) @ w4
        return x1 + h2

    x = A_x
    h = x + _A_ref(_layernorm(x, axis=-1), A_wqkv, A_wo)
    h2 = h + _B_ref(_layernorm(h, axis=-1), B_w1, B_w2, B_w3, B_w4)
    return h2
```

```python
import re

TRANS = ("v_exp_f32", "v_log_f32", "v_rcp_f32", "v_rsq_f32", "v_sqrt_f32", "v_sin_f32", "v_cos_f32")

def regs_of(tok):
    t = tok.strip()
    t = t.lstrip("-")
    if t.startswith("abs(") or t.startswith("neg("):
        t = t[4:-1]
    t = t.strip("|")
    m = re.fullmatch(r"([vsa])(\d+)", t)
    if m:
        return [(m.group(1), int(m.group(2)))]
    m = re.fullmatch(r"([vsa])\[(\d+):(\d+)\]", t)
    if m:
        return [(m.group(1), i) for i in range(int(m.group(2)), int(m.group(3)) + 1)]
    if t == "vcc":
        return [("s", 106), ("s", 107)]
    if t == "vcc_lo":
        return [("s", 106)]
    if t == "vcc_hi":
        return [("s", 107)]
    if t == "exec":
        return [("s", 126), ("s", 127)]
    if t == "m0":
        return [("s", 124)]
    return []


class Ins:
    __slots__ = ("op", "ops", "mods", "cm")

    def __init__(self, op, ops, mods="", cm=""):
        self.op, self.ops, self.mods, self.cm = op, [str(o) for o in ops], mods, cm

    def text(self):
        s = "    " + self.op
        if self.ops:
            s += " " + ", ".join(self.ops)
        if self.mods:
            s += " " + self.mods
        if self.cm:
            s += "    ; " + self.cm
        return s


class Label:
    def __init__(self, name):
        self.name = name

    def text(self):
        return self.name + ":"


class Raw:
    def __init__(self, s):
        self.s = s

    def text(self):
        return self.s


def classify(i):
    op, o = i.op, i.ops
    R = lambda k: regs_of(o[k]) if k < len(o) else []
    allr = lambda ks: [r for k in ks for r in R(k)]
    n = len(o)
    d = dict(kind="other", wr=[], rd=[])
    if op.startswith("v_mfma"):
        passes = 8 if "32x32" in op else 4
        d.update(kind="mfma", wr=R(0), ab=R(1) + R(2), c=R(3), rd=R(1) + R(2) + R(3), passes=passes)
    elif op.startswith("v_cmp"):
        d.update(kind="valu", wr=R(0), rd=allr(range(1, n)))
    elif op in ("v_readfirstlane_b32", "v_readlane_b32"):
        d.update(kind="valu", wr=R(0), rd=allr(range(1, n)), lane_read=True)
    elif op == "v_writelane_b32":
        d.update(kind="valu", wr=R(0), rd=allr(range(0, n)))
    elif op in ("v_swap_b32", "v_permlane16_swap_b32", "v_permlane32_swap_b32"):
        d.update(kind="valu", wr=R(0) + R(1), rd=R(0) + R(1), perm=op.startswith("v_permlane"))
    elif op.startswith("v_"):
        rd = allr(range(1, n))
        if op.startswith("v_fmac") or op.startswith("v_dot2c") or op.startswith("v_pk_fmac"):
            rd = rd + R(0)
        if op.startswith("v_cndmask") and n == 3:
            rd = rd + regs_of("vcc")
        wr = R(0)
        if op.startswith("v_add_co") or op.startswith("v_sub_co") or op.startswith("v_addc_co"):
            wr = wr + R(1)
            rd = allr(range(2, n))
        d.update(kind="valu", wr=wr, rd=rd, trans=op in TRANS, dot=op.startswith("v_dot"),
                 dpp=("row_" in i.mods or "quad_perm" in i.mods), sdwa=("sdwa" in op or ("op_sel" in i.mods and not op.startswith("v_pk_"))))
    elif op.startswith("ds_read") or op.startswith("ds_bpermute") or op.startswith("ds_swizzle"):
        d.update(kind="ds", wr=R(0), rd=allr(range(1, n)))
    elif op.startswith("ds_"):
        d.update(kind="ds", rd=allr(range(0, n)))
    elif op.startswith("buffer_load") or op.startswith("global_load"):
        if " lds" in (" " + i.mods):
            d.update(kind="vmem", rd=allr(range(0, n)), dma=True)
        else:
            d.update(kind="vmem", wr=R(0), rd=allr(range(1, n)))
    elif op.startswith("buffer_store") or op.startswith("buffer_atomic"):
        d.update(kind="vmem", rd=allr(range(0, n)), wide=R(0) if ("x4" in op or "x3" in op) else [])
    elif op.startswith("buffer_"):
        d.update(kind="vmem")
    elif op.startswith("s_"):
        if op.startswith("s_cmp") or op.startswith("s_cbranch") or op in ("s_branch", "s_nop", "s_waitcnt", "s_barrier", "s_endpgm", "s_sleep", "s_setprio", "s_bitcmp1_b32", "s_bitcmp0_b32"):
            d.update(kind="salu", rd=allr(range(0, n)))
        else:
            d.update(kind="salu", wr=R(0), rd=allr(range(1, n)))
    else:
        raise ValueError("unknown op " + op)
    return d


CAP = 24


class HState:
    def __init__(self):
        self.ev = {}

    def copy(self):
        h = HState()
        h.ev = dict(self.ev)
        return h

    def merge(self, o):
        ch = False
        for k, a in o.ev.items():
            if k not in self.ev or self.ev[k] > a:
                self.ev[k] = a
                ch = True
        return ch

    def tick(self, n):
        self.ev = {k: a + n for k, a in self.ev.items() if a + n < CAP}


def need_nops(st, ins, c):
    need = 0
    byreg = {}
    for k, a in st.ev.items():
        byreg.setdefault(k[1], []).append((k[0], k[2], a))

    def req(reg, typ, fn):
        nonlocal need
        for t, info, a in byreg.get(reg, ()):
            if t == typ:
                w = fn(info)
                if w is not None and w - a > need:
                    need = w - a

    kind = c["kind"]
    full = {4: 8, 8: 12}
    part = {4: 6, 8: 10}
    warc = {4: 3, 8: 7}
    if kind == "mfma":
        for r in c["rd"]:
            req(r, "vw", lambda info: 3 if info == "dot" else 2)
        for r in c["ab"]:
            req(r, "mw", lambda info: full[info[0]])
        cr = tuple(c["c"])
        for r in c["c"]:
            req(r, "mw", lambda info: 0 if (info[1] == cr and info[0] == c["passes"] and info[2] == ins.op) else part[info[0]])
        if not c["c"]:
            for r in c["wr"]:
                req(r, "mw", lambda info: part[info[0]])
        for r in c["wr"]:
            req(r, "st", lambda info: 2)
    elif kind == "valu":
        for r in c["rd"] + c["wr"]:
            req(r, "mw", lambda info: full[info[0]])
        for r in c["wr"]:
            req(r, "mc", lambda info: warc[info])
            req(r, "st", lambda info: 2)
        for r in c["rd"]:
            if r[0] == "v":
                if not c.get("trans"):
                    req(r, "vw", lambda info: 1 if info == "trans" else None)
                req(r, "vw", lambda info: 1 if info == "sdwa" else None)
                if c.get("perm") or c.get("dpp"):
                    req(r, "vw", lambda info: 2)
                if c.get("lane_read"):
                    req(r, "vw", lambda info: 1)
            else:
                req(r, "sw", lambda info: 4 if (c.get("lane_read") or ins.op == "v_writelane_b32") else 2)
        for r in set(c["rd"] + c["wr"]):
            if c.get("dot") and r in c["wr"] and r not in regs_of(ins.ops[1]) + regs_of(ins.ops[2]):
                continue
            req(r, "vw", lambda info: 3 if info == "dot" else None)
    elif kind in ("vmem", "ds"):
        for r in c["rd"] + c["wr"]:
            req(r, "mw", lambda info: full[info[0]])
        for r in c["rd"]:
            if r[0] == "s":
                req(r, "sw", lambda info: 5)
            else:
                req(r, "vw", lambda info: 3 if info == "dot" else (1 if info in ("trans", "sdwa") else None))
        for r in c["wr"]:
            req(r, "st", lambda info: 1)
            req(r, "mc", lambda info: warc[info])
        if c.get("dma"):
            req(("s", 124), "m0", lambda info: 1)
    elif kind == "salu":
        for r in c["rd"]:
            req(r, "sw", lambda info: 1)
    return need


def apply(st, ins, c):
    n = 1
    if ins.op == "s_nop":
        n = int(ins.ops[0]) + 1
    st.tick(n)
    kind = c["kind"]

    def clear(reg, types):
        for k in [k for k in st.ev if k[1] == reg and k[0] in types]:
            del st.ev[k]

    if kind == "mfma":
        for r in c["wr"]:
            clear(r, ("vw", "mw"))
            st.ev[("mw", r, (c["passes"], tuple(c["wr"]), ins.op))] = 0
        for r in c["c"]:
            st.ev[("mc", r, c["passes"])] = 0
    elif kind == "valu":
        info = "trans" if c.get("trans") else "dot" if c.get("dot") else "sdwa" if c.get("sdwa") else "plain"
        for r in c["wr"]:
            if r[0] == "v":
                clear(r, ("vw",))
                st.ev[("vw", r, info)] = 0
            else:
                st.ev[("sw", r, None)] = 0
    elif kind == "vmem":
        for r in c.get("wide", []):
            st.ev[("st", r, None)] = 0
    elif kind == "salu":
        for r in c["wr"]:
            clear(r, ("sw",))
            if r == ("s", 124):
                st.ev[("m0", r, None)] = 0


class Asm:
    def __init__(self):
        self.items = []
        self.vm = 0
        self.vm_done = 0
        self.lg = 0
        self.lg_done = 0
        self.nlabel = 0

    def I(self, op, *ops, mods="", cm=""):
        i = Ins(op, ops, mods, cm)
        self.items.append(i)
        if op.startswith("buffer_") or op.startswith("global_"):
            self.vm += 1
            return self.vm
        if op.startswith("ds_"):
            self.lg += 1
            return self.lg
        return None

    def label(self, name):
        self.items.append(Label(name))

    def newlabel(self, base="L"):
        self.nlabel += 1
        return "%s_%d" % (base, self.nlabel)

    def raw(self, s):
        self.items.append(Raw(s))

    def cmt(self, s):
        self.items.append(Raw("    ; " + s))

    def wait(self, vm=None, lg=None):
        parts = []
        if vm is not None and vm > self.vm_done:
            n = min(self.vm - vm, 63)
            parts.append("vmcnt(%d)" % n)
            self.vm_done = self.vm - n
        if lg is not None and lg > self.lg_done:
            n = min(self.lg - lg, 15)
            parts.append("lgkmcnt(%d)" % n)
            self.lg_done = self.lg - n
        if parts:
            self.I("s_waitcnt", " ".join(parts))

    def wait_vm_all(self, force=False):
        if force or self.vm > self.vm_done:
            self.I("s_waitcnt", "vmcnt(0)")
            self.vm_done = self.vm

    def wait_lg_all(self, force=False):
        if force or self.lg > self.lg_done:
            self.I("s_waitcnt", "lgkmcnt(0)")
            self.lg_done = self.lg

    def finalize(self):
        items = self.items
        cls = [classify(i) if isinstance(i, Ins) else None for i in items]
        label_in = {}
        nops = [0] * len(items)
        for _ in range(4):
            st = HState()
            live = True
            changed = False
            for k, it in enumerate(items):
                if isinstance(it, Label):
                    if not live:
                        st = HState()
                    if it.name in label_in:
                        st.merge(label_in[it.name])
                    live = True
                    continue
                if not isinstance(it, Ins):
                    continue
                c = cls[k]
                n = need_nops(st, it, c)
                if n > nops[k]:
                    nops[k] = n
                    changed = True
                if nops[k]:
                    st.tick(nops[k])
                apply(st, it, c)
                if it.op.startswith("s_cbranch") or it.op == "s_branch":
                    tgt = it.ops[0]
                    h = label_in.setdefault(tgt, HState())
                    if h.merge(st):
                        changed = True
                    if it.op == "s_branch":
                        live = False
                if it.op == "s_endpgm":
                    live = False
            if not changed:
                break
        out = []
        for k, it in enumerate(items):
            n = nops[k]
            while n > 0:
                m = min(n, 16)
                out.append("    s_nop %d" % (m - 1))
                n -= m
            out.append(it.text())
        return "\n".join(out) + "\n"
```

```python
import sys, struct
from asmlib import Asm

NAME = "sequential_preLN__sliding_block__mixer_s_mlp__prompt"
OPT = dict(stamp=0)
for a in sys.argv[2:]:
    k, v = a.split("=")
    OPT[k] = int(v)

def f2u(x):
    return struct.unpack("<I", struct.pack("<f", x))[0]
def hx(x):
    return "0x%x" % (x & 0xffffffff)
def fl(x):
    return hx(f2u(x))

TILE_B = 14336
TEN = 128 * TILE_B
OFF_Q, OFF_K, OFF_V = 0, TEN, 2 * TEN
OFF_O = 3 * TEN
OFF_H = OFF_O + 128 * 16384
OFF_HH = OFF_H + TEN
OFF_X1 = OFF_HH + TEN
OFF_G = OFF_X1 + TEN
OFF_FLAG = OFF_G + 128 * 57344
OFF_XCC = OFF_FLAG + 8 * 16384
OFF_EPOCH = OFF_XCC + 4096
OFF_STAMP = OFF_EPOCH + 4096
WS_SIZE = OFF_STAMP + 256 * 8 * 256
OOB = 0x40000000
F_Q, F_K, F_V, F_O, F_H, F_HH, F_X1, F_G = range(8)

SLOT = 28672
def slot(i): return SLOT * i
L_PART = 5 * SLOT
L_STAT = L_PART + 16384
L_CS = L_STAT + 2048
LDS_SIZE = 163840

SRD_X, SRD_WQKV, SRD_WO, SRD_W1, SRD_W2, SRD_W3, SRD_W4, SRD_OUT = ["s[%d:%d]" % (4 * i, 4 * i + 3) for i in range(1, 9)]
SRD_WS, SRD_DBG = "s[60:63]", "s[64:67]"
sX, sLI, sTG, sJ, sW, sTT, sKH, sTAG, sT = ["s%d" % i for i in range(68, 77)]
sM7, sW4096, sROW896, sROW2688, sROW3584 = "s77", "s78", "s79", "s80", "s81"
sODD = "s[82:83]"
sA, sB, sC, sD, sE, sF, sG, sH_ = ["s%d" % i for i in range(84, 92)]
sHEAD, sTQ0, sC0, sJP, sT1 = "s92", "s93", "s94", "s95", "s96"
sCNT = "s97"
sST = "s[98:99]"

vLANE, vTOK, vQ4, vL16 = "v0", "v1", "v2", "v3"
vD896, vD2688, vD3584 = "v4", "v5", "v6"
TRL = [[7, 8], [9, 10]]
TRC = [[11, 12], [13, 14]]
vTAG = "v15"
ONES = 16
XRES = 20
HREG = 24
YREG = 32
ACCO, ACCS = 40, 48
vPW, vPR, vSW, vSR, vCSW, vCSR = "v56", "v57", "v58", "v59", "v60", "v61"
vMU, vSTAMP = "v62", "v63"
BREG = 64
AREG = 112
TMP = 240

def v(i): return "v%d" % i
def vr(i, n): return "v[%d:%d]" % (i, i + n - 1)

A = Asm()
I = A.I
stamp_names = []

def stamp(name):
    if not OPT["stamp"]:
        return
    idx = len(stamp_names) + 2
    if name in stamp_names:
        idx = stamp_names.index(name) + 2
    else:
        stamp_names.append(name)
    I("s_memtime", sST)
    A.wait_lg_all(force=True)
    I("v_writelane_b32", vSTAMP, "s98", idx)

def barrier():
    I("s_barrier")

def sc(local=False):
    return "sc1"

def poll(vOff, soff="0", sleep=1):
    lp, dn = A.newlabel("Lpoll"), A.newlabel("Lpd")
    t = v(TMP + 15)
    I("s_mov_b32", sCNT, hx(40000))
    A.label(lp)
    I("buffer_load_dword", t, vOff, SRD_WS, soff, mods="offen sc1")
    A.wait_vm_all(force=True)
    I("v_cmp_ne_u32", "vcc", sTAG, t)
    I("s_cbranch_vccz", dn)
    if sleep:
        I("s_sleep", sleep)
    I("s_sub_u32", sCNT, sCNT, 1)
    I("s_cmp_lg_u32", sCNT, 0)
    I("s_cbranch_scc1", lp)
    A.label(dn)

def flag_store(soff):
    I("s_mov_b64", "exec", 1)
    I("buffer_store_dword", vTAG, "off", SRD_WS, soff, mods="sc1")
    I("s_mov_b64", "exec", -1)

def dma_kstep(srd, vofs, pitch, ldsbase, sbase, mods=""):
    if isinstance(ldsbase, int):
        I("s_and_b32", sH_, sM7, hx(ldsbase))
    else:
        I("s_and_b32", sH_, sM7, ldsbase)
    I("s_add_u32", "m0", sH_, sW4096)
    last = None
    for i, rows in enumerate((0, 4, 16, 20)):
        if i == 0:
            so = sbase
        else:
            I("s_add_u32", sG, sbase, hx(rows * pitch - 1024 * i))
            so = sG
        m = "offen" + (" offset:%d" % (1024 * i) if i else "") + (" " + mods if mods else "") + " lds"
        last = I("buffer_load_dwordx4", vofs, srd, so, mods=m)
    return last

def dma_half(srd, pitch, half, colbyte_sreg, colconst, ldsbase):
    vofs = {896: vD896, 2688: vD2688, 3584: vD3584}[pitch]
    srow = {896: sROW896, 2688: sROW2688, 3584: sROW3584}[pitch]
    I("s_add_u32", sF, srow, colbyte_sreg)
    c = 224 * half * pitch + colconst
    if c:
        I("s_add_u32", sF, sF, hx(c))
    return dma_kstep(srd, vofs, pitch, ldsbase, sF)

def set_tr(base_lo, base_hi=None):
    if base_hi is None:
        I("s_mov_b32", sA, hx(base_lo))
    else:
        I("s_cmp_eq_u32", sKH, 0)
        I("s_cselect_b32", sA, hx(base_lo), hx(base_hi)) if base_lo <= 64 or base_hi <= 64 else (
            I("s_mov_b32", sA, hx(base_hi)), I("s_cmov_b32", sA, hx(base_lo)))
    for b in range(2):
        for a in range(2):
            I("v_add_u32", v(TRC[b][a]), sA, v(TRL[b][a]))

def a_read(dst, off, trc=None):
    trc = trc or TRC
    last = None
    for b in range(2):
        for a in range(2):
            d = dst + (2 * b + a) * 4
            I("ds_read_b64_tr_b16", vr(d, 2), v(trc[b][a]), mods="offset:%d" % off)
            last = I("ds_read_b64_tr_b16", vr(d + 2, 2), v(trc[b][a]), mods="offset:%d" % (off + 1024))
    return last

def mfma4(areg, breg, first, acc0=ACCO, acc1=ACCS):
    for b in range(2):
        for a in range(2):
            acc = (acc0, acc1)[b] + 4 * a
            I("v_mfma_f32_16x16x32_bf16", vr(acc, 4), vr(areg + (2 * b + a) * 4, 4), vr(breg, 4),
              "0" if first else vr(acc, 4))

def stats_acc(breg, s_sum, s_sq):
    for i in range(4):
        I("v_dot2c_f32_bf16", v(s_sum), v(breg + i), v(ONES))
        I("v_dot2c_f32_bf16", v(s_sq), v(breg + i), v(breg + i))

def stats_reduce(a, b):
    I("v_permlane32_swap_b32", v(a), v(b))
    I("v_add_f32", v(a), v(a), v(b))
    I("v_mov_b32", v(b), v(a))
    I("v_permlane16_swap_b32", v(a), v(b))
    I("v_add_f32", v(a), v(a), v(b))

def mean_var(s_sum, s_sq, mu, var):
    I("v_mul_f32", v(mu), fl(1.0 / 448), v(s_sum))
    I("v_mul_f32", v(var), fl(1.0 / 448), v(s_sq))
    I("v_fma_f32", v(var), "-" + v(mu), v(mu), v(var))
    I("v_max_f32", v(var), 0, v(var))

def rstd(dst, var):
    I("v_add_f32", v(dst), fl(1e-5), v(var))
    I("v_rsq_f32", v(dst), v(dst))

def unswap_packed(p):
    I("s_mov_b64", "exec", sODD)
    I("v_swap_b32", v(p), v(p + 2))
    I("v_swap_b32", v(p + 1), v(p + 3))
    I("s_mov_b64", "exec", -1)

def pack8(dst, src):
    for i in range(4):
        I("v_cvt_pk_bf16_f32", v(dst + i), v(src + 2 * i), v(src + 2 * i + 1))

def unpack8(dst, src):
    for i in range(4):
        I("v_lshlrev_b32", v(dst + 2 * i), 16, v(src + i))
        I("v_and_b32", v(dst + 2 * i + 1), hx(0xffff0000), v(src + i))

def pair_send():
    I("ds_write_b128", vPW, vr(ACCS, 4))
    I("ds_write_b128", vPW, vr(ACCS + 4, 4), mods="offset:1024")

def pair_recv_issue():
    I("ds_read_b128", vr(ACCS, 4), vPR)
    return I("ds_read_b128", vr(ACCS + 4, 4), vPR, mods="offset:1024")

def pair_add():
    for i in range(8):
        I("v_add_f32", v(ACCO + i), v(ACCO + i), v(ACCS + i))

GC0 = -2.0 * 0.7978845608028654 * 1.4426950408889634
GC1 = GC0 * 0.044715
def gelu(x, n, t):
    for i in range(n):
        I("v_mul_f32", v(t + i), v(x + i), v(x + i))
    for i in range(n):
        I("v_fmaak_f32", v(t + i), sE, v(t + i), fl(GC0)) if False else I("v_fma_f32", v(t + i), v(t + i), sE, v(TMP + 14))
    for i in range(n):
        I("v_mul_f32", v(t + i), v(t + i), v(x + i))
    for i in range(n):
        I("v_exp_f32", v(t + i), v(t + i))
    for i in range(n):
        I("v_add_f32", v(t + i), 1.0, v(t + i))
    for i in range(n):
        I("v_rcp_f32", v(t + i), v(t + i))
    for i in range(n):
        I("v_mul_f32", v(x + i), v(x + i), v(t + i))

def gelu_consts():
    I("s_mov_b32", sE, fl(GC1))
    I("v_mov_b32", v(TMP + 14), fl(GC0))

def frag_store(preg, soff, off=0):
    return I("buffer_store_dwordx4", vr(preg, 4), vL16, SRD_WS, soff, mods="offen" + (" offset:%d" % off if off else "") + " sc1")

def tile_flag_poll_off(dst, nflags, e, sTile):
    I("v_min_u32", v(dst), nflags - 1, vLANE)
    I("v_lshlrev_b32", v(dst), 2, v(dst))
    I("s_lshl_b32", sA, sTile, 7)
    I("s_add_u32", sA, sA, hx(OFF_FLAG + e * 16384))
    I("v_add_u32", v(dst), sA, v(dst))

def blk_off(dst, base, tile_bytes):
    I("s_mul_i32", dst, sT, hx(tile_bytes))
    I("s_lshl_b32", sA, sJ, 1)
    I("s_add_u32", sA, sA, sKH)
    I("s_lshl_b32", sA, sA, 10)
    I("s_add_u32", dst, dst, sA)
    I("s_add_u32", dst, dst, hx(base))

def blk_flag_off(dst, e):
    I("s_lshl_b32", dst, sT, 7)
    I("s_lshl_b32", sA, sJ, 1)
    I("s_add_u32", sA, sA, sKH)
    I("s_lshl_b32", sA, sA, 2)
    I("s_add_u32", dst, dst, sA)
    I("s_add_u32", dst, dst, hx(OFF_FLAG + e * 16384))

def prologue():
    I("s_cmp_ge_u32", "s2", hx(256))
    I("s_cbranch_scc1", "L_end")
    I("s_load_dwordx16", "s[36:51]", "s[0:1]", 0)
    I("s_load_dwordx4", "s[52:55]", "s[0:1]", 64)
    I("s_load_dwordx2", "s[56:57]", "s[0:1]", 80)
    if OPT["stamp"]:
        I("v_mov_b32", vSTAMP, 0)
    t0, t1, t2, t3 = TMP, TMP + 1, TMP + 2, TMP + 3
    I("v_lshrrev_b32", v(t0), 6, "v0")
    I("v_and_b32", vLANE, 63, "v0")
    I("v_readfirstlane_b32", sW, v(t0))
    I("s_and_b32", sX, "s2", 7)
    I("s_lshr_b32", sLI, "s2", 3)
    I("s_mul_i32", sTG, sLI, 37)
    I("s_lshr_b32", sTG, sTG, 8)
    I("s_mul_i32", sA, sTG, 7)
    I("s_sub_u32", sJ, sLI, sA)
    I("s_and_b32", sTT, sW, 3)
    I("s_lshr_b32", sKH, sW, 2)
    I("s_lshl_b32", sT, sX, 4)
    I("s_lshl_b32", sA, sTG, 2)
    I("s_add_u32", sT, sT, sA)
    I("s_add_u32", sT, sT, sTT)
    I("s_cmp_eq_u32", sW, 7)
    I("s_cselect_b32", sM7, 0, -1)
    I("s_lshl_b32", sW4096, sW, 12)
    I("s_mul_i32", sROW896, sW, hx(32 * 896))
    I("s_mul_i32", sROW2688, sW, hx(32 * 2688))
    I("s_mul_i32", sROW3584, sW, hx(32 * 3584))
    I("s_cmp_eq_u32", sW, 7)
    I("s_cmov_b32", sW4096, hx(LDS_SIZE))
    I("s_cmov_b32", sROW896, hx(OOB))
    I("s_cmov_b32", sROW2688, hx(OOB))
    I("s_cmov_b32", sROW3584, hx(OOB))
    I("s_mov_b32", "s82", hx(0xffff0000))
    I("s_mov_b32", "s83", hx(0xffff0000))
    I("v_and_b32", vTOK, 15, vLANE)
    I("v_lshrrev_b32", vQ4, 4, vLANE)
    I("v_lshlrev_b32", vL16, 4, vLANE)
    I("v_bfe_u32", v(t0), vLANE, 3, 2)
    I("v_lshrrev_b32", v(t1), 5, vLANE)
    I("v_lshl_add_u32", v(t2), v(t1), 3, v(t0))
    I("v_lshrrev_b32", v(t0), 1, v(t0))
    I("v_lshl_or_b32", v(t0), v(t1), 2, v(t0))
    I("v_and_b32", v(t1), 7, vLANE)
    I("v_xor_b32", v(t0), v(t0), v(t1))
    I("v_lshlrev_b32", v(t0), 4, v(t0))
    for reg, pitch in ((vD896, 896), (vD2688, 2688), (vD3584, 3584)):
        I("v_mul_u32_u24", reg, hx(pitch), v(t2))
        I("v_add_u32", reg, reg, v(t0))
    tr_lane(TRL, 0)
    for i in range(4):
        I("v_mov_b32", v(ONES + i), hx(0x3f803f80))
    I("s_lshl_b32", sA, sW, 11)
    I("s_add_u32", sA, sA, hx(L_PART))
    I("v_add_u32", vPW, sA, vL16)
    I("v_xor_b32", vPR, hx(8192), vPW) if (L_PART % 16384 == 0) else None
    if L_PART % 16384:
        I("s_xor_b32", sA, sW, 4)
        I("s_lshl_b32", sA, sA, 11)
        I("s_add_u32", sA, sA, hx(L_PART))
        I("v_add_u32", vPR, sA, vL16)
    I("s_lshl_b32", sA, sTT, 9)
    I("s_add_u32", sA, sA, hx(L_STAT))
    I("v_lshl_add_u32", vSR, vTOK, 2, sA)
    I("s_lshl_b32", sB, sKH, 8)
    I("s_add_u32", sA, sA, sB)
    I("v_lshl_add_u32", vSW, vLANE, 2, sA)
    A.wait_lg_all(force=True)
    sizes = {4: (36, 1835008), 8: (38, 448 * 1344 * 2), 12: (40, 448 * 448 * 2), 16: (44, 448 * 448 * 2),
             20: (46, 448 * 448 * 2), 24: (48, 448 * 1792 * 2), 28: (50, 448 * 1792 * 2), 32: (52, 1835008),
             60: (56, WS_SIZE), 64: (54, 256)}
    for d, (src, n) in sizes.items():
        I("s_mov_b32", "s%d" % d, "s%d" % src)
        I("s_and_b32", "s%d" % (d + 1), "s%d" % (src + 1), hx(0xffff))
        I("s_mov_b32", "s%d" % (d + 2), hx(n))
        I("s_mov_b32", "s%d" % (d + 3), hx(0x20000))
    I("s_add_u32", "s58", "s56", hx(OFF_EPOCH))
    I("s_addc_u32", "s59", "s57", 0)
    I("s_load_dword", sTAG, "s[58:59]", 0)
    if OPT["stamp"]:
        I("s_memrealtime", sST)
        A.wait_lg_all(force=True)
        I("v_writelane_b32", vSTAMP, "s98", 0)
        I("s_getreg_b32", "s98", "hwreg(HW_REG_XCC_ID)")
        I("v_writelane_b32", vSTAMP, "s98", 1)
        stamp("start")

def tr_lane(dst, qadd):
    t0, t1, t2, t3 = TMP, TMP + 1, TMP + 2, TMP + 3
    if qadd:
        I("v_add_u32", v(t3), qadd, vQ4)
        q = v(t3)
    else:
        q = vQ4
    I("v_bfe_u32", v(t0), vLANE, 2, 2)
    I("v_and_b32", v(t1), 1, q)
    I("v_lshl_add_u32", v(t2), v(t1), 2, v(t0))
    I("v_lshrrev_b32", v(t3), 1, q)
    I("v_lshl_add_u32", v(t2), v(t3), 4, v(t2))
    I("v_lshrrev_b32", v(t0), 1, v(t0))
    I("v_lshl_or_b32", v(t0), v(t1), 2, v(t0))
    I("v_and_b32", v(t1), 3, vLANE)
    I("v_xor_b32", v(t0), v(t0), v(t1))
    I("v_lshlrev_b32", v(t0), 4, v(t0))
    I("v_lshl_add_u32", v(t0), v(t2), 7, v(t0))
    I("v_and_b32", v(t1), 1, v(t1))
    I("v_lshl_or_b32", v(t0), v(t1), 3, v(t0))
    I("s_lshl_b32", sA, sKH, 6)
    I("v_xor_b32", v(dst[0][0]), sA, v(t0))
    I("v_xor_b32", v(dst[0][1]), 8, v(dst[0][0]))
    I("v_xor_b32", v(dst[1][0]), 64, v(dst[0][0]))
    I("v_xor_b32", v(dst[1][1]), 64, v(dst[0][1]))

def finish_tag():
    A.wait_lg_all(force=True)
    I("s_mul_i32", sTAG, sTAG, hx(1664525))
    I("s_add_u32", sTAG, sTAG, hx(1013904223))
    I("v_mov_b32", vTAG, sTAG)

def count_in():
    l = A.newlabel("Lci")
    I("s_cmp_lg_u32", sW, 0)
    I("s_cbranch_scc1", l)
    I("s_mov_b64", "exec", 1)
    I("v_mov_b32", v(TMP + 13), 1)
    I("buffer_atomic_add", v(TMP + 13), "off", SRD_DBG, 0, mods="sc1")
    A.vm -= 1
    I("s_mov_b64", "exec", -1)
    A.label(l)

def phase_a():
    A.cmt("---- phase A: LN1 + QKV")
    t0 = TMP
    I("s_lshl_b32", sA, sT, 4)
    I("v_add_u32", v(t0), sA, vTOK)
    I("v_mul_u32_u24", v(t0), hx(896), v(t0))
    I("v_lshl_add_u32", v(t0), vQ4, 4, v(t0))
    I("s_mul_i32", sB, sKH, hx(448))
    xl = []
    for s in range(7):
        xl.append(I("buffer_load_dwordx4", vr(BREG + 4 * s, 4), v(t0), SRD_X, sB, mods="offen offset:%d" % (64 * s)))
    I("s_lshl_b32", sB, sJ, 7)
    I("s_lshl_b32", sC, sKH, 6)
    I("s_add_u32", sC, sC, sB)
    xr = I("buffer_load_dwordx4", vr(XRES, 4), v(t0), SRD_X, sC, mods="offen")
    dq0 = dma_half(SRD_WQKV, 2688, 0, sB, 0, slot(0))
    dq1 = dma_half(SRD_WQKV, 2688, 1, sB, 0, slot(1))
    dk0 = dma_half(SRD_WQKV, 2688, 0, sB, 896, slot(2))
    dk1 = dma_half(SRD_WQKV, 2688, 1, sB, 896, slot(3))
    dv0 = dma_half(SRD_WQKV, 2688, 0, sB, 1792, slot(4))
    finish_tag()
    s_sum, s_sq = TMP + 1, TMP + 2
    I("v_mov_b32", v(s_sum), 0)
    I("v_mov_b32", v(s_sq), 0)
    for s in range(7):
        A.wait(vm=xl[s])
        stats_acc(BREG + 4 * s, s_sum, s_sq)
    stamp("x_landed")
    stats_reduce(s_sum, s_sq)
    I("ds_write_b32", vSW, v(s_sum))
    A.wait_lg_all()
    barrier()
    I("ds_read2_b32", vr(TMP + 4, 2), vSR, mods="offset0:0 offset1:32")
    I("ds_read2_b32", vr(TMP + 6, 2), vSR, mods="offset0:64 offset1:96")
    count_in()
    A.wait_lg_all()
    I("v_add_f32", v(s_sum), v(TMP + 4), v(TMP + 6))
    I("v_add_f32", v(s_sq), v(TMP + 5), v(TMP + 7))
    mu, var, r = TMP + 4, TMP + 5, TMP + 6
    mean_var(s_sum, s_sq, mu, var)
    rstd(r, var)
    I("v_mul_f32", v(mu), v(mu), v(r))
    for i in range(28):
        lo, hi = TMP + 8 + 2 * (i & 1), TMP + 9 + 2 * (i & 1)
        I("v_lshlrev_b32", v(lo), 16, v(BREG + i))
        I("v_and_b32", v(hi), hx(0xffff0000), v(BREG + i))
        I("v_fma_f32", v(lo), v(lo), v(r), "-" + v(mu))
        I("v_fma_f32", v(hi), v(hi), v(r), "-" + v(mu))
        I("v_cvt_pk_bf16_f32", v(BREG + i), v(lo), v(hi))
    A.wait(vm=xr)
    unswap_packed(XRES)
    stamp("ln_done")

    def strip(z, landed, lo, hi, after_barrier=None):
        A.wait(vm=landed)
        barrier()
        stamp("strip%d_landed" % z)
        set_tr(slot(lo), slot(hi))
        rd = [a_read(AREG + 16 * 0, 0), a_read(AREG + 16 * 1, 4096)]
        for s in range(7):
            A.wait(lg=rd[s])
            mfma4(AREG + 16 * (s % 3), BREG + 4 * s, s == 0)
            if s + 2 < 7:
                rd.append(a_read(AREG + 16 * ((s + 2) % 3), 4096 * (s + 2)))
        pair_send()
        A.wait_lg_all()
        barrier()
        pr = pair_recv_issue()
        blk_off(sC, z * TEN, TILE_B)
        blk_flag_off(sD, z)
        A.wait(lg=pr)
        pair_add()
        if z == 0:
            I("s_mov_b32", sE, fl(1.4426950408889634 / 28 ** 0.5))
            for i in range(8):
                I("v_mul_f32", v(ACCO + i), sE, v(ACCO + i))
        pack8(TMP, ACCO)
        unswap_packed(TMP)
        st = frag_store(TMP, sC)
        r = after_barrier() if after_barrier else None
        return st, r

    def issue_v1():
        I("s_lshl_b32", sB, sJ, 7)
        return dma_half(SRD_WQKV, 2688, 1, sB, 1792, slot(0))

    st, dv1 = strip(0, dq1, 0, 1, issue_v1)
    A.wait(vm=st)
    flag_store(sD)
    stamp("q_flag")
    st, _ = strip(1, dk1, 2, 3)
    A.wait(vm=st)
    flag_store(sD)
    stamp("k_flag")
    st, _ = strip(2, dv1, 4, 0)
    I("s_lshl_b32", sB, sJ, 7)
    A.wait(vm=st)
    flag_store(sD)
    stamp("v_flag")

L_KIMG, L_VIMG = slot(1), slot(4)
def phase_b(main):
    A.cmt("---- phase B: attention")
    t0, t1, t2, t3, t4 = TMP, TMP + 1, TMP + 2, TMP + 3, TMP + 4
    SREG = 112
    KF = 64
    QF = 80
    PREG = 184
    VF = 64
    OA = 40
    mLo, mHi, vPK, vPV, vKR, vVR0, vVR1 = 88, 89, 90, 91, 92, 93, 94
    I("s_and_b32", sHEAD, sLI, 15)
    I("s_lshr_b32", sA, sLI, 4)
    I("s_lshl_b32", sA, sA, 3)
    I("s_lshl_b32", sTQ0, sX, 4)
    I("s_add_u32", sTQ0, sTQ0, sA)
    I("s_mul_i32", sC0, sHEAD, 7)
    I("s_lshr_b32", sC0, sC0, 1)
    I("s_add_u32", sT1, sTQ0, sW)
    I("s_lshr_b32", sA, sC0, 2)
    I("s_add_u32", sB, sC0, 3)
    I("s_lshr_b32", sB, sB, 2)
    I("s_sub_u32", sB, sB, sA)
    I("v_and_b32", v(t0), 1, vLANE)
    I("v_and_b32", v(t0), sB, v(t0))
    I("v_add_u32", v(t0), sA, v(t0))
    I("v_lshlrev_b32", v(t0), 2, v(t0))
    I("s_lshl_b32", sA, sT1, 7)
    I("s_add_u32", sA, sA, hx(OFF_FLAG + F_Q * 16384))
    I("v_add_u32", v(t1), sA, v(t0))
    I("v_lshrrev_b32", v(t2), 1, vLANE)
    I("v_min_u32", v(t3), 2, v(t2))
    I("s_mul_i32", sA, sW, 3)
    I("s_add_u32", sA, sA, sTQ0)
    I("s_sub_u32", sC, sA, 16)
    I("v_add_u32", v(t3), sC, v(t3))
    I("v_lshl_add_u32", v(t4), v(t3), 7, v(t0))
    I("v_add_u32", v(vPK), hx(OFF_FLAG + F_K * 16384), v(t4))
    I("v_add_u32", v(vPV), hx(OFF_FLAG + F_V * 16384), v(t4))
    I("v_cmp_gt_i32", "vcc", 0, v(t3))
    I("v_cndmask_b32", v(vPK), v(vPK), v(t1), "vcc")
    I("v_cndmask_b32", v(vPV), v(vPV), v(t1), "vcc")
    I("v_cmp_lt_u32", "vcc", 2, v(t2))
    I("v_cndmask_b32", v(vPK), v(vPK), v(t1), "vcc")
    I("s_and_b32", sA, sHEAD, 1)
    I("s_cmp_eq_u32", sA, 1)
    I("s_cselect_b32", sB, 0, 9)
    I("s_cselect_b32", sD, 9, 3)
    I("v_cmp_ne_u32", "vcc", sB, vQ4)
    I("v_cndmask_b32", v(mLo), 0, -1, "vcc", mods="") if False else None
    I("v_mov_b32", v(t0), -1)
    I("v_cndmask_b32", v(mLo), 0, v(t0), "vcc")
    I("v_cmp_ne_u32", "vcc", sD, vQ4)
    I("v_cndmask_b32", v(mHi), 0, v(t0), "vcc")
    I("s_lshl_b32", sA, sW, 10)
    I("s_add_u32", sB, sA, hx(L_KIMG))
    I("v_add_u32", v(vKR), sB, vL16)
    I("v_and_b32", v(t0), 3, vLANE)
    I("v_lshrrev_b32", v(t1), 2, vLANE)
    I("v_and_b32", v(t2), 2, v(t0))
    I("v_lshlrev_b32", v(t2), 2, v(t2))
    I("v_xor_b32", v(t1), v(t1), v(t2))
    I("v_lshlrev_b32", v(t1), 4, v(t1))
    I("v_lshl_add_u32", v(t1), v(t0), 8, v(t1))
    I("v_and_b32", v(t0), 1, v(t0))
    I("v_lshl_or_b32", v(t1), v(t0), 3, v(t1))
    I("s_add_u32", sB, sA, hx(L_VIMG))
    I("v_add_u32", v(vVR0), sB, v(t1))
    I("v_xor_b32", v(vVR1), 8, v(vVR0))
    vVS = 95
    I("v_and_b32", v(t0), 32, vLANE)
    I("v_lshlrev_b32", v(t0), 2, v(t0))
    I("v_xor_b32", v(vVS), v(t0), vL16)

    def kv_dma(base, img, vsrc):
        last = None
        I("s_mul_i32", sA, sW, hx(3072))
        I("s_add_u32", "m0", sA, hx(img))
        for i in range(3):
            I("s_add_u32", sA, sC, i)
            I("s_mul_i32", sB, sA, hx(TILE_B))
            I("s_lshl_b32", sD, sC0, 8)
            I("s_add_u32", sB, sB, sD)
            I("s_add_u32", sB, sB, hx(base - 1024 * i))
            I("s_cmp_lt_i32", sA, 0)
            I("s_cmov_b32", sB, hx(OOB))
            last = I("buffer_load_dwordx4", vsrc, SRD_WS, sB, mods="offen" + (" offset:%d" % (1024 * i) if i else "") + " sc1 lds")
        return last

    poll(v(vPK))
    stamp("qk_ready")
    kv_dma(OFF_K, L_KIMG, vL16)
    I("s_mul_i32", sB, sT1, hx(TILE_B))
    I("s_lshl_b32", sD, sC0, 8)
    I("s_add_u32", sB, sB, sD)
    I("buffer_load_dwordx4", vr(QF, 4), vL16, SRD_WS, sB, mods="offen sc1")
    poll(v(vPV))
    stamp("v_ready")
    dv = kv_dma(OFF_V, L_VIMG, v(vVS))
    if main:
        I("s_lshl_b32", sB, sJ, 7)
        dma_half(SRD_WO, 896, 0, sB, 0, slot(2))
        dma_half(SRD_WO, 896, 1, sB, 0, slot(3))
        dma_half(SRD_W1, 896, 0, sB, 0, slot(0))
    barrier()
    for i, m in enumerate((mLo, mLo, mHi, mHi)):
        I("v_and_b32", v(QF + i), v(m), v(QF + i))
    rd = [I("ds_read_b128", vr(KF + 4 * i, 4), v(vKR), mods="offset:%d" % (1024 * i)) for i in range(4)]
    for t in range(17):
        A.wait(lg=rd[t])
        I("v_mfma_f32_16x16x32_bf16", vr(SREG + 4 * t, 4), vr(KF + 4 * (t % 4), 4), vr(QF, 4), "0")
        if t + 4 < 17:
            rd.append(I("ds_read_b128", vr(KF + 4 * (t % 4), 4), v(vKR), mods="offset:%d" % (1024 * (t + 4))))
    NEG = TMP + 5
    I("v_mov_b32", v(NEG), hx(0xff800000))
    I("v_lshlrev_b32", v(t0), 2, vQ4)
    for i in range(4):
        I("v_add_u32", v(t1), i, v(t0))
        I("v_cmp_gt_u32", "vcc", v(t1), vTOK)
        I("v_cndmask_b32", v(SREG + i), v(NEG), v(SREG + i), "vcc")
        I("v_cndmask_b32", v(SREG + 64 + i), v(SREG + 64 + i), v(NEG), "vcc")
    lskip = A.newlabel("Lnomask")
    for t in range(16):
        I("s_cmp_ge_u32", sT1, 16 - t)
        I("s_cbranch_scc1", lskip)
        for i in range(4):
            I("v_mov_b32", v(SREG + 4 * t + i), v(NEG))
    A.label(lskip)
    m0_, m1_ = t0, t1
    I("v_max3_f32", v(m0_), v(SREG), v(SREG + 1), v(SREG + 2))
    I("v_max3_f32", v(m1_), v(SREG + 3), v(SREG + 4), v(SREG + 5))
    k = 6
    tog = 0
    while k < 68:
        m = (m0_, m1_)[tog]
        I("v_max3_f32", v(m), v(m), v(SREG + k), v(SREG + k + 1))
        k += 2
        tog ^= 1
    I("v_max_f32", v(m0_), v(m0_), v(m1_))
    I("v_mov_b32", v(m1_), v(m0_))
    I("v_permlane32_swap_b32", v(m0_), v(m1_))
    I("v_max_f32", v(m0_), v(m0_), v(m1_))
    I("v_mov_b32", v(m1_), v(m0_))
    I("v_permlane16_swap_b32", v(m0_), v(m1_))
    I("v_max_f32", v(m0_), v(m0_), v(m1_))
    for g in range(0, 68, 4):
        for i in range(4):
            I("v_sub_f32", v(SREG + g + i), v(SREG + g + i), v(m0_))
        for i in range(4):
            I("v_exp_f32", v(SREG + g + i), v(SREG + g + i))
        if g >= 4:
            p = g - 4
            I("v_cvt_pk_bf16_f32", v(PREG + p // 2), v(SREG + p), v(SREG + p + 1))
            I("v_cvt_pk_bf16_f32", v(PREG + p // 2 + 1), v(SREG + p + 2), v(SREG + p + 3))
    I("v_cvt_pk_bf16_f32", v(PREG + 32), v(SREG + 64), v(SREG + 65))
    I("v_cvt_pk_bf16_f32", v(PREG + 33), v(SREG + 66), v(SREG + 67))
    stamp("softmax_done")
    A.wait(vm=dv)
    barrier()
    stamp("v_landed")

    def vread(p):
        d = VF + 8 * (p % 3)
        last = None
        for a, vr_ in enumerate((vVR0, vVR1)):
            last = I("ds_read_b64_tr_b16", vr(d + 4 * a, 2), v(vr_), mods="offset:%d" % (2048 * p))
            if p < 8:
                last = I("ds_read_b64_tr_b16", vr(d + 4 * a + 2, 2), v(vr_), mods="offset:%d" % (2048 * p + 1024))
        return last
    rd = [vread(0), vread(1)]
    for p in range(9):
        if p + 2 < 9:
            rd.append(vread(p + 2))
        A.wait(lg=rd[p])
        d = VF + 8 * (p % 3)
        if p < 8:
            for a in range(2):
                I("v_mfma_f32_16x16x32_bf16", vr(OA + 4 * a, 4), vr(d + 4 * a, 4), vr(PREG + 4 * p, 4), "0" if p == 0 else vr(OA + 4 * a, 4))
            I("v_mfma_f32_16x16x32_bf16", vr(OA + 8, 4), vr(ONES, 4), vr(PREG + 4 * p, 4), "0" if p == 0 else vr(OA + 8, 4))
        else:
            for a in range(2):
                I("v_mfma_f32_16x16x16_bf16", vr(OA + 4 * a, 4), vr(d + 4 * a, 2), vr(PREG + 32, 2), vr(OA + 4 * a, 4))
            I("v_mfma_f32_16x16x16_bf16", vr(OA + 8, 4), vr(ONES, 2), vr(PREG + 32, 2), vr(OA + 8, 4))
    I("s_lshl_b32", sC, sT1, 14)
    I("s_lshl_b32", sA, sHEAD, 10)
    I("s_add_u32", sC, sC, sA)
    I("s_add_u32", sC, sC, hx(OFF_O))
    I("s_lshl_b32", sD, sT1, 7)
    I("s_lshl_b32", sA, sHEAD, 2)
    I("s_add_u32", sD, sD, sA)
    I("s_add_u32", sD, sD, hx(OFF_FLAG + F_O * 16384))
    I("v_rcp_f32", v(t4), v(OA + 8))
    for i in range(8):
        I("v_mul_f32", v(OA + i), v(OA + i), v(t4))
    pack8(TMP, OA)
    unswap_packed(TMP)
    for i, m in enumerate((mLo, mLo, mHi, mHi)):
        I("v_and_b32", v(TMP + i), v(m), v(TMP + i))
    st = frag_store(TMP, sC)
    A.wait(vm=st)
    flag_store(sD)
    stamp("o_flag")

def b_loads(n, soff, vaddr=None, stride=1024, breg=BREG):
    res = []
    for i in range(n):
        va = vaddr(i) if vaddr else vL16
        o = stride * i
        so = soff
        if o > 4095:
            I("s_add_u32", sG, soff, hx(o & ~4095))
            so = sG
            o &= 4095
        res.append(I("buffer_load_dwordx4", vr(breg + 4 * i, 4), va, SRD_WS, so, mods="offen" + (" offset:%d" % o if o else "") + " sc1"))
    return res

def phase_c1():
    A.cmt("---- phase C1: h = x + o @ wo")
    barrier()
    I("s_lshl_b32", sB, sJ, 7)
    dma_half(SRD_W1, 896, 1, sB, 0, slot(1))
    dma_half(SRD_W2, 896, 0, sB, 0, slot(4))
    TRO = [[96, 97], [98, 99]]
    tr_lane(TRO, 1)
    set_tr(slot(2), slot(3))
    for b in range(2):
        for a in range(2):
            I("v_add_u32", v(TRO[b][a]), sA, v(TRO[b][a]))
    ms = [0, 3, 7, 10, 14, 17, 21, 24]
    for s, m in enumerate(ms):
        if m & 1:
            a_read(AREG + 16 * s, (m - 1) * 1024, TRO)
        else:
            a_read(AREG + 16 * s, m * 1024)
    tile_flag_poll_off(TMP, 16, F_O, sT)
    I("s_lshl_b32", sC, sT, 14)
    I("s_lshl_b32", sA, sKH, 13)
    I("s_add_u32", sC, sC, sA)
    I("s_add_u32", sC, sC, hx(OFF_O))
    poll(v(TMP))
    stamp("c1_ready")
    bl = b_loads(8, sC)
    A.wait_lg_all()
    for s in range(8):
        A.wait(vm=bl[s])
        mfma4(AREG + 16 * s, BREG + 4 * s, s == 0)
    pair_send()
    A.wait_lg_all()
    barrier()
    pr = pair_recv_issue()
    I("s_lshl_b32", sB, sJ, 7)
    dma_half(SRD_W2, 896, 1, sB, 0, slot(2))
    e1_ids()
    I("s_lshl_b32", sB, sJP, 8)
    dma_half(SRD_W3, 3584, 0, sB, 0, slot(3))
    blk_off(sC, OFF_H, TILE_B)
    blk_flag_off(sD, F_H)
    unpack8(HREG, XRES)
    A.wait(lg=pr)
    pair_add()
    for i in range(8):
        I("v_add_f32", v(HREG + i), v(HREG + i), v(ACCO + i))
    pack8(TMP, HREG)
    unpack8(HREG, TMP)
    unswap_packed(TMP)
    st = frag_store(TMP, sC)
    return st

def e1_ids():
    I("s_lshr_b32", sA, sTG, 1)
    I("s_mul_i32", sJP, sA, 14)
    I("s_sub_u32", sJP, sLI, sJP)
    I("s_lshl_b32", sA, sA, 3)
    I("s_lshl_b32", sT1, sX, 4)
    I("s_add_u32", sT1, sT1, sA)
    I("s_add_u32", sT1, sT1, sW)

CSO, CSS = 96, 104
def phase_c2(st_prev):
    A.cmt("---- phase C2: hh = gelu(LN(LN(h)) @ w1)")
    set_tr(slot(0), slot(1))
    rd = [a_read(AREG + 16 * s, 4096 * s) for s in range(7)]
    A.wait(vm=st_prev)
    flag_store(sD)
    stamp("h_flag")
    for s in range(7):
        A.wait(lg=rd[s])
        mfma4(AREG + 16 * s, ONES, s == 0, CSO, CSS)
    I("s_lshl_b32", sA, sW, 7)
    I("s_add_u32", sA, sA, hx(L_CS))
    I("v_lshl_add_u32", vCSW, vQ4, 4, sA)
    I("v_xor_b32", vCSR, hx(512), vCSW)
    assert L_CS % 1024 == 0
    I("ds_write_b128", vCSW, vr(CSS, 4))
    I("ds_write_b128", vCSW, vr(CSS + 4, 4), mods="offset:64")
    tile_flag_poll_off(TMP, 14, F_H, sT)
    I("s_mul_i32", sC, sT, hx(TILE_B))
    I("s_mul_i32", sA, sKH, hx(7168))
    I("s_add_u32", sC, sC, sA)
    I("s_add_u32", sC, sC, hx(OFF_H))
    s_sum, s_sq = TMP + 1, TMP + 2
    I("v_mov_b32", v(s_sum), 0)
    I("v_mov_b32", v(s_sq), 0)
    poll(v(TMP))
    stamp("c2_ready")
    bl = b_loads(7, sC)
    for s in range(7):
        A.wait(vm=bl[s])
        mfma4(AREG + 16 * s, BREG + 4 * s, s == 0)
        stats_acc(BREG + 4 * s, s_sum, s_sq)
    stats_reduce(s_sum, s_sq)
    I("ds_write_b32", vSW, v(s_sum))
    pair_send()
    A.wait_lg_all()
    barrier()
    I("ds_read2_b32", vr(TMP + 4, 2), vSR, mods="offset0:0 offset1:32")
    r1 = I("ds_read2_b32", vr(TMP + 6, 2), vSR, mods="offset0:64 offset1:96")
    I("ds_read_b128", vr(CSS, 4), vCSR)
    I("ds_read_b128", vr(CSS + 4, 4), vCSR, mods="offset:64")
    pr = pair_recv_issue()
    I("s_lshl_b32", sB, sJP, 8)
    dma_half(SRD_W3, 3584, 1, sB, 0, slot(0))
    dma_half(SRD_W3, 3584, 0, sB, 128, slot(1))
    blk_off(sC, OFF_HH, TILE_B)
    blk_flag_off(sD, F_HH)
    gelu_consts()
    A.wait(lg=r1)
    I("v_add_f32", v(s_sum), v(TMP + 4), v(TMP + 6))
    I("v_add_f32", v(s_sq), v(TMP + 5), v(TMP + 7))
    mu, var, rh, ry = TMP + 4, TMP + 5, TMP + 6, TMP + 7
    mean_var(s_sum, s_sq, mu, var)
    rstd(rh, var)
    I("v_mul_f32", v(var), v(var), v(rh))
    I("v_mul_f32", v(var), v(var), v(rh))
    rstd(ry, var)
    I("v_mul_f32", v(ry), v(ry), v(rh))
    A.wait(lg=pr)
    pair_add()
    for i in range(8):
        I("v_add_f32", v(CSO + i), v(CSO + i), v(CSS + i))
    for i in range(8):
        I("v_fma_f32", v(ACCO + i), "-" + v(mu), v(CSO + i), v(ACCO + i))
    for i in range(8):
        I("v_mul_f32", v(ACCO + i), v(ACCO + i), v(ry))
    gelu(ACCO, 8, ACCS)
    pack8(TMP + 8, ACCO)
    unswap_packed(TMP + 8)
    st = frag_store(TMP + 8, sC)
    for i in range(8):
        I("v_sub_f32", v(YREG + i), v(HREG + i), v(mu))
    for i in range(8):
        I("v_mul_f32", v(YREG + i), v(YREG + i), v(rh))
    return st

def phase_d(st_prev):
    A.cmt("---- phase D: x1 = y + shift(hh) @ w2")
    set_tr(slot(4), slot(2))
    for s in range(7):
        a_read(AREG + 16 * s, 4096 * s)
    A.wait(vm=st_prev)
    flag_store(sD)
    stamp("hh_flag")
    aM, aP, aX = 96, 97, 98
    t0, t1, t2 = TMP + 1, TMP + 2, TMP + 3
    I("s_lshl_b32", sA, sT, 4)
    I("s_add_u32", sB, sKH, 1)
    I("s_mov_b32", sE, hx(TILE_B))
    I("v_mov_b32", v(t2), hx(OOB))
    for reg, op in ((aM, "s_sub_u32"), (aP, "s_add_u32")):
        I(op, sC, sA, sB)
        I("v_add_u32", v(t0), sC, vTOK)
        I("v_lshrrev_b32", v(t1), 4, v(t0))
        I("v_mul_lo_u32", v(t1), v(t1), sE)
        I("v_and_b32", v(reg), 15, v(t0))
        I("v_lshl_add_u32", v(reg), v(reg), 4, v(t1))
        I("v_lshl_add_u32", v(reg), vQ4, 8, v(reg))
        I("v_cmp_gt_u32", "vcc", hx(2048), v(t0))
        I("v_cndmask_b32", v(reg), v(t2), v(reg), "vcc")
    I("v_cmp_gt_u32", "vcc", 2, vQ4)
    I("v_cndmask_b32", v(aX), v(aP), v(aM), "vcc")
    I("v_min_u32", v(t0), 2, vQ4)
    I("s_sub_u32", sA, sT, 1)
    I("v_add_u32", v(t0), sA, v(t0))
    I("v_max_i32", v(t0), 0, v(t0))
    I("v_min_i32", v(t0), hx(127), v(t0))
    I("v_min_u32", v(t1), 13, vTOK)
    I("v_lshlrev_b32", v(t1), 2, v(t1))
    I("v_lshl_add_u32", v(TMP), v(t0), 7, v(t1))
    I("v_add_u32", v(TMP), hx(OFF_FLAG + F_HH * 16384), v(TMP))
    I("s_mul_i32", sC, sKH, hx(7168))
    I("s_add_u32", sC, sC, hx(OFF_HH))
    poll(v(TMP))
    stamp("d_ready")
    bl = b_loads(7, sC, vaddr=lambda i: v(aM if i < 3 else aX if i == 3 else aP))
    A.wait_lg_all()
    for s in range(7):
        A.wait(vm=bl[s])
        mfma4(AREG + 16 * s, BREG + 4 * s, s == 0)
    pair_send()
    A.wait_lg_all()
    barrier()
    pr = pair_recv_issue()
    I("s_lshl_b32", sB, sJP, 8)
    dma_half(SRD_W3, 3584, 1, sB, 128, slot(2))
    w4_dma(0, 0, slot(4))
    blk_off(sC, OFF_X1, TILE_B)
    blk_flag_off(sD, F_X1)
    A.wait(lg=pr)
    pair_add()
    for i in range(8):
        I("v_add_f32", v(ACCO + i), v(ACCO + i), v(YREG + i))
    pack8(TMP, ACCO)
    unpack8(ACCO, TMP)
    unswap_packed(TMP)
    st = frag_store(TMP, sC)
    for i in range(8):
        I("v_add_f32", v(HREG + i), v(HREG + i), v(ACCO + i))
    A.wait(vm=st)
    flag_store(sD)
    stamp("x1_flag")

def beta(dst, n_sreg, sigma):
    I("s_and_b32", sH_, n_sreg, 1)
    I("s_lshl_b32", dst, n_sreg, 1)
    I("s_sub_u32", dst, dst, sH_)
    if sigma:
        I("s_add_u32", dst, dst, 2)

def w4_dma(r, kh, ldsbase):
    I("s_add_u32", sA, sW, ((r & 1) * 2 + kh) * 7)
    beta(sF, sA, r >> 1)
    I("s_mul_i32", sF, sF, hx(32 * 896))
    I("s_lshl_b32", sA, sJ, 7)
    I("s_add_u32", sF, sF, sA)
    I("s_cmp_eq_u32", sW, 7)
    I("s_cmov_b32", sF, hx(OOB))
    return dma_kstep(SRD_W4, vD896, 896, ldsbase, sF)

W3SLOT = [[3, 0], [1, 2]]
def phase_e1():
    A.cmt("---- phase E1: g = gelu(LN(x1) @ w3)")
    ZB = 64
    AR = 128
    CS = 224
    barrier()
    t0, t1 = TMP, TMP + 1
    I("s_lshr_b32", sA, sW, 1)
    I("s_xor_b32", sA, sA, sKH)
    I("s_and_b32", sA, sA, 1)
    I("s_lshl_b32", sA, sA, 6)
    I("s_and_b32", sB, sW, 1)
    I("s_lshl_b32", sB, sB, 3)
    I("s_or_b32", sA, sA, sB)
    I("v_xor_b32", v(t0), sA, v(TRL[0][0]))
    I("s_cmp_eq_u32", sKH, 0)
    I("s_mov_b32", sA, hx(slot(W3SLOT[1][0])))
    I("s_cmov_b32", sA, hx(slot(W3SLOT[0][0])))
    I("s_mov_b32", sB, hx(slot(W3SLOT[1][1])))
    I("s_cmov_b32", sB, hx(slot(W3SLOT[0][1])))
    I("v_add_u32", v(t1), sB, v(t0))
    I("v_add_u32", v(t0), sA, v(t0))
    rd = []
    for s in range(14):
        ad = v(t0 if s < 7 else t1)
        I("ds_read_b64_tr_b16", vr(AR + 4 * s, 2), ad, mods="offset:%d" % (4096 * (s % 7)))
        rd.append(I("ds_read_b64_tr_b16", vr(AR + 4 * s + 2, 2), ad, mods="offset:%d" % (4096 * (s % 7) + 1024)))
    for s in range(14):
        A.wait(lg=rd[s])
        I("v_mfma_f32_16x16x32_bf16", vr(ACCO, 4), vr(AR + 4 * s, 4), vr(ONES, 4), "0" if s == 0 else vr(ACCO, 4))
    I("s_lshl_b32", sA, sW, 6)
    I("s_add_u32", sA, sA, hx(L_CS))
    I("v_lshl_add_u32", vCSW, vQ4, 4, sA)
    I("ds_write_b128", vCSW, vr(ACCO, 4))
    I("s_lshl_b32", sA, sKH, 7)
    I("s_add_u32", sA, sA, hx(L_CS))
    I("v_lshl_add_u32", vCSR, vQ4, 4, sA)
    I("v_xor_b32", vCSW, hx(128), vCSR)
    tile_flag_poll_off(TMP, 14, F_X1, sT1)
    I("s_mul_i32", sC, sT1, hx(TILE_B))
    I("s_add_u32", sC, sC, hx(OFF_X1))
    s_sum, s_sq = TMP + 1, TMP + 2
    I("v_mov_b32", v(s_sum), 0)
    I("v_mov_b32", v(s_sq), 0)
    poll(v(TMP))
    stamp("e1_ready")
    bl = b_loads(14, sC, breg=ZB)
    mu, rr = 62, 121
    TR2 = [[122, 123], [124, 125]]
    for sg in range(2):
        set_tr(slot(W3SLOT[sg][0]))
        I("s_mov_b32", sA, hx(slot(W3SLOT[sg][1])))
        for b in range(2):
            for a in range(2):
                I("v_add_u32", v(TR2[b][a]), sA, v(TRL[b][a]))
        def ard(s):
            return a_read(AR + 16 * (s % 4), 4096 * (s % 7), TRC if s < 7 else TR2)
        rd = [ard(0), ard(1)]
        for s in range(14):
            if s + 2 < 14:
                rd.append(ard(s + 2))
            A.wait(vm=bl[s], lg=rd[s])
            mfma4(AR + 16 * (s % 4), ZB + 4 * s, s == 0)
            if sg == 0:
                stats_acc(ZB + 4 * s, s_sum, s_sq)
        if sg == 0:
            stats_reduce(s_sum, s_sq)
            I("v_mov_b32", v(s_sq), v(s_sum))
            I("v_permlane32_swap_b32", v(s_sum), v(s_sq))
            mean_var(s_sum, s_sq, mu, TMP + 3)
            rstd(rr, TMP + 3)
        A.wait_lg_all()
        barrier()
        stamp("e1_pass%d" % sg)
        for b, ad in enumerate((vCSR, vCSW)):
            for a in range(2):
                I("ds_read_b128", vr(CS + 8 * b + 4 * a, 4), ad, mods="offset:%d" % (256 * sg + 64 * a))
        if sg == 0:
            w4_dma(0, 1, slot(W3SLOT[0][0]))
            w4_dma(1, 0, slot(W3SLOT[0][1]))
        else:
            w4_dma(1, 1, slot(W3SLOT[1][0]))
            w4_dma(2, 0, slot(W3SLOT[1][1]))
        gelu_consts()
        I("s_mul_i32", sC, sT1, hx(57344))
        I("s_lshl_b32", sA, sJP, 12)
        I("s_add_u32", sC, sC, sA)
        I("s_add_u32", sC, sC, hx(OFF_G + 2048 * sg))
        I("s_lshl_b32", sA, sKH, 10)
        I("s_add_u32", sB, sC, sA)
        I("s_xor_b32", sA, sA, hx(1024))
        I("s_add_u32", sC, sC, sA)
        I("s_lshl_b32", sD, sT1, 7)
        I("s_lshl_b32", sA, sJP, 3)
        I("s_add_u32", sD, sD, sA)
        I("s_add_u32", sD, sD, hx(OFF_FLAG + F_G * 16384 + 4 * sg))
        A.wait_lg_all()
        for i in range(16):
            I("v_fma_f32", v(ACCO + i), "-" + v(mu), v(CS + i), v(ACCO + i))
        for i in range(16):
            I("v_mul_f32", v(ACCO + i), v(ACCO + i), v(rr))
        gelu(ACCO, 16, CS)
        pack8(TMP + 4, ACCO)
        pack8(TMP + 8, ACCS)
        unswap_packed(TMP + 4)
        unswap_packed(TMP + 8)
        frag_store(TMP + 4, sB)
        st = frag_store(TMP + 8, sC)
        A.wait(vm=st)
        flag_store(sD)
        stamp("g_flag%d" % sg)

def phase_e2():
    A.cmt("---- phase E2: out = res + g @ w4")
    GB = 64
    AR = 176
    a_, b_, c_, d_, e_ = W3SLOT[0][0], W3SLOT[0][1], W3SLOT[1][0], W3SLOT[1][1], 4
    RS = [(e_, a_), (b_, c_), (d_, e_), (a_, b_)]
    I("s_mul_i32", sE, sT, hx(57344))
    I("s_add_u32", sE, sE, hx(OFF_G))
    bl = {}
    def g_poll(sg):
        I("v_min_u32", v(TMP), 13, vLANE)
        I("v_lshlrev_b32", v(TMP), 3, v(TMP))
        I("s_lshl_b32", sA, sT, 7)
        I("s_add_u32", sA, sA, hx(OFF_FLAG + F_G * 16384 + 4 * sg))
        I("v_add_u32", v(TMP), sA, v(TMP))
        poll(v(TMP))
    def g_loads(r):
        I("s_mul_i32", sC, sKH, 7)
        for i in range(7):
            I("s_add_u32", sA, sC, (r & 1) * 14 + i)
            beta(sB, sA, r >> 1)
            I("s_lshl_b32", sB, sB, 10)
            I("s_add_u32", sB, sB, sE)
            bl[(r, i)] = I("buffer_load_dwordx4", vr(GB + 28 * r + 4 * i, 4), vL16, SRD_WS, sB, mods="offen sc1")
    g_poll(0)
    stamp("e2_ready0")
    g_loads(0)
    g_loads(1)
    pend = None
    for r in range(4):
        if r == 2:
            g_poll(1)
            stamp("e2_ready1")
            g_loads(2)
            g_loads(3)
        if pend is not None:
            A.wait(vm=pend)
        A.wait_lg_all()
        barrier()
        stamp("e2_round%d" % r)
        if r == 1:
            w4_dma(2, 1, slot(e_))
            pend = w4_dma(3, 0, slot(a_))
        elif r == 2:
            pend = w4_dma(3, 1, slot(b_))
        set_tr(slot(RS[r][0]), slot(RS[r][1]))
        rd = [a_read(AR + 16 * 0, 0), a_read(AR + 16 * 1, 4096)]
        for s in range(7):
            if s + 2 < 7:
                rd.append(a_read(AR + 16 * ((s + 2) % 4), 4096 * (s + 2)))
            A.wait(vm=bl[(r, s)], lg=rd[s])
            mfma4(AR + 16 * (s % 4), GB + 28 * r + 4 * s, r == 0 and s == 0)
    pair_send()
    A.wait_lg_all()
    barrier()
    pr = pair_recv_issue()
    t0 = TMP + 8
    I("s_lshl_b32", sA, sT, 4)
    I("v_add_u32", v(t0), sA, vTOK)
    I("v_mul_u32_u24", v(t0), hx(896), v(t0))
    I("v_lshl_add_u32", v(t0), vQ4, 4, v(t0))
    I("s_lshl_b32", sB, sJ, 7)
    I("s_lshl_b32", sC, sKH, 6)
    I("s_add_u32", sC, sC, sB)
    A.wait(lg=pr)
    pair_add()
    for i in range(8):
        I("v_add_f32", v(ACCO + i), v(ACCO + i), v(HREG + i))
    pack8(TMP, ACCO)
    unswap_packed(TMP)
    I("buffer_store_dwordx4", vr(TMP, 4), v(t0), SRD_OUT, sC, mods="offen")
    stamp("end")

def dump_stamps():
    if not OPT["stamp"]:
        return
    I("s_lshl_b32", sA, "s2", 3)
    I("s_add_u32", sA, sA, sW)
    I("s_lshl_b32", sA, sA, 8)
    I("s_add_u32", sA, sA, hx(OFF_STAMP))
    I("v_lshlrev_b32", v(TMP), 2, vLANE)
    I("buffer_store_dword", vSTAMP, v(TMP), SRD_WS, sA, mods="offen")

def epoch_update():
    l = A.newlabel("Lep")
    I("s_cmp_lg_u32", "s2", hx(255))
    I("s_cbranch_scc1", l)
    I("s_cmp_lg_u32", sW, 0)
    I("s_cbranch_scc1", l)
    lp, dn = A.newlabel("Lpoll"), A.newlabel("Lpd")
    I("s_mov_b32", sCNT, hx(40000))
    I("s_mov_b32", sA, hx(256))
    A.label(lp)
    I("buffer_load_dword", v(TMP), "off", SRD_DBG, 0, mods="sc1")
    A.wait_vm_all(force=True)
    I("v_cmp_ne_u32", "vcc", sA, v(TMP))
    I("s_cbranch_vccz", dn)
    I("s_sleep", 2)
    I("s_sub_u32", sCNT, sCNT, 1)
    I("s_cmp_lg_u32", sCNT, 0)
    I("s_cbranch_scc1", lp)
    A.label(dn)
    I("s_mov_b32", sA, hx(OFF_EPOCH))
    flag_store(sA)
    A.label(l)

prologue()
I("s_cmp_ge_u32", sLI, 28)
I("s_cbranch_scc1", "L_spare")
phase_a()
phase_b(True)
st = phase_c1()
st = phase_c2(st)
phase_d(st)
phase_e1()
phase_e2()
dump_stamps()
I("s_endpgm")
A.label("L_spare")
A.vm = A.vm_done = A.lg = A.lg_done = 0
finish_tag()
barrier()
count_in()
phase_b(False)
epoch_update()
dump_stamps()
A.label("L_end")
I("s_endpgm")

body = A.finalize()
hdr = open("cdna_kernels/%s.s.ref" % NAME).read().split("; Override launch")[0]
out = hdr + "; @launch grid=(256,1,1) block=(512,1,1) lds=%d\n" % LDS_SIZE
out += """.amdgcn_target "amdgcn-amd-amdhsa--gfx950"
.text
.globl %s_kernel
.p2align 8
.type %s_kernel,@function
%s_kernel:
""" % (NAME, NAME, NAME)
out += body
out += """.section .rodata,"a"
.p2align 6
.amdhsa_kernel %s_kernel
  .amdhsa_next_free_vgpr 256
  .amdhsa_next_free_sgpr 102
  .amdhsa_accum_offset 256
  .amdhsa_group_segment_fixed_size 0
  .amdhsa_kernarg_size 88
  .amdhsa_user_sgpr_count 2
  .amdhsa_user_sgpr_kernarg_segment_ptr 1
  .amdhsa_system_sgpr_workgroup_id_x 1
.end_amdhsa_kernel
""" % NAME
open(sys.argv[1], "w").write(out)
import json
json.dump(dict(stamps=stamp_names, OFF=dict(Q=OFF_Q, K=OFF_K, V=OFF_V, O=OFF_O, H=OFF_H, HH=OFF_HH, X1=OFF_X1, G=OFF_G,
               FLAG=OFF_FLAG, STAMP=OFF_STAMP, WS=WS_SIZE)), open(sys.argv[1] + ".json", "w"))
```

```python
import sys, struct, json
from asmlib import Asm

NAME = "sequential_preLN__sliding_block__mixer_s_mlp__prompt"
OPT = dict(stamp=0, alias=1, local=1, warm=1, clean=1, npre=5, fk=11, mall=1, ta=1, tb=1)
for a in sys.argv[2:]:
    k, v_ = a.split("=")
    OPT[k] = int(v_)

def f2u(x): return struct.unpack("<I", struct.pack("<f", x))[0]
def hx(x): return "0x%x" % (x & 0xffffffff)
def fl(x): return hx(f2u(x))

TB = 14336
PSH = 21 if OPT["alias"] else 22
R_Q, R_K, R_V = 0, 16 * TB, 32 * TB
R_O = 48 * TB
R_G = R_O + 16 * 16384
R_HALO = R_G + 16 * 57344
R_LOC = R_HALO + 2 * 16384
R_FO = R_LOC
R_FHH = R_FO + 2048
R_FQ = R_FHH + 2048
R_SH = R_FQ + 2048
R_SX = R_SH + 32768
LOC_BYTES = 6144 + 65536
R_FQKV = R_LOC + LOC_BYTES
R_FG = R_FQKV + 16384
R_FHALO = R_FG + 32768
R_XCC = R_FHALO + 2048
R_END = R_XCC + 4096
assert R_END <= (1 << 21)
if OPT["alias"]:
    R_H, R_X1, R_HH = R_Q, R_Q, R_O
else:
    R_H = 1 << 21
    R_X1 = R_H + 16 * TB
    R_HH = R_X1 + 16 * TB
OFF_EPOCH = 8 << PSH
OFF_STAMP = OFF_EPOCH + 4096
WS_SIZE = OFF_STAMP + 256 * 8 * 256
OOB = 0x40000000

SLOT = 28672
def slot(i): return SLOT * i
L_XIMG = 3 * SLOT
L_QIMG = 5 * SLOT
L_CS1 = L_QIMG + 8192
L_CS3 = L_CS1 + 256
L_MODE = L_CS3 + 512
LDS_SIZE = 163840

SRD_X, SRD_WQKV, SRD_WO, SRD_W1, SRD_W2, SRD_W3, SRD_W4, SRD_OUT = ["s[%d:%d]" % (4 * i, 4 * i + 3) for i in range(1, 9)]
SRD_WS, SRD_DBG, SRD_CODE = "s[60:63]", "s[64:67]", "s[40:43]"
sX, sLI, sTG, sJ, sW, sLW, sPAGE, sTAG, sTL = ["s%d" % i for i in range(68, 77)]
sMODE, sJ128, sK, sROT, sXCC = "s77", "s78", "s79", "s80", "s81"
sODD = "s[82:83]"
sA, sB, sC, sD, sE, sF, sG, sH_ = ["s%d" % i for i in range(84, 92)]
sHEAD, sTQ0, sC0, sJP, sT1 = "s92", "s93", "s94", "s95", "s96"
sCNT = "s97"
sST = "s[98:99]"
sD2, sC2 = "s100", "s101"

vLANE, vTOK, vQ4, vL16 = "v0", "v1", "v2", "v3"
vD896, vD2688, vD3584 = "v4", "v5", "v6"
TRL = [[7, 8], [9, 10]]
TRC = [[11, 12], [13, 14]]
vTAG = "v15"
ONES = 16
HP = 20
HHP = 28
X1P = 36
vMU, vRH, vSTAMP = 44, 45, "v47"
ACC = 48
BREG = 64
AREG = 128
TMP = 240

def v(i): return "v%d" % i
def vr(i, n): return "v[%d:%d]" % (i, i + n - 1)

A = Asm()
I = A.I
stamp_names = []

def stamp(name):
    if not OPT["stamp"]:
        return
    if name not in stamp_names:
        stamp_names.append(name)
    idx = stamp_names.index(name) + 2
    assert idx < 64
    I("s_memtime", sST)
    A.wait_lg_all(force=True)
    I("v_writelane_b32", vSTAMP, "s98", idx)

def barrier():
    I("s_barrier")

def sync_counts():
    A.vm_done = A.vm
    A.lg_done = A.lg

def poll(vOff, sleep=1):
    lp, dn = A.newlabel("Lpoll"), A.newlabel("Lpd")
    t = v(TMP + 15)
    I("s_mov_b32", sCNT, hx(40000))
    A.label(lp)
    I("buffer_load_dword", t, vOff, SRD_WS, 0, mods="offen sc1")
    A.wait_vm_all(force=True)
    I("v_cmp_ne_u32", "vcc", sTAG, t)
    I("s_cbranch_vccz", dn)
    if sleep:
        I("s_sleep", sleep)
    I("s_sub_u32", sCNT, sCNT, 1)
    I("s_cmp_lg_u32", sCNT, 0)
    I("s_cbranch_scc1", lp)
    A.label(dn)

def moded(fn):
    if not OPT["local"]:
        return fn("sc1")
    l1, l2 = A.newlabel("Lsl"), A.newlabel("Lse")
    I("s_cmp_eq_u32", sMODE, 1)
    I("s_cbranch_scc0", l1)
    vm0 = A.vm
    fn("")
    I("s_branch", l2)
    A.label(l1)
    A.vm = vm0
    r = fn("sc1")
    A.label(l2)
    return r

def flag_store(soff, mods="sc1"):
    I("s_mov_b64", "exec", 1)
    r = I("buffer_store_dword", vTAG, "off", SRD_WS, soff, mods=mods)
    I("s_mov_b64", "exec", -1)
    return r

def frag_store(preg, soff, off=0, mods="sc1"):
    m = "offen" + (" offset:%d" % off if off else "") + (" " + mods if mods else "")
    return I("buffer_store_dwordx4", vr(preg, 4), vL16, SRD_WS, soff, mods=m)

def dma_seq(srd, pitch, lds_base, glob, n, mod=None, start=None, w4=None):
    vofs = {896: vD896, 2688: vD2688, 3584: vD3584}[pitch]
    if start is None:
        I("s_mov_b32", sK, 0)
    elif start != "cont":
        I("s_mov_b32", sK, start)
    I("s_lshl_b32", sF, sLW, 10)
    I("s_add_u32", sF, sF, hx(lds_base) if isinstance(lds_base, int) else lds_base)
    if glob[1]:
        I("s_add_u32", sG, glob[0], hx(glob[1]))
    else:
        I("s_mov_b32", sG, glob[0])
    I("s_mov_b32", sCNT, n)
    lp = A.newlabel("Ldma")
    A.label(lp)
    if w4 is None:
        I("s_lshl_b32", sH_, sK, 12)
        I("s_add_u32", "m0", sH_, sF)
        I("s_mul_i32", sH_, sK, hx(32 * pitch))
    else:
        I("s_mov_b32", "m0", sF)
        I("s_add_u32", sF, sF, hx(4096))
        I("s_and_b32", sH_, sK, hx(0xfffe))
        I("s_add_u32", sH_, sH_, sK)
        I("s_mul_i32", sH_, sH_, hx(32 * pitch))
    I("s_add_u32", sH_, sH_, sG)
    I("buffer_load_dwordx4", vofs, srd, sH_, mods="offen lds")
    I("s_add_u32", sK, sK, 1)
    if mod:
        I("s_cmp_eq_u32", sK, mod)
        I("s_cmov_b32", sK, 0)
    I("s_sub_u32", sCNT, sCNT, 1)
    I("s_cmp_lg_u32", sCNT, 0)
    I("s_cbranch_scc1", lp)
    A.vm += n - 1
    return A.vm

def set_tr(base, dst=None, src=None):
    dst = dst or TRC
    src = src or TRL
    if isinstance(base, int):
        I("s_mov_b32", sA, hx(base))
        base = sA
    for b in range(2):
        for a in range(2):
            I("v_add_u32", v(dst[b][a]), base, v(src[b][a]))

def a_frag(dst, f, off, trc=None):
    trc = trc or TRC
    b, a = divmod(f, 2)
    I("ds_read_b64_tr_b16", vr(dst + 4 * f, 2), v(trc[b][a]), mods="offset:%d" % off)
    return I("ds_read_b64_tr_b16", vr(dst + 4 * f + 2, 2), v(trc[b][a]), mods="offset:%d" % (off + 1024))

def a_read(dst, off, trc=None):
    return [a_frag(dst, f, off, trc) for f in range(4)]

def m16(acc, areg, breg, zero):
    I("v_mfma_f32_16x16x32_bf16", vr(acc, 4), vr(areg, 4), vr(breg, 4), "0" if zero else vr(acc, 4))

def gemm(nk, nbuf, npre, aoff, breg, bl=None, bissue=None, zero=True, acc=ACC, areg=AREG, rd=None, fill=None, hook=None):
    if rd is None:
        rd = [a_read(areg + 16 * s, *aoff(s)) for s in range(npre)]
    for s in range(nk):
        if hook:
            hook(s)
        nxt = s + npre
        new = []
        A.wait(vm=bl[s] if bl is not None else None, lg=rd[s][3])
        for f in range(4):
            m16(acc + 4 * f, areg + 16 * (s % nbuf) + 4 * f, breg(s), zero and s == 0)
            if f == 0 and bissue:
                bissue(s)
            if nxt < nk:
                new.append(a_frag(areg + 16 * (nxt % nbuf), f, *aoff(nxt)))
            if fill:
                fill(s, f)
        if nxt < nk:
            rd.append(new)

def stats_reduce(a, b):
    I("v_permlane32_swap_b32", v(a), v(b))
    I("v_add_f32", v(a), v(a), v(b))
    I("v_mov_b32", v(b), v(a))
    I("v_permlane16_swap_b32", v(a), v(b))
    I("v_add_f32", v(a), v(a), v(b))
    I("v_mov_b32", v(b), v(a))
    I("v_permlane32_swap_b32", v(a), v(b))

def mean_var(s_sum, s_sq, mu, var):
    I("v_mul_f32", v(mu), fl(1.0 / 448), v(s_sum))
    I("v_mul_f32", v(var), fl(1.0 / 448), v(s_sq))
    I("v_fma_f32", v(var), "-" + v(mu), v(mu), v(var))
    I("v_max_f32", v(var), 0, v(var))

def rstd(dst, var):
    I("v_add_f32", v(dst), fl(1e-5), v(var))
    I("v_rsq_f32", v(dst), v(dst))

def unswap(p, nfr):
    I("s_mov_b64", "exec", sODD)
    for k in range(nfr):
        I("v_swap_b32", v(p + 4 * k), v(p + 4 * k + 2))
        I("v_swap_b32", v(p + 4 * k + 1), v(p + 4 * k + 3))
    I("s_mov_b64", "exec", -1)

def pack(dst, src, n):
    for i in range(n // 2):
        I("v_cvt_pk_bf16_f32", v(dst + i), v(src + 2 * i), v(src + 2 * i + 1))

def unpack(dst, src, n):
    for i in range(n // 2):
        I("v_lshlrev_b32", v(dst + 2 * i), 16, v(src + i))
        I("v_and_b32", v(dst + 2 * i + 1), hx(0xffff0000), v(src + i))

BC = "op_sel_hi:[1,0]"
def pk_mul_b(d, a, s):
    I("v_pk_mul_f32", vr(d, 2), vr(a, 2), vr(s, 2), mods="op_sel_hi:[1,0]")

GC0 = -2.0 * 0.7978845608028654 * 1.4426950408889634
GC1 = GC0 * 0.044715
def gelu_prep(r, k0, k1, ri):
    I("v_rcp_f32", v(ri), v(r))
    I("v_mul_f32", v(k1), v(r), v(r))
    I("v_mul_f32", v(k0), fl(GC0), v(r))
    I("v_mul_f32", v(k1), v(k1), v(r))
    I("v_mul_f32", v(k1), fl(GC1), v(k1))

def gelu(x, n, t, k0, k1, ri, dst, packed):
    if packed:
        P = range(0, n, 2)
        for i in P: I("v_pk_mul_f32", vr(t + i, 2), vr(x + i, 2), vr(x + i, 2))
        for i in P: I("v_pk_fma_f32", vr(t + i, 2), vr(t + i, 2), vr(k1, 2), vr(k0, 2), mods="op_sel_hi:[1,0,0]")
        for i in P: I("v_pk_mul_f32", vr(t + i, 2), vr(t + i, 2), vr(x + i, 2))
        for i in range(n): I("v_exp_f32", v(t + i), v(t + i))
        for i in P: I("v_pk_fma_f32", vr(t + i, 2), vr(t + i, 2), vr(ri, 2), vr(ri, 2), mods="op_sel_hi:[1,0,0]")
        for i in range(n): I("v_rcp_f32", v(t + i), v(t + i))
        for i in P: I("v_pk_mul_f32", vr(x + i, 2), vr(x + i, 2), vr(t + i, 2))
    else:
        for i in range(n): I("v_mul_f32", v(t + i), v(x + i), v(x + i))
        for i in range(n): I("v_fma_f32", v(t + i), v(t + i), v(k1), v(k0))
        for i in range(n): I("v_mul_f32", v(t + i), v(t + i), v(x + i))
        for i in range(n): I("v_exp_f32", v(t + i), v(t + i))
        for i in range(n): I("v_fma_f32", v(t + i), v(t + i), v(ri), v(ri))
        for i in range(n): I("v_rcp_f32", v(t + i), v(t + i))
        for i in range(n): I("v_mul_f32", v(x + i), v(x + i), v(t + i))
    pack(dst, x, n)

def stat_granule(p):
    a, b = TMP + 8, TMP + 10
    I("v_mov_b32", v(a), 0)
    I("v_mov_b32", v(b), 0)
    for i in range(8):
        I("v_dot2c_f32_bf16", v(a), v(p + i), v(ONES))
        I("v_dot2c_f32_bf16", v(b), v(p + i), v(p + i))
    I("v_mov_b32", v(TMP + 9), vTAG)
    I("v_mov_b32", v(TMP + 11), vTAG)
    stats_reduce(a, b)

def granule_store(m):
    I("s_mov_b64", "exec", hx(0xffff))
    r = I("buffer_store_dwordx4", vr(TMP + 8, 4), vL16, SRD_WS, sD, mods="offen" + (" " + m if m else ""))
    I("s_mov_b64", "exec", -1)
    return r

def stat_poll(reg, tl):
    lp, dn = A.newlabel("Lpoll"), A.newlabel("Lpd")
    tile_off(sA, reg, 2048, tl)
    I("v_min_u32", v(TMP), hx(767), vL16)
    I("v_cmp_gt_u32", "vcc", 3, vQ4)
    I("v_subrev_u32", v(TMP), hx(256), vL16)
    I("v_cndmask_b32", v(TMP), v(TMP), vL16, "vcc")
    I("v_cndmask_b32", v(TMP + 1), 0, 1.0, "vcc") if False else None
    I("v_mov_b32", v(TMP + 1), 1.0)
    I("v_cndmask_b32", v(TMP + 1), 0, v(TMP + 1), "vcc")
    I("s_mov_b32", sCNT, hx(40000))
    A.label(lp)
    I("buffer_load_dwordx4", vr(TMP + 4, 4), vL16, SRD_WS, sA, mods="offen sc1")
    I("buffer_load_dwordx4", vr(TMP + 8, 4), v(TMP), SRD_WS, sA, mods="offen offset:1024 sc1")
    A.wait_vm_all(force=True)
    I("v_xor_b32", v(TMP + 5), vTAG, v(TMP + 5))
    I("v_xor_b32", v(TMP + 7), vTAG, v(TMP + 7))
    I("v_xor_b32", v(TMP + 9), vTAG, v(TMP + 9))
    I("v_xor_b32", v(TMP + 11), vTAG, v(TMP + 11))
    I("v_or3_b32", v(TMP + 5), v(TMP + 5), v(TMP + 7), v(TMP + 9))
    I("v_or_b32", v(TMP + 5), v(TMP + 5), v(TMP + 11))
    I("v_cmp_ne_u32", "vcc", 0, v(TMP + 5))
    I("s_cbranch_vccz", dn)
    I("s_sub_u32", sCNT, sCNT, 1)
    I("s_cmp_lg_u32", sCNT, 0)
    I("s_cbranch_scc1", lp)
    A.label(dn)

def stat_finish():
    I("v_fma_f32", v(TMP + 4), v(TMP + 8), v(TMP + 1), v(TMP + 4))
    I("v_fma_f32", v(TMP + 6), v(TMP + 10), v(TMP + 1), v(TMP + 6))
    stats_reduce(TMP + 4, TMP + 6)

def tile_off(dst, reg, stride, tl=sTL, extra=None):
    I("s_mul_i32", dst, tl, hx(stride))
    I("s_add_u32", dst, dst, sPAGE)
    if reg:
        I("s_add_u32", dst, dst, hx(reg))
    if extra:
        I("s_add_u32", dst, dst, extra)

def out_offs(reg, stride, freg, fstride, fsh):
    I("s_lshl_b32", sA, sJ, 11)
    tile_off(sC, reg, stride, extra=sA)
    I("s_lshl_b32", sA, sJ, fsh)
    tile_off(sD, freg, fstride, extra=sA)

def flag_poll_off(dst, n, freg, fstride, shift, tl=sTL):
    I("v_min_u32", v(dst), n - 1, vLANE)
    tile_off(sA, freg, fstride, tl)
    I("v_lshl_add_u32", v(dst), v(dst), shift, sA)

class BLoads:
    def __init__(self, n, soff, vaddr=None, breg=BREG):
        self.n, self.vaddr, self.breg, self.ids = n, vaddr, breg, {}
        for q in range(4):
            I("s_add_u32", "s%d" % (50 + q), soff, hx(4096 * q))
    def issue(self, i):
        if i >= self.n:
            return
        va = self.vaddr(i) if self.vaddr else vL16
        o = (1024 * i) & 4095
        self.ids[i] = I("buffer_load_dwordx4", vr(self.breg + 4 * i, 4), va, SRD_WS, "s%d" % (50 + i // 4),
                        mods="offen" + (" offset:%d" % o if o else "") + " sc1")
    def first(self):
        for i in range(OPT["npre"]):
            self.issue(i)
    def more(self, s):
        self.issue(s + OPT["npre"])
    def last_step(self):
        return self.n - OPT["npre"]

def only(grp, fn):
    l = A.newlabel("Lo")
    I("s_cmp_lt_u32" if grp == "B" else "s_cmp_ge_u32", sW, 4)
    I("s_cbranch_scc1", l)
    sv = (A.vm, A.vm_done, A.lg, A.lg_done)
    fn()
    A.vm, A.vm_done, A.lg, A.lg_done = sv
    A.label(l)

def main_only(fn):
    l = A.newlabel("Lm")
    I("s_cmp_ge_u32", sLI, 28)
    I("s_cbranch_scc1", l)
    sv = (A.vm, A.vm_done, A.lg, A.lg_done)
    fn()
    A.vm, A.vm_done, A.lg, A.lg_done = sv
    A.label(l)

vJUNK = v(46)
def touch1(srd, vofs, soff, mods=""):
    return I("buffer_load_dword", vJUNK, vofs, srd, soff, mods="offen" + (" " + mods if mods else ""))

def grp_touch(srd, base, stride_sh, count):
    I("s_lshl_b32", sA, sLW, 5)
    I("s_add_u32", sA, sA, sLI)
    I("s_lshl_b32", sA, sA, 6 + stride_sh)
    I("v_lshlrev_b32", v(TMP + 12), stride_sh, vLANE)
    if base:
        I("s_add_u32", sA, sA, hx(base))
    for i in range(count):
        touch1(srd, v(TMP + 12), sA)
        if i + 1 < count:
            I("s_add_u32", sA, sA, hx(128 * 64 << stride_sh))

def tr_lane(dst, qadd):
    t0, t1, t2, t3 = TMP, TMP + 1, TMP + 2, TMP + 3
    if qadd:
        I("v_add_u32", v(t3), qadd, vQ4)
        q = v(t3)
    else:
        q = vQ4
    I("v_bfe_u32", v(t0), vLANE, 2, 2)
    I("v_and_b32", v(t1), 1, q)
    I("v_lshl_add_u32", v(t2), v(t1), 2, v(t0))
    I("v_lshrrev_b32", v(t3), 1, q)
    I("v_lshl_add_u32", v(t2), v(t3), 4, v(t2))
    I("v_lshrrev_b32", v(t0), 1, v(t0))
    I("v_lshl_or_b32", v(t0), v(t1), 2, v(t0))
    I("v_and_b32", v(t1), 3, vLANE)
    I("v_xor_b32", v(t0), v(t0), v(t1))
    I("v_lshlrev_b32", v(t0), 4, v(t0))
    I("v_lshl_add_u32", v(t0), v(t2), 7, v(t0))
    I("v_and_b32", v(t1), 1, v(t1))
    I("v_lshl_or_b32", v(dst[0][0]), v(t1), 3, v(t0))
    I("v_xor_b32", v(dst[0][1]), 8, v(dst[0][0]))
    I("v_xor_b32", v(dst[1][0]), 64, v(dst[0][0]))
    I("v_xor_b32", v(dst[1][1]), 64, v(dst[0][1]))

def prologue():
    I("s_cmp_ge_u32", "s2", hx(256))
    I("s_cbranch_scc1", "L_end")
    if OPT["stamp"]:
        I("v_mov_b32", vSTAMP, 0)
        I("s_memrealtime", sST)
        A.wait_lg_all(force=True)
        I("v_writelane_b32", vSTAMP, "s98", 0)
        stamp("start")
    I("s_load_dwordx16", "s[36:51]", "s[0:1]", 0)
    I("s_load_dwordx4", "s[52:55]", "s[0:1]", 64)
    I("s_load_dwordx2", "s[56:57]", "s[0:1]", 80)
    t0, t1, t2, t3 = TMP, TMP + 1, TMP + 2, TMP + 3
    I("v_lshrrev_b32", v(t0), 6, "v0")
    I("v_and_b32", vLANE, 63, "v0")
    I("v_readfirstlane_b32", sW, v(t0))
    I("s_and_b32", sX, "s2", 7)
    I("s_lshr_b32", sLI, "s2", 3)
    I("s_mul_i32", sTG, sLI, 37)
    I("s_lshr_b32", sTG, sTG, 8)
    I("s_mul_i32", sA, sTG, 7)
    I("s_sub_u32", sJ, sLI, sA)
    I("s_lshl_b32", sJ128, sJ, 7)
    I("s_and_b32", sLW, sW, 3)
    I("s_lshl_b32", sTL, sTG, 2)
    I("s_add_u32", sTL, sTL, sLW)
    I("s_lshl_b32", sPAGE, sX, PSH)
    I("s_lshr_b32", sROT, sA, 1)
    I("s_mov_b32", "s82", hx(0xffff0000))
    I("s_mov_b32", "s83", hx(0xffff0000))
    I("s_lshr_b32", sA, sTG, 1)
    I("s_mul_i32", sJP, sA, 14)
    I("s_sub_u32", sJP, sLI, sJP)
    I("v_and_b32", vTOK, 15, vLANE)
    I("v_lshrrev_b32", vQ4, 4, vLANE)
    I("v_lshlrev_b32", vL16, 4, vLANE)
    I("v_bfe_u32", v(t0), vLANE, 3, 2)
    I("v_lshrrev_b32", v(t1), 5, vLANE)
    I("v_lshl_add_u32", v(t2), v(t1), 3, v(t0))
    I("s_and_b32", sA, sLW, 1)
    I("s_lshl_b32", sA, sA, 2)
    I("s_and_b32", sB, sLW, 2)
    I("s_lshl_b32", sB, sB, 3)
    I("s_add_u32", sA, sA, sB)
    I("v_add_u32", v(t2), sA, v(t2))
    I("v_lshrrev_b32", v(t0), 1, v(t0))
    I("v_lshl_or_b32", v(t0), v(t1), 2, v(t0))
    I("v_and_b32", v(t1), 7, vLANE)
    I("v_xor_b32", v(t0), v(t0), v(t1))
    I("v_lshlrev_b32", v(t0), 4, v(t0))
    for reg, pitch in ((vD896, 896), (vD2688, 2688), (vD3584, 3584)):
        I("v_mul_u32_u24", reg, hx(pitch), v(t2))
        I("v_add_u32", reg, reg, v(t0))
    A.wait_lg_all(force=True)
    sizes = {4: (36, 1835008), 8: (38, 448 * 1344 * 2), 60: (56, WS_SIZE), 12: (40, 448 * 448 * 2), 16: (44, 448 * 448 * 2),
             20: (46, 448 * 448 * 2), 24: (48, 448 * 1792 * 2), 28: (50, 448 * 1792 * 2), 32: (52, 1835008),
             64: (54, 256)}
    for d, (src, n) in sizes.items():
        I("s_mov_b32", "s%d" % d, "s%d" % src)
        I("s_and_b32", "s%d" % (d + 1), "s%d" % (src + 1), hx(0xffff))
        I("s_mov_b32", "s%d" % (d + 2), hx(n))
        I("s_mov_b32", "s%d" % (d + 3), hx(0x20000))
    I("s_add_u32", "s58", "s56", hx(OFF_EPOCH))
    I("s_addc_u32", "s59", "s57", 0)
    stamp("kernarg")
    I("s_load_dword", sTAG, "s[58:59]", 0)

def late_consts():
    tr_lane(TRL, 0)
    for i in range(4):
        I("v_mov_b32", v(ONES + i), hx(0x3f803f80))

def finish_tag():
    A.wait_lg_all(force=True)
    I("s_mul_i32", sTAG, sTAG, hx(1664525))
    I("s_add_u32", sTAG, sTAG, hx(1013904223))
    I("v_mov_b32", vTAG, sTAG)

def publish_xcc():
    l = A.newlabel("Lpx")
    I("s_getreg_b32", sXCC, "hwreg(HW_REG_XCC_ID)")
    I("s_and_b32", sXCC, sXCC, 15)
    I("s_cmp_lg_u32", sW, 4)
    I("s_cbranch_scc1", l)
    I("s_add_u32", sA, sTAG, sXCC)
    I("v_mov_b32", v(TMP + 13), sA)
    I("s_lshl_b32", sA, sLI, 7)
    I("s_add_u32", sA, sA, sPAGE)
    I("s_add_u32", sA, sA, hx(R_XCC))
    I("s_mov_b64", "exec", 1)
    I("buffer_store_dword", v(TMP + 13), "off", SRD_WS, sA, mods="sc1")
    A.vm -= 1
    I("s_mov_b64", "exec", -1)
    A.label(l)

def phase_a_compute():
    A.cmt("---- phase A compute")
    t0, t1, t2, t3 = TMP + 4, TMP + 5, TMP + 6, TMP + 7
    I("v_lshrrev_b32", v(t0), 3, vLANE)
    I("v_lshrrev_b32", v(t1), 4, vLANE)
    I("v_and_b32", v(t2), 7, vLANE)
    I("v_xor_b32", v(t1), v(t1), v(t2))
    I("v_mul_u32_u24", v(t0), hx(896), v(t0))
    I("v_lshl_add_u32", v(t2), v(t1), 4, v(t0))
    I("v_xor_b32", v(t1), 4, v(t1))
    I("v_lshl_add_u32", v(t3), v(t1), 4, v(t0))
    I("s_lshl_b32", sA, sX, 4)
    I("s_add_u32", sA, sA, sTL)
    I("s_mul_i32", sB, sA, hx(16 * 896))
    I("s_mul_i32", sF, sLW, hx(TB))
    I("s_add_u32", sF, sF, hx(L_XIMG))
    I("s_mov_b32", sK, sJ)
    for n in range(7):
        I("s_lshl_b32", sA, sK, 11)
        I("s_add_u32", "m0", sA, sF)
        I("s_lshl_b32", sA, sK, 7)
        I("s_add_u32", sA, sA, sB)
        I("s_add_u32", sE, sA, hx(8 * 896 - 1024))
        I("buffer_load_dwordx4", v(t2), SRD_X, sA, mods="offen lds")
        I("buffer_load_dwordx4", v(t3), SRD_X, sE, mods="offen offset:1024 lds")
        if n < 6:
            I("s_add_u32", sK, sK, 1)
            I("s_cmp_eq_u32", sK, 7)
            I("s_cmov_b32", sK, 0)
    barrier()
    late_consts()
    finish_tag()
    I("v_lshrrev_b32", v(t0), 1, vTOK)
    I("v_xor_b32", v(t0), v(t0), vQ4)
    I("v_lshlrev_b32", v(t0), 4, v(t0))
    I("v_lshl_add_u32", v(t0), vTOK, 7, v(t0))
    I("v_add_u32", v(t0), sF, v(t0))
    I("v_xor_b32", v(t1), 64, v(t0))
    I("s_lshl_b32", sA, sJ, 11)
    I("v_add_u32", v(t2), sA, v(t0))
    I("v_add_u32", v(t3), sA, v(t1))
    A.wait_vm_all()
    stamp("x_dma")
    xl = [I("ds_read_b128", vr(BREG + 4 * s, 4), v(t1 if s & 1 else t0), mods="offset:%d" % (2048 * (s >> 1))) for s in range(14)]
    I("ds_read_b128", vr(HP, 4), v(t2))
    xr = I("ds_read_b128", vr(HP + 4, 4), v(t3))
    s_sum, s_sq = TMP + 4, TMP + 5
    s_sum, s_sq = TMP + 2, TMP + 3
    I("v_mov_b32", v(s_sum), 0)
    I("v_mov_b32", v(s_sq), 0)
    for s in range(14):
        A.wait(lg=xl[s])
        for i in range(4):
            I("v_dot2c_f32_bf16", v(s_sum), v(BREG + 4 * s + i), v(ONES))
            I("v_dot2c_f32_bf16", v(s_sq), v(BREG + 4 * s + i), v(BREG + 4 * s + i))
    stamp("x_landed")
    stats_reduce(s_sum, s_sq)
    mu, var, r = TMP + 6, TMP + 7, TMP + 8
    mean_var(s_sum, s_sq, mu, var)
    rstd(r, var)
    I("v_mul_f32", v(mu), "-" + v(mu), v(r), mods="") if False else I("v_mul_f32", v(mu), v(mu), v(r))
    I("v_sub_f32", v(mu), 0, v(mu))
    for i in range(56):
        lo = TMP + 10 + 2 * (i & 1)
        I("v_lshlrev_b32", v(lo), 16, v(BREG + i))
        I("v_and_b32", v(lo + 1), hx(0xffff0000), v(BREG + i))
        I("v_pk_fma_f32", vr(lo, 2), vr(lo, 2), vr(r, 2), vr(mu, 2), mods="op_sel_hi:[1,0,0]")
        if i:
            p = TMP + 10 + 2 * ((i - 1) & 1)
            I("v_cvt_pk_bf16_f32", v(BREG + i - 1), v(p), v(p + 1))
    I("v_cvt_pk_bf16_f32", v(BREG + 55), v(TMP + 12), v(TMP + 13))
    A.wait(lg=xr)
    unswap(HP, 2)
    stamp("ln_done")
    TR2 = [[120, 121], [122, 123]]
    pend = [None]

    def strip(i):
        if i == 0:
            set_tr(slot(0))
            aoff = lambda s: (4096 * s, TRC)
        else:
            s1, s2 = ((2, 3), (4, 0))[i - 1]
            I("s_mov_b32", sB, hx(slot(s1)))
            I("s_mov_b32", sE, hx(slot(s2)))
            I("s_bitcmp1_b32", sTG, 0)
            I("s_cselect_b32", sF, sE, sB)
            I("s_cselect_b32", sE, sB, sE)
            set_tr(sF)
            set_tr(sE, dst=TR2)
            aoff = lambda s: (4096 * (s % 7), TRC if s < 7 else TR2)
        if i == 2 and OPT["local"]:
            I("v_mov_b32", v(TMP + 9), hx(L_MODE))
        barrier()
        stamp("strip%d_landed" % i)
        if i == 2 and OPT["local"]:
            I("ds_read_b32", v(TMP + 9), v(TMP + 9))
        def hook(s):
            if s == OPT["fk"] and pend[0] is not None:
                A.wait(vm=pend[0])
                flag_store(sD)
                stamp("flag%d" % (i - 1))
        gemm(14, 4, 2, aoff, lambda s: BREG + 4 * s, hook=hook)
        if i < 2:
            out_offs((R_K, R_V)[i], TB, R_FQKV + 4 * i, 1024, 7)
        else:
            out_offs(R_Q, TB, R_FQ, 128, 2)
            if OPT["local"]:
                I("v_readfirstlane_b32", sMODE, v(TMP + 9))
            I("v_mov_b32", v(TMP + 8), fl(1.4426950408889634 / 28 ** 0.5))
            for k in range(0, 16, 2):
                pk_mul_b(ACC + k, ACC + k, TMP + 8)
        pack(TMP, ACC, 16)
        unswap(TMP, 2)
        if i < 2:
            frag_store(TMP, sC)
            pend[0] = frag_store(TMP + 4, sC, 1024)
        else:
            pend[0] = store_out(TMP)
    for i in range(3):
        strip(i)
    stamp("q_stored")
    att_ids()
    att_consts()
    ack_flag(pend[0], "q_flag")

def half_bases(col):
    I("s_bitcmp1_b32", sTG, 0)
    I("s_cselect_b32", sB, hx(224 * 2688), 0)
    I("s_cselect_b32", sE, 0, hx(224 * 2688))
    I("s_add_u32", sB, sB, sJ128)
    I("s_add_u32", sE, sE, sJ128)

def phase_a_loader():
    A.cmt("---- phase A loader")
    late_consts()
    half_bases(0)
    barrier()
    d0 = dma_seq(SRD_WQKV, 2688, slot(0), (sJ128, 896), 14, mod=14, start=sROT)
    dma_seq(SRD_WQKV, 2688, slot(2), (sB, 1792), 7)
    finish_tag()
    A.wait(vm=d0)
    barrier()
    publish_xcc()
    d1 = dma_seq(SRD_WQKV, 2688, slot(3), (sE, 1792), 7)
    I("s_lshl_b32", sA, sJ, 11)
    tile_off(sC, R_Q, TB, extra=sA)
    I("v_lshlrev_b32", v(TMP + 12), 7, vTOK)
    touch1(SRD_WS, v(TMP + 12), sC)
    dma_seq(SRD_WQKV, 2688, slot(4), (sB, 0), 7)
    A.wait(vm=d1)
    barrier()
    dma_seq(SRD_WQKV, 2688, slot(0), (sE, 0), 7)
    mode_check()
    A.wait_vm_all(force=True)
    barrier()
    dma_seq(SRD_WO, 896, slot(3), (sJ128, 0), 7)
    I("s_lshl_b32", sA, sJ, 8)
    tile_off(sC, R_SH, 2048, extra=sA)
    I("v_and_b32", v(TMP + 12), 1, vLANE)
    I("v_lshlrev_b32", v(TMP + 12), 7, v(TMP + 12))
    I("v_and_b32", v(TMP + 13), 2, vLANE)
    I("v_lshl_add_u32", v(TMP + 12), v(TMP + 13), 14, v(TMP + 12))
    touch1(SRD_WS, v(TMP + 12), sC)
    if not OPT["alias"]:
        I("v_lshlrev_b32", v(TMP + 12), 7, vTOK)
        I("s_lshl_b32", sA, sJ, 11)
        for reg, st_ in ((R_H, TB), (R_X1, TB), (R_HH, 16384)):
            tile_off(sC, reg, st_, extra=sA)
            touch1(SRD_WS, v(TMP + 12), sC)

L_KIMG, L_VIMG = slot(1), slot(2)
def att_ids():
    I("s_and_b32", sHEAD, sLI, 15)
    I("s_lshr_b32", sA, sLI, 4)
    I("s_lshl_b32", sA, sA, 3)
    I("s_lshl_b32", sTQ0, sX, 4)
    I("s_add_u32", sTQ0, sTQ0, sA)
    I("s_mul_i32", sC0, sHEAD, 7)
    I("s_lshr_b32", sC0, sC0, 1)
    I("s_add_u32", sT1, sTQ0, sW)

def kv_poll_off(dst, e):
    t0, t2, t3 = TMP, TMP + 2, TMP + 3
    I("s_lshr_b32", sA, sC0, 3)
    I("s_add_u32", sB, sC0, 3)
    I("s_lshr_b32", sB, sB, 3)
    I("s_sub_u32", sB, sB, sA)
    I("v_and_b32", v(t0), sB, vLANE)
    I("v_add_u32", v(t0), sA, v(t0))
    I("v_lshrrev_b32", v(t2), 1, vLANE)
    if e is None:
        I("s_and_b32", sA, sTQ0, 15)
        I("s_lshl_b32", sB, sLW, 1)
        I("s_add_u32", sA, sA, sB)
        I("v_and_b32", v(t2), 1, v(t2))
        I("v_add_u32", v(t2), sA, v(t2))
        I("v_lshlrev_b32", v(t0), 2, v(t0))
        I("v_lshl_add_u32", v(t0), v(t2), 7, v(t0))
        I("s_add_u32", sA, sPAGE, hx(R_FQ))
        I("v_add_u32", v(dst), sA, v(t0))
        return
    I("v_lshlrev_b32", v(t0), 7, v(t0))
    I("s_mul_i32", sA, sLW, 6)
    I("s_add_u32", sA, sA, sTQ0)
    I("s_sub_u32", sA, sA, 16)
    I("v_min_u32", v(t2), 5, v(t2))
    I("v_add_u32", v(t3), sA, v(t2))
    I("v_max_i32", v(t3), 0, v(t3))
    I("v_lshrrev_b32", v(dst), 4, v(t3))
    I("v_lshlrev_b32", v(dst), PSH, v(dst))
    I("v_add_u32", v(dst), v(dst), v(t0))
    I("v_and_b32", v(t0), 15, v(t3))
    I("v_lshl_add_u32", v(dst), v(t0), 10, v(dst))
    I("v_add_u32", v(dst), hx(R_FQKV + 4 * e), v(dst))

def kv_dma(reg, img, vsrc):
    last = None
    I("s_mul_i32", sC, sLW, 6)
    I("s_lshl_b32", sF, sC, 10)
    I("s_add_u32", sF, sF, hx(img))
    I("s_add_u32", sC, sC, sTQ0)
    I("s_sub_u32", sC, sC, 16)
    I("s_lshl_b32", sE, sC0, 8)
    I("s_add_u32", sE, sE, hx(reg))
    for i in range(6):
        I("s_add_u32", "m0", sF, hx(1024 * i))
        I("s_add_u32", sA, sC, i)
        I("s_lshr_b32", sB, sA, 4)
        I("s_lshl_b32", sB, sB, PSH)
        I("s_and_b32", sG, sA, 15)
        I("s_mul_i32", sG, sG, hx(TB))
        I("s_add_u32", sB, sB, sG)
        I("s_add_u32", sB, sB, sE)
        I("s_cmp_lt_i32", sA, 0)
        I("s_cmov_b32", sB, hx(OOB))
        last = I("buffer_load_dwordx4", vsrc, SRD_WS, sB, mods="offen sc1 lds")
    return last

def mode_check():
    if not OPT["local"]:
        return
    l = A.newlabel("Lmc")
    I("s_cmp_lg_u32", sW, 4)
    I("s_cbranch_scc1", l)
    sv = (A.vm, A.vm_done, A.lg, A.lg_done)
    lp, dn = A.newlabel("Lpoll"), A.newlabel("Lpd")
    I("v_and_b32", v(TMP), 31, vLANE)
    I("s_add_u32", sA, sPAGE, hx(R_XCC))
    I("v_lshl_add_u32", v(TMP), v(TMP), 7, sA)
    I("s_mov_b32", sCNT, hx(40000))
    A.label(lp)
    I("buffer_load_dword", v(TMP + 1), v(TMP), SRD_WS, 0, mods="offen sc1")
    A.wait_vm_all(force=True)
    I("v_subrev_u32", v(TMP + 1), sTAG, v(TMP + 1))
    I("v_cmp_le_u32", "vcc", 16, v(TMP + 1))
    I("s_cbranch_vccz", dn)
    I("s_sleep", 4)
    I("s_sub_u32", sCNT, sCNT, 1)
    I("s_cmp_lg_u32", sCNT, 0)
    I("s_cbranch_scc1", lp)
    A.label(dn)
    I("v_cmp_ne_u32", "vcc", sXCC, v(TMP + 1))
    I("s_cmp_eq_u64", "vcc", 0)
    I("s_cselect_b32", sA, 1, 0)
    I("v_mov_b32", v(TMP), sA)
    I("v_mov_b32", v(TMP + 1), hx(L_MODE))
    I("ds_write_b32", v(TMP + 1), v(TMP))
    A.wait_lg_all(force=True)
    A.vm, A.vm_done, A.lg, A.lg_done = sv
    A.label(l)

def att_loader_pre():
    att_ids()
    I("s_and_b32", sA, sTQ0, 15)
    I("s_lshl_b32", sB, sLW, 1)
    I("s_add_u32", sB, sA, sB)
    I("s_lshl_b32", sA, sHEAD, 10)
    tile_off(sC, R_O, 16384, tl=sB, extra=sA)
    I("v_and_b32", v(TMP + 12), 7, vLANE)
    I("v_lshlrev_b32", v(TMP + 12), 7, v(TMP + 12))
    I("v_and_b32", v(TMP + 13), 8, vLANE)
    I("v_lshl_add_u32", v(TMP + 12), v(TMP + 13), 11, v(TMP + 12))
    touch1(SRD_WS, v(TMP + 12), sC)
    att_consts()
    kv_poll_off(TMP + 4, 0)
    poll(v(TMP + 4), sleep=2)
    stamp("k_ready")
    kv_dma(R_K, L_KIMG, vL16)
    kv_poll_off(TMP + 4, None)
    poll(v(TMP + 4))
    stamp("q_ready")
    I("s_and_b32", sA, sTQ0, 15)
    I("s_lshl_b32", sB, sLW, 1)
    I("s_add_u32", sA, sA, sB)
    I("s_lshl_b32", sE, sC0, 8)
    tile_off(sC, R_Q, TB, tl=sA, extra=sE)
    I("s_lshl_b32", sB, sB, 10)
    I("s_add_u32", "m0", sB, hx(L_QIMG))
    I("s_add_u32", sE, sC, hx(TB - 1024))
    I("buffer_load_dwordx4", vL16, SRD_WS, sC, mods="offen sc1 lds")
    I("buffer_load_dwordx4", vL16, SRD_WS, sE, mods="offen offset:1024 sc1 lds")
    kv_poll_off(TMP + 4, 1)
    A.wait_vm_all()

mLo, mHi, vQR, vMD, vKR, vVR0, vVR1, vVS = 88, 89, 90, 91, 92, 93, 94, 95
def att_consts():
    t0, t1, t2 = TMP + 8, TMP + 9, TMP + 10
    I("s_and_b32", sA, sHEAD, 1)
    I("s_cmp_eq_u32", sA, 1)
    I("s_cselect_b32", sB, 0, 9)
    I("s_cselect_b32", sE, 9, 3)
    I("v_mov_b32", v(t0), -1)
    I("v_cmp_ne_u32", "vcc", sB, vQ4)
    I("v_cndmask_b32", v(mLo), 0, v(t0), "vcc")
    I("v_cmp_ne_u32", "vcc", sE, vQ4)
    I("v_cndmask_b32", v(mHi), 0, v(t0), "vcc")
    I("s_lshl_b32", sA, sW, 10)
    I("s_add_u32", sB, sA, hx(L_KIMG))
    I("v_add_u32", v(vKR), sB, vL16)
    I("v_and_b32", v(t0), 3, vLANE)
    I("v_lshrrev_b32", v(t1), 2, vLANE)
    I("v_and_b32", v(t2), 2, v(t0))
    I("v_lshlrev_b32", v(t2), 2, v(t2))
    I("v_xor_b32", v(t1), v(t1), v(t2))
    I("v_lshlrev_b32", v(t1), 4, v(t1))
    I("v_lshl_add_u32", v(t1), v(t0), 8, v(t1))
    I("v_and_b32", v(t0), 1, v(t0))
    I("v_lshl_or_b32", v(t1), v(t0), 3, v(t1))
    I("s_add_u32", sB, sA, hx(L_VIMG))
    I("v_add_u32", v(vVR0), sB, v(t1))
    I("v_xor_b32", v(vVR1), 8, v(vVR0))
    I("v_and_b32", v(t0), 32, vLANE)
    I("v_lshlrev_b32", v(t0), 2, v(t0))
    I("v_xor_b32", v(vVS), v(t0), vL16)
    I("s_add_u32", sB, sA, hx(L_QIMG))
    I("v_add_u32", v(vQR), sB, vL16)
    I("v_mov_b32", v(vMD), hx(L_MODE))

def phase_b(tagname):
    A.cmt("---- phase B: attention")
    t0, t1, t2, t3, t4 = TMP, TMP + 1, TMP + 2, TMP + 3, TMP + 4
    SREG, KF, QF, PREG, VF, OA = 112, 64, 80, 184, 64, 48
    barrier()
    stamp("kq_landed")
    q = I("ds_read_b128", vr(QF, 4), v(vQR))
    if OPT["local"]:
        q = I("ds_read_b32", v(vMD), v(vMD))
    rd = [I("ds_read_b128", vr(KF + 4 * i, 4), v(vKR), mods="offset:%d" % (1024 * i)) for i in range(4)]
    NT = OPT["ta"]
    def bpre():
        poll(v(TMP + 4))
        stamp("v_ready")
        kv_dma(R_V, L_VIMG, v(vVS))
        def m():
            dma_seq(SRD_WO, 896, slot(4), (sJ128, 224 * 896), 7)
            dma_seq(SRD_W1, 896, slot(0), (sJ128, 0), 7)
        main_only(m)
        if NT:
            grp_touch(SRD_W2, 0, 7, 1)
    only("B", bpre)
    A.wait(lg=q)
    if OPT["local"]:
        I("v_readfirstlane_b32", sMODE, v(vMD))
    for i, m in enumerate((mLo, mLo, mHi, mHi)):
        I("v_and_b32", v(QF + i), v(m), v(QF + i))
    for t in range(17):
        A.wait(lg=rd[t])
        I("v_mfma_f32_16x16x32_bf16", vr(SREG + 4 * t, 4), vr(KF + 4 * (t % 4), 4), vr(QF, 4), "0")
        if t + 4 < 17:
            rd.append(I("ds_read_b128", vr(KF + 4 * (t % 4), 4), v(vKR), mods="offset:%d" % (1024 * (t + 4))))
    def b6():
        l1, l2 = A.newlabel("Lw"), A.newlabel("Lw")
        I("s_cmp_ge_u32", sLI, 28)
        I("s_cbranch_scc1", l1)
        I("s_waitcnt", "vmcnt(%d)" % (14 + NT))
        I("s_branch", l2)
        A.label(l1)
        I("s_waitcnt", "vmcnt(%d)" % NT)
        A.label(l2)
        barrier()
        stamp("v_landed")
        main_only(lambda: dma_seq(SRD_W1, 896, slot(1), (sJ128, 224 * 896), 7))
    NEG = TMP + 5
    I("v_mov_b32", v(NEG), hx(0xff800000))
    I("v_lshlrev_b32", v(t0), 2, vQ4)
    for i in range(4):
        I("v_add_u32", v(t1), i, v(t0))
        I("v_cmp_gt_u32", "vcc", v(t1), vTOK)
        I("v_cndmask_b32", v(SREG + i), v(NEG), v(SREG + i), "vcc")
        I("v_cndmask_b32", v(SREG + 64 + i), v(SREG + 64 + i), v(NEG), "vcc")
    lskip = A.newlabel("Lnomask")
    for t in range(16):
        I("s_cmp_ge_u32", sT1, 16 - t)
        I("s_cbranch_scc1", lskip)
        for i in range(4):
            I("v_mov_b32", v(SREG + 4 * t + i), v(NEG))
    A.label(lskip)
    only("B", b6)
    m0_, m1_ = TMP + 6, TMP + 8
    I("v_max3_f32", v(m0_), v(SREG), v(SREG + 1), v(SREG + 2))
    I("v_max3_f32", v(m1_), v(SREG + 3), v(SREG + 4), v(SREG + 5))
    for n, k in enumerate(range(6, 68, 2)):
        m = (m0_, m1_)[n & 1]
        I("v_max3_f32", v(m), v(m), v(SREG + k), v(SREG + k + 1))
    I("v_max_f32", v(m0_), v(m0_), v(m1_))
    I("v_mov_b32", v(m1_), v(m0_))
    I("v_permlane32_swap_b32", v(m0_), v(m1_))
    I("v_max_f32", v(m0_), v(m0_), v(m1_))
    I("v_mov_b32", v(m1_), v(m0_))
    I("v_permlane16_swap_b32", v(m0_), v(m1_))
    I("v_max_f32", v(m0_), v(m0_), v(m1_))
    I("v_sub_f32", v(m0_), 0, v(m0_))
    for g in range(0, 68, 2):
        I("v_pk_add_f32", vr(SREG + g, 2), vr(SREG + g, 2), vr(m0_, 2), mods="op_sel_hi:[1,0]")
    for g in range(0, 68, 4):
        for i in range(4):
            I("v_exp_f32", v(SREG + g + i), v(SREG + g + i))
        if g >= 4:
            p = g - 4
            I("v_cvt_pk_bf16_f32", v(PREG + p // 2), v(SREG + p), v(SREG + p + 1))
            I("v_cvt_pk_bf16_f32", v(PREG + p // 2 + 1), v(SREG + p + 2), v(SREG + p + 3))
    I("v_cvt_pk_bf16_f32", v(PREG + 32), v(SREG + 64), v(SREG + 65))
    I("v_cvt_pk_bf16_f32", v(PREG + 33), v(SREG + 66), v(SREG + 67))
    stamp("softmax_done")
    only("B", lambda: I("s_waitcnt", "vmcnt(0)"))
    barrier()
    stamp("pv_start")

    def vread(p):
        d = VF + 8 * (p % 3)
        last = None
        for a, vr_ in enumerate((vVR0, vVR1)):
            last = I("ds_read_b64_tr_b16", vr(d + 4 * a, 2), v(vr_), mods="offset:%d" % (2048 * p))
            if p < 8:
                last = I("ds_read_b64_tr_b16", vr(d + 4 * a + 2, 2), v(vr_), mods="offset:%d" % (2048 * p + 1024))
        return last
    rd = [vread(0), vread(1)]
    I("s_and_b32", sB, sT1, 15)
    I("s_lshl_b32", sA, sHEAD, 10)
    tile_off(sC, R_O, 16384, tl=sB, extra=sA)
    I("s_lshl_b32", sA, sHEAD, 2)
    tile_off(sD, R_FO, 128, tl=sB, extra=sA)
    for p in range(9):
        if p + 2 < 9:
            rd.append(vread(p + 2))
        A.wait(lg=rd[p])
        d = VF + 8 * (p % 3)
        if p < 8:
            m16(OA + 8, ONES, PREG + 4 * p, p == 0)
            for a in range(2):
                m16(OA + 4 * a, d + 4 * a, PREG + 4 * p, p == 0)
        else:
            I("v_mfma_f32_16x16x16_bf16", vr(OA + 8, 4), vr(ONES, 2), vr(PREG + 32, 2), vr(OA + 8, 4))
            for a in range(2):
                I("v_mfma_f32_16x16x16_bf16", vr(OA + 4 * a, 4), vr(d + 4 * a, 2), vr(PREG + 32, 2), vr(OA + 4 * a, 4))
    I("v_rcp_f32", v(t4), v(OA + 8))
    for i in range(8):
        I("v_mul_f32", v(OA + i), v(OA + i), v(t4))
    pack(TMP, OA, 8)
    unswap(TMP, 1)
    for i, m in enumerate((mLo, mLo, mHi, mHi)):
        I("v_and_b32", v(TMP + i), v(m), v(TMP + i))
    moded(lambda m: frag_store(TMP, sC, mods=m))
    stamp("o_stored")
    A.wait_vm_all(force=True)
    moded(lambda m: flag_store(sD, m))
    stamp("o_flag")
    only("A", barrier)

def ack_flag(st, name):
    A.wait(vm=st)
    moded(lambda m: flag_store(sD, m))
    stamp(name)

def store_out(preg, q_barrier=True):
    def f(m):
        frag_store(preg, sC, mods=m)
        return frag_store(preg + 4, sC, 1024, mods=m)
    return moded(f)

def c_compute(st):
    A.cmt("---- C1 compute")
    TRO = [[40, 41], [42, 43]]
    tr_lane(TRO, 1)
    set_tr(slot(3))
    set_tr(sA, dst=TRO, src=TRO)
    ms = [7 * h // 2 for h in range(16)]
    aoff = lambda s: ((ms[s] - 1) * 1024, TRO) if ms[s] & 1 else (ms[s] * 1024, TRC)
    rd = [a_read(AREG + 16 * s, *aoff(s)) for s in range(7)]
    unpack(ACC, HP, 16)
    flag_poll_off(TMP, 16, R_FO, 128, 2)
    tile_off(sC2, R_O, 16384)
    bl = BLoads(16, sC2)
    out_offs(R_H, TB, R_SH, 2048, 8)
    poll(v(TMP), sleep=0)
    A.wait_lg_all()
    stamp("c1_ready")
    bl.first()
    def phook(s):
        if s == bl.last_step():
            barrier()
    gemm(16, 7, 7, aoff, lambda s: BREG + 4 * s, bl=bl.ids, bissue=bl.more, zero=False, rd=rd, hook=phook)
    stamp("c1_mfma")
    pack(HP, ACC, 16)
    for i in range(8):
        I("v_mov_b32", v(TMP + i), v(HP + i))
    unswap(TMP, 2)
    st = store_out(TMP)
    barrier()
    set_tr(slot(0))
    aoff = lambda s: (4096 * s, TRC)
    rd = [a_read(AREG + 16 * s, *aoff(s)) for s in range(2)]
    stat_granule(HP)
    A.wait(vm=st)
    moded(granule_store)
    stamp("h_flag")
    rd += [a_read(AREG + 16 * s, *aoff(s)) for s in range(2, 7)]
    tile_off(sC2, R_H, TB)
    bl = BLoads(14, sC2)
    out_offs(R_HH, 16384, R_FHH, 128, 2)
    I("v_lshlrev_b32", v(TMP + 12), 4, vQ4)
    I("v_add_u32", v(TMP + 12), hx(131072), v(TMP + 12))
    for f in range(4):
        I("ds_read_b128", vr(ACC + 4 * f, 4), v(TMP + 12), mods="offset:%d" % (L_CS1 - 131072 + 64 * f))
    stat_poll(R_SH, sTL)
    A.wait_lg_all()
    stamp("c2_ready")
    bl.first()
    stat_finish()
    var, nmu, ry = TMP + 7, TMP + 8, TMP + 10
    K0, K1, RI = 120, 122, 124
    mean_var(TMP + 4, TMP + 6, vMU, var)
    I("v_sub_f32", v(nmu), 0, v(vMU))
    rstd(vRH, var)
    for i in range(0, 16, 2):
        pk_mul_b(ACC + i, ACC + i, nmu)
    I("v_mul_f32", v(var), v(var), v(vRH))
    I("v_mul_f32", v(var), v(var), v(vRH))
    rstd(ry, var)
    I("v_mul_f32", v(ry), v(ry), v(vRH))
    gelu_prep(ry, K0, K1, RI)
    gemm(14, 7, 7, aoff, lambda s: BREG + 4 * s, bl=bl.ids, bissue=bl.more, zero=False, rd=rd, hook=phook)
    stamp("c2_mfma")
    gelu(ACC, 16, BREG, K0, K1, RI, HHP, True)
    unswap(HHP, 2)
    st = store_out(HHP)
    lh = A.newlabel("Lhalo")
    I("s_add_u32", sA, sTL, 1)
    I("s_and_b32", sA, sA, 15)
    I("s_cmp_gt_u32", sA, 1)
    I("s_cbranch_scc1", lh)
    I("s_and_b32", sB, sTL, 1)
    I("s_lshl_b32", sA, sJ, 11)
    tile_off(sC, R_HALO, 16384, tl=sB, extra=sA)
    frag_store(HHP, sC)
    frag_store(HHP + 4, sC, 1024)
    A.vm -= 2
    A.label(lh)
    barrier()
    set_tr(slot(2))
    rd = [a_read(AREG + 16 * s, *aoff(s)) for s in range(3)]
    lh, lh2 = A.newlabel("Lhalo"), A.newlabel("Lhalo")
    I("s_add_u32", sA, sTL, 1)
    I("s_and_b32", sA, sA, 15)
    I("s_cmp_gt_u32", sA, 1)
    I("s_cbranch_scc1", lh)
    I("s_waitcnt", "vmcnt(2)")
    moded(lambda m: flag_store(sD, m))
    I("s_waitcnt", "vmcnt(1)")
    I("s_and_b32", sB, sTL, 1)
    tile_off(sC, R_FHALO, 1024, tl=sB, extra=sJ128)
    flag_store(sC)
    A.vm -= 2
    I("s_branch", lh2)
    A.label(lh)
    A.wait(vm=st)
    moded(lambda m: flag_store(sD, m))
    A.label(lh2)
    stamp("hh_flag")
    rd += [a_read(AREG + 16 * s, *aoff(s)) for s in range(3, 7)]
    unpack(ACC, HP, 16)
    I("v_mov_b32", v(TMP + 2), v(vRH))
    I("v_mul_f32", v(TMP + 4), v(vMU), v(vRH))
    I("v_sub_f32", v(TMP + 4), 0, v(TMP + 4))
    for i in range(0, 16, 2):
        I("v_pk_fma_f32", vr(ACC + i, 2), vr(ACC + i, 2), vr(TMP + 2, 2), vr(TMP + 4, 2), mods="op_sel_hi:[1,0,0]")
    aM1, aP1, aX1, aM2, aP2, aX2 = 120, 121, 122, 123, 124, 125
    t0, t1, t2, t3 = TMP + 6, TMP + 7, TMP + 8, TMP + 9
    I("s_lshl_b32", sB, sX, 8)
    I("s_lshl_b32", sA, sTL, 4)
    I("s_add_u32", sB, sB, sA)
    I("v_mov_b32", v(t3), hx(OOB))
    for reg, d in ((aM1, -1), (aP1, 1), (aM2, -2), (aP2, 2)):
        I("s_add_u32", sA, sB, d)
        I("v_add_u32", v(t0), sA, vTOK)
        I("v_lshrrev_b32", v(t1), 8, v(t0))
        I("v_bfe_u32", v(t2), v(t0), 4, 4)
        I("v_lshlrev_b32", v(reg), 14, v(t2))
        I("v_add_u32", v(reg), hx(R_HH), v(reg))
        I("v_and_b32", v(t2), 1, v(t2))
        I("v_lshlrev_b32", v(t2), 14, v(t2))
        I("v_add_u32", v(t2), hx(R_HALO), v(t2))
        I("v_cmp_ne_u32", "vcc", sX, v(t1))
        I("v_cndmask_b32", v(reg), v(reg), v(t2), "vcc")
        I("v_lshl_add_u32", v(reg), v(t1), PSH, v(reg))
        I("v_and_b32", v(t1), 15, v(t0))
        I("v_lshl_add_u32", v(reg), v(t1), 4, v(reg))
        I("v_lshl_add_u32", v(reg), vQ4, 8, v(reg))
        I("v_cmp_gt_u32", "vcc", hx(2048), v(t0))
        I("v_cndmask_b32", v(reg), v(t3), v(reg), "vcc")
    I("v_cmp_gt_u32", "vcc", 2, vQ4)
    I("v_cndmask_b32", v(aX1), v(aP1), v(aM1), "vcc")
    I("v_cndmask_b32", v(aX2), v(aP2), v(aM2), "vcc")
    I("s_lshr_b32", sB, sB, 4)
    I("s_sub_u32", sA, sB, 1)
    I("v_min_u32", v(t0), 2, vQ4)
    I("v_add_u32", v(t0), sA, v(t0))
    I("v_max_i32", v(t0), 0, v(t0))
    I("v_min_i32", v(t0), hx(127), v(t0))
    I("v_lshrrev_b32", v(t1), 4, v(t0))
    I("v_and_b32", v(t0), 15, v(t0))
    I("v_min_u32", v(t2), 6, vTOK)
    I("v_lshlrev_b32", v(t3), 2, v(t2))
    I("v_lshl_add_u32", v(t3), v(t0), 7, v(t3))
    I("v_lshl_add_u32", v(t3), v(t1), PSH, v(t3))
    I("v_add_u32", v(TMP), hx(R_FHH), v(t3))
    I("v_and_b32", v(t0), 1, v(t0))
    I("v_lshlrev_b32", v(t2), 7, v(t2))
    I("v_lshl_add_u32", v(t2), v(t0), 10, v(t2))
    I("v_lshl_add_u32", v(t2), v(t1), PSH, v(t2))
    I("v_add_u32", v(t2), hx(R_FHALO), v(t2))
    I("v_cmp_ne_u32", "vcc", sX, v(t1))
    I("v_cndmask_b32", v(TMP), v(TMP), v(t2), "vcc")
    I("s_mov_b32", sC2, 0)
    amap = [aM1] * 3 + [aX1] + [aP1] * 3 + [aM2] * 3 + [aX2] + [aP2] * 3
    bl = BLoads(14, sC2, vaddr=lambda i: v(amap[i]))
    out_offs(R_X1, TB, R_SX, 2048, 8)
    poll(v(TMP), sleep=0)
    A.wait_lg_all()
    stamp("d_ready")
    bl.first()
    gemm(14, 7, 7, aoff, lambda s: BREG + 4 * s, bl=bl.ids, bissue=bl.more, zero=False, rd=rd, hook=phook)
    stamp("d_mfma")
    pack(TMP, ACC, 16)
    for i in range(8):
        I("v_mov_b32", v(X1P + i), v(TMP + i))
    unswap(X1P, 2)
    st = store_out(X1P)
    stat_granule(TMP)
    barrier()
    A.wait(vm=st)
    moded(granule_store)
    stamp("x1_flag")
    unpack(RES, TMP, 16)
    unpack(ACC, HP, 16)
    for i in range(0, 16, 2):
        I("v_pk_add_f32", vr(RES + i, 2), vr(RES + i, 2), vr(ACC + i, 2))

RES = 224
def colsum(bases, ldst):
    t0, t1 = TMP, TMP + 1
    I("s_and_b32", sA, sLW, 2)
    I("s_lshl_b32", sA, sA, 5)
    I("s_and_b32", sB, sLW, 1)
    I("s_lshl_b32", sB, sB, 3)
    I("s_or_b32", sA, sA, sB)
    I("v_xor_b32", v(t0), sA, v(TRL[0][0]))
    I("v_add_u32", v(t1), hx(bases[1]), v(t0))
    I("v_add_u32", v(t0), hx(bases[0]), v(t0))
    rd = []
    for s in range(14):
        ad = v(t0 if s < 7 else t1)
        I("ds_read_b64_tr_b16", vr(AREG + 4 * s, 2), ad, mods="offset:%d" % (4096 * (s % 7)))
        rd.append(I("ds_read_b64_tr_b16", vr(AREG + 4 * s + 2, 2), ad, mods="offset:%d" % (4096 * (s % 7) + 1024)))
    for s in range(14):
        A.wait(lg=rd[s])
        m16(ACC, AREG + 4 * s, ONES, s == 0)
    I("s_lshl_b32", sA, sLW, 6)
    I("s_add_u32", sA, sA, hx(ldst))
    I("v_lshl_add_u32", v(t0), vQ4, 4, sA)
    I("ds_write_b128", v(t0), vr(ACC, 4))
    A.wait_lg_all()

W3S = [[4, 0], [1, 2]]
def c_loader(st):
    A.cmt("---- C/D loader")
    I("s_lshl_b32", sE, sJP, 8)
    colsum((slot(0), slot(1)), L_CS1)
    barrier()
    dma_seq(SRD_W2, 896, slot(2), (sJ128, 0), 7)
    barrier()
    dma_seq(SRD_W2, 896, slot(3), (sJ128, 224 * 896), 7)
    barrier()
    d = A.vm
    dma_seq(SRD_W3, 3584, slot(W3S[0][0]), (sE, 0), 7)
    A.wait(vm=d)
    barrier()
    d = dma_seq(SRD_W3, 3584, slot(W3S[0][1]), (sE, 224 * 3584), 7)
    A.wait(vm=d)
    barrier()
    dma_seq(SRD_W3, 3584, slot(W3S[1][0]), (sE, 128), 7)
    colsum((slot(W3S[0][0]), slot(W3S[0][1])), L_CS3)
    barrier()
    dma_seq(SRD_W3, 3584, slot(W3S[1][1]), (sE, 224 * 3584 + 128), 7)

def w4_rot():
    I("s_lshl_b32", sA, sJ, 1)
    I("s_add_u32", sROT, sROT, sA)
    I("s_cmp_ge_u32", sROT, 14)
    I("s_cselect_b32", sA, 14, 0)
    I("s_sub_u32", sROT, sROT, sA)
    I("s_lshl_b32", sROT, sROT, 1)

W4SL = [3, 4, 0, 1, 2, 3, 4, 0]
def pair_table(mul, base):
    I("s_lshr_b32", sK, sROT, 1)
    for i in range(14):
        I("s_mul_i32", sA, sK, hx(mul))
        I("s_add_u32", "s%d" % (36 + i), sA, base)
        if i < 13:
            I("s_add_u32", sK, sK, 1)
            I("s_cmp_eq_u32", sK, 14)
            I("s_cmov_b32", sK, 0)

def w4_thunks(n):
    res = []
    for i in range(7):
        p = 7 * (n & 3) + i
        def th(i=i, p=p):
            I("s_add_u32", "m0", sF, hx(slot(W4SL[n]) + 4096 * i))
            I("s_add_u32", sH_, "s%d" % (36 + p // 2), hx(((p & 1) * 32 + (n >> 2) * 64) * 896))
            return I("buffer_load_dwordx4", vD896, SRD_W4, sH_, mods="offen lds")
        res.append(th)
    return res

def w4_dma(n):
    r = None
    for th in w4_thunks(n):
        r = th()
    return r

class Inject:
    def __init__(self, thunks, every):
        self.th, self.every, self.c = list(thunks), every, 0
    def __enter__(self):
        global I
        self.old = I
        def J(*a, **k):
            global I
            r = self.old(*a, **k)
            self.c += 1
            if self.c % self.every == 0 and self.th:
                cur = I
                I = self.old
                self.th.pop(0)()
                I = cur
            return r
        I = J
        return self
    def __exit__(self, *a):
        global I
        I = self.old
        for t in self.th:
            t()

def e1(grp):
    A.cmt("---- E1 group " + grp)
    ZB, AR, GT = 64, 128, 192
    NMU, K0, K1, RI = 120, 121, 122, 123
    TR2 = [[124, 125], [126, 127]]
    vCS = 208
    w4_rot()
    pair_table(128 * 896, sJ128)
    I("s_lshr_b32", sA, sTG, 1)
    I("s_lshl_b32", sA, sA, 3)
    I("s_add_u32", sT1, sA, sW)
    tile_off(sC2, R_X1, TB, tl=sT1)
    bl = BLoads(14, sC2, breg=ZB)
    I("v_lshlrev_b32", v(vCS), 4, vQ4)
    I("v_add_u32", v(vCS), hx(131072), v(vCS))
    set_tr(slot(W3S[0][0]))
    set_tr(slot(W3S[0][1]), dst=TR2)
    aoff = lambda s: (4096 * (s % 7), TRC if s < 7 else TR2)
    I("s_lshl_b32", sA, sJP, 12)
    tile_off(sC, R_G, 57344, tl=sT1, extra=sA)
    I("s_lshl_b32", sA, sJP, 7)
    tile_off(sD, R_FG, 2048, tl=sT1, extra=sA)
    I("s_lshl_b32", sF, sLW, 10)
    def cs_read(sg):
        return [I("ds_read_b128", vr(ACC + 4 * f, 4), v(vCS), mods="offset:%d" % (L_CS3 + 256 * sg - 131072 + 64 * f)) for f in range(4)]
    if grp == "A":
        cs = cs_read(0)
        rd = [a_read(AR + 16 * s, *aoff(s)) for s in range(2)]
    stat_poll(R_SX, sT1)
    stamp("e1_ready")
    if grp == "A":
        bl.first()
    stat_finish()
    mean_var(TMP + 4, TMP + 6, NMU, TMP + 7)
    rstd(TMP + 8, TMP + 7)
    I("v_sub_f32", v(NMU), 0, v(NMU))
    gelu_prep(TMP + 8, K0, K1, RI)
    if grp == "B":
        barrier()
        bl.first()
        colsum((slot(W3S[1][0]), slot(W3S[1][1])), L_CS3 + 256)
    st = None
    for sg in range(2):
        if not (grp == "A" and sg == 0):
            cs = cs_read(sg)
            rd = [a_read(AR, *aoff(0))]
            A.wait(lg=cs[3])
            rd += [a_read(AR + 16, *aoff(1))]
        A.wait(lg=cs[3])
        for i in range(16):
            I("v_mul_f32", v(ACC + i), v(ACC + i), v(NMU))
        def hook(s, sg=sg):
            if grp == "A" and sg == 0 and s == bl.last_step():
                barrier()
            if sg == 1 and s == 10:
                A.wait_vm_all()
                flag_store(sD)
                I("s_add_u32", sD, sD, 4)
                stamp("g_flag0")
        gemm(14, 4, 2, aoff, lambda s: ZB + 4 * s, bl=bl.ids if sg == 0 else None, bissue=bl.more if sg == 0 else None,
             zero=False, areg=AR, rd=rd, hook=hook)
        stamp("e1_pass%d" % sg)
        th = []
        if grp == "B":
            barrier()
            th = w4_thunks(1 + 2 * sg) + w4_thunks(2 + 2 * sg)
            if sg == 0 and OPT["tb"]:
                w4b_touch()
        elif sg == 0:
            th = w4_thunks(0)
        if sg == 0:
            set_tr(slot(W3S[1][0]))
            set_tr(slot(W3S[1][1]), dst=TR2)
        with Inject(th, 8 if grp == "B" else 16):
            gelu(ACC, 16, GT, K0, K1, RI, TMP + 4, False)
        unswap(TMP + 4, 2)
        frag_store(TMP + 4, sC, 2048 * sg)
        st = frag_store(TMP + 8, sC, 2048 * sg + 1024)
        stamp("e1_gelu%d" % sg)
        if grp == "A" and sg == 0:
            barrier()
    return st

def w4b_touch():
    l = A.newlabel("Lt")
    I("s_lshl_b32", sA, sTG, 2)
    I("s_add_u32", sA, sA, sLW)
    I("s_cmp_ge_u32", sA, 14)
    I("s_cbranch_scc1", l)
    I("s_mul_i32", sA, sA, hx(128 * 896))
    I("s_lshl_b32", sB, sJ, 13)
    I("s_add_u32", sA, sA, sB)
    I("s_add_u32", sA, sA, hx(64 * 896))
    I("v_lshlrev_b32", v(TMP + 12), 7, vLANE)
    touch1(SRD_W4, v(TMP + 12), sA)
    A.vm -= 1
    A.label(l)

def e2_compute(st):
    A.cmt("---- E2 compute")
    NB = 16
    AR = 128
    TR2 = [[192, 193], [194, 195]]
    tile_off(sE, R_G, 57344)
    pair_table(4096, sE)
    bl = {}
    def g_load(n):
        o = 2048 * (n // 28) + 1024 * (n & 1)
        bl[n] = I("buffer_load_dwordx4", vr(BREG + 4 * (n % NB), 4), vL16, SRD_WS, "s%d" % (36 + (n % 28) // 2),
                  mods="offen" + (" offset:%d" % o if o else "") + " sc1")
    for i in range(16):
        I("v_mov_b32", v(ACC + i), v(RES + i))
    set_tr(slot(W4SL[0]))
    set_tr(slot(W4SL[1]), dst=TR2)
    flag_poll_off(TMP, 14, R_FG, 2048, 7)
    barrier()
    poll(v(TMP))
    flag_store(sD)
    stamp("e2_ready0")
    for n in range(NB):
        g_load(n)
    I("v_add_u32", v(TMP), 4, v(TMP))
    def hook(n):
        if n % 7 == 5 and n < 49:
            A.wait_lg_all()
            barrier()
            stamp("e2_slot%d" % (n // 7 + 1))
            if n // 7 + 2 < 8:
                set_tr(slot(W4SL[n // 7 + 2]), dst=TR2 if (n // 7) & 1 else TRC)
        if n == 28 - NB:
            poll(v(TMP))
            stamp("e2_ready1")
            if OPT["clean"] and OPT["local"]:
                clean_stores()
    def fill(n, f):
        if f == 3 and n + NB < 56:
            g_load(n + NB)
    gemm(56, 4, 2, lambda n: (4096 * (n % 7), TR2 if (n // 7) & 1 else TRC), lambda n: BREG + 4 * (n % NB),
         bl=bl, zero=False, areg=AR, fill=fill, hook=hook)
    stamp("e2_mfma")
    t0, t1, t2 = TMP + 8, TMP + 9, TMP + 10
    return_regs = None
    I("s_lshl_b32", sF, sLW, 11)
    I("s_add_u32", sF, sF, hx(L_QIMG))
    I("v_lshrrev_b32", v(t0), 1, vTOK)
    I("v_xor_b32", v(t0), v(t0), vQ4)
    I("v_lshlrev_b32", v(t0), 4, v(t0))
    I("v_lshl_add_u32", v(t0), vTOK, 7, v(t0))
    I("v_add_u32", v(t0), sF, v(t0))
    I("v_xor_b32", v(t1), 64, v(t0))
    pack(TMP, ACC, 16)
    unswap(TMP, 2)
    I("ds_write_b128", v(t0), vr(TMP, 4))
    I("ds_write_b128", v(t1), vr(TMP + 4, 4))
    I("v_add_u32", v(t2), sF, vL16)
    r0 = I("ds_read_b128", vr(ACC, 4), v(t2))
    r1 = I("ds_read_b128", vr(ACC + 4, 4), v(t2), mods="offset:1024")
    I("v_lshrrev_b32", v(t0), 3, vLANE)
    I("v_lshrrev_b32", v(t1), 4, vLANE)
    I("v_and_b32", v(t2), 7, vLANE)
    I("v_xor_b32", v(t1), v(t1), v(t2))
    I("v_mul_u32_u24", v(t0), hx(896), v(t0))
    I("v_lshl_add_u32", v(t2), v(t1), 4, v(t0))
    I("v_xor_b32", v(t1), 4, v(t1))
    I("v_lshl_add_u32", v(t1), v(t1), 4, v(t0))
    I("s_lshl_b32", sA, sX, 4)
    I("s_add_u32", sA, sA, sTL)
    I("s_mul_i32", sB, sA, hx(16 * 896))
    I("s_add_u32", sB, sB, sJ128)
    I("s_add_u32", sE, sB, hx(8 * 896))
    om = "offen" + (" sc1" if OPT.get("outsc1") else "")
    A.wait(lg=r0)
    I("buffer_store_dwordx4", vr(ACC, 4), v(t2), SRD_OUT, sB, mods=om)
    A.wait(lg=r1)
    I("buffer_store_dwordx4", vr(ACC + 4, 4), v(t1), SRD_OUT, sE, mods=om)
    stamp("end")

def clean_stores():
    I("s_lshl_b32", sA, sJ, 11)
    tile_off(sC, R_HH, 16384, extra=sA)
    frag_store(HHP, sC)
    frag_store(HHP + 4, sC, 1024)
    tile_off(sC, R_X1, TB, extra=sA)
    frag_store(X1P, sC)
    frag_store(X1P + 4, sC, 1024)
    l = A.newlabel("Lcl")
    I("s_cmp_lg_u32", sJ, 0)
    I("s_cbranch_scc1", l)
    tile_off(sC, R_O + 14336, 16384)
    frag_store(X1P, sC)
    frag_store(X1P + 4, sC, 1024)
    A.vm -= 2
    A.label(l)

def e2_loader(st):
    A.cmt("---- E2 loader")
    A.wait_vm_all(force=True)
    flag_store(sD)
    pend = {}
    for sl in range(1, 8):
        if sl in pend:
            A.wait(vm=pend[sl])
        barrier()
        if sl + 4 < 8:
            pend[sl + 4] = w4_dma(sl + 4)

def dump_stamps():
    if not OPT["stamp"]:
        return
    I("s_lshl_b32", sA, "s2", 3)
    I("s_add_u32", sA, sA, sW)
    I("s_lshl_b32", sA, sA, 8)
    I("s_add_u32", sA, sA, hx(OFF_STAMP))
    I("v_lshlrev_b32", v(TMP), 2, vLANE)
    I("buffer_store_dword", vSTAMP, v(TMP), SRD_WS, sA, mods="offen")

def epoch_update():
    l = A.newlabel("Lep")
    I("s_cmp_lg_u32", "s2", hx(255))
    I("s_cbranch_scc1", l)
    I("s_cmp_lg_u32", sW, 0)
    I("s_cbranch_scc1", l)
    lp, dn = A.newlabel("Lpoll"), A.newlabel("Lpd")
    I("v_lshrrev_b32", v(TMP), 3, vLANE)
    I("v_lshlrev_b32", v(TMP), PSH, v(TMP))
    I("v_and_b32", v(TMP + 1), 7, vLANE)
    I("v_lshl_add_u32", v(TMP), v(TMP + 1), 7, v(TMP))
    I("s_mov_b32", sA, hx(R_XCC))
    I("s_mov_b32", sCNT, hx(40000))
    A.label(lp)
    for i in range(4):
        I("buffer_load_dword", v(TMP + 4 + i), v(TMP), SRD_WS, sA, mods="offen offset:%d sc1" % (1024 * i))
    A.wait_vm_all(force=True)
    for i in range(4):
        I("v_subrev_u32", v(TMP + 4 + i), sTAG, v(TMP + 4 + i))
    I("v_max_u32", v(TMP + 4), v(TMP + 4), v(TMP + 5))
    I("v_max3_u32", v(TMP + 4), v(TMP + 4), v(TMP + 6), v(TMP + 7))
    I("v_cmp_le_u32", "vcc", 16, v(TMP + 4))
    I("s_cbranch_vccz", dn)
    I("s_sleep", 2)
    I("s_sub_u32", sCNT, sCNT, 1)
    I("s_cmp_lg_u32", sCNT, 0)
    I("s_cbranch_scc1", lp)
    A.label(dn)
    I("s_mov_b32", sA, hx(OFF_EPOCH))
    flag_store(sA)
    A.label(l)

def touch(srd, base, nbytes, mods=""):
    n = -(-nbytes // (32 * 8192))
    if isinstance(base, int):
        I("s_mov_b32", sA, hx(base))
    else:
        I("s_mov_b32", sA, base)
    lim = None
    for i in range(n):
        rem = nbytes - i * 32 * 8192
        if rem < 32 * 8192:
            I("v_cmp_gt_u32", "vcc", hx(rem), v(TMP + 8))
            I("v_cndmask_b32", v(TMP + 10), v(TMP + 9), v(TMP + 8), "vcc")
            va = v(TMP + 10)
        else:
            va = v(TMP + 8)
        I("buffer_load_dword", v(TMP + 11), va, srd, sA, mods="offen" + (" " + mods if mods else ""))
        if i + 1 < n:
            I("s_add_u32", sA, sA, hx(32 * 8192))

def touch_setup():
    I("s_sub_u32", sA, sLI, 28)
    I("s_lshl_b32", sA, sA, 3)
    I("s_add_u32", sA, sA, sW)
    I("s_lshl_b32", sA, sA, 13)
    I("v_lshl_add_u32", v(TMP + 8), vLANE, 7, sA)
    I("v_mov_b32", v(TMP + 9), hx(OOB))

def spare_pre():
    A.cmt("---- spare CU: prefetch")
    I("v_mov_b32", v(TMP + 4), 0)
    touch_setup()
    I("s_getpc_b64", "s[40:41]")
    A.label("L_pc")
    I("s_sub_u32", "s40", "s40", "L_pc-%s_kernel" % NAME)
    I("s_subb_u32", "s41", "s41", 0)
    I("s_and_b32", "s41", "s41", hx(0xffff))
    I("s_mov_b32", "s42", "L_codeend-%s_kernel" % NAME)
    I("s_mov_b32", "s43", hx(0x20000))
    I("s_sub_u32", sA, sLI, 28)
    I("s_lshl_b32", sB, sW, 2)
    I("s_add_u32", sA, sA, sB)
    I("s_lshl_b32", sA, sA, 11)
    I("v_lshlrev_b32", v(TMP + 12), 7, vTOK)
    touch1(SRD_CODE, v(TMP + 12), sA)
    I("v_lshlrev_b32", v(TMP + 12), 7, vLANE)
    l = A.newlabel("Lf")
    I("s_cmp_lg_u32", sA, hx(31 << 11))
    I("s_cbranch_scc1", l)
    I("s_add_u32", sB, sPAGE, hx(R_LOC))
    touch1(SRD_WS, v(TMP + 12), sB)
    A.label(l)
    if OPT["mall"]:
        I("s_sub_u32", sA, sLI, 28)
        I("s_lshl_b32", sA, sA, 3)
        I("s_add_u32", sA, sA, sX)
        I("s_lshl_b32", sB, sW, 5)
        I("s_add_u32", sC, sA, sB)
        off = 0
        for k, (srd, n) in enumerate(((SRD_WQKV, 147), (SRD_WO, 49), (SRD_W1, 49), (SRD_W2, 49), (SRD_W3, 196), (SRD_W4, 196))):
            l = A.newlabel("Lml")
            I("s_sub_u32", sA, sC, hx(off))
            I("s_and_b32", sA, sA, hx(255))
            I("s_cmp_ge_u32", sA, hx(n))
            I("s_cbranch_scc1", l)
            I("s_lshl_b32", sA, sA, 13)
            touch1(srd, v(TMP + 12), sA)
            A.label(l)
            off += n
            if k == 0:
                late_consts()
                finish_tag()
                barrier()
                publish_xcc()
    else:
        late_consts()
        finish_tag()
        barrier()
        publish_xcc()
    A.wait_vm_all(force=True)
    stamp("sp_mall")
    if OPT["warm"] > 1:
        touch(SRD_W1, 0, 401408)
        A.wait_vm_all(force=True)
    stamp("sp_warm1")

def spare_post():
    if OPT["warm"]:
        touch_setup()
        I("v_lshlrev_b32", v(TMP + 10), 1, v(TMP + 8))
        for sg in range(2):
            I("s_mov_b32", sA, 128 * sg)
            for i in range(4):
                touch1(SRD_W3, v(TMP + 10), sA)
                I("s_add_u32", sA, sA, hx(32 * 16384))
        stamp("sp_w3")
        touch(SRD_W4, 0, 1605632)
        A.wait_vm_all(force=True)
        stamp("sp_w4")

def reset():
    A.vm = A.vm_done = A.lg = A.lg_done = 0

prologue()
if OPT.get("probe"):
    pk = OPT["probe"]
    if pk in (1, 2):
        I("s_mov_b32", "s36", "s56"); I("s_and_b32", "s37", "s57", hx(0xffff)); I("s_mov_b32", "s38", hx(256 << 20)); I("s_mov_b32", "s39", hx(0x20000))
        base, per = ((64 << 20), 4) if pk == 1 else ((248 << 20), 4)
    else:
        I("s_mov_b32", "s36", "s42"); I("s_and_b32", "s37", "s43", hx(0xffff)); I("s_mov_b32", "s38", hx(1835008)); I("s_mov_b32", "s39", hx(0x20000))
        base, per = 0, 1
    I("s_lshl_b32", sA, "s2", 3)
    I("s_add_u32", sA, sA, sW)
    I("s_mul_i32", sA, sA, hx(per * 1024))
    I("s_add_u32", sA, sA, hx(base))
    for rr_ in range(OPT.get("prep", 1)):
        for i in range(per):
            I("buffer_load_dwordx4", vr(64 + 4 * i, 4), vL16, "s[36:39]", sA, mods="offen offset:%d" % (1024 * i))
    A.wait_vm_all()
    barrier()
    stamp("probe")
I("s_mov_b32", sMODE, 0)
I("s_cmp_ge_u32", sLI, 28)
I("s_cbranch_scc1", "L_spare")
I("s_cmp_ge_u32", sW, 4)
I("s_cbranch_scc1", "L_aload")
phase_a_compute()
I("s_branch", "L_att")
A.label("L_spare")
reset()
spare_pre()
I("s_cmp_ge_u32", sW, 4)
I("s_cbranch_scc1", "L_sp4")
att_ids()
att_consts()
I("s_branch", "L_att")
A.label("L_sp4")
mode_check()
I("s_branch", "L_attpre")
A.label("L_aload")
reset()
phase_a_loader()
A.label("L_attpre")
att_loader_pre()
A.label("L_att")
reset()
phase_b("x")
I("s_cmp_ge_u32", sLI, 28)
I("s_cbranch_scc1", "L_spare2")
I("s_cmp_ge_u32", sW, 4)
I("s_cbranch_scc1", "L_cload")
save = (A.vm, A.vm_done, A.lg, A.lg_done)
c_compute(None)
st = e1("A")
e2_compute(st)
dump_stamps()
I("s_endpgm")
A.label("L_cload")
A.vm, A.vm_done, A.lg, A.lg_done = save
c_loader(None)
st = e1("B")
e2_loader(st)
dump_stamps()
I("s_endpgm")
A.label("L_spare2")
reset()
epoch_update()
I("s_waitcnt", "vmcnt(0)")
barrier()
spare_post()
dump_stamps()
A.label("L_end")
I("s_endpgm")
A.label("L_codeend")

body = A.finalize()
hdr = open("cdna_kernels/%s.s.ref" % NAME).read().split("; Override launch")[0]
out = hdr + "; @launch grid=(256,1,1) block=(512,1,1) lds=%d\n" % LDS_SIZE
out += """.amdgcn_target "amdgcn-amd-amdhsa--gfx950"
.text
.globl %s_kernel
.p2align 8
.type %s_kernel,@function
%s_kernel:
""" % (NAME, NAME, NAME)
out += body
out += """.section .rodata,"a"
.p2align 6
.amdhsa_kernel %s_kernel
  .amdhsa_next_free_vgpr 256
  .amdhsa_next_free_sgpr 102
  .amdhsa_accum_offset 256
  .amdhsa_group_segment_fixed_size 0
  .amdhsa_kernarg_size 88
  .amdhsa_user_sgpr_count 2
  .amdhsa_user_sgpr_kernarg_segment_ptr 1
  .amdhsa_system_sgpr_workgroup_id_x 1
.end_amdhsa_kernel
""" % NAME
open(sys.argv[1], "w").write(out)
json.dump(dict(stamps=stamp_names, PSH=PSH, OFF=dict(Q=R_Q, K=R_K, V=R_V, O=R_O, H=R_H, HH=R_HH, X1=R_X1, G=R_G,
               STAMP=OFF_STAMP, WS=WS_SIZE)), open(sys.argv[1] + ".json", "w"))
```

```python
import sys, struct, json
from asmlib import Asm

NAME = "sequential_preLN__sliding_block__mixer_s_mlp__prompt"
OPT = dict(stamp=0, alias=1, local=1, warm=1, clean=0, npre=5, fk=11, mall=1, ta=1, tb=1)
for a in sys.argv[2:]:
    k, v_ = a.split("=")
    OPT[k] = int(v_)

def f2u(x): return struct.unpack("<I", struct.pack("<f", x))[0]
def hx(x): return "0x%x" % (x & 0xffffffff)
def fl(x): return hx(f2u(x))

TB = 14336
PSH = 21 if OPT["alias"] else 22
R_Q, R_2, R_K, R_V = 0, 16 * TB, 32 * TB, 48 * TB
R_HALO = 64 * TB
R_LOC = R_HALO + 2 * TB
R_FO = R_LOC
R_FHH = R_FO + 2048
R_FQ = R_FHH + 2048
R_FG = R_FQ + 2048
R_SH = R_FG + 2048
R_SX = R_SH + 32768
R_FQKV = R_SX + 32768
R_FHALO = R_FQKV + 16384
R_XCC = R_FHALO + 2048
R_END = R_XCC + 4096
assert R_END <= (1 << 21)
if OPT["alias"]:
    R_O, R_HH, R_H, R_X1 = R_Q, R_Q, R_2, R_2
    R_G = (R_K, R_Q)
else:
    R_H = R_2
    R_O = 1 << 21
    R_X1 = R_O + 16 * TB
    R_HH = R_X1 + 16 * TB
    R_G = (R_HH + 48 * TB, R_HH + 16 * TB)
OFF_EPOCH = 8 << PSH
OFF_STAMP = OFF_EPOCH + 4096
WS_SIZE = OFF_STAMP + 256 * 8 * 256
OOB = 0x40000000

SLOT = 28672
def slot(i): return SLOT * i
L_XIMG = 3 * SLOT
L_QIMG = 5 * SLOT
L_STG = L_QIMG
L_CS1 = L_QIMG + 16384
L_CS3 = L_CS1 + 256
L_MODE = L_CS3 + 1024
L_TAG = L_MODE + 4
L_CNT = L_MODE + 8
LDS_SIZE = 163840

SRD_X, SRD_WQKV, SRD_WO, SRD_W1, SRD_W2, SRD_W3, SRD_W4, SRD_OUT = ["s[%d:%d]" % (4 * i, 4 * i + 3) for i in range(1, 9)]
SRD_WS, SRD_BG = "s[60:63]", "s[64:67]"
sX, sLI, sTG, sJ, sW, sLW, sPAGE, sTAG, sTL = ["s%d" % i for i in range(68, 77)]
sMODE, sJ128, sK, sROT, sXCC = "s77", "s78", "s79", "s80", "s81"
sODD = "s[82:83]"
sA, sB, sC, sD, sE, sF, sG, sH_ = ["s%d" % i for i in range(84, 92)]
sHEAD, sTQ0, sC0, sJP, sT1 = "s92", "s93", "s94", "s95", "s96"
sCNT = "s97"
sST = "s[98:99]"
sD2, sC2 = "s100", "s101"

vLANE, vTOK, vQ4, vL16 = "v0", "v1", "v2", "v3"
vD896, vD2688, vD3584, vD4 = "v4", "v5", "v6", "v44"
TRL = [[7, 8], [9, 10]]
TRC = [[11, 12], [13, 14]]
vTAG = "v15"
ONES = 16
HP = 20
HHP = 28
X1P = 36
vMU, vRH, vSTAMP = 44, 45, "v47"
vSPO, vSPW = 5, 46
ACC = 48
BREG = 64
AREG = 128
TMP = 240

def v(i): return "v%d" % i
def vr(i, n): return "v[%d:%d]" % (i, i + n - 1)

A = Asm()
I = A.I
stamp_names = []
stamp_names_b = ["start", "drained"] + ["sp_mall", "sp_w3", "sp_w4"]
stamp_names += stamp_names_b
ROLE = ["A"]

def stamp(name):
    if not OPT["stamp"]:
        return
    lst = stamp_names_b if ROLE[0] == "B" else stamp_names
    if name not in lst:
        lst.append(name)
    idx = lst.index(name) + 2
    assert idx < 64
    I("s_memtime", sST)
    A.wait_lg_all(force=True)
    I("v_writelane_b32", vSTAMP, "s98", idx)

def barrier():
    I("s_barrier")

def sync_counts():
    A.vm_done = A.vm
    A.lg_done = A.lg

def poll(vOff, sleep=1):
    lp, dn = A.newlabel("Lpoll"), A.newlabel("Lpd")
    t = v(TMP + 15)
    I("s_mov_b32", sCNT, hx(40000))
    A.label(lp)
    I("buffer_load_dword", t, vOff, SRD_WS, 0, mods="offen sc1")
    A.wait_vm_all(force=True)
    I("v_cmp_ne_u32", "vcc", sTAG, t)
    I("s_cbranch_vccz", dn)
    if sleep:
        I("s_sleep", sleep)
    I("s_sub_u32", sCNT, sCNT, 1)
    I("s_cmp_lg_u32", sCNT, 0)
    I("s_cbranch_scc1", lp)
    A.label(dn)

def moded(fn):
    if not OPT["local"]:
        return fn("sc1")
    l1, l2 = A.newlabel("Lsl"), A.newlabel("Lse")
    I("s_cmp_eq_u32", sMODE, 1)
    I("s_cbranch_scc0", l1)
    vm0 = A.vm
    fn("")
    I("s_branch", l2)
    A.label(l1)
    A.vm = vm0
    r = fn("sc1")
    A.label(l2)
    return r

def flag_store(soff, mods="sc1"):
    I("s_mov_b64", "exec", 1)
    r = I("buffer_store_dword", vTAG, "off", SRD_WS, soff, mods=mods)
    I("s_mov_b64", "exec", -1)
    return r

def frag_store(preg, soff, off=0, mods="sc1"):
    m = "offen" + (" offset:%d" % off if off else "") + (" " + mods if mods else "")
    return I("buffer_store_dwordx4", vr(preg, 4), vL16, SRD_WS, soff, mods=m)

def dma_seq(srd, pitch, lds_base, glob, n, mod=None, start=None, w4=None):
    vofs = {896: vD896, 2688: vD2688, 3584: vD3584}[pitch]
    if start is None:
        I("s_mov_b32", sK, 0)
    elif start != "cont":
        I("s_mov_b32", sK, start)
    I("s_lshl_b32", sF, sLW, 10)
    I("s_add_u32", sF, sF, hx(lds_base) if isinstance(lds_base, int) else lds_base)
    if glob[1]:
        I("s_add_u32", sG, glob[0], hx(glob[1]))
    else:
        I("s_mov_b32", sG, glob[0])
    I("s_mov_b32", sCNT, n)
    lp = A.newlabel("Ldma")
    A.label(lp)
    if w4 is None:
        I("s_lshl_b32", sH_, sK, 12)
        I("s_add_u32", "m0", sH_, sF)
        I("s_mul_i32", sH_, sK, hx(32 * pitch))
    else:
        I("s_mov_b32", "m0", sF)
        I("s_add_u32", sF, sF, hx(4096))
        I("s_and_b32", sH_, sK, hx(0xfffe))
        I("s_add_u32", sH_, sH_, sK)
        I("s_mul_i32", sH_, sH_, hx(32 * pitch))
    I("s_add_u32", sH_, sH_, sG)
    I("buffer_load_dwordx4", vofs, srd, sH_, mods="offen lds")
    I("s_add_u32", sK, sK, 1)
    if mod:
        I("s_cmp_eq_u32", sK, mod)
        I("s_cmov_b32", sK, 0)
    I("s_sub_u32", sCNT, sCNT, 1)
    I("s_cmp_lg_u32", sCNT, 0)
    I("s_cbranch_scc1", lp)
    A.vm += n - 1
    return A.vm

def set_tr(base, dst=None, src=None):
    dst = dst or TRC
    src = src or TRL
    if isinstance(base, int):
        I("s_mov_b32", sA, hx(base))
        base = sA
    for b in range(2):
        for a in range(2):
            I("v_add_u32", v(dst[b][a]), base, v(src[b][a]))

def a_frag(dst, f, off, trc=None):
    trc = trc or TRC
    b, a = divmod(f, 2)
    I("ds_read_b64_tr_b16", vr(dst + 4 * f, 2), v(trc[b][a]), mods="offset:%d" % off)
    return I("ds_read_b64_tr_b16", vr(dst + 4 * f + 2, 2), v(trc[b][a]), mods="offset:%d" % (off + 1024))

def a_read(dst, off, trc=None):
    return [a_frag(dst, f, off, trc) for f in range(4)]

def m16(acc, areg, breg, zero):
    I("v_mfma_f32_16x16x32_bf16", vr(acc, 4), vr(areg, 4), vr(breg, 4), "0" if zero else vr(acc, 4))

def gemm(nk, nbuf, npre, aoff, breg, bl=None, bissue=None, zero=True, acc=ACC, areg=AREG, rd=None, fill=None, hook=None):
    if rd is None:
        rd = [a_read(areg + 16 * s, *aoff(s)) for s in range(npre)]
    for s in range(nk):
        if hook:
            hook(s)
        nxt = s + npre
        new = []
        A.wait(vm=bl[s] if bl is not None else None, lg=rd[s][3])
        for f in range(4):
            m16(acc + 4 * f, areg + 16 * (s % nbuf) + 4 * f, breg(s), zero and s == 0)
            if f == 0 and bissue:
                bissue(s)
            if nxt < nk:
                new.append(a_frag(areg + 16 * (nxt % nbuf), f, *aoff(nxt)))
            if fill:
                fill(s, f)
        if nxt < nk:
            rd.append(new)

def stats_reduce(a, b):
    I("v_permlane32_swap_b32", v(a), v(b))
    I("v_add_f32", v(a), v(a), v(b))
    I("v_mov_b32", v(b), v(a))
    I("v_permlane16_swap_b32", v(a), v(b))
    I("v_add_f32", v(a), v(a), v(b))
    I("v_mov_b32", v(b), v(a))
    I("v_permlane32_swap_b32", v(a), v(b))

def mean_var(s_sum, s_sq, mu, var):
    I("v_mul_f32", v(mu), fl(1.0 / 448), v(s_sum))
    I("v_mul_f32", v(var), fl(1.0 / 448), v(s_sq))
    I("v_fma_f32", v(var), "-" + v(mu), v(mu), v(var))
    I("v_max_f32", v(var), 0, v(var))

def rstd(dst, var):
    I("v_add_f32", v(dst), fl(1e-5), v(var))
    I("v_rsq_f32", v(dst), v(dst))

def unswap(p, nfr):
    I("s_mov_b64", "exec", sODD)
    for k in range(nfr):
        I("v_swap_b32", v(p + 4 * k), v(p + 4 * k + 2))
        I("v_swap_b32", v(p + 4 * k + 1), v(p + 4 * k + 3))
    I("s_mov_b64", "exec", -1)

def pack(dst, src, n):
    for i in range(n // 2):
        I("v_cvt_pk_bf16_f32", v(dst + i), v(src + 2 * i), v(src + 2 * i + 1))

def unpack(dst, src, n):
    for i in range(n // 2):
        I("v_lshlrev_b32", v(dst + 2 * i), 16, v(src + i))
        I("v_and_b32", v(dst + 2 * i + 1), hx(0xffff0000), v(src + i))

BC = "op_sel_hi:[1,0]"
def pk_mul_b(d, a, s):
    I("v_pk_mul_f32", vr(d, 2), vr(a, 2), vr(s, 2), mods="op_sel_hi:[1,0]")

GC0 = -2.0 * 0.7978845608028654 * 1.4426950408889634
GC1 = GC0 * 0.044715
def gelu_prep(r, k0, k1, ri):
    I("v_rcp_f32", v(ri), v(r))
    I("v_mul_f32", v(k1), v(r), v(r))
    I("v_mul_f32", v(k0), fl(GC0), v(r))
    I("v_mul_f32", v(k1), v(k1), v(r))
    I("v_mul_f32", v(k1), fl(GC1), v(k1))

def gelu(x, n, t, k0, k1, ri, dst, packed):
    if packed:
        P = range(0, n, 2)
        for i in P: I("v_pk_mul_f32", vr(t + i, 2), vr(x + i, 2), vr(x + i, 2))
        for i in P: I("v_pk_fma_f32", vr(t + i, 2), vr(t + i, 2), vr(k1, 2), vr(k0, 2), mods="op_sel_hi:[1,0,0]")
        for i in P: I("v_pk_mul_f32", vr(t + i, 2), vr(t + i, 2), vr(x + i, 2))
        for i in range(n): I("v_exp_f32", v(t + i), v(t + i))
        for i in P: I("v_pk_fma_f32", vr(t + i, 2), vr(t + i, 2), vr(ri, 2), vr(ri, 2), mods="op_sel_hi:[1,0,0]")
        for i in range(n): I("v_rcp_f32", v(t + i), v(t + i))
        for i in P: I("v_pk_mul_f32", vr(x + i, 2), vr(x + i, 2), vr(t + i, 2))
    else:
        for i in range(n): I("v_mul_f32", v(t + i), v(x + i), v(x + i))
        for i in range(n): I("v_fma_f32", v(t + i), v(t + i), v(k1), v(k0))
        for i in range(n): I("v_mul_f32", v(t + i), v(t + i), v(x + i))
        for i in range(n): I("v_exp_f32", v(t + i), v(t + i))
        for i in range(n): I("v_fma_f32", v(t + i), v(t + i), v(ri), v(ri))
        for i in range(n): I("v_rcp_f32", v(t + i), v(t + i))
        for i in range(n): I("v_mul_f32", v(x + i), v(x + i), v(t + i))
    pack(dst, x, n)

def stat_granule(p):
    a, b = TMP + 8, TMP + 10
    I("v_mov_b32", v(a), 0)
    I("v_mov_b32", v(b), 0)
    for i in range(8):
        I("v_dot2c_f32_bf16", v(a), v(p + i), v(ONES))
        I("v_dot2c_f32_bf16", v(b), v(p + i), v(p + i))
    I("v_mov_b32", v(TMP + 9), vTAG)
    I("v_mov_b32", v(TMP + 11), vTAG)
    stats_reduce(a, b)

def granule_store(m):
    I("s_mov_b64", "exec", hx(0xffff))
    r = I("buffer_store_dwordx4", vr(TMP + 8, 4), vL16, SRD_WS, sD, mods="offen" + (" " + m if m else ""))
    I("s_mov_b64", "exec", -1)
    return r

def stat_aux():
    I("v_cmp_gt_u32", "vcc", 3, vQ4)
    I("v_subrev_u32", v(vSPO), hx(256), vL16)
    I("v_cndmask_b32", v(vSPO), v(vSPO), vL16, "vcc")
    I("v_mov_b32", v(vSPW), 1.0)
    I("v_cndmask_b32", v(vSPW), 0, v(vSPW), "vcc")

def stat_poll(soff):
    lp, dn = A.newlabel("Lpoll"), A.newlabel("Lpd")
    I("s_mov_b32", sCNT, hx(40000))
    A.label(lp)
    I("buffer_load_dwordx4", vr(TMP + 4, 4), vL16, SRD_WS, soff, mods="offen sc1")
    I("buffer_load_dwordx4", vr(TMP + 8, 4), v(vSPO), SRD_WS, soff, mods="offen offset:1024 sc1")
    I("s_sub_u32", sCNT, sCNT, 1)
    A.wait_vm_all(force=True)
    I("v_min3_u32", v(TMP + 12), v(TMP + 5), v(TMP + 7), v(TMP + 9))
    I("v_max3_u32", v(TMP + 13), v(TMP + 5), v(TMP + 7), v(TMP + 9))
    I("v_min3_u32", v(TMP + 12), v(TMP + 12), v(TMP + 11), vTAG)
    I("v_max3_u32", v(TMP + 13), v(TMP + 13), v(TMP + 11), vTAG)
    I("v_cmp_ne_u32", "vcc", v(TMP + 12), v(TMP + 13))
    I("s_cbranch_vccz", dn)
    I("s_cmp_lg_u32", sCNT, 0)
    I("s_cbranch_scc1", lp)
    A.label(dn)

def stat_finish():
    I("v_fmac_f32", v(TMP + 4), v(TMP + 8), v(vSPW))
    I("v_fmac_f32", v(TMP + 6), v(TMP + 10), v(vSPW))
    stats_reduce(TMP + 4, TMP + 6)

def tile_off(dst, reg, stride, tl=sTL, extra=None):
    I("s_mul_i32", dst, tl, hx(stride))
    I("s_add_u32", dst, dst, sPAGE)
    if reg:
        I("s_add_u32", dst, dst, hx(reg))
    if extra:
        I("s_add_u32", dst, dst, extra)

def out_offs(reg, stride, freg, fstride, fsh):
    I("s_lshl_b32", sA, sJ, 11)
    tile_off(sC, reg, stride, extra=sA)
    I("s_lshl_b32", sA, sJ, fsh)
    tile_off(sD, freg, fstride, extra=sA)

def flag_poll_off(dst, n, freg, fstride, shift, tl=sTL):
    I("v_min_u32", v(dst), n - 1, vLANE)
    tile_off(sA, freg, fstride, tl)
    I("v_lshl_add_u32", v(dst), v(dst), shift, sA)

class BLoads:
    def __init__(self, n, soff, vaddr=None, breg=BREG):
        self.n, self.vaddr, self.breg, self.ids = n, vaddr, breg, {}
        for q in range(4):
            I("s_add_u32", "s%d" % (50 + q), soff, hx(4096 * q))
    def issue(self, i):
        if i >= self.n:
            return
        va = self.vaddr(i) if self.vaddr else vL16
        o = (1024 * i) & 4095
        self.ids[i] = I("buffer_load_dwordx4", vr(self.breg + 4 * i, 4), va, SRD_WS, "s%d" % (50 + i // 4),
                        mods="offen" + (" offset:%d" % o if o else "") + " sc1")
    def first(self):
        for i in range(OPT["npre"]):
            self.issue(i)
    def more(self, s):
        self.issue(s + OPT["npre"])
    def last_step(self):
        return self.n - OPT["npre"]

def only(grp, fn):
    l = A.newlabel("Lo")
    I("s_cmp_lt_u32" if grp == "B" else "s_cmp_ge_u32", sW, 4)
    I("s_cbranch_scc1", l)
    sv = (A.vm, A.vm_done, A.lg, A.lg_done)
    fn()
    A.vm, A.vm_done, A.lg, A.lg_done = sv
    A.label(l)

def main_only(fn):
    l = A.newlabel("Lm")
    I("s_cmp_ge_u32", sLI, 28)
    I("s_cbranch_scc1", l)
    sv = (A.vm, A.vm_done, A.lg, A.lg_done)
    fn()
    A.vm, A.vm_done, A.lg, A.lg_done = sv
    A.label(l)

vJUNK = v(254)
def touch1(srd, vofs, soff, mods=""):
    return I("buffer_load_dword", vJUNK, vofs, srd, soff, mods="offen" + (" " + mods if mods else ""))

def grp_touch(srd, base, stride_sh, count):
    I("s_lshl_b32", sA, sLW, 5)
    I("s_add_u32", sA, sA, sLI)
    I("s_lshl_b32", sA, sA, 6 + stride_sh)
    I("v_lshlrev_b32", v(TMP + 12), stride_sh, vLANE)
    if base:
        I("s_add_u32", sA, sA, hx(base))
    for i in range(count):
        touch1(srd, v(TMP + 12), sA)
        if i + 1 < count:
            I("s_add_u32", sA, sA, hx(128 * 64 << stride_sh))

def tr_lane(dst, qadd):
    t0, t1, t2, t3 = TMP, TMP + 1, TMP + 2, TMP + 3
    if qadd:
        I("v_add_u32", v(t3), qadd, vQ4)
        q = v(t3)
    else:
        q = vQ4
    I("v_bfe_u32", v(t0), vLANE, 2, 2)
    I("v_and_b32", v(t1), 1, q)
    I("v_lshl_add_u32", v(t2), v(t1), 2, v(t0))
    I("v_lshrrev_b32", v(t3), 1, q)
    I("v_lshl_add_u32", v(t2), v(t3), 4, v(t2))
    I("v_lshrrev_b32", v(t0), 1, v(t0))
    I("v_lshl_or_b32", v(t0), v(t1), 2, v(t0))
    I("v_and_b32", v(t1), 3, vLANE)
    I("v_xor_b32", v(t0), v(t0), v(t1))
    I("v_lshlrev_b32", v(t0), 4, v(t0))
    I("v_lshl_add_u32", v(t0), v(t2), 7, v(t0))
    I("v_and_b32", v(t1), 1, v(t1))
    I("v_lshl_or_b32", v(dst[0][0]), v(t1), 3, v(t0))
    I("v_xor_b32", v(dst[0][1]), 8, v(dst[0][0]))
    I("v_xor_b32", v(dst[1][0]), 64, v(dst[0][0]))
    I("v_xor_b32", v(dst[1][1]), 64, v(dst[0][1]))

SRDS = {4: (36, 1835008), 8: (38, 448 * 1344 * 2), 60: (56, WS_SIZE), 12: (40, 448 * 448 * 2), 16: (44, 448 * 448 * 2),
        20: (46, 448 * 448 * 2), 24: (48, 448 * 1792 * 2), 28: (50, 448 * 1792 * 2), 32: (52, 1835008)}
def srds(which):
    for d in which:
        src, n = SRDS[d]
        I("s_mov_b32", "s%d" % d, "s%d" % src)
        I("s_and_b32", "s%d" % (d + 1), "s%d" % (src + 1), hx(0xffff))
        I("s_mov_b32", "s%d" % (d + 2), hx(n))
        I("s_mov_b32", "s%d" % (d + 3), hx(0x20000))

def prologue():
    I("s_cmp_ge_u32", "s2", hx(256))
    I("s_cbranch_scc1", "L_end")
    if OPT["stamp"]:
        I("v_mov_b32", vSTAMP, 0)
        I("s_memrealtime", sST)
        A.wait_lg_all(force=True)
        I("v_writelane_b32", vSTAMP, "s98", 0)
        stamp("start")
    I("s_load_dwordx16", "s[36:51]", "s[0:1]", 0)
    I("s_load_dwordx4", "s[52:55]", "s[0:1]", 64)
    I("s_load_dwordx2", "s[56:57]", "s[0:1]", 80)
    I("v_lshrrev_b32", v(TMP), 6, "v0")
    I("v_and_b32", vLANE, 63, "v0")
    I("v_readfirstlane_b32", sW, v(TMP))
    I("s_and_b32", sX, "s2", 7)
    I("s_lshr_b32", sLI, "s2", 3)
    I("s_mul_i32", sTG, sLI, 37)
    I("s_lshr_b32", sTG, sTG, 8)
    I("s_mul_i32", sROT, sTG, 7)
    I("s_sub_u32", sJ, sLI, sROT)
    I("s_lshr_b32", sROT, sROT, 1)
    I("s_lshl_b32", sJ128, sJ, 7)
    I("s_and_b32", sLW, sW, 3)
    I("s_lshl_b32", sTL, sTG, 2)
    I("s_add_u32", sTL, sTL, sLW)
    I("s_lshl_b32", sPAGE, sX, PSH)
    I("v_lshrrev_b32", vQ4, 4, vLANE)

def dma_lane_consts():
    t0, t1, t2 = TMP, TMP + 1, TMP + 2
    I("v_bfe_u32", v(t0), vLANE, 3, 2)
    I("v_lshrrev_b32", v(t1), 5, vLANE)
    I("v_lshl_add_u32", v(t2), v(t1), 3, v(t0))
    I("s_and_b32", sA, sLW, 1)
    I("s_lshl_b32", sA, sA, 2)
    I("s_and_b32", sB, sLW, 2)
    I("s_lshl_b32", sB, sB, 3)
    I("s_add_u32", sA, sA, sB)
    I("v_add_u32", v(t2), sA, v(t2))
    I("v_lshrrev_b32", v(t0), 1, v(t0))
    I("v_lshl_or_b32", v(t0), v(t1), 2, v(t0))
    I("v_and_b32", v(t1), 7, vLANE)
    I("v_xor_b32", v(t0), v(t0), v(t1))
    I("v_lshlrev_b32", v(t0), 4, v(t0))
    for reg, pitch in ((vD896, 896), (vD2688, 2688)):
        I("v_mul_u32_u24", reg, hx(pitch), v(t2))
        I("v_add_u32", reg, reg, v(t0))
    I("v_and_b32", v(t0), 16, vLANE)
    I("v_lshrrev_b32", v(t0), 2, v(t0))
    I("v_xor_b32", v(t0), v(t0), v(t1))
    I("v_lshlrev_b32", v(t0), 4, v(t0))
    for reg, pitch in ((vD4, 896), (vD3584, 3584)):
        I("v_mul_u32_u24", reg, hx(pitch), v(t2))
        I("v_add_u32", reg, reg, v(t0))

def late_consts():
    I("v_and_b32", vTOK, 15, vLANE)
    I("v_lshlrev_b32", vL16, 4, vLANE)
    I("s_mov_b32", "s82", hx(0xffff0000))
    I("s_mov_b32", "s83", hx(0xffff0000))
    I("s_lshr_b32", sA, sTG, 1)
    I("s_mul_i32", sJP, sA, 14)
    I("s_sub_u32", sJP, sLI, sJP)
    I("s_mov_b32", sMODE, 0)
    tr_lane(TRL, 0)
    for i in range(4):
        I("v_mov_b32", v(ONES + i), hx(0x3f803f80))
    for i in range(36, 44):
        I("v_mov_b32", v(i), 0)

def epoch_load():
    l = A.newlabel("Lel")
    I("s_add_u32", "s58", "s56", hx(OFF_EPOCH))
    I("s_addc_u32", "s59", "s57", 0)
    I("s_cmp_lg_u32", sW, 4)
    I("s_cbranch_scc1", l)
    I("s_load_dword", sTAG, "s[58:59]", 0)
    A.label(l)

def tag_publish():
    l = A.newlabel("Lpx")
    I("s_getreg_b32", sXCC, "hwreg(HW_REG_XCC_ID)")
    I("s_and_b32", sXCC, sXCC, 15)
    I("s_cmp_lg_u32", sW, 4)
    I("s_cbranch_scc1", l)
    I("s_lshl_b32", sC, sLI, 7)
    I("s_add_u32", sC, sC, sPAGE)
    I("s_add_u32", sC, sC, hx(R_XCC))
    I("v_mov_b32", v(TMP + 12), hx(L_TAG))
    I("s_waitcnt", "lgkmcnt(0)")
    I("s_mul_i32", sTAG, sTAG, hx(1664525))
    I("s_add_u32", sTAG, sTAG, hx(1013904223))
    I("v_mov_b32", vTAG, sTAG)
    I("s_add_u32", sA, sTAG, sXCC)
    I("v_mov_b32", v(TMP + 13), sA)
    I("ds_write_b32", v(TMP + 12), vTAG)
    I("v_mov_b32", v(TMP + 10), 0)
    I("ds_write_b32", v(TMP + 12), v(TMP + 10), mods="offset:4")
    I("ds_write_b32", v(TMP + 12), v(TMP + 10), mods="offset:8")
    A.lg -= 3
    I("s_mov_b64", "exec", 1)
    I("buffer_store_dword", v(TMP + 13), "off", SRD_WS, sC, mods="sc1")
    A.vm -= 1
    I("s_mov_b64", "exec", -1)
    I("s_waitcnt", "lgkmcnt(0)")
    A.label(l)

def tag_read_issue():
    I("v_mov_b32", vTAG, hx(L_TAG))
    return I("ds_read_b32", vTAG, vTAG)

def tag_read_finish(r):
    A.wait(lg=r)
    I("v_readfirstlane_b32", sTAG, vTAG)

def phase_a_compute():
    A.cmt("---- phase A compute")
    t0, t1, t2, t3 = TMP + 4, TMP + 5, TMP + 6, TMP + 7
    I("v_lshrrev_b32", v(t0), 3, vLANE)
    I("v_and_b32", v(t2), 7, vLANE)
    I("v_xor_b32", v(t1), vQ4, v(t2))
    I("v_mul_u32_u24", v(t0), hx(896), v(t0))
    I("v_lshl_add_u32", v(t2), v(t1), 4, v(t0))
    I("v_xor_b32", v(t1), 4, v(t1))
    I("v_lshl_add_u32", v(t3), v(t1), 4, v(t0))
    I("s_lshl_b32", sA, sX, 4)
    I("s_add_u32", sA, sA, sTL)
    I("s_mul_i32", sB, sA, hx(16 * 896))
    I("s_mul_i32", sF, sLW, hx(TB))
    I("s_add_u32", sF, sF, hx(L_XIMG))
    I("s_mov_b32", sK, sJ)
    I("s_mov_b32", sCNT, 7)
    A.wait_lg_all(force=True)
    stamp("kernarg")
    srds([4])
    A.label("L_xdma")
    I("s_lshl_b32", sA, sK, 11)
    I("s_add_u32", "m0", sA, sF)
    I("s_lshl_b32", sA, sK, 7)
    I("s_add_u32", sA, sA, sB)
    I("s_add_u32", sE, sA, hx(8 * 896 - 1024))
    I("buffer_load_dwordx4", v(t2), SRD_X, sA, mods="offen lds")
    I("buffer_load_dwordx4", v(t3), SRD_X, sE, mods="offen offset:1024 lds")
    I("s_add_u32", sK, sK, 1)
    I("s_cmp_eq_u32", sK, 7)
    I("s_cmov_b32", sK, 0)
    I("s_sub_u32", sCNT, sCNT, 1)
    I("s_cmp_lg_u32", sCNT, 0)
    I("s_cbranch_scc1", "L_xdma")
    barrier()
    srds([8, 60, 12, 16, 20, 24, 28, 32])
    late_consts()
    I("v_lshrrev_b32", v(t0), 1, vTOK)
    I("v_xor_b32", v(t0), v(t0), vQ4)
    I("v_lshlrev_b32", v(t0), 4, v(t0))
    I("v_lshl_add_u32", v(t0), vTOK, 7, v(t0))
    I("v_add_u32", v(t0), sF, v(t0))
    I("v_xor_b32", v(t1), 64, v(t0))
    I("s_lshl_b32", sA, sJ, 11)
    I("v_add_u32", v(t2), sA, v(t0))
    I("v_add_u32", v(t3), sA, v(t1))
    A.wait_vm_all()
    stamp("x_dma")
    xl = [I("ds_read_b128", vr(BREG + 4 * s, 4), v(t1 if s & 1 else t0), mods="offset:%d" % (2048 * (s >> 1))) for s in range(14)]
    I("ds_read_b128", vr(HP, 4), v(t2))
    xr = I("ds_read_b128", vr(HP + 4, 4), v(t3))
    s_sum, s_sq = TMP + 4, TMP + 5
    s_sum, s_sq = TMP + 2, TMP + 3
    I("v_mov_b32", v(s_sum), 0)
    I("v_mov_b32", v(s_sq), 0)
    for s in range(14):
        A.wait(lg=xl[s])
        for i in range(4):
            I("v_dot2c_f32_bf16", v(s_sum), v(BREG + 4 * s + i), v(ONES))
            I("v_dot2c_f32_bf16", v(s_sq), v(BREG + 4 * s + i), v(BREG + 4 * s + i))
    stamp("x_landed")
    stats_reduce(s_sum, s_sq)
    mu, var, r = TMP + 6, TMP + 7, TMP + 8
    mean_var(s_sum, s_sq, mu, var)
    rstd(r, var)
    I("v_mul_f32", v(mu), "-" + v(mu), v(r), mods="") if False else I("v_mul_f32", v(mu), v(mu), v(r))
    I("v_sub_f32", v(mu), 0, v(mu))
    for i in range(56):
        lo = TMP + 10 + 2 * (i & 1)
        I("v_lshlrev_b32", v(lo), 16, v(BREG + i))
        I("v_and_b32", v(lo + 1), hx(0xffff0000), v(BREG + i))
        I("v_pk_fma_f32", vr(lo, 2), vr(lo, 2), vr(r, 2), vr(mu, 2), mods="op_sel_hi:[1,0,0]")
        if i:
            p = TMP + 10 + 2 * ((i - 1) & 1)
            I("v_cvt_pk_bf16_f32", v(BREG + i - 1), v(p), v(p + 1))
    I("v_cvt_pk_bf16_f32", v(BREG + 55), v(TMP + 12), v(TMP + 13))
    A.wait(lg=xr)
    unswap(HP, 2)
    stamp("ln_done")
    TR2 = [[120, 121], [122, 123]]
    pend = [None]

    def strip(i):
        if i == 0:
            set_tr(slot(0))
            aoff = lambda s: (4096 * s, TRC)
        else:
            s1, s2 = ((2, 3), (4, 0))[i - 1]
            I("s_mov_b32", sB, hx(slot(s1)))
            I("s_mov_b32", sE, hx(slot(s2)))
            I("s_bitcmp1_b32", sTG, 0)
            I("s_cselect_b32", sF, sE, sB)
            I("s_cselect_b32", sE, sB, sE)
            set_tr(sF)
            set_tr(sE, dst=TR2)
            aoff = lambda s: (4096 * (s % 7), TRC if s < 7 else TR2)
        if i == 2 and OPT["local"]:
            I("v_mov_b32", v(TMP + 9), hx(L_MODE))
        barrier()
        stamp("strip%d_landed" % i)
        if i == 0:
            tg_ = tag_read_issue()
        if i == 2 and OPT["local"]:
            I("ds_read_b32", v(TMP + 9), v(TMP + 9))
        def hook(s):
            if s == OPT["fk"] and pend[0] is not None:
                A.wait(vm=pend[0])
                flag_store(sD)
                stamp("flag%d" % (i - 1))
        gemm(14, 4, 2, aoff, lambda s: BREG + 4 * s, hook=hook)
        if i == 0:
            tag_read_finish(tg_)
        if i < 2:
            out_offs((R_K, R_V)[i], TB, R_FQKV + 4 * i, 1024, 7)
        else:
            out_offs(R_Q, TB, R_FQ, 128, 2)
            if OPT["local"]:
                I("v_readfirstlane_b32", sMODE, v(TMP + 9))
            I("v_mov_b32", v(TMP + 8), fl(1.4426950408889634 / 28 ** 0.5))
            for k in range(0, 16, 2):
                pk_mul_b(ACC + k, ACC + k, TMP + 8)
        pack(TMP, ACC, 16)
        unswap(TMP, 2)
        if i < 2:
            frag_store(TMP, sC)
            pend[0] = frag_store(TMP + 4, sC, 1024)
        else:
            pend[0] = store_out(TMP)
    for i in range(3):
        strip(i)
    stamp("q_stored")
    att_ids()
    att_consts()
    ack_flag(pend[0], "q_flag")
    dma_lane_consts()
    I("v_mov_b32", vD896, vD4)
    c_setup()

def half_bases(col):
    I("s_bitcmp1_b32", sTG, 0)
    I("s_cselect_b32", sB, hx(224 * 2688), 0)
    I("s_cselect_b32", sE, 0, hx(224 * 2688))
    I("s_add_u32", sB, sB, sJ128)
    I("s_add_u32", sE, sE, sJ128)

def phase_a_loader():
    A.cmt("---- phase A loader")
    dma_lane_consts()
    half_bases(0)
    A.wait_lg_all(force=True)
    epoch_load()
    srds([8, 60, 4, 12, 16, 20, 24, 28, 32])
    late_consts()
    barrier()
    dma_seq(SRD_WQKV, 2688, slot(0), (sJ128, 896), 4, mod=14, start=sROT)
    tag_publish()
    d0 = dma_seq(SRD_WQKV, 2688, slot(0), (sJ128, 896), 10, mod=14, start="cont")
    dma_seq(SRD_WQKV, 2688, slot(2), (sB, 1792), 7)
    A.wait(vm=d0)
    barrier()
    tag_read_finish(tag_read_issue())
    mode_issue()
    d1 = dma_seq(SRD_WQKV, 2688, slot(3), (sE, 1792), 7)
    dma_seq(SRD_WQKV, 2688, slot(4), (sB, 0), 7)
    A.wait(vm=d1)
    barrier()
    d2 = dma_seq(SRD_WQKV, 2688, slot(0), (sE, 0), 7)
    mode_check()
    att_ids()
    att_consts_b()
    kv_poll_off(TMP + 4, 0)
    A.wait(vm=d2)
    barrier()
    dma_seq(SRD_WO, 896, slot(3), (sJ128, 0), 7)

L_KIMG, L_VIMG = slot(1), slot(2)
def att_ids():
    I("s_and_b32", sHEAD, sLI, 15)
    I("s_lshr_b32", sA, sLI, 4)
    I("s_lshl_b32", sA, sA, 3)
    I("s_lshl_b32", sTQ0, sX, 4)
    I("s_add_u32", sTQ0, sTQ0, sA)
    I("s_mul_i32", sC0, sHEAD, 7)
    I("s_lshr_b32", sC0, sC0, 1)
    I("s_lshl_b32", sA, sLW, 1)
    I("s_add_u32", sT1, sTQ0, sA)

def kv_poll_off(dst, e):
    t0, t2, t3 = TMP, TMP + 2, TMP + 3
    I("s_lshr_b32", sA, sC0, 3)
    I("s_add_u32", sB, sC0, 3)
    I("s_lshr_b32", sB, sB, 3)
    I("s_sub_u32", sB, sB, sA)
    I("v_and_b32", v(t0), sB, vLANE)
    I("v_add_u32", v(t0), sA, v(t0))
    I("v_lshrrev_b32", v(t2), 1, vLANE)
    if e is None:
        I("s_and_b32", sA, sTQ0, 15)
        I("s_lshl_b32", sB, sLW, 1)
        I("s_add_u32", sA, sA, sB)
        I("v_and_b32", v(t2), 1, v(t2))
        I("v_add_u32", v(t2), sA, v(t2))
        I("v_lshlrev_b32", v(t0), 2, v(t0))
        I("v_lshl_add_u32", v(t0), v(t2), 7, v(t0))
        I("s_add_u32", sA, sPAGE, hx(R_FQ))
        I("v_add_u32", v(dst), sA, v(t0))
        return
    I("v_lshlrev_b32", v(t0), 7, v(t0))
    I("s_mul_i32", sA, sLW, 6)
    I("s_add_u32", sA, sA, sTQ0)
    I("s_sub_u32", sA, sA, 16)
    I("v_min_u32", v(t2), 5, v(t2))
    I("v_add_u32", v(t3), sA, v(t2))
    I("v_max_i32", v(t3), 0, v(t3))
    I("v_lshrrev_b32", v(dst), 4, v(t3))
    I("v_lshlrev_b32", v(dst), PSH, v(dst))
    I("v_add_u32", v(dst), v(dst), v(t0))
    I("v_and_b32", v(t0), 15, v(t3))
    I("v_lshl_add_u32", v(dst), v(t0), 10, v(dst))
    I("v_add_u32", v(dst), hx(R_FQKV + 4 * e), v(dst))

def kv_dma(reg, img, vsrc):
    last = None
    I("s_mul_i32", sC, sLW, 6)
    I("s_lshl_b32", sF, sC, 10)
    I("s_add_u32", sF, sF, hx(img))
    I("s_add_u32", sC, sC, sTQ0)
    I("s_sub_u32", sC, sC, 16)
    I("s_lshl_b32", sE, sC0, 8)
    I("s_add_u32", sE, sE, hx(reg))
    for i in range(6):
        I("s_add_u32", "m0", sF, hx(1024 * i))
        I("s_add_u32", sA, sC, i)
        I("s_lshr_b32", sB, sA, 4)
        I("s_lshl_b32", sB, sB, PSH)
        I("s_and_b32", sG, sA, 15)
        I("s_mul_i32", sG, sG, hx(TB))
        I("s_add_u32", sB, sB, sG)
        I("s_add_u32", sB, sB, sE)
        I("s_cmp_lt_i32", sA, 0)
        I("s_cmov_b32", sB, hx(OOB))
        last = I("buffer_load_dwordx4", vsrc, SRD_WS, sB, mods="offen sc1 lds")
    return last

def w1_touches():
    I("s_cmp_lt_u32", sLW, 2)
    I("s_cselect_b32", "s64", "s12", "s16")
    I("s_cselect_b32", "s65", "s13", "s17")
    I("s_mov_b32", "s66", hx(448 * 448 * 2))
    I("s_mov_b32", "s67", hx(0x20000))
    I("s_and_b32", sA, sLW, 1)
    I("s_mul_i32", sA, sA, 28)
    I("s_add_u32", sA, sA, sLI)
    I("s_lshl_b32", sA, sA, 13)
    I("v_lshlrev_b32", v(TMP + 12), 7, vLANE)
    touch1(SRD_BG, v(TMP + 12), sA)
    I("s_lshl_b32", sA, sJ, 11)
    tile_off(sC, R_2, TB, extra=sA)
    I("v_lshlrev_b32", v(TMP + 12), 7, vTOK)
    touch1(SRD_WS, v(TMP + 12), sC)
    if not OPT["alias"]:
        for reg in (R_X1, R_HH, R_O, R_G[0], R_G[0] + 16 * TB, R_G[1], R_G[1] + 16 * TB):
            tile_off(sC, reg, TB, extra=sA)
            touch1(SRD_WS, v(TMP + 12), sC)
    I("s_lshl_b32", sA, sJ, 8)
    tile_off(sC, R_SH, 2048, extra=sA)
    I("v_and_b32", v(TMP + 12), 1, vLANE)
    I("v_lshlrev_b32", v(TMP + 12), 7, v(TMP + 12))
    I("v_and_b32", v(TMP + 13), 2, vLANE)
    I("v_lshl_add_u32", v(TMP + 12), v(TMP + 13), 14, v(TMP + 12))
    touch1(SRD_WS, v(TMP + 12), sC)

def w2_touches():
    I("s_lshl_b32", sA, sLW, 5)
    I("s_add_u32", sA, sA, sLI)
    I("s_sub_u32", sB, hx(127), sA)
    I("s_lshl_b32", sA, sA, 14)
    I("s_lshl_b32", sB, sB, 13)
    I("v_lshlrev_b32", v(TMP + 12), 7, vLANE)
    I("v_lshlrev_b32", v(TMP + 13), 8, vLANE)
    touch1(SRD_W2, v(TMP + 12), sB)
    touch1(SRD_W3, v(TMP + 13), sA)
    if OPT["ta"] > 1:
        I("s_add_u32", sA, sA, hx(128))
        touch1(SRD_W3, v(TMP + 13), sA)

def mode_issue():
    if not OPT["local"]:
        return
    I("v_and_b32", v(TMP + 6), 31, vLANE)
    I("s_add_u32", sA, sPAGE, hx(R_XCC))
    I("v_lshl_add_u32", v(TMP + 6), v(TMP + 6), 7, sA)
    l = A.newlabel("Lmi")
    I("s_cmp_lg_u32", sW, 4)
    I("s_cbranch_scc1", l)
    I("buffer_load_dword", v(TMP + 7), v(TMP + 6), SRD_WS, 0, mods="offen sc1")
    A.vm -= 1
    A.label(l)

def mode_check():
    if not OPT["local"]:
        return
    l = A.newlabel("Lmc")
    I("s_cmp_lg_u32", sW, 4)
    I("s_cbranch_scc1", l)
    sv = (A.vm, A.vm_done, A.lg, A.lg_done)
    lp, dn = A.newlabel("Lpoll"), A.newlabel("Lpd")
    I("s_mov_b32", sCNT, hx(40000))
    A.label(lp)
    I("v_subrev_u32", v(TMP + 7), sTAG, v(TMP + 7))
    I("v_cmp_le_u32", "vcc", 16, v(TMP + 7))
    I("s_cbranch_vccz", dn)
    I("s_sub_u32", sCNT, sCNT, 1)
    I("s_cmp_eq_u32", sCNT, 0)
    I("s_cbranch_scc1", dn)
    I("s_sleep", 4)
    I("buffer_load_dword", v(TMP + 7), v(TMP + 6), SRD_WS, 0, mods="offen sc1")
    A.wait_vm_all(force=True)
    I("s_branch", lp)
    A.label(dn)
    I("v_cmp_ne_u32", "vcc", sXCC, v(TMP + 7))
    I("s_cmp_eq_u64", "vcc", 0)
    I("s_cselect_b32", sA, 1, 0)
    I("v_mov_b32", v(TMP), sA)
    I("v_mov_b32", v(TMP + 1), hx(L_MODE))
    I("ds_write_b32", v(TMP + 1), v(TMP))
    A.wait_lg_all(force=True)
    A.vm, A.vm_done, A.lg, A.lg_done = sv
    A.label(l)

def att_loader_pre():
    poll(v(TMP + 4), sleep=2)
    stamp("k_ready")
    kv_dma(R_K, L_KIMG, vL16)
    kv_poll_off(TMP + 5, None)
    kv_poll_off(TMP + 4, 1)
    I("s_and_b32", sA, sTQ0, 15)
    I("s_lshl_b32", sB, sLW, 1)
    I("s_add_u32", sA, sA, sB)
    I("s_lshl_b32", sE, sC0, 8)
    tile_off(sC, R_Q, TB, tl=sA, extra=sE)
    I("s_lshl_b32", sB, sB, 10)
    I("s_add_u32", "m0", sB, hx(L_QIMG))
    I("s_add_u32", sE, sC, hx(TB - 1024))
    poll(v(TMP + 5), sleep=0)
    stamp("q_ready")
    I("buffer_load_dwordx4", vL16, SRD_WS, sC, mods="offen sc1 lds")
    dq = I("buffer_load_dwordx4", vL16, SRD_WS, sE, mods="offen offset:1024 sc1 lds")
    VP[0] = I("buffer_load_dword", v(TMP + 7), v(TMP + 4), SRD_WS, 0, mods="offen sc1")
    A.wait(vm=dq)
VP = [None]

mLo, mHi, vQR, vMD, vKR, vVR0, vVR1 = 96, 97, 98, 99, 100, 101, 102
vVS = 96
def att_consts_b():
    I("v_and_b32", v(vVS), 32, vLANE)
    I("v_lshlrev_b32", v(vVS), 2, v(vVS))
    I("v_xor_b32", v(vVS), v(vVS), vL16)

def att_consts():
    t0, t1, t2 = TMP + 8, TMP + 9, TMP + 10
    I("s_and_b32", sA, sHEAD, 1)
    I("s_cmp_eq_u32", sA, 1)
    I("s_cselect_b32", sB, 0, 9)
    I("s_cselect_b32", sE, 9, 3)
    I("v_mov_b32", v(t0), -1)
    I("v_cmp_ne_u32", "vcc", sB, vQ4)
    I("v_cndmask_b32", v(mLo), 0, v(t0), "vcc")
    I("v_cmp_ne_u32", "vcc", sE, vQ4)
    I("v_cndmask_b32", v(mHi), 0, v(t0), "vcc")
    I("s_lshl_b32", sA, sLW, 11)
    I("s_add_u32", sB, sA, hx(L_KIMG))
    I("v_add_u32", v(vKR), sB, vL16)
    I("v_and_b32", v(t0), 3, vLANE)
    I("v_lshrrev_b32", v(t1), 2, vLANE)
    I("v_and_b32", v(t2), 2, v(t0))
    I("v_lshlrev_b32", v(t2), 2, v(t2))
    I("v_xor_b32", v(t1), v(t1), v(t2))
    I("v_lshlrev_b32", v(t1), 4, v(t1))
    I("v_lshl_add_u32", v(t1), v(t0), 8, v(t1))
    I("v_and_b32", v(t0), 1, v(t0))
    I("v_lshl_or_b32", v(t1), v(t0), 3, v(t1))
    I("s_add_u32", sB, sA, hx(L_VIMG))
    I("v_add_u32", v(vVR0), sB, v(t1))
    I("v_xor_b32", v(vVR1), 8, v(vVR0))
    I("s_add_u32", sB, sA, hx(L_QIMG))
    I("v_add_u32", v(vQR), sB, vL16)
    I("v_mov_b32", v(vMD), hx(L_MODE))
    I("v_lshlrev_b32", v(t0), 2, vQ4)
    for i, sm in enumerate(MSK):
        I("v_add_u32", v(t1), i, v(t0))
        I("v_cmp_gt_u32", sm, v(t1), vTOK)
    I("s_and_b32", sB, sT1, 15)
    I("s_lshl_b32", sA, sC0, 8)
    tile_off("s44", R_O, TB, tl=sB, extra=sA)
    I("s_lshl_b32", sA, sHEAD, 2)
    tile_off("s59", R_FO, 128, tl=sB, extra=sA)
    I("s_bitcmp1_b32", sHEAD, 0)
    I("s_cselect_b32", "s42", hx(0xffff), 0)
    I("s_cselect_b32", "s43", 0, hx(0xffff0000))
    I("s_cselect_b32", "s46", 8, 0)
    I("s_mov_b32", "s48", hx(0xffff))
    I("s_mov_b32", "s49", 0)
    I("s_not_b64", "s[40:41]", "s[42:43]")
    I("s_add_u32", "s46", "s46", "s44")
    I("s_add_u32", "s45", "s44", hx(TB))
    I("s_add_u32", "s47", "s46", hx(TB))
MSK = ["s[36:37]", "s[38:39]", "s[50:51]", "s[52:53]"]

def att_a():
    A.cmt("---- attention (A waves)")
    OA, QF, KF, VF, SA, SB = 48, 72, 80, 72, 104, 172
    S = lambda q, t: (SA + 4 * t) if q == 0 else (SB + 4 * (t - 1))
    NEG = TMP + 5
    M = [[TMP + 6, TMP + 8], [TMP + 10, TMP + 12]]
    I("v_mov_b32", v(NEG), hx(0xff800000))
    barrier()
    stamp("kq_landed")
    I("ds_read_b128", vr(QF, 4), v(vQR))
    q = I("ds_read_b128", vr(QF + 4, 4), v(vQR), mods="offset:1024")
    if OPT["local"]:
        q = I("ds_read_b32", v(vMD), v(vMD))
    rd0 = [I("ds_read_b128", vr(KF + 4 * i, 4), v(vKR), mods="offset:%d" % (1024 * i)) for i in range(4)]
    for qq in range(2):
        for k in range(2):
            I("v_mov_b32", v(M[qq][k]), v(NEG))
    A.wait(lg=q)
    if OPT["local"]:
        I("v_readfirstlane_b32", sMODE, v(vMD))
    for i in range(8):
        I("v_and_b32", v(QF + i), v((mLo, mLo, mHi, mHi)[i & 3]), v(QF + i))

    def post(t):
        for qq in range(2):
            if not (qq <= t <= 16 + qq):
                continue
            r = S(qq, t)
            if t == qq:
                for i in range(4):
                    I("v_cndmask_b32", v(r + i), v(NEG), v(r + i), MSK[i])
            if t == 16 + qq:
                for i in range(4):
                    I("v_cndmask_b32", v(r + i), v(r + i), v(NEG), MSK[i])
            I("v_max3_f32", v(M[qq][0]), v(M[qq][0]), v(r), v(r + 1))
            I("v_max3_f32", v(M[qq][1]), v(M[qq][1]), v(r + 2), v(r + 3))

    def sphase(check):
        rd = list(rd0)
        for t in range(18):
            A.wait(lg=rd[t])
            if check and t < 16:
                l1, l2 = A.newlabel("Lsv"), A.newlabel("Lsv")
                I("s_cmp_ge_u32", sT1, 16 - t)
                I("s_cbranch_scc1", l1)
                for qq in range(2):
                    if qq <= t <= 16 + qq:
                        for i in range(4):
                            I("v_mov_b32", v(S(qq, t) + i), v(NEG))
                I("s_branch", l2)
                A.label(l1)
            for qq in range(2):
                if qq <= t <= 16 + qq:
                    I("v_mfma_f32_16x16x32_bf16", vr(S(qq, t), 4), vr(KF + 4 * (t % 4), 4), vr(QF + 4 * qq, 4), "0")
            if check and t < 16:
                A.label(l2)
            if t + 4 < 18:
                rd.append(I("ds_read_b128", vr(KF + 4 * (t % 4), 4), v(vKR), mods="offset:%d" % (1024 * (t + 4))))
            if t >= 2:
                post(t - 2)
        post(16)
        post(17)
    lx0, lsd = A.newlabel("Lx0"), A.newlabel("Lsd")
    I("s_cmp_lt_u32", sT1, 16)
    I("s_cbranch_scc1", lx0)
    sv = (A.lg, A.lg_done)
    sphase(False)
    I("s_branch", lsd)
    A.label(lx0)
    A.lg, A.lg_done = sv
    sphase(True)
    A.label(lsd)
    stamp("s_done")
    for op in ("max", "mov", "p32", "max", "mov", "p16", "max", "neg"):
        for qq in range(2):
            a, b = M[qq]
            if op == "max": I("v_max_f32", v(a), v(a), v(b))
            if op == "mov": I("v_mov_b32", v(b), v(a))
            if op == "p32": I("v_permlane32_swap_b32", v(a), v(b))
            if op == "p16": I("v_permlane16_swap_b32", v(a), v(b))
            if op == "neg": I("v_sub_f32", v(a), 0, v(a))
    for qq in range(2):
        for g in range(0, 68, 2):
            r = (SA, SB)[qq] + g
            I("v_pk_add_f32", vr(r, 2), vr(r, 2), vr(M[qq][0], 2), mods="op_sel_hi:[1,0]")

    def tiles(qq, p):
        return [t for t in (2 * p, 2 * p + 1) if qq <= t <= 16 + qq]
    def exp_ops(p):
        ops = []
        for qq in range(2):
            ts = tiles(qq, p)
            r = S(qq, ts[0])
            n = 4 * len(ts)
            ops += [lambda r=r, i=i: I("v_exp_f32", v(r + i), v(r + i)) for i in range(n)]
        return ops
    def cvt_ops(p):
        ops = []
        for qq in range(2):
            ts = tiles(qq, p)
            r = S(qq, ts[0])
            ops += [lambda r=r, i=i: I("v_cvt_pk_bf16_f32", v(r + i), v(r + 2 * i), v(r + 2 * i + 1)) for i in range(2 * len(ts))]
        return ops
    vrd = {}
    def vread_ops(p):
        d = VF + 8 * (p % 3)
        ops = []
        for a, vr_ in enumerate((vVR0, vVR1)):
            for h in range(2):
                def f(a=a, vr_=vr_, h=h):
                    vrd[p] = I("ds_read_b64_tr_b16", vr(d + 4 * a + 2 * h, 2), v(vr_), mods="offset:%d" % (2048 * p + 1024 * h))
                ops.append(f)
        return ops
    def pv_ops(p):
        d = VF + 8 * (p % 3)
        ops = [lambda: A.wait(lg=vrd[p])]
        for qq in range(2):
            ts = tiles(qq, p)
            r = S(qq, ts[0])
            o = OA + 12 * qq
            for acc, areg in ((o + 8, None), (o, d), (o + 4, d + 4)):
                if len(ts) == 2:
                    ops.append(lambda acc=acc, areg=areg, r=r: m16(acc, ONES if areg is None else areg, r, p == 0))
                else:
                    ar = ONES if areg is None else areg + (2 if qq == 1 else 0)
                    ops.append(lambda acc=acc, ar=ar, r=r: I("v_mfma_f32_16x16x16_bf16", vr(acc, 4), vr(ar, 2), vr(r, 2),
                                                            "0" if p == 0 else vr(acc, 4)))
        return ops
    LAG = OPT.get("lag", 4)
    side = []
    issued_v = 0
    done_pv = 0
    for p in range(9):
        main = exp_ops(p) + (cvt_ops(p - 1) if p else [])
        if p == LAG - 1:
            barrier()
            stamp("v_landed")
            side += vread_ops(0) + vread_ops(1)
            issued_v = 2
        if p >= LAG:
            for _ in range(2):
                if done_pv <= p - 2:
                    if issued_v < 9:
                        side += vread_ops(issued_v)
                        issued_v += 1
                    side += pv_ops(done_pv)
                    done_pv += 1
        for k, op in enumerate(main):
            op()
            if side:
                side.pop(0)()
        while side:
            side.pop(0)()
    for op in cvt_ops(8):
        op()
    stamp("softmax_done")
    while done_pv < 9:
        if issued_v < 9:
            for op in vread_ops(issued_v):
                op()
            issued_v += 1
        for op in pv_ops(done_pv):
            op()
        done_pv += 1
    for qq in range(2):
        I("v_rcp_f32", v(TMP + 12 + qq), v(OA + 12 * qq + 8))
    for qq in range(2):
        for i in range(8):
            I("v_mul_f32", v(OA + 12 * qq + i), v(OA + 12 * qq + i), v(TMP + 12 + qq))
    pack(TMP, OA, 8)
    pack(TMP + 4, OA + 12, 8)
    unswap(TMP, 2)
    for qq in range(2):
        I("v_cndmask_b32", v(TMP + 8 + 2 * qq), v(TMP + 4 * qq), v(TMP + 4 * qq + 2), "s[48:49]")
        I("v_cndmask_b32", v(TMP + 9 + 2 * qq), v(TMP + 4 * qq + 1), v(TMP + 4 * qq + 3), "s[48:49]")
    def ost(m):
        mm = "offen" + (" " + m if m else "")
        I("s_mov_b64", "exec", "s[40:41]")
        I("buffer_store_dwordx4", vr(TMP, 4), vL16, SRD_WS, "s44", mods=mm)
        I("buffer_store_dwordx4", vr(TMP + 4, 4), vL16, SRD_WS, "s45", mods=mm)
        I("s_mov_b64", "exec", "s[42:43]")
        I("buffer_store_dwordx2", vr(TMP + 8, 2), vL16, SRD_WS, "s46", mods=mm)
        I("buffer_store_dwordx2", vr(TMP + 10, 2), vL16, SRD_WS, "s47", mods=mm)
        I("s_mov_b64", "exec", -1)
    moded(ost)
    stamp("o_stored")

def att_b():
    A.cmt("---- attention (B waves)")
    barrier()
    if OPT["local"]:
        I("v_mov_b32", v(TMP + 6), hx(L_MODE))
        I("ds_read_b32", v(TMP + 6), v(TMP + 6))
    cls_check(VP[0], TMP + 7, TMP + 4, 0, "v_ready", sleep=1)
    kv_dma(R_V, L_VIMG, v(vVS))
    if OPT["local"]:
        A.wait_lg_all()
        I("v_readfirstlane_b32", sMODE, v(TMP + 6))
    lsp, lj = A.newlabel("Lbs"), A.newlabel("Lbj")
    I("s_cmp_ge_u32", sLI, 28)
    I("s_cbranch_scc1", lsp)
    sv = (A.vm, A.vm_done)
    dv = A.vm
    dma_seq(SRD_WO, 896, slot(4), (sJ128, 224 * 896), 7)
    dma_seq(SRD_W1, 896, slot(0), (sJ128, 0), 7)
    A.wait(vm=dv)
    stamp("b_vland")
    barrier()
    stamp("b_b6")
    kvdone()
    dma_seq(SRD_W1, 896, slot(1), (sJ128, 224 * 896), 7)
    I("s_mov_b32", sA, sJ128)
    for k in range(14):
        I("buffer_load_dwordx4", vr(PARK + 4 * k, 4), vD896, SRD_W2, sA, mods="offen")
        I("s_add_u32", sA, sA, hx(32 * 896))
    stamp("b_w2iss")
    if OPT.get("kvt", 1):
        kvdone_try()
    I("s_branch", lj)
    A.label(lsp)
    A.vm, A.vm_done = sv
    I("s_waitcnt", "vmcnt(0)")
    barrier()
    kvdone()
    spare_att()
    A.label(lj)
    A.wait_vm_all(force=True)
    stamp("bg_done")
    barrier()

PARK = 184
def kvdone():
    l = A.newlabel("Lkd")
    I("s_cmp_lg_u32", sW, 4)
    I("s_cbranch_scc1", l)
    I("s_lshl_b32", sA, sLI, 7)
    I("s_add_u32", sA, sA, sPAGE)
    I("s_add_u32", sA, sA, hx(R_XCC + 4))
    flag_store(sA)
    A.vm -= 1
    A.label(l)

vKVO = 43
def kvdone_try():
    I("v_lshrrev_b32", v(vKVO), 5, vLANE)
    I("v_add_u32", v(vKVO), sX, v(vKVO))
    I("v_min_u32", v(vKVO), 7, v(vKVO))
    I("v_lshlrev_b32", v(vKVO), PSH, v(vKVO))
    I("v_and_b32", v(TMP + 1), 31, vLANE)
    I("v_lshl_add_u32", v(vKVO), v(TMP + 1), 7, v(vKVO))
    I("v_add_u32", v(vKVO), hx(R_XCC + 4), v(vKVO))
    I("s_mov_b32", sXCC, 1)
    l = A.newlabel("Lkt")
    I("s_cmp_lg_u32", sW, 4)
    I("s_cbranch_scc1", l)
    I("buffer_load_dword", v(TMP + 1), v(vKVO), SRD_WS, 0, mods="offen sc1")
    A.vm -= 1
    I("s_waitcnt", "vmcnt(0)")
    I("v_cmp_ne_u32", "vcc", sTAG, v(TMP + 1))
    I("s_cmp_eq_u64", "vcc", 0)
    I("s_cselect_b32", sXCC, 1, 0)
    A.label(l)

def kvdone_check():
    l = A.newlabel("Lkc")
    I("s_cmp_eq_u32", sXCC, 1)
    I("s_cbranch_scc1", l)
    sv = (A.vm, A.vm_done)
    poll(v(vKVO), sleep=2)
    A.vm, A.vm_done = sv
    A.label(l)

def o_flag():
    A.wait_vm_all(force=True)
    def f(m):
        I("s_mov_b64", "exec", 1)
        I("buffer_store_dword", vTAG, "off", SRD_WS, "s59", mods=m)
        I("buffer_store_dword", vTAG, "off", SRD_WS, "s59", mods="offset:128" + (" " + m if m else ""))
        I("s_mov_b64", "exec", -1)
    moded(f)
    stamp("o_flag")

def ack_flag(st, name):
    A.wait(vm=st)
    moded(lambda m: flag_store(sD, m))
    stamp(name)

def store_out(preg, q_barrier=True):
    def f(m):
        frag_store(preg, sC, mods=m)
        return frag_store(preg + 4, sC, 1024, mods=m)
    return moded(f)

aM1, aP1, aX1, aM2, aP2, aX2, vDP = 36, 37, 38, 39, 40, 41, 42
vCS = 6
sR1, sR2, sGH, sFHH, sSP = "s54", "s55", "s56", "s57", "s58"
def c_setup():
    t0, t1, t2, t3 = TMP + 8, TMP + 9, TMP + 10, TMP + 11
    stat_aux()
    I("v_lshlrev_b32", v(vCS), 4, vQ4)
    I("v_add_u32", v(vCS), hx(131072), v(vCS))
    I("s_lshl_b32", sB, sX, 8)
    I("s_lshl_b32", sA, sTL, 4)
    I("s_add_u32", sB, sB, sA)
    I("v_mov_b32", v(t3), hx(OOB))
    for reg, d in ((aM1, -1), (aP1, 1), (aM2, -2), (aP2, 2)):
        I("s_add_u32", sA, sB, d)
        I("v_add_u32", v(t0), sA, vTOK)
        I("v_lshrrev_b32", v(t1), 8, v(t0))
        I("v_bfe_u32", v(t2), v(t0), 4, 4)
        I("v_mul_u32_u24", v(reg), hx(TB), v(t2))
        I("v_add_u32", v(reg), hx(R_HH), v(reg))
        I("v_and_b32", v(t2), 1, v(t2))
        I("v_mul_u32_u24", v(t2), hx(TB), v(t2))
        I("v_add_u32", v(t2), hx(R_HALO), v(t2))
        I("v_cmp_ne_u32", "vcc", sX, v(t1))
        I("v_cndmask_b32", v(reg), v(reg), v(t2), "vcc")
        I("v_lshl_add_u32", v(reg), v(t1), PSH, v(reg))
        I("v_and_b32", v(t1), 15, v(t0))
        I("v_lshl_add_u32", v(reg), v(t1), 4, v(reg))
        I("v_lshl_add_u32", v(reg), vQ4, 8, v(reg))
        I("v_cmp_gt_u32", "vcc", hx(2048), v(t0))
        if OPT.get("nohalo"):
            I("v_lshrrev_b32", v(t1), 8, v(t0))
            I("v_cmp_eq_u32", "vcc", sX, v(t1))
        I("v_cndmask_b32", v(reg), v(t3), v(reg), "vcc")
    I("v_cmp_gt_u32", "vcc", 2, vQ4)
    I("v_cndmask_b32", v(aX1), v(aP1), v(aM1), "vcc")
    I("v_cndmask_b32", v(aX2), v(aP2), v(aM2), "vcc")
    I("s_lshr_b32", sB, sB, 4)
    I("s_sub_u32", sA, sB, 1)
    I("v_min_u32", v(t0), 2, vQ4)
    I("v_add_u32", v(t0), sA, v(t0))
    I("v_max_i32", v(t0), 0, v(t0))
    I("v_min_i32", v(t0), hx(127), v(t0))
    if OPT.get("nohalo"):
        I("s_lshl_b32", sA, sX, 4)
        I("v_max_i32", v(t0), sA, v(t0))
        I("s_add_u32", sA, sA, 15)
        I("v_min_i32", v(t0), sA, v(t0))
    I("v_lshrrev_b32", v(t1), 4, v(t0))
    I("v_and_b32", v(t0), 15, v(t0))
    I("v_min_u32", v(t2), 6, vTOK)
    I("v_lshlrev_b32", v(t3), 2, v(t2))
    I("v_lshl_add_u32", v(t3), v(t0), 7, v(t3))
    I("v_lshl_add_u32", v(t3), v(t1), PSH, v(t3))
    I("v_add_u32", v(vDP), hx(R_FHH), v(t3))
    I("v_and_b32", v(t0), 1, v(t0))
    I("v_lshlrev_b32", v(t2), 7, v(t2))
    I("v_lshl_add_u32", v(t2), v(t0), 10, v(t2))
    I("v_lshl_add_u32", v(t2), v(t1), PSH, v(t2))
    I("v_add_u32", v(t2), hx(R_FHALO), v(t2))
    I("v_cmp_ne_u32", "vcc", sX, v(t1))
    I("v_cndmask_b32", v(vDP), v(vDP), v(t2), "vcc")
    tile_off(sR1, 0, TB)
    I("s_lshl_b32", sA, sJ, 11)
    I("s_add_u32", sR2, sR1, sA)
    tile_off(sSP, R_SH, 2048)
    I("s_lshl_b32", sA, sJ, 8)
    I("s_add_u32", sGH, sSP, sA)
    I("s_lshl_b32", sA, sJ, 2)
    tile_off(sFHH, R_FHH, 128, extra=sA)

def c_compute():
    aoff = lambda s: (4096 * s, TRC)
    NE = OPT.get("nearly", 4)
    set_tr(slot(3))
    barrier()
    rd = [a_read(AREG + 16 * s, *aoff(s)) for s in range(NE)]
    unpack(ACC, HP, 16)
    o_flag()
    flag_poll_off(TMP, 16, R_FO, 128, 2)
    I("s_add_u32", sC2, sR1, hx(R_O))
    bl = BLoads(14, sC2)
    I("s_add_u32", sC, sR2, hx(R_H))
    I("s_mov_b32", sD, sGH)
    rd += [a_read(AREG + 16 * s, *aoff(s)) for s in range(NE, 7)]
    poll(v(TMP), sleep=0)
    A.wait_lg_all()
    stamp("c1_ready")
    bl.first()
    e_table(True)
    gemm(14, 7, 7, aoff, lambda s: BREG + 4 * s, bl=bl.ids, bissue=bl.more, zero=False, rd=rd)
    stamp("c1_mfma")
    pack(HP, ACC, 16)
    unswap(HP, 2)
    st = store_out(HP)
    barrier()
    stat_granule(HP)
    set_tr(slot(0))
    I("s_add_u32", sC2, sR1, hx(R_H))
    bl = BLoads(14, sC2)
    I("s_add_u32", sC, sR2, hx(R_HH))
    NE = OPT.get("nearly2", 3)
    rd = [a_read(AREG + 16 * s, *aoff(s)) for s in range(NE)]
    A.wait(vm=st)
    moded(granule_store)
    stamp("h_flag")
    rd += [a_read(AREG + 16 * s, *aoff(s)) for s in range(NE, 7)]
    for f in range(4):
        I("ds_read_b128", vr(ACC + 4 * f, 4), v(vCS), mods="offset:%d" % (L_CS1 - 131072 + 64 * f))
    unswap(HP, 2)
    stat_poll(sSP)
    A.wait_lg_all()
    stamp("c2_ready")
    bl.first()
    stat_finish()
    var, nmu, ry = TMP + 7, TMP + 8, TMP + 10
    K0, K1, RI = TMP, TMP + 2, TMP + 12
    mean_var(TMP + 4, TMP + 6, vMU, var)
    I("v_sub_f32", v(nmu), 0, v(vMU))
    rstd(vRH, var)
    for i in range(0, 16, 2):
        pk_mul_b(ACC + i, ACC + i, nmu)
    def chook(s):
        if s == 8:
            I("v_mul_f32", v(var), v(var), v(vRH))
            I("v_mul_f32", v(var), v(var), v(vRH))
            rstd(ry, var)
        if s == 10:
            I("v_mul_f32", v(ry), v(ry), v(vRH))
            gelu_prep(ry, K0, K1, RI)
        if s == bl.last_step():
            A.wait_lg_all()
            barrier()
    gemm(14, 7, 7, aoff, lambda s: BREG + 4 * s, bl=bl.ids, bissue=bl.more, zero=False, rd=rd, hook=chook)
    stamp("c2_mfma")
    gelu(ACC, 16, BREG, K0, K1, RI, HHP, True)
    unswap(HHP, 2)
    st = store_out(HHP)
    lh = A.newlabel("Lhalo")
    I("s_add_u32", sA, sTL, 1)
    I("s_and_b32", sD2, sA, 15)
    if OPT.get("nohalo"):
        I("s_mov_b32", sD2, 5)
    I("s_cmp_gt_u32", sD2, 1)
    I("s_cbranch_scc1", lh)
    I("s_and_b32", sB, sTL, 1)
    I("s_lshl_b32", sA, sJ, 11)
    tile_off(sC, R_HALO, TB, tl=sB, extra=sA)
    frag_store(HHP, sC)
    frag_store(HHP + 4, sC, 1024)
    A.vm -= 2
    A.label(lh)
    stamp("hh_stored")
    barrier()
    stamp("a_c2q")
    set_tr(slot(3))
    unpack(ACC, HP, 16)
    I("v_mov_b32", v(TMP + 2), v(vRH))
    I("v_mul_f32", v(TMP + 4), v(vMU), v(vRH))
    I("v_sub_f32", v(TMP + 4), 0, v(TMP + 4))
    for i in range(0, 16, 2):
        I("v_pk_fma_f32", vr(ACC + i, 2), vr(ACC + i, 2), vr(TMP + 2, 2), vr(TMP + 4, 2), mods="op_sel_hi:[1,0,0]")
    I("s_mov_b32", sC2, 0)
    amap = [aM1] * 3 + [aX1] + [aP1] * 3 + [aM2] * 3 + [aX2] + [aP2] * 3
    bl = BLoads(14, sC2, vaddr=lambda i: v(amap[i]))
    rd = [a_read(AREG + 16 * s, *aoff(s)) for s in range(NE)]
    lh, lh2 = A.newlabel("Lhalo"), A.newlabel("Lhalo")
    I("s_cmp_gt_u32", sD2, 1)
    I("s_cbranch_scc1", lh)
    I("s_waitcnt", "vmcnt(2)")
    moded(lambda m: flag_store(sFHH, m))
    I("s_and_b32", sB, sTL, 1)
    tile_off(sC, R_FHALO, 1024, tl=sB, extra=sJ128)
    I("s_waitcnt", "vmcnt(1)")
    flag_store(sC)
    A.vm -= 2
    I("s_branch", lh2)
    A.label(lh)
    A.wait(vm=st)
    moded(lambda m: flag_store(sFHH, m))
    A.label(lh2)
    stamp("hh_flag")
    e_table(False)
    rd += [a_read(AREG + 16 * s, *aoff(s)) for s in range(NE, 7)]
    I("s_add_u32", sC, sR2, hx(R_X1))
    I("s_add_u32", sD, sGH, hx(R_SX - R_SH))
    poll(v(vDP), sleep=0)
    A.wait_lg_all()
    stamp("d_ready")
    bl.first()
    e_lane_a()
    gemm(14, 7, 7, aoff, lambda s: BREG + 4 * s, bl=bl.ids, bissue=bl.more, zero=False, rd=rd,
         hook=lambda s: barrier() if s == 1 else None)
    stamp("d_mfma")
    pack(TMP, ACC, 16)
    unswap(TMP, 2)
    st = store_out(TMP)
    barrier()
    stat_granule(TMP)
    unpack(RES, HP, 16)
    for i in range(0, 16, 2):
        I("v_pk_add_f32", vr(RES + i, 2), vr(RES + i, 2), vr(ACC + i, 2))
    return st

RES = 28
def colsum(bases, ldst):
    t0, t1 = TMP, TMP + 1
    I("s_and_b32", sA, sLW, 2)
    I("s_lshl_b32", sA, sA, 5)
    I("s_and_b32", sB, sLW, 1)
    I("s_lshl_b32", sB, sB, 3)
    I("s_or_b32", sA, sA, sB)
    I("v_xor_b32", v(t0), sA, v(TRL[0][0]))
    I("v_add_u32", v(t1), hx(bases[1]), v(t0))
    I("v_add_u32", v(t0), hx(bases[0]), v(t0))
    rd = []
    for s in range(14):
        ad = v(t0 if s < 7 else t1)
        I("ds_read_b64_tr_b16", vr(AREG + 4 * s, 2), ad, mods="offset:%d" % (4096 * (s % 7)))
        rd.append(I("ds_read_b64_tr_b16", vr(AREG + 4 * s + 2, 2), ad, mods="offset:%d" % (4096 * (s % 7) + 1024)))
    for s in range(14):
        A.wait(lg=rd[s])
        m16(ACC, AREG + 4 * s, ONES, s == 0)
    I("s_lshl_b32", sA, sLW, 6)
    I("s_add_u32", sA, sA, hx(ldst))
    I("v_lshl_add_u32", v(t0), vQ4, 4, sA)
    I("ds_write_b128", v(t0), vr(ACC, 4))
    A.wait_lg_all()

W3S = [[2, 0], [1, 3]]
vUP = 36
def c_loader():
    A.cmt("---- C/D loader")
    I("s_lshl_b32", sE, sJP, 8)
    dma_seq(SRD_W3, 3584, slot(W3S[0][0]), (sE, 0), 7)
    I("s_lshr_b32", sA, sTG, 1)
    I("s_lshl_b32", sA, sA, 3)
    I("s_lshl_b32", sB, sLW, 1)
    I("s_add_u32", sT1, sA, sB)
    colsum((slot(0), slot(1)), L_CS1)
    I("s_lshl_b32", sA, sLW, 10)
    I("s_add_u32", sA, sA, hx(slot(3)))
    I("v_add_u32", v(TMP), sA, vL16)
    I("v_mov_b32", v(vUP), v(TMP))
    I("s_add_u32", sA, sE, hx(224 * 3584 + 128))
    barrier()
    for k in range(7):
        I("buffer_load_dwordx4", vr(64 + 4 * k, 4), vD3584, SRD_W3, sA, mods="offen")
        I("s_add_u32", sA, sA, hx(32 * 3584))
    for k in range(14):
        I("ds_write_b128", v(TMP), vr(PARK + 4 * k, 4), mods="offset:%d" % (4096 * k))
    A.wait_lg_all()
    barrier()
    stamp("b_c2p")
    dma_seq(SRD_W3, 3584, slot(W3S[0][1]), (sE, 224 * 3584), 7)
    A.wait_vm_all()
    stamp("b_w3ab")
    barrier()
    dma_seq(SRD_W3, 3584, slot(W3S[1][0]), (sE, 128), 7)
    tr32_lane()
    colsum32(0)
    e_helper_setup()
    barrier()
    assert W3S[1][1] == 3
    for k in range(7):
        I("ds_write_b128", v(vUP), vr(64 + 4 * k, 4), mods="offset:%d" % (4096 * k))
    A.wait_lg_all()
    A.wait_vm_all()
    barrier()
    colsum32(1)

W4SL = [2, 0, 1, 3, 2, 0, 1, 3]
vCN, vC1, vCT = 16, 17, 18
def cnt_setup():
    I("v_mov_b32", v(vCN), hx(L_CNT))
    I("v_mov_b32", v(vC1), 1)

def arrive(which):
    I("s_mov_b64", "exec", 1)
    I("ds_add_u32", v(vCN), v(vC1), mods="offset:%d" % (4 * which))
    I("s_mov_b64", "exec", -1)

def spin(which, target, sleep=0):
    lp, dn = A.newlabel("Lsp"), A.newlabel("Lsd")
    I("s_mov_b32", sCNT, hx(400000))
    A.label(lp)
    I("ds_read_b32", v(vCT), v(vCN), mods="offset:%d" % (4 * which))
    I("s_sub_u32", sCNT, sCNT, 1)
    A.wait_lg_all(force=True)
    I("v_cmp_gt_u32", "vcc", target, v(vCT))
    I("s_cbranch_vccz", dn)
    if sleep:
        I("s_sleep", sleep)
    I("s_cmp_lg_u32", sCNT, 0)
    I("s_cbranch_scc1", lp)
    A.label(dn)

GT_ = ["s64", "s65", "s66", "s67", "s59", "s3", sHEAD]
def e_table(for_a):
    I("s_lshr_b32", sA, sTG, 1)
    I("s_lshl_b32", sA, sA, 3)
    I("s_lshl_b32", sB, sLW, 1)
    I("s_add_u32", sT1, sA, sB)
    I("s_lshl_b32", sK, sJ, 1)
    I("s_add_u32", sK, sK, sROT)
    if for_a:
        I("s_and_b32", sA, sW, 1)
        I("s_mul_i32", sA, sA, 7)
        I("s_add_u32", sK, sK, sA)
        I("s_cmp_ge_u32", sK, 14)
        I("s_cselect_b32", sA, 14, 0)
        I("s_sub_u32", sK, sK, sA)
    I("s_cmp_ge_u32", sK, 14)
    I("s_cselect_b32", sA, 14, 0)
    I("s_sub_u32", sK, sK, sA)
    if for_a:
        I("s_add_u32", sB, sPAGE, hx(15 * TB))
    n = 7 if for_a else 14
    for i in range(n):
        r = GT_[i] if for_a else "s%d" % (36 + i)
        if for_a:
            I("s_cmp_ge_u32", sK, 7)
            I("s_cselect_b32", sA, sB, sPAGE)
            I("s_lshl_b32", r, sK, 11)
            I("s_add_u32", r, r, sA)
        else:
            I("s_mul_i32", r, sK, hx(128 * 896))
            I("s_add_u32", r, r, sJ128)
        if i < n - 1:
            I("s_add_u32", sK, sK, 1)
            I("s_cmp_eq_u32", sK, 14)
            I("s_cmov_b32", sK, 0)

def w4_thunks(n):
    res = []
    c, h = divmod(n, 2)
    for i in range(7):
        def th(i=i):
            I("s_add_u32", "m0", sF, hx(slot(W4SL[n]) + 4096 * i))
            I("s_add_u32", sH_, "s%d" % (36 + 7 * h + i), hx(32 * c * 896))
            W4ID[n] = I("buffer_load_dwordx4", vD4 if ROLE[0] == "B" else vD896, SRD_W4, sH_, mods="offen lds")
        res.append(th)
    return res
W4ID = {}

class Inject:
    def __init__(self, thunks, first, every=None):
        self.th, self.nx, self.every, self.c = list(thunks), first, every or first, 0
    def __enter__(self):
        global I
        self.old = I
        def J(*a, **k):
            global I
            r = self.old(*a, **k)
            self.c += 1
            if self.c >= self.nx and self.th:
                self.nx += self.every
                cur = I
                I = self.old
                self.th.pop(0)()
                I = cur
            return r
        I = J
        return self
    def __exit__(self, *a):
        global I
        I = self.old
        for t in self.th:
            t()

T32 = [7, 8]
C32 = [[11, 12], [13, 14]]
def tr32_lane(dst=T32):
    t0, t1, t2 = TMP + 12, TMP + 13, TMP + 14 - 3
    I("v_bfe_u32", v(t0), vLANE, 2, 2)
    I("v_lshrrev_b32", v(t1), 5, vLANE)
    I("v_lshl_add_u32", v(t1), v(t1), 2, v(t0))
    I("v_lshlrev_b32", v(t1), 7, v(t1))
    I("v_and_b32", v(t0), 2, v(t0))
    I("v_lshl_or_b32", v(t1), v(t0), 5, v(t1))
    I("v_and_b32", v(t0), 16, vLANE)
    I("v_lshl_or_b32", v(t1), v(t0), 1, v(t1))
    I("v_and_b32", v(t0), 1, vLANE)
    I("v_lshl_or_b32", v(t1), v(t0), 4, v(t1))
    I("v_and_b32", v(t0), 2, vLANE)
    I("v_lshl_or_b32", v(dst[0]), v(t0), 2, v(t1))
    I("v_xor_b32", v(dst[1]), 64, v(dst[0]))

def bf_lane(dst):
    I("v_and_b32", v(dst), 1, vQ4)
    I("v_mul_u32_u24", v(dst), hx(TB), v(dst))
    I("v_lshl_add_u32", v(dst), vTOK, 4, v(dst))
    I("v_lshrrev_b32", v(TMP + 12), 5, vLANE)
    I("v_lshl_add_u32", v(dst), v(TMP + 12), 8, v(dst))

def set32(base, k):
    if isinstance(base, int):
        I("s_mov_b32", sA, hx(base))
        base = sA
    for b in range(2):
        I("v_add_u32", v(C32[k][b]), base, v(T32[b]))

def m32(acc, areg, breg, zero):
    I("v_mfma_f32_32x32x16_bf16", vr(acc, 16), vr(areg, 4), vr(breg, 4), "0" if zero else vr(acc, 16))

def colsum32(sg):
    t0 = TMP
    I("s_mov_b32", sA, hx(slot(W3S[sg][0])))
    I("s_bitcmp1_b32", sLW, 1)
    I("s_cmov_b32", sA, hx(slot(W3S[sg][1])))
    I("s_and_b32", sB, sLW, 1)
    I("s_lshl_b32", sB, sB, 6)
    I("v_xor_b32", v(t0), sB, v(T32[0]))
    I("v_add_u32", v(t0), sA, v(t0))
    rd = []
    for k in range(14):
        I("ds_read_b64_tr_b16", vr(AREG + 4 * k, 2), v(t0), mods="offset:%d" % (2048 * k))
        rd.append(I("ds_read_b64_tr_b16", vr(AREG + 4 * k + 2, 2), v(t0), mods="offset:%d" % (2048 * k + 1024)))
    for k in range(14):
        A.wait(lg=rd[k])
        m32(ACC, AREG + 4 * k, ONES, k == 0)
    I("s_lshl_b32", sB, sB, 2)
    I("s_and_b32", sA, sLW, 2)
    I("s_lshl_b32", sA, sA, 6)
    I("s_add_u32", sA, sA, sB)
    I("s_add_u32", sA, sA, hx(L_CS3 + 512 * sg))
    I("v_lshrrev_b32", v(t0), 5, vLANE)
    I("v_lshl_add_u32", v(t0), v(t0), 6, sA)
    for q in range(4):
        I("ds_write_b128", v(t0), vr(ACC + 4 * q, 4), mods="offset:%d" % (16 * q))
    A.wait_lg_all()

def gemm32(nk, breg, areg, rd, bl=None, bissue=None, zero=None, hook=None):
    for k in range(nk):
        if hook:
            hook(k)
        if k % 2 == 0:
            A.wait(vm=bl(k + 1) if bl else None, lg=rd[k + 1])
        for b in range(2):
            m32((ACC, ACC2)[b], areg + 8 * (k % 6) + 4 * b, breg(k), zero(k) if zero else False)
            if bissue:
                bissue(k, b)
            if k + 4 < nk:
                r = a32(areg, k + 4, b)
        if k + 4 < nk:
            rd.append(r)

def a32(areg, k, b):
    d = areg + 8 * (k % 6) + 4 * b
    ad = v(C32[(k // 14) & 1][b])
    I("ds_read_b64_tr_b16", vr(d, 2), ad, mods="offset:%d" % (2048 * (k % 14)))
    return I("ds_read_b64_tr_b16", vr(d + 2, 2), ad, mods="offset:%d" % (2048 * (k % 14) + 1024))

vRW = [120, 121, 122, 123]
vRR = [124, 125, 126, 127]
vBF, vXP = 9, 10
def e_lane_a():
    t0, t1 = TMP + 8, TMP + 9
    tr32_lane()
    bf_lane(vBF)
    I("v_min_u32", v(vXP), 6, vTOK)
    I("v_lshlrev_b32", v(vXP), 8, v(vXP))
    I("v_and_b32", v(t0), 1, vQ4)
    I("v_lshl_add_u32", v(vXP), v(t0), 11, v(vXP))
    tile_off(sA, R_SX + 4, 2048, tl=sT1)
    I("v_add_u32", v(vXP), sA, v(vXP))
    I("v_lshl_or_b32", v(t0), vQ4, 1, v(t0))
    I("v_xor_b32", v(t0), v(t0), vTOK)
    I("v_lshlrev_b32", v(t0), 4, v(t0))
    I("v_lshl_add_u32", v(t0), vTOK, 8, v(t0))
    I("s_lshl_b32", sA, sLW, 12)
    I("s_add_u32", sA, sA, hx(L_STG))
    I("v_add_u32", v(vRW[0]), sA, v(t0))
    I("v_xor_b32", v(vRW[1]), 16, v(vRW[0]))
    I("v_xor_b32", v(vRW[2]), hx(128), v(vRW[0]))
    I("v_xor_b32", v(vRW[3]), hx(144), v(vRW[0]))
    I("v_lshrrev_b32", v(t0), 3, vLANE)
    I("v_and_b32", v(t1), 7, vLANE)
    I("v_lshlrev_b32", v(t1), 1, v(t1))
    I("v_xor_b32", v(t1), v(t1), v(t0))
    I("v_lshlrev_b32", v(t1), 4, v(t1))
    I("v_lshl_add_u32", v(t1), v(t0), 8, v(t1))
    I("v_add_u32", v(vRR[0]), sA, v(t1))
    I("v_xor_b32", v(vRR[1]), 16, v(vRR[0]))
    I("v_xor_b32", v(vRR[2]), hx(128 + 2048), v(vRR[0]))
    I("v_xor_b32", v(vRR[3]), hx(144 + 2048), v(vRR[0]))
    assert L_STG % 4096 == 0

def cls_check(ld, t, voff, c, name=None, sleep=0):
    ok, lp = A.newlabel("Lrk"), A.newlabel("Lrl")
    I("s_add_u32", sA, sTAG, c)
    A.wait(vm=ld)
    I("s_mov_b32", sCNT, hx(40000))
    A.label(lp)
    I("v_subrev_u32", v(t), sA, v(t))
    I("v_cmp_le_u32", "vcc", 4, v(t))
    I("s_cbranch_vccz", ok)
    I("s_sub_u32", sCNT, sCNT, 1)
    I("s_cmp_eq_u32", sCNT, 0)
    I("s_cbranch_scc1", ok)
    sv = (A.vm, A.vm_done)
    if sleep:
        I("s_sleep", sleep)
    I("buffer_load_dword", v(t), v(voff), SRD_WS, 0, mods="offen sc1")
    I("s_waitcnt", "vmcnt(0)")
    A.vm, A.vm_done = sv
    I("s_branch", lp)
    A.label(ok)
    if name:
        stamp(name)

ACC2 = 224
def e_compute(st_prev):
    A.cmt("---- E1 (A: matrix part)")
    ZB, AR = 64, 176
    vS0, vS1 = TMP + 4, TMP + 5
    vG = [20, 21]
    vGP, PT = 22, 23
    vFR = [24, 25, 26, 27]
    tile_off(sC2, R_X1, TB, tl=sT1)
    for q in range(4):
        I("s_add_u32", "s%d" % (50 + q), sC2, hx(4096 * q))
    set32(slot(W3S[0][0]), 0)
    A.wait(vm=st_prev)
    moded(granule_store)
    stamp("x1_flag")
    for q in range(4):
        I("ds_write_b128", v(vRW[q]), vr(RES + 4 * q, 4))
    for q in range(4):
        I("ds_read_b128", vr(RES + 4 * q, 4), v(vRR[q]))
    set32(slot(W3S[0][1]), 1)
    I("s_lshr_b32", sA, sLW, 1)
    I("s_lshl_b32", sA, sA, 14)
    I("s_and_b32", sB, sLW, 2)
    I("s_lshl_b32", sB, sB, 12)
    I("s_sub_u32", sA, sA, sB)
    I("s_add_u32", sA, sA, hx(slot(4) - L_STG))
    cnt_setup()
    for q in range(4):
        I("v_add_u32", v(vFR[q]), sA, v(vRR[q]))
    rd = []
    for k in range(4):
        a32(AR, k, 0)
        rd.append(a32(AR, k, 1))
    poll(v(vXP), sleep=0)
    stamp("e1_ready")
    zl = {}
    def zload(i):
        if i >= 28:
            return
        o = (512 * i) & 4095
        zl[i] = I("buffer_load_dwordx4", vr(ZB + 4 * i, 4), v(vBF), SRD_WS, "s%d" % (50 + i // 8),
                  mods="offen" + (" offset:%d" % o if o else "") + " sc1")
    NP = OPT.get("npz", 6)
    for i in range(NP):
        zload(i)
    I("s_lshl_b32", sA, sLW, 12)
    I("s_add_u32", sB, sA, hx(L_STG))
    I("v_add_u32", v(vS0), sB, vL16)
    I("s_add_u32", sB, sA, hx(slot(4)))
    I("v_add_u32", v(vS1), sB, vL16)
    I("s_and_b32", sB, sTL, hx(0xfe))
    I("s_mul_i32", sA, sB, hx(TB))
    I("v_add_u32", v(vG[1]), sA, v(vBF))
    I("v_add_u32", v(vG[0]), hx(R_G[0]), v(vG[1]))
    if R_G[1]:
        I("v_add_u32", v(vG[1]), hx(R_G[1]), v(vG[1]))
    I("s_lshr_b32", sB, sTL, 1)
    tile_off(sA, R_FG, 128, tl=sB)
    I("v_lshl_add_u32", v(vGP), vLANE, 2, sA)
    I("s_lshr_b32", sB, sTG, 1)
    I("s_lshl_b32", sB, sB, 2)
    I("s_lshl_b32", sA, sJP, 2)
    tile_off(sE, R_FG, 128, tl=sB, extra=sA)
    I("v_and_b32", v(PT), 3, vLANE)
    I("v_lshl_add_u32", v(PT), v(PT), 7, sE)
    I("v_cmp_gt_u32", "vcc", 14, vLANE)
    I("v_cndmask_b32", v(vGP), v(PT), v(vGP), "vcc")
    def handoff(target):
        for ad, ac in ((vS0, ACC), (vS1, ACC2)):
            for q in range(4):
                I("ds_write_b128", v(ad), vr(ac + 4 * q, 4), mods="offset:%d" % (1024 * q))
        arrive(0)
        spin(0, target)
    pl, gl = {}, {}
    nxt, lim = [0], [0]
    def pissue(c):
        pl[c] = I("buffer_load_dword", v(PT), v(vGP), SRD_WS, 0, mods="offen sc1")
    def gload():
        n = nxt[0]
        nxt[0] += 1
        c, r = divmod(n, 14)
        o = 1024 * (c & 1) + 512 * (r & 1)
        gl[n] = I("buffer_load_dwordx4", vr(ZB + 4 * (n % 28), 4), v(vG[c >> 1]), SRD_WS, GT_[r // 2],
                  mods="offen" + (" offset:%d" % o if o else "") + " sc1")
    def bissue(k, b):
        if b == 0:
            zload(k + NP)
            if k >= 28 and w01:
                w01.pop(0)()
    w01 = w4_thunks(0) + w4_thunks(1)
    I("s_lshl_b32", sF, sLW, 10)
    def hook(k):
        if k == 10:
            set32(slot(W3S[1][0]), 0)
        if k == 28 - NP:
            arrive(0)
        if k == 24:
            set32(slot(W3S[1][1]), 1)
        if k == 28:
            stamp("e1_pass0")
            handoff(8)
            stamp("e1_h0")
        if k == 50:
            spin(1, 8)
    gemm32(56, lambda k: ZB + 4 * (k % 28), AR, rd, bl=lambda k: zl[k] if k < 28 else None, bissue=bissue,
           zero=lambda k: k % 28 == 0, hook=hook)
    stamp("e1_pass1")
    def tr_round(c):
        I("s_mov_b32", sA, hx(slot(W4SL[2 * c])))
        I("s_bitcmp1_b32", sW, 0)
        I("s_cmov_b32", sA, hx(slot(W4SL[2 * c + 1])))
        set32(sA, c & 1)
    tr_round(0)
    tr_round(1)
    A.wait(vm=W4ID[1])
    handoff(12)
    stamp("e1_h1")
    wq = w4_thunks(2) + w4_thunks(3)
    NW = OPT.get("w2n", 7)
    pissue(0)
    for _ in range(NW):
        wq.pop(0)()
    rd = []
    for k in range(4):
        a32(AR, k, 0)
        rd.append(a32(AR, k, 1))
    cls_check(pl[0], PT, vGP, 0, "e2_ready0")
    lim[0] = 14
    while nxt[0] < OPT.get("g0n", 7):
        gload()
    def hook2(k):
        c, i = divmod(k, 14)
        if i == 0 and 0 < c < 3:
            wq.extend(w4_thunks(2 * c + 2) + w4_thunks(2 * c + 3))
        if i == 10 and c < 3:
            assert not wq
            A.wait(vm=W4ID[2 * c + 3])
            arrive(0)
            spin(0, 16 + 4 * c)
            stamp("e2_rb%d" % (c + 1))
            if c + 2 < 4:
                tr_round(c + 2)
        if i == OPT.get("pi", 3) and c < 3:
            pissue(c + 1)
        if i == 7 and c < 3:
            cls_check(pl[c + 1], PT, vGP, c + 1, "e2_ready%d" % (c + 1))
            lim[0] += 14
    def bissue2(k, b):
        if nxt[0] < lim[0]:
            assert nxt[0] - 28 < k
            gload()
        elif wq:
            wq.pop(0)()
    gemm32(56, lambda k: ZB + 4 * (k % 28), AR, rd, bl=lambda k: gl[k], bissue=bissue2, zero=lambda k: k == 0, hook=hook2)
    stamp("e2_mfma")
    t0, t1 = TMP + 8, TMP + 9
    W = 64
    I("v_lshrrev_b32", v(t0), 5, vLANE)
    I("v_lshlrev_b32", v(t0), 1, v(t0))
    I("v_xor_b32", v(t0), v(t0), vTOK)
    I("v_lshlrev_b32", v(t0), 4, v(t0))
    I("v_and_b32", v(t1), 31, vLANE)
    I("v_lshl_add_u32", v(t0), v(t1), 8, v(t0))
    I("s_lshl_b32", sA, sLW, 13)
    I("s_add_u32", sA, sA, hx(slot(4)))
    I("v_add_u32", v(W), sA, v(t0))
    assert slot(4) % 256 == 0 and slot(4) + 32768 <= L_CS1
    units = [8 * b + 4 * (g >> 1) + (g & 1) for b in range(2) for g in range(4)]
    for n in range(1, 8):
        I("v_xor_b32", v(W + n), hx(16 * units[n]), v(W))
    for n in range(8):
        I("ds_write_b128", v(W + n), vr((ACC, ACC2)[n // 4] + 4 * (n % 4), 4))
    arrive(0)
    o0, o1 = 72, 73
    I("v_lshrrev_b32", v(o0), 3, vLANE)
    I("v_and_b32", v(o1), 7, vLANE)
    I("v_mul_u32_u24", v(o0), hx(896), v(o0))
    I("v_lshl_add_u32", v(o0), v(o1), 4, v(o0))
    I("s_lshl_b32", sA, sX, 4)
    I("s_add_u32", sA, sA, sTL)
    I("s_mul_i32", sB, sA, hx(16 * 896))
    I("s_add_u32", sB, sB, sJ128)
    I("s_add_u32", sE, sB, hx(8 * 896))
    spin(0, 28)
    rr = []
    for q in range(4):
        I("ds_read_b128", vr(ACC + 4 * q, 4), v(vFR[q]))
        rr.append(I("ds_read_b128", vr(ACC2 + 4 * q, 4), v(vFR[q]), mods="offset:8192"))
    om = "offen" + (" sc1" if OPT.get("outsc1") else "")
    for h in range(2):
        A.wait(lg=rr[2 * h + 1])
        for i in range(8 * h, 8 * h + 8, 2):
            I("v_pk_add_f32", vr(ACC + i, 2), vr(ACC + i, 2), vr(ACC2 + i, 2))
        for i in range(8 * h, 8 * h + 8, 2):
            I("v_pk_add_f32", vr(ACC + i, 2), vr(ACC + i, 2), vr(RES + i, 2))
        pack(TMP + 4 * h, ACC + 8 * h, 8)
        I("buffer_store_dwordx4", vr(TMP + 4 * h, 4), v(o0), SRD_OUT, (sB, sE)[h], mods=om)
    stamp("end")

def e_helper_setup():
    vS0, vS1, vRC, RT, vFL, vSO, vSO3, vW3 = 28, 29, 30, 31, 32, 33, 34, 35
    I("v_lshrrev_b32", v(vCS), 5, vLANE)
    I("v_lshlrev_b32", v(vCS), 6, v(vCS))
    I("v_add_u32", v(vCS), hx(131072), v(vCS))
    bf_lane(vBF)
    I("s_lshl_b32", sA, sLW, 12)
    I("s_add_u32", sB, sA, hx(L_STG))
    I("v_add_u32", v(vS0), sB, vL16)
    I("s_add_u32", sB, sA, hx(slot(4)))
    I("v_add_u32", v(vS1), sB, vL16)
    I("s_lshl_b32", sA, sJP, 11)
    I("s_cmp_ge_u32", sJP, 7)
    I("s_cselect_b32", sB, hx(15 * TB), 0)
    I("s_add_u32", sA, sA, sB)
    tile_off(sC, R_G[0], TB, tl=sT1, extra=sA)
    I("s_lshr_b32", sB, sT1, 1)
    tile_off(sG, R_FG, 128, tl=sB)
    I("s_lshl_b32", sA, sJP, 2)
    I("s_add_u32", sD, sG, sA)
    I("v_min_u32", v(TMP), 13, vTOK)
    I("v_lshl_add_u32", v(vRC), v(TMP), 2, sG)
    I("v_lshrrev_b32", v(TMP), 5, vLANE)
    I("v_mul_u32_u24", v(TMP), 3, v(TMP))
    I("s_sub_u32", sA, sT1, 1)
    I("v_add_u32", v(TMP), sA, v(TMP))
    I("v_max_i32", v(TMP), 0, v(TMP))
    I("v_min_i32", v(TMP), 15, v(TMP))
    I("v_min_u32", v(TMP + 1), 6, vTOK)
    I("v_lshlrev_b32", v(TMP + 1), 8, v(TMP + 1))
    I("v_lshl_add_u32", v(TMP), v(TMP), 11, v(TMP + 1))
    I("s_add_u32", sA, sPAGE, hx(R_SX + 4))
    I("v_add_u32", v(TMP), sA, v(TMP))
    I("v_cmp_ne_u32", "vcc", 0, vQ4)
    I("v_cndmask_b32", v(vRC), v(vRC), v(TMP), "vcc")
    I("s_lshl_b32", sF, sLW, 10)
    tile_off(sSP, R_SX, 2048, tl=sT1)
    I("v_and_b32", v(vSO3), 1, vQ4)
    I("v_lshlrev_b32", v(vSO3), 11, v(vSO3))
    I("v_lshl_add_u32", v(vSO3), vTOK, 4, v(vSO3))
    I("v_lshrrev_b32", v(TMP), 5, vLANE)
    I("v_lshl_add_u32", v(vSO), v(TMP), 8, v(vSO3))
    I("v_cvt_f32_u32", v(vW3), v(TMP))
    I("v_sub_f32", v(vW3), 1.0, v(vW3))

def e_helper():
    A.cmt("---- E (B: activation)")
    X, CS, GT = 64, 96, 160
    NMU, K0, K1, RI = 20, 21, 22, 23
    vS0, vS1, vRC, RT, vFL, vSO, vSO3, vW3 = 28, 29, 30, 31, 32, 33, 34, 35
    kvdone_check()
    cnt_setup()
    arrive(1)
    def cs_fetch(sg):
        T = 176
        for n in range(16):
            I("ds_read_b128", vr(T + 4 * n, 4), v(vCS), mods="offset:%d" % (L_CS3 + 512 * sg - 131072 + 128 * (n // 4) + 16 * (n % 4)))
        A.wait_lg_all()
        for b in range(2):
            for i in range(16):
                I("v_add_f32", v(CS + 32 * sg + 16 * b + i), v(T + 32 * b + i), v(T + 32 * b + 16 + i))
    cs_fetch(0)
    spin(1, 4, 1)
    cs_fetch(1)
    spin(0, 4, 2)
    lp, dn = A.newlabel("Lpoll"), A.newlabel("Lpd")
    G = X
    I("s_mov_b32", sCNT, hx(40000))
    A.label(lp)
    for q in range(3):
        I("buffer_load_dwordx4", vr(G + 4 * q, 4), v(vSO), SRD_WS, sSP, mods="offen offset:%d sc1" % (512 * q))
    I("buffer_load_dwordx4", vr(G + 12, 4), v(vSO3), SRD_WS, sSP, mods="offen offset:1536 sc1")
    I("s_sub_u32", sCNT, sCNT, 1)
    A.wait_vm_all(force=True)
    I("v_mov_b32", v(TMP), vTAG)
    I("v_mov_b32", v(TMP + 1), vTAG)
    for q in range(4):
        I("v_min3_u32", v(TMP), v(TMP), v(G + 4 * q + 1), v(G + 4 * q + 3))
        I("v_max3_u32", v(TMP + 1), v(TMP + 1), v(G + 4 * q + 1), v(G + 4 * q + 3))
    I("v_cmp_ne_u32", "vcc", v(TMP), v(TMP + 1))
    I("s_cbranch_vccz", dn)
    I("s_cmp_lg_u32", sCNT, 0)
    I("s_cbranch_scc1", lp)
    A.label(dn)
    for o in (0, 2):
        I("v_add_f32", v(G + o), v(G + o), v(G + 4 + o))
        I("v_add_f32", v(G + o), v(G + o), v(G + 8 + o))
        I("v_fmac_f32", v(G + o), v(G + 12 + o), v(vW3))
        I("v_mov_b32", v(G + o + 1), v(G + o))
        I("v_permlane32_swap_b32", v(G + o), v(G + o + 1))
        I("v_add_f32", v(G + o), v(G + o), v(G + o + 1))
    mean_var(G, G + 2, NMU, TMP + 7)
    rstd(TMP + 8, TMP + 7)
    I("v_sub_f32", v(NMU), 0, v(NMU))
    gelu_prep(TMP + 8, K0, K1, RI)
    stamp("b_ready")
    def fetch():
        for b, ad in enumerate((vS0, vS1)):
            for q in range(4):
                I("ds_read_b128", vr(X + 16 * b + 4 * q, 4), v(ad), mods="offset:%d" % (1024 * q))
        A.wait_lg_all()
    def act(c):
        b = c & 1
        x = X + 16 * b
        for i in range(16):
            I("v_fmac_f32", v(x + i), v(CS + 16 * c + i), v(NMU))
        gelu(x, 16, GT, K0, K1, RI, TMP, False)
    def put(c):
        def f(m):
            r = None
            for u in range(2):
                o = 1024 * (c & 1) + 512 * u
                r = I("buffer_store_dwordx4", vr(TMP + 4 * u, 4), v(vBF), SRD_WS, sC,
                      mods="offen" + (" offset:%d" % o if o else "") + (" " + m if m else ""))
            return r
        r = moded(f)
        stamp("b_g%d" % c)
        return r
    def flag(c, st):
        I("v_add_u32", v(vFL), c, vTAG)
        A.wait(vm=st)
        def f(m):
            I("s_mov_b64", "exec", 1)
            I("buffer_store_dword", v(vFL), "off", SRD_WS, sD, mods=m)
            I("s_mov_b64", "exec", -1)
        moded(f)
    FD = OPT.get("fd", 50)
    spin(0, 8, 1)
    fetch()
    arrive(1)
    act(0)
    st0 = put(0)
    with Inject([lambda: flag(0, st0)], FD):
        act(1)
    st1 = put(1)
    rc = I("buffer_load_dword", v(RT), v(vRC), SRD_WS, 0, mods="offen sc1")
    I("s_add_u32", sC, sC, hx(R_G[1] - R_G[0]))
    spin(0, 12, 1)
    stamp("b_h1")
    fetch()
    with Inject([lambda: flag(1, st1)], OPT.get("f1", 30)):
        act(2)
    cls_check(rc, RT, vRC, 0)
    st2 = put(2)
    with Inject([lambda: flag(2, st2)], OPT.get("f2", 110)):
        act(3)
    st3 = put(3)
    flag(3, st3)

def dump_stamps():
    if not OPT["stamp"]:
        return
    A.wait_vm_all(force=True)
    stamp("drained")
    I("s_memrealtime", sST)
    A.wait_lg_all(force=True)
    I("v_writelane_b32", vSTAMP, "s98", 1)
    I("s_lshl_b32", sA, "s2", 3)
    I("s_add_u32", sA, sA, sW)
    I("s_lshl_b32", sA, sA, 8)
    I("s_add_u32", sA, sA, hx(OFF_STAMP))
    I("v_lshlrev_b32", v(TMP), 2, vLANE)
    I("buffer_store_dword", vSTAMP, v(TMP), SRD_WS, sA, mods="offen")

def epoch_update():
    l = A.newlabel("Lep")
    I("s_cmp_lg_u32", "s2", hx(255))
    I("s_cbranch_scc1", l)
    I("s_cmp_lg_u32", sW, 0)
    I("s_cbranch_scc1", l)
    lp, dn = A.newlabel("Lpoll"), A.newlabel("Lpd")
    I("v_lshrrev_b32", v(TMP), 3, vLANE)
    I("v_lshlrev_b32", v(TMP), PSH, v(TMP))
    I("v_and_b32", v(TMP + 1), 7, vLANE)
    I("v_lshl_add_u32", v(TMP), v(TMP + 1), 7, v(TMP))
    I("s_mov_b32", sA, hx(R_XCC))
    I("s_mov_b32", sCNT, hx(40000))
    A.label(lp)
    for i in range(4):
        I("buffer_load_dword", v(TMP + 4 + i), v(TMP), SRD_WS, sA, mods="offen offset:%d sc1" % (1024 * i))
    A.wait_vm_all(force=True)
    for i in range(4):
        I("v_subrev_u32", v(TMP + 4 + i), sTAG, v(TMP + 4 + i))
    I("v_max_u32", v(TMP + 4), v(TMP + 4), v(TMP + 5))
    I("v_max3_u32", v(TMP + 4), v(TMP + 4), v(TMP + 6), v(TMP + 7))
    I("v_cmp_le_u32", "vcc", 16, v(TMP + 4))
    I("s_cbranch_vccz", dn)
    I("s_sleep", 2)
    I("s_sub_u32", sCNT, sCNT, 1)
    I("s_cmp_lg_u32", sCNT, 0)
    I("s_cbranch_scc1", lp)
    A.label(dn)
    I("s_mov_b32", sA, hx(OFF_EPOCH))
    flag_store(sA)
    A.label(l)

def touch(srd, base, nbytes, mods=""):
    n = -(-nbytes // (32 * 8192))
    if isinstance(base, int):
        I("s_mov_b32", sA, hx(base))
    else:
        I("s_mov_b32", sA, base)
    lim = None
    for i in range(n):
        rem = nbytes - i * 32 * 8192
        if rem < 32 * 8192:
            I("v_cmp_gt_u32", "vcc", hx(rem), v(TMP + 8))
            I("v_cndmask_b32", v(TMP + 10), v(TMP + 9), v(TMP + 8), "vcc")
            va = v(TMP + 10)
        else:
            va = v(TMP + 8)
        I("buffer_load_dword", v(TMP + 11), va, srd, sA, mods="offen" + (" " + mods if mods else ""))
        if i + 1 < n:
            I("s_add_u32", sA, sA, hx(32 * 8192))

def touch_setup():
    I("s_sub_u32", sA, sLI, 28)
    I("s_lshl_b32", sA, sA, 3)
    I("s_add_u32", sA, sA, sW)
    I("s_lshl_b32", sA, sA, 13)
    I("v_lshl_add_u32", v(TMP + 8), vLANE, 7, sA)
    I("v_mov_b32", v(TMP + 9), hx(OOB))

def spare_pre():
    A.cmt("---- spare CU: prefetch")
    I("v_mov_b32", v(TMP + 4), 0)
    I("v_and_b32", vTOK, 15, vLANE)
    touch_setup()
    I("s_getpc_b64", "s[64:65]")
    A.label("L_pc")
    I("s_sub_u32", "s64", "s64", "L_pc-%s_kernel" % NAME)
    I("s_subb_u32", "s65", "s65", 0)
    I("s_and_b32", "s65", "s65", hx(0xffff))
    I("s_mov_b32", "s66", "L_codeend-%s_kernel" % NAME)
    I("s_mov_b32", "s67", hx(0x20000))
    I("s_sub_u32", sA, sLI, 28)
    I("s_lshl_b32", sB, sW, 2)
    I("s_add_u32", sA, sA, sB)
    I("s_lshl_b32", sD, sA, 11)
    I("v_lshlrev_b32", v(TMP + 12), 7, vTOK)
    touch1(SRD_BG, v(TMP + 12), sD)
    A.wait_lg_all(force=True)
    epoch_load()
    srds([60, 8, 4, 12, 16, 20, 24, 28, 32])
    I("v_lshlrev_b32", v(TMP + 11), 7, vLANE)
    def mall(items, off):
        for srd, n in items:
            l = A.newlabel("Lml")
            I("s_sub_u32", sA, sE, hx(off))
            I("s_and_b32", sA, sA, hx(255))
            I("s_cmp_ge_u32", sA, hx(n))
            I("s_cbranch_scc1", l)
            I("s_lshl_b32", sA, sA, 13)
            touch1(srd, v(TMP + 11), sA)
            A.label(l)
            off += n
        return off
    I("s_sub_u32", sA, sLI, 28)
    I("s_lshl_b32", sA, sA, 3)
    I("s_add_u32", sA, sA, sX)
    I("s_lshl_b32", sB, sW, 5)
    I("s_add_u32", sE, sA, sB)
    off = mall([(SRD_WQKV, 147), (SRD_WO, 49), (SRD_W1, 49)], 0)
    I("s_lshl_b32", sG, sD, 2)
    I("s_add_u32", sG, sG, sPAGE)
    I("s_mov_b32", sA, sG)
    I("s_cmp_ge_u32", sD, hx(28 << 11))
    I("s_cmov_b32", sA, hx(OOB))
    I("s_add_u32", sB, sPAGE, hx(R_LOC))
    I("s_cmp_eq_u32", sD, hx(31 << 11))
    I("s_cmov_b32", sA, sB)
    touch1(SRD_WS, v(TMP + 11), sA)
    tag_publish()
    late_consts()
    dma_lane_consts()
    barrier()
    tag_read_finish(tag_read_issue())
    off = mall([(SRD_W2, 49)], off)
    I("s_add_u32", sA, sG, hx(R_2))
    I("s_add_u32", sB, sG, hx(R_SH - 28 * 8192))
    I("s_cmp_ge_u32", sD, hx(28 << 11))
    I("s_cmov_b32", sA, sB)
    touch1(SRD_WS, v(TMP + 11), sA)
    I("s_add_u32", sA, sB, hx(32768))
    I("s_cmp_lt_u32", sD, hx(28 << 11))
    I("s_cmov_b32", sA, hx(OOB))
    touch1(SRD_WS, v(TMP + 11), sA)
    if not OPT["alias"]:
        I("s_add_u32", sB, sPAGE, hx(1 << 21))
        touch(SRD_WS, sB, 112 * TB)
    if OPT["mall"] > 1:
        off = mall([(SRD_W3, 196)], off)
    mode_issue()
    A.wait_vm_all(force=True)
    stamp("sp_mall")
    att_ids()

def spare_att():
    I("s_sub_u32", sA, sLI, 28)
    I("s_lshl_b32", sA, sA, 3)
    I("s_add_u32", sA, sA, sX)
    I("s_lshl_b32", sB, sLW, 5)
    I("s_add_u32", sA, sA, sB)
    I("s_sub_u32", sB, hx(127), sA)
    I("s_lshl_b32", sA, sA, 13)
    I("s_lshl_b32", sB, sB, 13)
    I("v_lshlrev_b32", v(TMP + 12), 7, vLANE)
    seq = []
    if OPT["mall"] < 2:
        seq += [(SRD_W3, sA, 0), (SRD_W3, sA, 1)]
    seq += [(SRD_W4, sB, 1), (SRD_W4, sB, 0)]
    for srd, r, hi in seq[:OPT["ta"]]:
        I("s_add_u32", sC, r, hx(hi * 128 * 8192))
        touch1(srd, v(TMP + 12), sC)

def spare_post():
    if OPT["warm"]:
        touch_setup()
        I("v_lshlrev_b32", v(TMP + 10), 1, v(TMP + 8))
        for sg in range(2):
            I("s_mov_b32", sA, 128 * sg)
            for i in range(4):
                touch1(SRD_W3, v(TMP + 10), sA)
                I("s_add_u32", sA, sA, hx(32 * 16384))
                if i & 1:
                    barrier()
        stamp("sp_w3")
        I("s_sub_u32", sB, sLI, 28)
        I("s_lshl_b32", sB, sB, 3)
        I("s_add_u32", sB, sB, sW)
        I("v_lshlrev_b32", v(TMP + 10), 7, vLANE)
        for sg in range(2):
            for i in range(4):
                I("s_add_u32", sC, sB, 32 * i)
                I("s_mul_i32", sD, sC, hx(147))
                I("s_lshr_b32", sD, sD, 10)
                I("s_mul_i32", sA, sD, hx(128 * 896 - 7 * 8192))
                I("s_lshl_b32", sC, sC, 13)
                I("s_add_u32", sA, sA, sC)
                if sg:
                    I("s_add_u32", sA, sA, hx(64 * 896))
                touch1(SRD_W4, v(TMP + 10), sA)
                if i & 1:
                    barrier()
        A.wait_vm_all(force=True)
        stamp("sp_w4")

def reset():
    A.vm = A.vm_done = A.lg = A.lg_done = 0

prologue()
I("s_cmp_ge_u32", sLI, 28)
I("s_cbranch_scc1", "L_spare")
I("s_cmp_ge_u32", sW, 4)
I("s_cbranch_scc1", "L_aload")
phase_a_compute()
A.label("L_att")
reset()
att_a()
I("s_cmp_ge_u32", sLI, 28)
I("s_cbranch_scc1", "L_spare2a")
st = c_compute()
e_compute(st)
dump_stamps()
I("s_endpgm")
A.label("L_spare")
reset()
spare_pre()
I("s_cmp_ge_u32", sW, 4)
I("s_cbranch_scc1", "L_sp4")
att_consts()
I("s_branch", "L_att")
A.label("L_sp4")
mode_check()
att_consts_b()
kv_poll_off(TMP + 4, 0)
I("s_branch", "L_attpre")
A.label("L_aload")
ROLE[0] = "B"
reset()
phase_a_loader()
A.label("L_attpre")
att_loader_pre()
att_b()
I("s_cmp_ge_u32", sLI, 28)
I("s_cbranch_scc1", "L_spare2")
c_loader()
e_helper()
dump_stamps()
I("s_endpgm")
A.label("L_spare2a")
ROLE[0] = "A"
reset()
o_flag()
epoch_update()
I("s_waitcnt", "vmcnt(0)")
barrier()
A.label("L_spare2")
spare_post()
dump_stamps()
A.label("L_end")
I("s_endpgm")
A.label("L_codeend")

body = A.finalize()
hdr = open("cdna_kernels/%s.s.ref" % NAME).read().split("; Override launch")[0]
out = hdr + "; @launch grid=(256,1,1) block=(512,1,1) lds=%d\n" % LDS_SIZE
out += """.amdgcn_target "amdgcn-amd-amdhsa--gfx950"
.text
.globl %s_kernel
.p2align 8
.type %s_kernel,@function
%s_kernel:
""" % (NAME, NAME, NAME)
out += body
out += """.section .rodata,"a"
.p2align 6
.amdhsa_kernel %s_kernel
  .amdhsa_next_free_vgpr 256
  .amdhsa_next_free_sgpr 102
  .amdhsa_accum_offset 256
  .amdhsa_group_segment_fixed_size 0
  .amdhsa_kernarg_size 88
  .amdhsa_user_sgpr_count 2
  .amdhsa_user_sgpr_kernarg_segment_ptr 1
  .amdhsa_system_sgpr_workgroup_id_x 1
.end_amdhsa_kernel
""" % NAME
open(sys.argv[1], "w").write(out)
json.dump(dict(stamps=stamp_names, stamps_b=stamp_names_b, PSH=PSH, v5=1, OFF=dict(Q=R_Q, K=R_K, V=R_V, O=R_O, H=R_H, HH=R_HH, X1=R_X1, G=R_G[0], G1=R_G[1],
               STAMP=OFF_STAMP, WS=WS_SIZE)), open(sys.argv[1] + ".json", "w"))
```

```python
import re

TRANS = ("v_exp_f32", "v_log_f32", "v_rcp_f32", "v_rsq_f32", "v_sqrt_f32", "v_sin_f32", "v_cos_f32")

def regs_of(tok):
    t = tok.strip()
    t = t.lstrip("-")
    if t.startswith("abs(") or t.startswith("neg("):
        t = t[4:-1]
    t = t.strip("|")
    m = re.fullmatch(r"([vsa])(\d+)", t)
    if m:
        return [(m.group(1), int(m.group(2)))]
    m = re.fullmatch(r"([vsa])\[(\d+):(\d+)\]", t)
    if m:
        return [(m.group(1), i) for i in range(int(m.group(2)), int(m.group(3)) + 1)]
    if t == "vcc":
        return [("s", 106), ("s", 107)]
    if t == "vcc_lo":
        return [("s", 106)]
    if t == "vcc_hi":
        return [("s", 107)]
    if t == "exec":
        return [("s", 126), ("s", 127)]
    if t == "exec_lo":
        return [("s", 126)]
    if t == "exec_hi":
        return [("s", 127)]
    if t == "m0":
        return [("s", 124)]
    return []


class Ins:
    __slots__ = ("op", "ops", "mods", "cm")

    def __init__(self, op, ops, mods="", cm=""):
        self.op, self.ops, self.mods, self.cm = op, [str(o) for o in ops], mods, cm

    def text(self):
        s = "    " + self.op
        if self.ops:
            s += " " + ", ".join(self.ops)
        if self.mods:
            s += " " + self.mods
        if self.cm:
            s += "    ; " + self.cm
        return s


class Label:
    def __init__(self, name):
        self.name = name

    def text(self):
        return self.name + ":"


class Raw:
    def __init__(self, s):
        self.s = s

    def text(self):
        return self.s


def classify(i):
    op, o = i.op, i.ops
    R = lambda k: regs_of(o[k]) if k < len(o) else []
    allr = lambda ks: [r for k in ks for r in R(k)]
    n = len(o)
    d = dict(kind="other", wr=[], rd=[])
    if op.startswith("v_mfma"):
        passes = 8 if "32x32" in op else 4
        d.update(kind="mfma", wr=R(0), ab=R(1) + R(2), c=R(3), rd=R(1) + R(2) + R(3), passes=passes)
    elif op.startswith("v_cmp"):
        d.update(kind="valu", wr=R(0), rd=allr(range(1, n)))
    elif op in ("v_readfirstlane_b32", "v_readlane_b32"):
        d.update(kind="valu", wr=R(0), rd=allr(range(1, n)), lane_read=True)
    elif op == "v_writelane_b32":
        d.update(kind="valu", wr=R(0), rd=allr(range(0, n)))
    elif op in ("v_swap_b32", "v_permlane16_swap_b32", "v_permlane32_swap_b32"):
        d.update(kind="valu", wr=R(0) + R(1), rd=R(0) + R(1), perm=op.startswith("v_permlane"))
    elif op.startswith("v_"):
        rd = allr(range(1, n))
        if op.startswith("v_fmac") or op.startswith("v_dot2c") or op.startswith("v_pk_fmac"):
            rd = rd + R(0)
        if op.startswith("v_cndmask") and n == 3:
            rd = rd + regs_of("vcc")
        wr = R(0)
        if op.startswith("v_add_co") or op.startswith("v_sub_co") or op.startswith("v_addc_co"):
            wr = wr + R(1)
            rd = allr(range(2, n))
        d.update(kind="valu", wr=wr, rd=rd, trans=op in TRANS, dot=op.startswith("v_dot"),
                 dpp=("row_" in i.mods or "quad_perm" in i.mods), sdwa=("sdwa" in op or ("op_sel" in i.mods and not op.startswith("v_pk_"))))
    elif op.startswith("ds_read") or op.startswith("ds_bpermute") or op.startswith("ds_swizzle"):
        d.update(kind="ds", wr=R(0), rd=allr(range(1, n)))
    elif op.startswith("ds_"):
        d.update(kind="ds", rd=allr(range(0, n)))
    elif op.startswith("buffer_load") or op.startswith("global_load"):
        if " lds" in (" " + i.mods):
            d.update(kind="vmem", rd=allr(range(0, n)), dma=True)
        else:
            d.update(kind="vmem", wr=R(0), rd=allr(range(1, n)))
    elif op.startswith("buffer_store") or op.startswith("buffer_atomic"):
        d.update(kind="vmem", rd=allr(range(0, n)), wide=R(0) if ("x4" in op or "x3" in op) else [])
    elif op.startswith("buffer_"):
        d.update(kind="vmem")
    elif op.startswith("s_"):
        if op.startswith("s_cmp") or op.startswith("s_cbranch") or op in ("s_branch", "s_nop", "s_waitcnt", "s_barrier", "s_endpgm", "s_sleep", "s_setprio", "s_bitcmp1_b32", "s_bitcmp0_b32"):
            d.update(kind="salu", rd=allr(range(0, n)))
        else:
            d.update(kind="salu", wr=R(0), rd=allr(range(1, n)))
    else:
        raise ValueError("unknown op " + op)
    return d


CAP = 24


class HState:
    def __init__(self):
        self.ev = {}

    def copy(self):
        h = HState()
        h.ev = dict(self.ev)
        return h

    def merge(self, o):
        ch = False
        for k, a in o.ev.items():
            if k not in self.ev or self.ev[k] > a:
                self.ev[k] = a
                ch = True
        return ch

    def tick(self, n):
        self.ev = {k: a + n for k, a in self.ev.items() if a + n < CAP}


def need_nops(st, ins, c):
    need = 0
    byreg = {}
    for k, a in st.ev.items():
        byreg.setdefault(k[1], []).append((k[0], k[2], a))

    def req(reg, typ, fn):
        nonlocal need
        for t, info, a in byreg.get(reg, ()):
            if t == typ:
                w = fn(info)
                if w is not None and w - a > need:
                    need = w - a

    kind = c["kind"]
    full = {4: 8, 8: 12}
    part = {4: 6, 8: 10}
    warc = {4: 3, 8: 7}
    if kind == "mfma":
        for r in c["rd"]:
            req(r, "vw", lambda info: 3 if info == "dot" else 2)
        for r in c["ab"]:
            req(r, "mw", lambda info: full[info[0]])
        cr = tuple(c["c"])
        for r in c["c"]:
            req(r, "mw", lambda info: 0 if (info[1] == cr and info[0] == c["passes"] and info[2] == ins.op) else part[info[0]])
        if not c["c"]:
            for r in c["wr"]:
                req(r, "mw", lambda info: part[info[0]])
        for r in c["wr"]:
            req(r, "st", lambda info: 2)
    elif kind == "valu":
        for r in c["rd"] + c["wr"]:
            req(r, "mw", lambda info: full[info[0]])
        for r in c["wr"]:
            req(r, "mc", lambda info: warc[info])
            req(r, "st", lambda info: 2)
        for r in c["rd"]:
            if r[0] == "v":
                if not c.get("trans"):
                    req(r, "vw", lambda info: 1 if info == "trans" else None)
                req(r, "vw", lambda info: 1 if info == "sdwa" else None)
                if c.get("perm") or c.get("dpp"):
                    req(r, "vw", lambda info: 2)
                if c.get("lane_read"):
                    req(r, "vw", lambda info: 1)
            else:
                req(r, "sw", lambda info: 4 if (c.get("lane_read") or ins.op == "v_writelane_b32") else 2)
        for r in set(c["rd"] + c["wr"]):
            if c.get("dot") and r in c["wr"] and r not in regs_of(ins.ops[1]) + regs_of(ins.ops[2]):
                continue
            req(r, "vw", lambda info: 3 if info == "dot" else None)
    elif kind in ("vmem", "ds"):
        for r in c["rd"] + c["wr"]:
            req(r, "mw", lambda info: full[info[0]])
        for r in c["rd"]:
            if r[0] == "s":
                req(r, "sw", lambda info: 5)
            else:
                req(r, "vw", lambda info: 3 if info == "dot" else (1 if info in ("trans", "sdwa") else None))
        for r in c["wr"]:
            req(r, "st", lambda info: 1)
            req(r, "mc", lambda info: warc[info])
        if c.get("dma"):
            req(("s", 124), "m0", lambda info: 1)
    elif kind == "salu":
        for r in c["rd"]:
            req(r, "sw", lambda info: 1)
    return need


def apply(st, ins, c):
    n = 1
    if ins.op == "s_nop":
        n = int(ins.ops[0]) + 1
    st.tick(n)
    kind = c["kind"]

    def clear(reg, types):
        for k in [k for k in st.ev if k[1] == reg and k[0] in types]:
            del st.ev[k]

    if kind == "mfma":
        for r in c["wr"]:
            clear(r, ("vw", "mw"))
            st.ev[("mw", r, (c["passes"], tuple(c["wr"]), ins.op))] = 0
        for r in c["c"]:
            st.ev[("mc", r, c["passes"])] = 0
    elif kind == "valu":
        info = "trans" if c.get("trans") else "dot" if c.get("dot") else "sdwa" if c.get("sdwa") else "plain"
        for r in c["wr"]:
            if r[0] == "v":
                clear(r, ("vw",))
                st.ev[("vw", r, info)] = 0
            else:
                st.ev[("sw", r, None)] = 0
    elif kind == "vmem":
        for r in c.get("wide", []):
            st.ev[("st", r, None)] = 0
    elif kind == "salu":
        for r in c["wr"]:
            clear(r, ("sw",))
            if r == ("s", 124):
                st.ev[("m0", r, None)] = 0


class Asm:
    def __init__(self):
        self.items = []
        self.vm = 0
        self.vm_done = 0
        self.lg = 0
        self.lg_done = 0
        self.nlabel = 0

    def I(self, op, *ops, mods="", cm=""):
        i = Ins(op, ops, mods, cm)
        self.items.append(i)
        if op.startswith("buffer_") or op.startswith("global_"):
            self.vm += 1
            return self.vm
        if op.startswith("ds_"):
            self.lg += 1
            return self.lg
        return None

    def label(self, name):
        self.items.append(Label(name))

    def newlabel(self, base="L"):
        self.nlabel += 1
        return "%s_%d" % (base, self.nlabel)

    def raw(self, s):
        self.items.append(Raw(s))

    def cmt(self, s):
        self.items.append(Raw("    ; " + s))

    def wait(self, vm=None, lg=None):
        parts = []
        if vm is not None and vm > self.vm_done:
            n = min(self.vm - vm, 63)
            parts.append("vmcnt(%d)" % n)
            self.vm_done = self.vm - n
        if lg is not None and lg > self.lg_done:
            n = min(self.lg - lg, 15)
            parts.append("lgkmcnt(%d)" % n)
            self.lg_done = self.lg - n
        if parts:
            self.I("s_waitcnt", " ".join(parts))

    def wait_vm_all(self, force=False):
        if force or self.vm > self.vm_done:
            self.I("s_waitcnt", "vmcnt(0)")
            self.vm_done = self.vm

    def wait_lg_all(self, force=False):
        if force or self.lg > self.lg_done:
            self.I("s_waitcnt", "lgkmcnt(0)")
            self.lg_done = self.lg

    def finalize(self):
        items = self.items
        cls = [classify(i) if isinstance(i, Ins) else None for i in items]
        label_in = {}
        nops = [0] * len(items)
        for _ in range(4):
            st = HState()
            live = True
            changed = False
            for k, it in enumerate(items):
                if isinstance(it, Label):
                    if not live:
                        st = HState()
                    if it.name in label_in:
                        st.merge(label_in[it.name])
                    live = True
                    continue
                if not isinstance(it, Ins):
                    continue
                c = cls[k]
                n = need_nops(st, it, c)
                if n > nops[k]:
                    nops[k] = n
                    changed = True
                if nops[k]:
                    st.tick(nops[k])
                apply(st, it, c)
                if it.op.startswith("s_cbranch") or it.op == "s_branch":
                    tgt = it.ops[0]
                    h = label_in.setdefault(tgt, HState())
                    if h.merge(st):
                        changed = True
                    if it.op == "s_branch":
                        live = False
                if it.op == "s_endpgm":
                    live = False
            if not changed:
                break
        out = []
        for k, it in enumerate(items):
            n = nops[k]
            while n > 0:
                m = min(n, 16)
                out.append("    s_nop %d" % (m - 1))
                n -= m
            out.append(it.text())
        return "\n".join(out) + "\n"
```

```python
import sys, struct, json
from asmlib import Asm

NAME = "sequential_preLN__sliding_block__mixer_s_mlp__prompt"
OPT = dict(stamp=0, alias=1, local=1, warm=1, clean=0, npre=5, fk=11, mall=1, ta=1, tb=1)
KEEP = []
for a in sys.argv[2:]:
    k, v_ = a.split("=")
    if k == "keep":
        KEEP = v_.split(",")
        continue
    OPT[k] = int(v_)

def f2u(x): return struct.unpack("<I", struct.pack("<f", x))[0]
def hx(x): return "0x%x" % (x & 0xffffffff)
def fl(x): return hx(f2u(x))

TB = 14336
PSH = 21 if OPT["alias"] else 22
R_Q, R_2, R_K, R_V = 0, 16 * TB, 32 * TB, 48 * TB
R_HALO = 64 * TB
R_LOC = R_HALO + 2 * TB
R_FO = R_LOC
R_FHH = R_FO + 2048
R_FQ = R_FHH + 2048
R_FG = R_FQ + 2048
R_SH = R_FG + 2048
R_SX = R_SH + 32768
R_FQKV = R_SX + 32768
R_FHALO = R_FQKV + 16384
R_XCC = R_FHALO + 2048
R_END = R_XCC + 4096
assert R_END <= (1 << 21)
if OPT["alias"]:
    R_O, R_HH, R_H, R_X1 = R_Q, R_Q, R_2, R_2
    R_G = (R_K, R_Q)
else:
    R_H = R_2
    R_O = 1 << 21
    R_X1 = R_O + 16 * TB
    R_HH = R_X1 + 16 * TB
    R_G = (R_HH + 48 * TB, R_HH + 16 * TB)
OFF_EPOCH = 8 << PSH
OFF_CSG = OFF_EPOCH + 4096
OFF_STAMP = OFF_CSG + 16384
WS_SIZE = OFF_STAMP + 256 * 8 * 256
OOB = 0x40000000

SLOT = 28672
def slot(i): return SLOT * i
L_XIMG = 3 * SLOT
L_QIMG = 5 * SLOT
L_STG = L_QIMG
L_CS1 = L_QIMG + 16384
L_CS3 = L_CS1 + 256
L_MODE = L_CS3 + 1024
L_TAG = L_MODE + 4
L_CNT = L_MODE + 16
L_CSA = L_CNT + 256
aO, aOF, aC1P, aC1Q, aC2P, aC2Q, aHF, aDP, aXF, bWO, bW1, bCS1, bW2, bAB, bW3 = range(4, 19)
aZ, aF0, aF1, aF2, aF3, aL01, aL2, aL3, aFIN = range(19, 28)
aH, bR = 32, 36
L_CST = L_CSA
L_STA = L_CSA + 768
assert L_STA + 1024 <= 163840
LDS_SIZE = 163840

SRD_X, SRD_WQKV, SRD_WO, SRD_W1, SRD_W2, SRD_W3, SRD_W4, SRD_OUT = ["s[%d:%d]" % (4 * i, 4 * i + 3) for i in range(1, 9)]
SRD_WS, SRD_BG = "s[60:63]", "s[64:67]"
sX, sLI, sTG, sJ, sW, sLW, sPAGE, sTAG, sTL = ["s%d" % i for i in range(68, 77)]
sMODE, sJ128, sK, sROT, sXCC = "s77", "s78", "s79", "s80", "s81"
sODD = "s[82:83]"
sA, sB, sC, sD, sE, sF, sG, sH_ = ["s%d" % i for i in range(84, 92)]
sHEAD, sTQ0, sC0, sJP, sT1 = "s92", "s93", "s94", "s95", "s96"
sCNT = "s97"
sST = "s[98:99]"
sD2, sC2 = "s100", "s101"

vLANE, vTOK, vQ4, vL16 = "v0", "v1", "v2", "v3"
vD896, vD2688, vD3584, vD4 = "v4", "v5", "v6", "v44"
TRL = [[7, 8], [9, 10]]
TRC = [[11, 12], [13, 14]]
vTAG = "v15"
ONES = 16
HP = 20
HHP = 80
X1P = 36
vMU, vRH, vSTAMP = 44, 45, "v47"
vSPO, vSPW = 5, 46
ACC = 48
BREG = 64
AREG = 128
TMP = 240

def v(i): return "v%d" % i
def vr(i, n): return "v[%d:%d]" % (i, i + n - 1)

A = Asm()
I = A.I
stamp_names = []
stamp_names_b = ["start", "drained"] + ["sp_mall", "sp_w3", "sp_w4"]
stamp_names += stamp_names_b
ROLE = ["A"]

def stamp(name):
    if not OPT["stamp"]:
        return
    if OPT["stamp"] == 2 and name not in ("start", "drained") and name not in KEEP:
        return
    lst = stamp_names_b if ROLE[0] == "B" else stamp_names
    if name not in lst:
        lst.append(name)
    idx = lst.index(name) + 2
    assert idx < 64
    I("s_memrealtime" if OPT.get("rt") else "s_memtime", sST)
    A.wait_lg_all(force=True)
    I("v_writelane_b32", vSTAMP, "s98", idx)

FS = []
def fstamp(name):
    k = len(FS)
    FS.append(name)
    I("s_getreg_b32", "s98", "hwreg(HW_REG_SHADER_CYCLES)") if False else None
    KEEP.append(name)
    stamp(name)

def barrier():
    I("s_barrier")

def sync_counts():
    A.vm_done = A.vm
    A.lg_done = A.lg

def poll(vOff, sleep=1):
    sleep = max(sleep, OPT.get("psl", 0))
    lp, dn = A.newlabel("Lpoll"), A.newlabel("Lpd")
    t = v(TMP + 15)
    I("s_mov_b32", sCNT, hx(40000))
    A.label(lp)
    I("buffer_load_dword", t, vOff, SRD_WS, 0, mods="offen sc1")
    A.wait_vm_all(force=True)
    I("v_cmp_ne_u32", "vcc", sTAG, t)
    I("s_cbranch_vccz", dn)
    if sleep:
        I("s_sleep", sleep)
    I("s_sub_u32", sCNT, sCNT, 1)
    I("s_cmp_lg_u32", sCNT, 0)
    I("s_cbranch_scc1", lp)
    A.label(dn)

def poll_a(vOff, t):
    I("buffer_load_dword", v(t), vOff, SRD_WS, 0, mods="offen sc1")

def poll_b(vOff, t):
    lp, dn = A.newlabel("Lpoll"), A.newlabel("Lpd")
    I("s_mov_b32", sCNT, hx(40000))
    A.label(lp)
    A.wait_vm_all(force=True)
    I("v_cmp_ne_u32", "vcc", sTAG, v(t))
    I("s_cbranch_vccz", dn)
    I("s_sub_u32", sCNT, sCNT, 1)
    I("s_cmp_eq_u32", sCNT, 0)
    I("s_cbranch_scc1", dn)
    poll_a(vOff, t)
    A.vm -= 1
    I("s_branch", lp)
    A.label(dn)

def moded(fn):
    if not OPT["local"]:
        return fn("sc1")
    l1, l2 = A.newlabel("Lsl"), A.newlabel("Lse")
    I("s_cmp_eq_u32", sMODE, 1)
    I("s_cbranch_scc0", l1)
    vm0 = A.vm
    fn("")
    I("s_branch", l2)
    A.label(l1)
    A.vm = vm0
    r = fn("sc1")
    A.label(l2)
    return r

def flag_store(soff, mods="sc1"):
    I("s_mov_b64", "exec", 1)
    r = I("buffer_store_dword", vTAG, "off", SRD_WS, soff, mods=mods)
    I("s_mov_b64", "exec", -1)
    return r

def frag_store(preg, soff, off=0, mods="sc1"):
    m = "offen" + (" offset:%d" % off if off else "") + (" " + mods if mods else "")
    return I("buffer_store_dwordx4", vr(preg, 4), vL16, SRD_WS, soff, mods=m)

def dma_seq(srd, pitch, lds_base, glob, n, mod=None, start=None, w4=None):
    vofs = {896: vD896, 2688: vD2688, 3584: vD3584}[pitch]
    if start is None:
        I("s_mov_b32", sK, 0)
    elif start != "cont":
        I("s_mov_b32", sK, start)
    I("s_lshl_b32", sF, sLW, 10)
    I("s_add_u32", sF, sF, hx(lds_base) if isinstance(lds_base, int) else lds_base)
    if glob[1]:
        I("s_add_u32", sG, glob[0], hx(glob[1]))
    else:
        I("s_mov_b32", sG, glob[0])
    I("s_mov_b32", sCNT, n)
    lp = A.newlabel("Ldma")
    A.label(lp)
    if w4 is None:
        I("s_lshl_b32", sH_, sK, 12)
        I("s_add_u32", "m0", sH_, sF)
        I("s_mul_i32", sH_, sK, hx(32 * pitch))
    else:
        I("s_mov_b32", "m0", sF)
        I("s_add_u32", sF, sF, hx(4096))
        I("s_and_b32", sH_, sK, hx(0xfffe))
        I("s_add_u32", sH_, sH_, sK)
        I("s_mul_i32", sH_, sH_, hx(32 * pitch))
    I("s_add_u32", sH_, sH_, sG)
    I("buffer_load_dwordx4", vofs, srd, sH_, mods="offen lds")
    I("s_add_u32", sK, sK, 1)
    if mod:
        I("s_cmp_eq_u32", sK, mod)
        I("s_cmov_b32", sK, 0)
    I("s_sub_u32", sCNT, sCNT, 1)
    I("s_cmp_lg_u32", sCNT, 0)
    I("s_cbranch_scc1", lp)
    A.vm += n - 1
    return A.vm

def set_tr(base, dst=None, src=None):
    dst = dst or TRC
    src = src or TRL
    if isinstance(base, int):
        I("s_mov_b32", sA, hx(base))
        base = sA
    for b in range(2):
        for a in range(2):
            I("v_add_u32", v(dst[b][a]), base, v(src[b][a]))

def a_frag(dst, f, off, trc=None):
    trc = trc or TRC
    b, a = divmod(f, 2)
    I("ds_read_b64_tr_b16", vr(dst + 4 * f, 2), v(trc[b][a]), mods="offset:%d" % off)
    return I("ds_read_b64_tr_b16", vr(dst + 4 * f + 2, 2), v(trc[b][a]), mods="offset:%d" % (off + 1024))

def a_read(dst, off, trc=None):
    return [a_frag(dst, f, off, trc) for f in range(4)]

def m16(acc, areg, breg, zero):
    I("v_mfma_f32_16x16x32_bf16", vr(acc, 4), vr(areg, 4), vr(breg, 4), "0" if zero else vr(acc, 4))

def gemm(nk, nbuf, npre, aoff, breg, bl=None, bissue=None, zero=True, acc=ACC, areg=AREG, rd=None, fill=None, hook=None):
    if rd is None:
        rd = [a_read(areg + 16 * s, *aoff(s)) for s in range(npre)]
    for s in range(nk):
        if hook:
            hook(s)
        nxt = s + npre
        new = []
        A.wait(vm=bl[s] if bl is not None else None, lg=rd[s][3])
        for f in range(4):
            m16(acc + 4 * f, areg + 16 * (s % nbuf) + 4 * f, breg(s), zero and s == 0)
            if f == 0 and bissue:
                bissue(s)
            if nxt < nk:
                new.append(a_frag(areg + 16 * (nxt % nbuf), f, *aoff(nxt)))
            if fill:
                fill(s, f)
        if nxt < nk:
            rd.append(new)

def stats_reduce(a, b):
    I("v_permlane32_swap_b32", v(a), v(b))
    I("v_add_f32", v(a), v(a), v(b))
    I("v_mov_b32", v(b), v(a))
    I("v_permlane16_swap_b32", v(a), v(b))
    I("v_add_f32", v(a), v(a), v(b))
    I("v_mov_b32", v(b), v(a))
    I("v_permlane32_swap_b32", v(a), v(b))

def mean_var(s_sum, s_sq, mu, var):
    I("v_mul_f32", v(mu), fl(1.0 / 448), v(s_sum))
    I("v_mul_f32", v(var), fl(1.0 / 448), v(s_sq))
    I("v_fma_f32", v(var), "-" + v(mu), v(mu), v(var))
    I("v_max_f32", v(var), 0, v(var))

def rstd(dst, var):
    I("v_add_f32", v(dst), fl(1e-5), v(var))
    I("v_rsq_f32", v(dst), v(dst))

def unswap(p, nfr):
    I("s_mov_b64", "exec", sODD)
    for k in range(nfr):
        I("v_swap_b32", v(p + 4 * k), v(p + 4 * k + 2))
        I("v_swap_b32", v(p + 4 * k + 1), v(p + 4 * k + 3))
    I("s_mov_b64", "exec", -1)

def pack(dst, src, n):
    for i in range(n // 2):
        I("v_cvt_pk_bf16_f32", v(dst + i), v(src + 2 * i), v(src + 2 * i + 1))

def unpack(dst, src, n):
    for i in range(n // 2):
        I("v_lshlrev_b32", v(dst + 2 * i), 16, v(src + i))
        I("v_and_b32", v(dst + 2 * i + 1), hx(0xffff0000), v(src + i))

BC = "op_sel_hi:[1,0]"
def pk_mul_b(d, a, s):
    I("v_pk_mul_f32", vr(d, 2), vr(a, 2), vr(s, 2), mods="op_sel_hi:[1,0]")

GC0 = -2.0 * 0.7978845608028654 * 1.4426950408889634
GC1 = GC0 * 0.044715
def gelu_prep(r, k0, k1, ri):
    I("v_rcp_f32", v(ri), v(r))
    I("v_mul_f32", v(k1), v(r), v(r))
    I("v_mul_f32", v(k0), fl(GC0), v(r))
    I("v_mul_f32", v(k1), v(k1), v(r))
    I("v_mul_f32", v(k1), fl(GC1), v(k1))

def gelu(x, n, t, k0, k1, ri, dst, packed):
    if packed:
        P = range(0, n, 2)
        for i in P: I("v_pk_mul_f32", vr(t + i, 2), vr(x + i, 2), vr(x + i, 2))
        for i in P: I("v_pk_fma_f32", vr(t + i, 2), vr(t + i, 2), vr(k1, 2), vr(k0, 2), mods="op_sel_hi:[1,0,0]")
        for i in P: I("v_pk_mul_f32", vr(t + i, 2), vr(t + i, 2), vr(x + i, 2))
        for i in range(n): I("v_exp_f32", v(t + i), v(t + i))
        for i in P: I("v_pk_fma_f32", vr(t + i, 2), vr(t + i, 2), vr(ri, 2), vr(ri, 2), mods="op_sel_hi:[1,0,0]")
        for i in range(n): I("v_rcp_f32", v(t + i), v(t + i))
        for i in P: I("v_pk_mul_f32", vr(x + i, 2), vr(x + i, 2), vr(t + i, 2))
    else:
        for i in range(n): I("v_mul_f32", v(t + i), v(x + i), v(x + i))
        for i in range(n): I("v_fma_f32", v(t + i), v(t + i), v(k1), v(k0))
        for i in range(n): I("v_mul_f32", v(t + i), v(t + i), v(x + i))
        for i in range(n): I("v_exp_f32", v(t + i), v(t + i))
        for i in range(n): I("v_fma_f32", v(t + i), v(t + i), v(ri), v(ri))
        for i in range(n): I("v_rcp_f32", v(t + i), v(t + i))
        for i in range(n): I("v_mul_f32", v(x + i), v(x + i), v(t + i))
    pack(dst, x, n)

def stat_granule(p):
    a, b = TMP + 8, TMP + 10
    I("v_mov_b32", v(a), 0)
    I("v_mov_b32", v(b), 0)
    for i in range(8):
        I("v_dot2c_f32_bf16", v(a), v(p + i), v(ONES))
        I("v_dot2c_f32_bf16", v(b), v(p + i), v(p + i))
    I("v_mov_b32", v(TMP + 9), vTAG)
    I("v_mov_b32", v(TMP + 11), vTAG)
    stats_reduce(a, b)

def granule_store(m):
    I("s_mov_b64", "exec", hx(0xffff))
    r = I("buffer_store_dwordx4", vr(TMP + 8, 4), vL16, SRD_WS, sD, mods="offen" + (" " + m if m else ""))
    I("s_mov_b64", "exec", -1)
    return r

def stat_aux():
    I("v_cmp_gt_u32", "vcc", 3, vQ4)
    I("v_subrev_u32", v(vSPO), hx(256), vL16)
    I("v_cndmask_b32", v(vSPO), v(vSPO), vL16, "vcc")
    I("v_mov_b32", v(vSPW), 1.0)
    I("v_cndmask_b32", v(vSPW), 0, v(vSPW), "vcc")

def stat_poll_a(soff):
    I("buffer_load_dwordx4", vr(TMP + 4, 4), vL16, SRD_WS, soff, mods="offen sc1")
    I("buffer_load_dwordx4", vr(TMP + 8, 4), v(vSPO), SRD_WS, soff, mods="offen offset:1024 sc1")

def stat_poll(soff):
    lp, dn = A.newlabel("Lpoll"), A.newlabel("Lpd")
    I("s_mov_b32", sCNT, hx(40000))
    A.label(lp)
    A.wait_vm_all(force=True)
    I("v_min3_u32", v(TMP + 12), v(TMP + 5), v(TMP + 7), v(TMP + 9))
    I("v_max3_u32", v(TMP + 13), v(TMP + 5), v(TMP + 7), v(TMP + 9))
    I("v_min3_u32", v(TMP + 12), v(TMP + 12), v(TMP + 11), vTAG)
    I("v_max3_u32", v(TMP + 13), v(TMP + 13), v(TMP + 11), vTAG)
    I("v_cmp_ne_u32", "vcc", v(TMP + 12), v(TMP + 13))
    I("s_cbranch_vccz", dn)
    I("s_sub_u32", sCNT, sCNT, 1)
    I("s_cmp_eq_u32", sCNT, 0)
    I("s_cbranch_scc1", dn)
    stat_poll_a(soff)
    A.vm -= 2
    I("s_branch", lp)
    A.label(dn)

def stat_finish():
    I("v_fmac_f32", v(TMP + 4), v(TMP + 8), v(vSPW))
    I("v_fmac_f32", v(TMP + 6), v(TMP + 10), v(vSPW))
    stats_reduce(TMP + 4, TMP + 6)

def tile_off(dst, reg, stride, tl=sTL, extra=None):
    I("s_mul_i32", dst, tl, hx(stride))
    I("s_add_u32", dst, dst, sPAGE)
    if reg:
        I("s_add_u32", dst, dst, hx(reg))
    if extra:
        I("s_add_u32", dst, dst, extra)

def out_offs(reg, stride, freg, fstride, fsh):
    I("s_lshl_b32", sA, sJ, 11)
    tile_off(sC, reg, stride, extra=sA)
    I("s_lshl_b32", sA, sJ, fsh)
    tile_off(sD, freg, fstride, extra=sA)

def flag_poll_off(dst, n, freg, fstride, shift, tl=sTL):
    I("v_min_u32", v(dst), n - 1, vLANE)
    tile_off(sA, freg, fstride, tl)
    I("v_lshl_add_u32", v(dst), v(dst), shift, sA)

class BLoads:
    def __init__(self, n, soff, vaddr=None, breg=BREG):
        self.n, self.vaddr, self.breg, self.ids = n, vaddr, breg, {}
        for q in range(4):
            I("s_add_u32", "s%d" % (50 + q), soff, hx(4096 * q))
    def issue(self, i):
        if i >= self.n:
            return
        va = self.vaddr(i) if self.vaddr else vL16
        o = (1024 * i) & 4095
        self.ids[i] = I("buffer_load_dwordx4", vr(self.breg + 4 * i, 4), va, SRD_WS, "s%d" % (50 + i // 4),
                        mods="offen" + (" offset:%d" % o if o else "") + " sc1")
    def first(self):
        for i in range(OPT["npre"]):
            self.issue(i)
    def more(self, s):
        self.issue(s + OPT["npre"])
    def last_step(self):
        return self.n - OPT["npre"]

def only(grp, fn):
    l = A.newlabel("Lo")
    I("s_cmp_lt_u32" if grp == "B" else "s_cmp_ge_u32", sW, 4)
    I("s_cbranch_scc1", l)
    sv = (A.vm, A.vm_done, A.lg, A.lg_done)
    fn()
    A.vm, A.vm_done, A.lg, A.lg_done = sv
    A.label(l)

def main_only(fn):
    l = A.newlabel("Lm")
    I("s_cmp_ge_u32", sLI, 28)
    I("s_cbranch_scc1", l)
    sv = (A.vm, A.vm_done, A.lg, A.lg_done)
    fn()
    A.vm, A.vm_done, A.lg, A.lg_done = sv
    A.label(l)

vJUNK = v(254)
def touch1(srd, vofs, soff, mods=""):
    return I("buffer_load_dword", vJUNK, vofs, srd, soff, mods="offen" + (" " + mods if mods else ""))

def grp_touch(srd, base, stride_sh, count):
    I("s_lshl_b32", sA, sLW, 5)
    I("s_add_u32", sA, sA, sLI)
    I("s_lshl_b32", sA, sA, 6 + stride_sh)
    I("v_lshlrev_b32", v(TMP + 12), stride_sh, vLANE)
    if base:
        I("s_add_u32", sA, sA, hx(base))
    for i in range(count):
        touch1(srd, v(TMP + 12), sA)
        if i + 1 < count:
            I("s_add_u32", sA, sA, hx(128 * 64 << stride_sh))

def tr_lane(dst, qadd):
    t0, t1, t2, t3 = TMP, TMP + 1, TMP + 2, TMP + 3
    if qadd:
        I("v_add_u32", v(t3), qadd, vQ4)
        q = v(t3)
    else:
        q = vQ4
    I("v_bfe_u32", v(t0), vLANE, 2, 2)
    I("v_and_b32", v(t1), 1, q)
    I("v_lshl_add_u32", v(t2), v(t1), 2, v(t0))
    I("v_lshrrev_b32", v(t3), 1, q)
    I("v_lshl_add_u32", v(t2), v(t3), 4, v(t2))
    I("v_lshrrev_b32", v(t0), 1, v(t0))
    I("v_lshl_or_b32", v(t0), v(t1), 2, v(t0))
    I("v_and_b32", v(t1), 3, vLANE)
    I("v_xor_b32", v(t0), v(t0), v(t1))
    I("v_lshlrev_b32", v(t0), 4, v(t0))
    I("v_lshl_add_u32", v(t0), v(t2), 7, v(t0))
    I("v_and_b32", v(t1), 1, v(t1))
    I("v_lshl_or_b32", v(dst[0][0]), v(t1), 3, v(t0))
    I("v_xor_b32", v(dst[0][1]), 8, v(dst[0][0]))
    I("v_xor_b32", v(dst[1][0]), 64, v(dst[0][0]))
    I("v_xor_b32", v(dst[1][1]), 64, v(dst[0][1]))

SRDS = {4: (36, 1835008), 8: (38, 448 * 1344 * 2), 60: (56, WS_SIZE), 12: (40, 448 * 448 * 2), 16: (44, 448 * 448 * 2),
        20: (46, 448 * 448 * 2), 24: (48, 448 * 1792 * 2), 28: (50, 448 * 1792 * 2), 32: (52, 1835008)}
def srds(which):
    for d in which:
        src, n = SRDS[d]
        I("s_mov_b32", "s%d" % d, "s%d" % src)
        I("s_and_b32", "s%d" % (d + 1), "s%d" % (src + 1), hx(0xffff))
        I("s_mov_b32", "s%d" % (d + 2), hx(n))
        I("s_mov_b32", "s%d" % (d + 3), hx(0x20000))

def prologue():
    I("s_cmp_ge_u32", "s2", hx(256))
    I("s_cbranch_scc1", "L_end")
    if OPT["stamp"]:
        I("v_mov_b32", vSTAMP, 0)
        I("s_memrealtime", sST)
        A.wait_lg_all(force=True)
        I("v_writelane_b32", vSTAMP, "s98", 0)
        stamp("start")
    I("s_load_dwordx16", "s[36:51]", "s[0:1]", 0)
    I("s_load_dwordx4", "s[52:55]", "s[0:1]", 64)
    I("s_load_dwordx2", "s[56:57]", "s[0:1]", 80)
    I("v_lshrrev_b32", v(TMP), 6, "v0")
    I("v_and_b32", vLANE, 63, "v0")
    I("v_readfirstlane_b32", sW, v(TMP))
    I("s_and_b32", sX, "s2", 7)
    I("s_lshr_b32", sLI, "s2", 3)
    I("s_mul_i32", sTG, sLI, 37)
    I("s_lshr_b32", sTG, sTG, 8)
    I("s_mul_i32", sROT, sTG, 7)
    I("s_sub_u32", sJ, sLI, sROT)
    I("s_lshr_b32", sROT, sROT, 1)
    I("s_lshl_b32", sJ128, sJ, 7)
    I("s_and_b32", sLW, sW, 3)
    I("s_lshl_b32", sTL, sTG, 2)
    I("s_add_u32", sTL, sTL, sLW)
    I("s_lshl_b32", sPAGE, sX, PSH)
    I("v_lshrrev_b32", vQ4, 4, vLANE)

def dma_lane_consts(for_a=False):
    t0, t1, t2 = TMP, TMP + 1, TMP + 2
    I("v_bfe_u32", v(t0), vLANE, 3, 2)
    I("v_lshrrev_b32", v(t1), 5, vLANE)
    I("v_lshl_add_u32", v(t2), v(t1), 3, v(t0))
    I("s_and_b32", sA, sLW, 1)
    I("s_lshl_b32", sA, sA, 2)
    I("s_and_b32", sB, sLW, 2)
    I("s_lshl_b32", sB, sB, 3)
    I("s_add_u32", sA, sA, sB)
    I("v_add_u32", v(t2), sA, v(t2))
    I("v_lshrrev_b32", v(t0), 1, v(t0))
    I("v_lshl_or_b32", v(t0), v(t1), 2, v(t0))
    I("v_and_b32", v(t1), 7, vLANE)
    I("v_xor_b32", v(t0), v(t0), v(t1))
    I("v_lshlrev_b32", v(t0), 4, v(t0))
    for reg, pitch in ((vD896, 896),) + (((vD2688, 2688),) if (PA == 1 and not for_a) else ()):
        I("v_mul_u32_u24", reg, hx(pitch), v(t2))
        I("v_add_u32", reg, reg, v(t0))
    I("v_and_b32", v(t0), 16, vLANE)
    I("v_lshrrev_b32", v(t0), 2, v(t0))
    I("v_xor_b32", v(t0), v(t0), v(t1))
    I("v_lshlrev_b32", v(t0), 4, v(t0))
    for reg, pitch in ((vD4, 896),) + (() if for_a else ((vD3584, 3584),) if PA == 1 else ((vD2688, 2688), (vD3584, 3584))):
        I("v_mul_u32_u24", reg, hx(pitch), v(t2))
        I("v_add_u32", reg, reg, v(t0))

def late_consts1():
    I("v_and_b32", vTOK, 15, vLANE)
    I("v_lshlrev_b32", vL16, 4, vLANE)
    I("s_mov_b32", "s82", hx(0xffff0000))
    I("s_mov_b32", "s83", hx(0xffff0000))
    I("s_mov_b32", sMODE, 0)
    for i in range(4):
        I("v_mov_b32", v(ONES + i), hx(0x3f803f80))

def late_consts2():
    I("s_lshr_b32", sA, sTG, 1)
    I("s_mul_i32", sJP, sA, 14)
    I("s_sub_u32", sJP, sLI, sJP)
    tr_lane(TRL, 0)

def late_consts():
    late_consts1()
    late_consts2()
    for i in range(36, 44):
        I("v_mov_b32", v(i), 0)

def epoch_load():
    l = A.newlabel("Lel")
    I("s_add_u32", "s58", "s56", hx(OFF_EPOCH))
    I("s_addc_u32", "s59", "s57", 0)
    I("s_cmp_lg_u32", sW, 4)
    I("s_cbranch_scc1", l)
    I("s_load_dword", sTAG, "s[58:59]", 0)
    A.label(l)

def tag_publish():
    l = A.newlabel("Lpx")
    I("s_getreg_b32", sXCC, "hwreg(HW_REG_XCC_ID)")
    I("s_and_b32", sXCC, sXCC, 15)
    I("s_cmp_lg_u32", sW, 4)
    I("s_cbranch_scc1", l)
    I("s_lshl_b32", sC, sLI, 7)
    I("s_add_u32", sC, sC, sPAGE)
    I("s_add_u32", sC, sC, hx(R_XCC))
    I("v_mov_b32", v(TMP + 12), hx(L_TAG))
    I("s_waitcnt", "lgkmcnt(0)")
    I("s_mul_i32", sTAG, sTAG, hx(1664525))
    I("s_add_u32", sTAG, sTAG, hx(1013904223))
    I("v_mov_b32", vTAG, sTAG)
    I("s_add_u32", sA, sTAG, sXCC)
    I("v_mov_b32", v(TMP + 13), sA)
    I("ds_write_b32", v(TMP + 12), vTAG)
    A.lg -= 1
    I("s_mov_b64", "exec", 1)
    I("buffer_store_dword", v(TMP + 13), "off", SRD_WS, sC, mods="sc1")
    A.vm -= 1
    I("s_mov_b64", "exec", -1)
    I("s_waitcnt", "lgkmcnt(0)")
    A.label(l)

def tag_read_issue():
    I("v_mov_b32", vTAG, hx(L_TAG))
    return I("ds_read_b32", vTAG, vTAG)

def tag_read_finish(r):
    A.wait(lg=r)
    I("v_readfirstlane_b32", sTAG, vTAG)

def phase_a_compute():
    A.cmt("---- phase A compute")
    t0, t1, t2, t3 = TMP + 4, TMP + 5, TMP + 6, TMP + 7
    I("v_lshrrev_b32", v(t0), 3, vLANE)
    I("v_and_b32", v(t2), 7, vLANE)
    I("v_xor_b32", v(t1), vQ4, v(t2))
    I("v_mul_u32_u24", v(t0), hx(896), v(t0))
    I("v_lshl_add_u32", v(t2), v(t1), 4, v(t0))
    I("v_xor_b32", v(t1), 4, v(t1))
    I("v_lshl_add_u32", v(t3), v(t1), 4, v(t0))
    I("s_lshl_b32", sA, sX, 4)
    I("s_add_u32", sA, sA, sTL)
    I("s_mul_i32", sB, sA, hx(16 * 896))
    I("s_mul_i32", sF, sLW, hx(TB))
    I("s_add_u32", sF, sF, hx(L_XIMG))
    I("s_mov_b32", sK, sJ)
    I("s_mov_b32", sCNT, 7)
    A.wait_lg_all(force=True)
    stamp("kernarg")
    srds([4])
    A.label("L_xdma")
    I("s_lshl_b32", sA, sK, 11)
    I("s_add_u32", "m0", sA, sF)
    I("s_lshl_b32", sA, sK, 7)
    I("s_add_u32", sA, sA, sB)
    I("s_add_u32", sE, sA, hx(8 * 896 - 1024))
    I("buffer_load_dwordx4", v(t2), SRD_X, sA, mods="offen lds")
    I("buffer_load_dwordx4", v(t3), SRD_X, sE, mods="offen offset:1024 lds")
    I("s_add_u32", sK, sK, 1)
    I("s_cmp_eq_u32", sK, 7)
    I("s_cmov_b32", sK, 0)
    I("s_sub_u32", sCNT, sCNT, 1)
    I("s_cmp_lg_u32", sCNT, 0)
    I("s_cbranch_scc1", "L_xdma")
    I("v_mov_b32", v(ACC), 0)
    I("v_lshlrev_b32", v(ACC + 1), 2, vLANE)
    I("ds_write_b32", v(ACC + 1), v(ACC), mods="offset:%d" % 0) if False else None
    I("v_add_u32", v(ACC + 1), hx(L_CNT), v(ACC + 1))
    I("ds_write_b32", v(ACC + 1), v(ACC))
    I("v_add_u32", v(ACC + 1), hx(L_CS3 - L_CNT), v(ACC + 1))
    I("ds_write_b32", v(ACC + 1), v(ACC))
    I("ds_write_b32", v(ACC + 1), v(ACC), mods="offset:256")
    A.wait_lg_all()
    barrier()
    srds([60])
    late_consts1()
    XB, AR, CS = 64, 176, 208
    vB, vT = 35, 43
    xa = [208, 209, 210, 211]
    I("v_lshrrev_b32", v(t0), 1, vTOK)
    I("v_xor_b32", v(t1), v(t0), vQ4)
    I("v_lshlrev_b32", v(t1), 4, v(t1))
    I("v_lshl_add_u32", v(t1), vTOK, 7, v(t1))
    I("s_lshl_b32", sA, sJ, 11)
    I("s_add_u32", sA, sA, sF)
    I("v_add_u32", v(212), sA, v(t1))
    I("v_xor_b32", v(213), 64, v(212))
    I("v_lshrrev_b32", v(t1), 5, vLANE)
    I("v_xor_b32", v(t1), v(t1), v(t0))
    I("v_lshlrev_b32", v(t1), 4, v(t1))
    I("v_lshl_add_u32", v(t1), vTOK, 7, v(t1))
    I("v_and_b32", v(t2), 1, vQ4)
    I("v_mul_u32_u24", v(t2), hx(TB), v(t2))
    I("s_and_b32", sA, sLW, 2)
    I("s_mul_i32", sA, sA, hx(TB))
    I("s_add_u32", sA, sA, hx(L_XIMG))
    I("v_add3_u32", v(xa[0]), v(t1), v(t2), sA)
    for q in range(1, 4):
        I("v_xor_b32", v(xa[q]), hx(32 * q), v(xa[0]))
    tr32_lane([vT, t3])
    I("s_and_b32", sA, sLW, 1)
    I("s_lshl_b32", sA, sA, 6)
    I("v_xor_b32", v(vT), sA, v(vT))
    bf_lane(vB)
    cnt_setup([TMP + 13, TMP + 12, TMP + 11])
    vCA, vSW_, vSR_ = 13, 14, TMP + 10
    I("v_lshrrev_b32", v(vCA), 5, vLANE)
    I("s_lshl_b32", sA, sA, 1)
    I("s_add_u32", sA, sA, hx(L_CSA))
    I("v_lshl_add_u32", v(vCA), v(vCA), 5, sA)
    I("s_lshl_b32", sA, sLW, 8)
    I("s_add_u32", sA, sA, hx(L_STA))
    I("v_lshl_add_u32", v(vSW_), vLANE, 2, sA)
    I("s_and_b32", sA, sLW, 2)
    I("s_lshl_b32", sA, sA, 8)
    I("s_add_u32", sA, sA, hx(L_STA))
    I("v_and_b32", v(vSR_), 31, vLANE)
    I("v_lshl_add_u32", v(vSR_), v(vSR_), 2, sA)
    I("s_lshl_b32", sB, sJ, 1)
    I("s_and_b32", sA, sLW, 1)
    I("s_add_u32", sB, sB, sA)
    I("s_and_b32", sE, sTL, hx(0xfe))
    I("s_lshl_b32", sA, sB, 10)
    tile_off(sC, 0, TB, tl=sE, extra=sA)
    I("s_lshl_b32", sA, sB, 7)
    tile_off(sD, R_FQKV, 1024, tl=sE, extra=sA)
    I("s_lshl_b32", sA, sB, 2)
    tile_off(sD2, R_FQ, 64, tl=sE, extra=sA)
    HB = [slot(0), slot(1), slot(2), slot(3), slot(4), slot(0)]
    TA = [11, 12]
    for h in range(2):
        I("v_add_u32", v(TA[h]), hx(HB[h]), v(vT))
    stamp("setup_done")
    A.wait_vm_all()
    arrive(2)
    I("ds_read_b128", vr(HP, 4), v(212))
    I("ds_read_b128", vr(HP + 4, 4), v(213))
    spin(2, 4)
    stamp("x_dma")
    s_sum, s_sq = TMP + 2, TMP + 3
    I("v_mov_b32", v(s_sum), 0)
    I("v_mov_b32", v(s_sq), 0)
    unswap(HP, 2)
    def xpath(order):
        xl = {}
        def rdx(k):
            xl[k] = I("ds_read_b128", vr(XB + 4 * k, 4), v(xa[k & 3]), mods="offset:%d" % (2048 * (k >> 2)))
        for k in order[:14]:
            rdx(k)
        for n, k in enumerate(order[:14]):
            A.wait(lg=xl[k])
            rdx(order[14 + n])
            for i in range(4):
                I("v_dot2c_f32_bf16", v(s_sum), v(XB + 4 * k + i), v(ONES))
                I("v_dot2c_f32_bf16", v(s_sq), v(XB + 4 * k + i), v(XB + 4 * k + i))
    l1, l2 = A.newlabel("Lxs"), A.newlabel("Lxs")
    I("s_bitcmp1_b32", sW, 0)
    I("s_cbranch_scc1", l1)
    sv = (A.lg, A.lg_done)
    xpath(list(range(28)))
    I("s_branch", l2)
    A.label(l1)
    A.lg, A.lg_done = sv
    xpath(list(range(14, 28)) + list(range(14)))
    A.label(l2)
    I("v_permlane32_swap_b32", v(s_sum), v(s_sq))
    I("v_add_f32", v(s_sum), v(s_sum), v(s_sq))
    I("ds_write_b32", v(vSW_), v(s_sum))
    A.wait_lg_all()
    stamp("stats_done")
    barrier()
    stamp("strip0_landed")
    D, NR = 6, 8
    rd = {}
    def ard(n):
        d = AR + 4 * (n % NR)
        ad = v(TA[(n // 14) & 1])
        I("ds_read_b64_tr_b16", vr(d, 2), ad, mods="offset:%d" % (2048 * (n % 14)))
        rd[n] = I("ds_read_b64_tr_b16", vr(d + 2, 2), ad, mods="offset:%d" % (2048 * (n % 14) + 1024))
    I("ds_read2_b32", vr(TMP + 4, 2), v(vSR_), mods="offset0:0 offset1:32")
    I("ds_read2_b32", vr(TMP + 6, 2), v(vSR_), mods="offset0:64 offset1:96")
    tg_ = tag_read_issue()
    for n in range(D):
        ard(n)
    side = []
    def rec(fn):
        global I
        old = I
        out = []
        def J(*a, **k):
            out.append(lambda a=a, k=k: old(*a, **k))
        I = J
        fn()
        I = old
        return out
    def lnfin():
        I("v_readfirstlane_b32", sTAG, vTAG)
        I("v_add_f32", v(TMP + 4), v(TMP + 4), v(TMP + 6))
        I("v_add_f32", v(TMP + 5), v(TMP + 5), v(TMP + 7))
        mean_var(TMP + 4, TMP + 5, vMU, TMP + 6)
        rstd(vRH, TMP + 6)
        I("v_sub_f32", v(vMU), 0, v(vMU))
        I("v_mul_f32", v(TMP + 8), fl(1.4426950408889634 / 28 ** 0.5), v(vRH))
    st = {}
    def cs_read(i):
        r = None
        for g in range(4):
            r = I("ds_read_b128", vr(CS + 4 * g, 4), v(vCA), mods="offset:%d" % (256 * i + 64 * (g >> 1) + 16 * (g & 1)))
        return r
    def epi_pre():
        for q in range(16):
            I("v_mul_f32", v(CS + q), v(CS + q), v(vMU))
    def epi_add(ac):
        for q in range(16):
            I("v_add_f32", v(CS + q), v(CS + q), v(ac + q))
    def epi_valu(i):
        for q in range(16):
            I("v_mul_f32", v(CS + q), v(CS + q), v(vRH if i < 2 else TMP + 8))
        pack(TMP, CS, 16)
    def epi_store(i, m="sc1"):
        I("s_add_u32", sA, sC, hx((R_K, R_V, R_Q)[i]))
        for u in range(2):
            st[i] = I("buffer_store_dwordx4", vr(TMP + 4 * u, 4), v(vB), SRD_WS, sA,
                      mods="offen" + (" offset:512" if u else "") + (" " + m if m else ""))
        return st[i]
    FK = OPT.get("fk2", 62)
    for n in range(84):
        i, k = divmod(n, 28)
        if k == 28 - D and i < 2:
            A.wait_lg_all()
            barrier()
            stamp("strip%d_landed" % (i + 1))
            csr = cs_read(i)
            if i == 1 and OPT["local"]:
                I("ds_read_b32", v(TMP + 9), v(CNR[0]), mods="offset:%d" % (65536 + L_MODE - L_CNT)) if False else None
                I("v_mov_b32", v(TMP + 9), hx(L_MODE))
                I("ds_read_b32", v(TMP + 9), v(TMP + 9))
        if n % 14 == 14 - D and n // 14 + 2 < 6:
            I("v_add_u32", v(TA[(n // 14) & 1]), hx(HB[n // 14 + 2]), v(vT))
        if n == 1:
            side += rec(lnfin)
        if k == 24 and i < 2:
            A.wait(lg=csr)
            side += rec(epi_pre)
        if k < 2 and i > 0:
            assert not side
            epi_add((ACC, ACC2)[k])
        if k == 2 and i > 0:
            side += rec(lambda: epi_valu(i - 1)) + [lambda i=i: (epi_store(i - 1), stamp("stored%d" % (i - 1)))]
        if n == FK:
            A.wait(vm=st[0])
            flag_store(sD)
            stamp("flag0")
        if n == 78:
            spin(3, 4)
            csr = cs_read(2)
        if n == 80:
            A.wait(lg=csr)
            side += rec(epi_pre)
        if n % 2 == 0:
            A.wait(lg=rd[n + 1])
        m32((ACC, ACC2)[n & 1], AR + 4 * (n % NR), XB + 4 * k, k < 2)
        if n + D < 84:
            ard(n + D)
        for _ in range(4):
            if side:
                side.pop(0)()
    assert not side
    if OPT["local"]:
        I("v_readfirstlane_b32", sMODE, v(TMP + 9))
    I("s_add_u32", sD, sD, 4)
    epi_add(ACC)
    epi_add(ACC2)
    epi_valu(2)
    moded(lambda m: epi_store(2, m))
    stamp("q_stored")
    A.wait(vm=st[1])
    flag_store(sD)
    stamp("flag1")
    A.wait(vm=st[2])
    moded(lambda m: flag_store(sD2, m))
    stamp("q_flag")
    srds([24, 28, 32])
    late_consts2()
    att_ids()
    att_consts()
    c_setup()
    e_table(True)
    stamp("setup2")

def phase_a_compute1():
    A.cmt("---- phase A compute")
    t0, t1, t2, t3 = TMP + 4, TMP + 5, TMP + 6, TMP + 7
    I("v_lshrrev_b32", v(t0), 3, vLANE)
    I("v_and_b32", v(t2), 7, vLANE)
    I("v_xor_b32", v(t1), vQ4, v(t2))
    I("v_mul_u32_u24", v(t0), hx(896), v(t0))
    I("v_lshl_add_u32", v(t2), v(t1), 4, v(t0))
    I("v_xor_b32", v(t1), 4, v(t1))
    I("v_lshl_add_u32", v(t3), v(t1), 4, v(t0))
    I("s_lshl_b32", sA, sX, 4)
    I("s_add_u32", sA, sA, sTL)
    I("s_mul_i32", sB, sA, hx(16 * 896))
    I("s_mul_i32", sF, sLW, hx(TB))
    I("s_add_u32", sF, sF, hx(L_XIMG))
    I("s_mov_b32", sK, sJ)
    I("s_mov_b32", sCNT, 7)
    A.wait_lg_all(force=True)
    stamp("kernarg")
    srds([4])
    A.label("L_xdma")
    I("s_lshl_b32", sA, sK, 11)
    I("s_add_u32", "m0", sA, sF)
    I("s_lshl_b32", sA, sK, 7)
    I("s_add_u32", sA, sA, sB)
    I("s_add_u32", sE, sA, hx(8 * 896 - 1024))
    I("buffer_load_dwordx4", v(t2), SRD_X, sA, mods="offen lds")
    I("buffer_load_dwordx4", v(t3), SRD_X, sE, mods="offen offset:1024 lds")
    I("s_add_u32", sK, sK, 1)
    I("s_cmp_eq_u32", sK, 7)
    I("s_cmov_b32", sK, 0)
    I("s_sub_u32", sCNT, sCNT, 1)
    I("s_cmp_lg_u32", sCNT, 0)
    I("s_cbranch_scc1", "L_xdma")
    I("v_mov_b32", v(ACC), 0)
    I("v_lshlrev_b32", v(ACC + 1), 2, vLANE)
    I("ds_write_b32", v(ACC + 1), v(ACC), mods="offset:%d" % 0) if False else None
    I("v_add_u32", v(ACC + 1), hx(L_CNT), v(ACC + 1))
    I("ds_write_b32", v(ACC + 1), v(ACC))
    I("v_add_u32", v(ACC + 1), hx(L_CS3 - L_CNT), v(ACC + 1))
    I("ds_write_b32", v(ACC + 1), v(ACC))
    I("ds_write_b32", v(ACC + 1), v(ACC), mods="offset:256")
    barrier()
    srds([60, 24, 28, 32])
    late_consts1()
    late_consts2()
    I("v_lshrrev_b32", v(t0), 1, vTOK)
    I("v_xor_b32", v(t0), v(t0), vQ4)
    I("v_lshlrev_b32", v(t0), 4, v(t0))
    I("v_lshl_add_u32", v(t0), vTOK, 7, v(t0))
    I("v_add_u32", v(t0), sF, v(t0))
    I("v_xor_b32", v(t1), 64, v(t0))
    I("s_lshl_b32", sA, sJ, 11)
    I("v_add_u32", v(t2), sA, v(t0))
    I("v_add_u32", v(t3), sA, v(t1))
    c_setup()
    stamp("setup_done")
    A.wait_vm_all()
    stamp("x_dma")
    xl = [I("ds_read_b128", vr(BREG + 4 * s, 4), v(t1 if s & 1 else t0), mods="offset:%d" % (2048 * (s >> 1))) for s in range(14)]
    I("ds_read_b128", vr(HP, 4), v(t2))
    xr = I("ds_read_b128", vr(HP + 4, 4), v(t3))
    s_sum, s_sq = TMP + 4, TMP + 5
    s_sum, s_sq = TMP + 2, TMP + 3
    I("v_mov_b32", v(s_sum), 0)
    I("v_mov_b32", v(s_sq), 0)
    for s in range(14):
        A.wait(lg=xl[s])
        for i in range(4):
            I("v_dot2c_f32_bf16", v(s_sum), v(BREG + 4 * s + i), v(ONES))
            I("v_dot2c_f32_bf16", v(s_sq), v(BREG + 4 * s + i), v(BREG + 4 * s + i))
    stamp("x_landed")
    stats_reduce(s_sum, s_sq)
    mu, var, r = TMP + 6, TMP + 7, TMP + 8
    mean_var(s_sum, s_sq, mu, var)
    rstd(r, var)
    I("v_mul_f32", v(mu), "-" + v(mu), v(r), mods="") if False else I("v_mul_f32", v(mu), v(mu), v(r))
    I("v_sub_f32", v(mu), 0, v(mu))
    for i in range(56):
        lo = TMP + 10 + 2 * (i & 1)
        I("v_lshlrev_b32", v(lo), 16, v(BREG + i))
        I("v_and_b32", v(lo + 1), hx(0xffff0000), v(BREG + i))
        I("v_pk_fma_f32", vr(lo, 2), vr(lo, 2), vr(r, 2), vr(mu, 2), mods="op_sel_hi:[1,0,0]")
        if i:
            p = TMP + 10 + 2 * ((i - 1) & 1)
            I("v_cvt_pk_bf16_f32", v(BREG + i - 1), v(p), v(p + 1))
    I("v_cvt_pk_bf16_f32", v(BREG + 55), v(TMP + 12), v(TMP + 13))
    A.wait(lg=xr)
    unswap(HP, 2)
    stamp("ln_done")
    TR2 = [[120, 121], [122, 123]]
    pend = [None]

    def strip(i):
        if i == 0:
            set_tr(slot(0))
            aoff = lambda s: (4096 * s, TRC)
        else:
            s1, s2 = ((2, 3), (4, 0))[i - 1]
            I("s_mov_b32", sB, hx(slot(s1)))
            I("s_mov_b32", sE, hx(slot(s2)))
            I("s_bitcmp1_b32", sTG, 0)
            I("s_cselect_b32", sF, sE, sB)
            I("s_cselect_b32", sE, sB, sE)
            set_tr(sF)
            set_tr(sE, dst=TR2)
            aoff = lambda s: (4096 * (s % 7), TRC if s < 7 else TR2)
        if i == 2 and OPT["local"]:
            I("v_mov_b32", v(TMP + 9), hx(L_MODE))
        barrier()
        stamp("strip%d_landed" % i)
        if i == 0:
            tg_ = tag_read_issue()
        if i == 2 and OPT["local"]:
            I("ds_read_b32", v(TMP + 9), v(TMP + 9))
        def hook(s):
            if s == OPT["fk"] and pend[0] is not None:
                A.wait(vm=pend[0])
                flag_store(sD)
                stamp("flag%d" % (i - 1))
        gemm(14, 4, 2, aoff, lambda s: BREG + 4 * s, hook=hook)
        if i == 0:
            tag_read_finish(tg_)
        if i < 2:
            out_offs((R_K, R_V)[i], TB, R_FQKV + 4 * i, 1024, 7)
        else:
            out_offs(R_Q, TB, R_FQ, 128, 2)
            if OPT["local"]:
                I("v_readfirstlane_b32", sMODE, v(TMP + 9))
            I("v_mov_b32", v(TMP + 8), fl(1.4426950408889634 / 28 ** 0.5))
            for k in range(0, 16, 2):
                pk_mul_b(ACC + k, ACC + k, TMP + 8)
        pack(TMP, ACC, 16)
        unswap(TMP, 2)
        if i < 2:
            frag_store(TMP, sC)
            pend[0] = frag_store(TMP + 4, sC, 1024)
        else:
            pend[0] = store_out(TMP)
    for i in range(3):
        strip(i)
    stamp("q_stored")
    att_ids()
    e_table(True)
    ack_flag(pend[0], "q_flag")
    att_consts()
    stamp("setup2")

def half_bases(col):
    I("s_bitcmp1_b32", sTG, 0)
    I("s_cselect_b32", sB, hx(224 * 2688), 0)
    I("s_cselect_b32", sE, 0, hx(224 * 2688))
    I("s_add_u32", sB, sB, sJ128)
    I("s_add_u32", sE, sE, sJ128)

def phase_a_loader1():
    A.cmt("---- phase A loader")
    dma_lane_consts()
    half_bases(0)
    A.wait_lg_all(force=True)
    epoch_load()
    srds([8, 60, 4, 12, 16, 20, 24, 28, 32])
    late_consts()
    barrier()
    dma_seq(SRD_WQKV, 2688, slot(0), (sJ128, 896), 4, mod=14, start=sROT)
    tag_publish()
    d0 = dma_seq(SRD_WQKV, 2688, slot(0), (sJ128, 896), 10, mod=14, start="cont")
    dma_seq(SRD_WQKV, 2688, slot(2), (sB, 1792), 7)
    A.wait(vm=d0)
    barrier()
    tag_read_finish(tag_read_issue())
    mode_issue()
    d1 = dma_seq(SRD_WQKV, 2688, slot(3), (sE, 1792), 7)
    dma_seq(SRD_WQKV, 2688, slot(4), (sB, 0), 7)
    A.wait(vm=d1)
    barrier()
    d2 = dma_seq(SRD_WQKV, 2688, slot(0), (sE, 0), 7)
    mode_check()
    att_ids()
    att_consts_b()
    kv_poll_off(TMP + 4, 0)
    A.wait(vm=d2)
    barrier()
    dma_seq(SRD_WO, 896, slot(3), (sJ128, 0), 7)

def colsum_a(i, bases):
    if OPT.get("nocs"):
        return
    t0, t1 = TMP, TMP + 1
    I("v_add_u32", v(t0), hx(bases[0]), v(vCL))
    I("v_add_u32", v(t1), hx(bases[1]), v(vCL))
    rd = []
    for s_ in range(14):
        ad = v(t0 if s_ < 7 else t1)
        I("ds_read_b64_tr_b16", vr(AREG + 4 * s_, 2), ad, mods="offset:%d" % (4096 * (s_ % 7)))
        rd.append(I("ds_read_b64_tr_b16", vr(AREG + 4 * s_ + 2, 2), ad, mods="offset:%d" % (4096 * (s_ % 7) + 1024)))
    A.wait_lg_all()
    for s_ in range(14):
        m16(ACC, AREG + 4 * s_, ONES, s_ == 0)
    I("s_mov_b32", "exec_lo", hx(0x10001))
    I("s_mov_b32", "exec_hi", hx(0x10001))
    I("ds_write_b128", v(vCW), vr(ACC, 4), mods="offset:%d" % (256 * i))
    I("s_mov_b64", "exec", -1)
    A.wait_lg_all()

vCL, vCW = 20, 21
def phase_a_loader():
    A.cmt("---- phase A loader")
    dma_lane_consts()
    A.wait_lg_all(force=True)
    epoch_load()
    srds([8, 60])
    barrier()
    dma_seq(SRD_WQKV, 2688, slot(0), (sJ128, 896), 4, mod=14, start=sROT)
    tag_publish()
    d0 = dma_seq(SRD_WQKV, 2688, slot(0), (sJ128, 896), 10, mod=14, start="cont")
    dma_seq(SRD_WQKV, 2688, slot(2), (sJ128, 1792), 7)
    late_consts1()
    t0, t1, t2 = TMP, TMP + 1, TMP + 2
    I("v_bfe_u32", v(t0), vLANE, 2, 2)
    I("v_and_b32", v(t1), 1, vQ4)
    I("v_lshl_add_u32", v(t1), v(t1), 2, v(t0))
    I("v_lshrrev_b32", v(t2), 1, vQ4)
    I("v_lshl_add_u32", v(t1), v(t2), 4, v(t1))
    I("v_and_b32", v(t0), 2, v(t0))
    I("v_lshlrev_b32", v(t0), 5, v(t0))
    I("s_lshl_b32", sA, sLW, 5)
    I("v_xor_b32", v(t0), sA, v(t0))
    I("v_lshl_add_u32", v(t0), v(t1), 7, v(t0))
    I("v_and_b32", v(t1), 3, vLANE)
    I("v_lshl_add_u32", v(vCL), v(t1), 3, v(t0))
    I("s_lshl_b32", sA, sLW, 6)
    I("s_add_u32", sA, sA, hx(L_CSA))
    I("v_lshl_add_u32", v(vCW), vQ4, 4, sA)
    cnt_setup([23, 24, 25])
    A.wait(vm=d0)
    stamp("b_k")
    barrier()
    d1 = dma_seq(SRD_WQKV, 2688, slot(3), (sJ128, 1792 + 224 * 2688), 7)
    tag_read_finish(tag_read_issue())
    mode_issue()
    dma_seq(SRD_WQKV, 2688, slot(4), (sJ128, 0), 7)
    I("s_setprio", 2)
    colsum_a(0, (slot(0), slot(1)))
    A.wait(vm=d1)
    stamp("b_v")
    barrier()
    d2 = dma_seq(SRD_WQKV, 2688, slot(0), (sJ128, 224 * 2688), 7)
    colsum_a(1, (slot(2), slot(3)))
    A.wait(vm=d2)
    mode_check()
    stamp("b_q")
    barrier()
    colsum_a(2, (slot(4), slot(0)))
    arrive(3)
    I("s_setprio", 0)
    srds([12, 16, 20, 24, 28, 32])
    dma_seq(SRD_WO, 896, slot(3), (sJ128, 0), 7)
    late_consts2()
    I("v_mov_b32", v(43), 0)
    att_ids()
    att_consts_b()
    kv_poll_off(TMP + 4, 0)

L_KIMG, L_VIMG = slot(1), slot(2)
def att_ids():
    I("s_and_b32", sHEAD, sLI, 15)
    I("s_lshr_b32", sA, sLI, 4)
    I("s_lshl_b32", sA, sA, 3)
    I("s_lshl_b32", sTQ0, sX, 4)
    I("s_add_u32", sTQ0, sTQ0, sA)
    I("s_mul_i32", sC0, sHEAD, 7)
    I("s_lshr_b32", sC0, sC0, 1)
    I("s_lshl_b32", sA, sLW, 1)
    I("s_add_u32", sT1, sTQ0, sA)

def kv_poll_off(dst, e):
    t0, t2, t3 = TMP, TMP + 2, TMP + 3
    I("s_lshr_b32", sA, sC0, 2)
    I("s_add_u32", sB, sC0, 3)
    I("s_lshr_b32", sB, sB, 2)
    I("s_sub_u32", sB, sB, sA)
    I("v_and_b32", v(t0), sB, vLANE)
    I("v_add_u32", v(t0), sA, v(t0))
    if e is None:
        I("s_and_b32", sA, sT1, 15)
        I("s_lshl_b32", sA, sA, 6)
        I("s_add_u32", sA, sA, sPAGE)
        I("s_add_u32", sA, sA, hx(R_FQ))
        I("v_lshl_add_u32", v(dst), v(t0), 2, sA)
        return
    I("v_lshlrev_b32", v(t0), 7, v(t0))
    I("s_mul_i32", sA, sLW, 6)
    I("s_add_u32", sA, sA, sTQ0)
    I("s_sub_u32", sA, sA, 16)
    I("v_and_b32", v(t2), hx(0xfe), vLANE)
    I("v_min_u32", v(t2), 4, v(t2))
    I("v_add_u32", v(t3), sA, v(t2))
    I("v_max_i32", v(t3), 0, v(t3))
    I("v_lshrrev_b32", v(dst), 4, v(t3))
    I("v_lshlrev_b32", v(dst), PSH, v(dst))
    I("v_add_u32", v(dst), v(dst), v(t0))
    I("v_and_b32", v(t0), 15, v(t3))
    I("v_lshl_add_u32", v(dst), v(t0), 10, v(dst))
    I("v_add_u32", v(dst), hx(R_FQKV + 4 * e), v(dst))

def kv_poll_off1(dst, e):
    t0, t2, t3 = TMP, TMP + 2, TMP + 3
    I("s_lshr_b32", sA, sC0, 3)
    I("s_add_u32", sB, sC0, 3)
    I("s_lshr_b32", sB, sB, 3)
    I("s_sub_u32", sB, sB, sA)
    I("v_and_b32", v(t0), sB, vLANE)
    I("v_add_u32", v(t0), sA, v(t0))
    I("v_lshrrev_b32", v(t2), 1, vLANE)
    if e is None:
        I("s_and_b32", sA, sTQ0, 15)
        I("s_lshl_b32", sB, sLW, 1)
        I("s_add_u32", sA, sA, sB)
        I("v_and_b32", v(t2), 1, v(t2))
        I("v_add_u32", v(t2), sA, v(t2))
        I("v_lshlrev_b32", v(t0), 2, v(t0))
        I("v_lshl_add_u32", v(t0), v(t2), 7, v(t0))
        I("s_add_u32", sA, sPAGE, hx(R_FQ))
        I("v_add_u32", v(dst), sA, v(t0))
        return
    I("v_lshlrev_b32", v(t0), 7, v(t0))
    I("s_mul_i32", sA, sLW, 6)
    I("s_add_u32", sA, sA, sTQ0)
    I("s_sub_u32", sA, sA, 16)
    I("v_min_u32", v(t2), 5, v(t2))
    I("v_add_u32", v(t3), sA, v(t2))
    I("v_max_i32", v(t3), 0, v(t3))
    I("v_lshrrev_b32", v(dst), 4, v(t3))
    I("v_lshlrev_b32", v(dst), PSH, v(dst))
    I("v_add_u32", v(dst), v(dst), v(t0))
    I("v_and_b32", v(t0), 15, v(t3))
    I("v_lshl_add_u32", v(dst), v(t0), 10, v(dst))
    I("v_add_u32", v(dst), hx(R_FQKV + 4 * e), v(dst))

PA = OPT.get('pa', 1)
if PA == 1:
    kv_poll_off = kv_poll_off1
    phase_a_compute = phase_a_compute1
    phase_a_loader = phase_a_loader1

def kv_dma(reg, img, vsrc):
    last = None
    I("s_mul_i32", sC, sLW, 6)
    I("s_lshl_b32", sF, sC, 10)
    I("s_add_u32", sF, sF, hx(img))
    I("s_add_u32", sC, sC, sTQ0)
    I("s_sub_u32", sC, sC, 16)
    I("s_lshl_b32", sE, sC0, 8)
    I("s_add_u32", sE, sE, hx(reg))
    for i in range(6):
        I("s_add_u32", "m0", sF, hx(1024 * i))
        I("s_add_u32", sA, sC, i)
        I("s_lshr_b32", sB, sA, 4)
        I("s_lshl_b32", sB, sB, PSH)
        I("s_and_b32", sG, sA, 15)
        I("s_mul_i32", sG, sG, hx(TB))
        I("s_add_u32", sB, sB, sG)
        I("s_add_u32", sB, sB, sE)
        I("s_cmp_lt_i32", sA, 0)
        I("s_cmov_b32", sB, hx(OOB))
        last = I("buffer_load_dwordx4", vsrc, SRD_WS, sB, mods="offen sc1 lds")
    return last

def w1_touches():
    I("s_cmp_lt_u32", sLW, 2)
    I("s_cselect_b32", "s64", "s12", "s16")
    I("s_cselect_b32", "s65", "s13", "s17")
    I("s_mov_b32", "s66", hx(448 * 448 * 2))
    I("s_mov_b32", "s67", hx(0x20000))
    I("s_and_b32", sA, sLW, 1)
    I("s_mul_i32", sA, sA, 28)
    I("s_add_u32", sA, sA, sLI)
    I("s_lshl_b32", sA, sA, 13)
    I("v_lshlrev_b32", v(TMP + 12), 7, vLANE)
    touch1(SRD_BG, v(TMP + 12), sA)
    I("s_lshl_b32", sA, sJ, 11)
    tile_off(sC, R_2, TB, extra=sA)
    I("v_lshlrev_b32", v(TMP + 12), 7, vTOK)
    touch1(SRD_WS, v(TMP + 12), sC)
    if not OPT["alias"]:
        for reg in (R_X1, R_HH, R_O, R_G[0], R_G[0] + 16 * TB, R_G[1], R_G[1] + 16 * TB):
            tile_off(sC, reg, TB, extra=sA)
            touch1(SRD_WS, v(TMP + 12), sC)
    I("s_lshl_b32", sA, sJ, 8)
    tile_off(sC, R_SH, 2048, extra=sA)
    I("v_and_b32", v(TMP + 12), 1, vLANE)
    I("v_lshlrev_b32", v(TMP + 12), 7, v(TMP + 12))
    I("v_and_b32", v(TMP + 13), 2, vLANE)
    I("v_lshl_add_u32", v(TMP + 12), v(TMP + 13), 14, v(TMP + 12))
    touch1(SRD_WS, v(TMP + 12), sC)

def w2_touches():
    I("s_lshl_b32", sA, sLW, 5)
    I("s_add_u32", sA, sA, sLI)
    I("s_sub_u32", sB, hx(127), sA)
    I("s_lshl_b32", sA, sA, 14)
    I("s_lshl_b32", sB, sB, 13)
    I("v_lshlrev_b32", v(TMP + 12), 7, vLANE)
    I("v_lshlrev_b32", v(TMP + 13), 8, vLANE)
    touch1(SRD_W2, v(TMP + 12), sB)
    touch1(SRD_W3, v(TMP + 13), sA)
    if OPT["ta"] > 1:
        I("s_add_u32", sA, sA, hx(128))
        touch1(SRD_W3, v(TMP + 13), sA)

def mode_issue():
    if not OPT["local"]:
        return
    I("v_and_b32", v(TMP + 6), 31, vLANE)
    I("s_add_u32", sA, sPAGE, hx(R_XCC))
    I("v_lshl_add_u32", v(TMP + 6), v(TMP + 6), 7, sA)
    l = A.newlabel("Lmi")
    I("s_cmp_lg_u32", sW, 4)
    I("s_cbranch_scc1", l)
    I("buffer_load_dword", v(TMP + 7), v(TMP + 6), SRD_WS, 0, mods="offen sc1")
    A.vm -= 1
    A.label(l)

def mode_check():
    if not OPT["local"]:
        return
    l = A.newlabel("Lmc")
    I("s_cmp_lg_u32", sW, 4)
    I("s_cbranch_scc1", l)
    sv = (A.vm, A.vm_done, A.lg, A.lg_done)
    lp, dn = A.newlabel("Lpoll"), A.newlabel("Lpd")
    I("s_mov_b32", sCNT, hx(40000))
    A.label(lp)
    I("v_subrev_u32", v(TMP + 7), sTAG, v(TMP + 7))
    I("v_cmp_le_u32", "vcc", 16, v(TMP + 7))
    I("s_cbranch_vccz", dn)
    I("s_sub_u32", sCNT, sCNT, 1)
    I("s_cmp_eq_u32", sCNT, 0)
    I("s_cbranch_scc1", dn)
    I("s_sleep", 4)
    I("buffer_load_dword", v(TMP + 7), v(TMP + 6), SRD_WS, 0, mods="offen sc1")
    A.wait_vm_all(force=True)
    I("s_branch", lp)
    A.label(dn)
    I("v_cmp_ne_u32", "vcc", sXCC, v(TMP + 7))
    I("s_cmp_eq_u64", "vcc", 0)
    I("s_cselect_b32", sA, 1, 0)
    I("v_mov_b32", v(TMP), sA)
    I("v_mov_b32", v(TMP + 1), hx(L_MODE))
    I("ds_write_b32", v(TMP + 1), v(TMP))
    A.wait_lg_all(force=True)
    A.vm, A.vm_done, A.lg, A.lg_done = sv
    A.label(l)

def att_loader_pre():
    poll(v(TMP + 4), sleep=2)
    stamp("k_ready")
    kv_dma(R_K, L_KIMG, vL16)
    kv_poll_off(TMP + 5, None)
    I("v_add_u32", v(TMP + 4), 4, v(TMP + 4))
    I("s_and_b32", sA, sTQ0, 15)
    I("s_lshl_b32", sB, sLW, 1)
    I("s_add_u32", sA, sA, sB)
    I("s_lshl_b32", sE, sC0, 8)
    tile_off(sC, R_Q, TB, tl=sA, extra=sE)
    I("s_lshl_b32", sB, sB, 10)
    I("s_add_u32", "m0", sB, hx(L_QIMG))
    I("s_add_u32", sE, sC, hx(TB - 1024))
    poll(v(TMP + 5), sleep=0)
    stamp("q_ready")
    I("buffer_load_dwordx4", vL16, SRD_WS, sC, mods="offen sc1 lds")
    dq = I("buffer_load_dwordx4", vL16, SRD_WS, sE, mods="offen offset:1024 sc1 lds")
    A.wait(vm=dq)
VP = [None]

mLo, mHi, vQR, vMD, vKR, vVR0, vVR1 = 28, 29, 30, 31, 32, 33, 34
vVS = 96
def att_consts_b():
    I("v_and_b32", v(vVS), 32, vLANE)
    I("v_lshlrev_b32", v(vVS), 2, v(vVS))
    I("v_xor_b32", v(vVS), v(vVS), vL16)

def att_consts():
    t0, t1, t2 = TMP + 8, TMP + 9, TMP + 10
    I("s_and_b32", sA, sHEAD, 1)
    I("s_cmp_eq_u32", sA, 1)
    I("s_cselect_b32", sB, 0, 9)
    I("s_cselect_b32", sE, 9, 3)
    I("v_mov_b32", v(t0), -1)
    I("v_cmp_ne_u32", "vcc", sB, vQ4)
    I("v_cndmask_b32", v(mLo), 0, v(t0), "vcc")
    I("v_cmp_ne_u32", "vcc", sE, vQ4)
    I("v_cndmask_b32", v(mHi), 0, v(t0), "vcc")
    I("s_lshl_b32", sA, sLW, 11)
    I("s_add_u32", sB, sA, hx(L_KIMG))
    I("v_add_u32", v(vKR), sB, vL16)
    I("v_and_b32", v(t0), 3, vLANE)
    I("v_lshrrev_b32", v(t1), 2, vLANE)
    I("v_and_b32", v(t2), 2, v(t0))
    I("v_lshlrev_b32", v(t2), 2, v(t2))
    I("v_xor_b32", v(t1), v(t1), v(t2))
    I("v_lshlrev_b32", v(t1), 4, v(t1))
    I("v_lshl_add_u32", v(t1), v(t0), 8, v(t1))
    I("v_and_b32", v(t0), 1, v(t0))
    I("v_lshl_or_b32", v(t1), v(t0), 3, v(t1))
    I("s_add_u32", sB, sA, hx(L_VIMG))
    I("v_add_u32", v(vVR0), sB, v(t1))
    I("v_xor_b32", v(vVR1), 8, v(vVR0))
    I("s_add_u32", sB, sA, hx(L_QIMG))
    I("v_add_u32", v(vQR), sB, vL16)
    I("v_mov_b32", v(vMD), hx(L_MODE))
    I("v_lshlrev_b32", v(t0), 2, vQ4)
    for i, sm in enumerate(MSK):
        I("v_add_u32", v(t1), i, v(t0))
        I("v_cmp_gt_u32", sm, v(t1), vTOK)
    I("s_and_b32", sB, sT1, 15)
    I("s_lshl_b32", sA, sC0, 8)
    tile_off("s44", R_O, TB, tl=sB, extra=sA)
    I("s_lshl_b32", sA, sHEAD, 2)
    tile_off("s59", R_FO, 128, tl=sB, extra=sA)
    I("s_bitcmp1_b32", sHEAD, 0)
    I("s_cselect_b32", "s42", hx(0xffff), 0)
    I("s_cselect_b32", "s43", 0, hx(0xffff0000))
    I("s_cselect_b32", "s46", 8, 0)
    I("s_mov_b32", "s48", hx(0xffff))
    I("s_mov_b32", "s49", 0)
    I("s_not_b64", "s[40:41]", "s[42:43]")
    I("s_add_u32", "s46", "s46", "s44")
    I("s_add_u32", "s45", "s44", hx(TB))
    I("s_add_u32", "s47", "s46", hx(TB))
MSK = ["s[36:37]", "s[38:39]", "s[50:51]", "s[52:53]"]

def att_a():
    A.cmt("---- attention (A waves)")
    OA, QF, KF, VF, SA, SB = 48, 72, 80, 72, 104, 172
    S = lambda q, t: (SA + 4 * t) if q == 0 else (SB + 4 * (t - 1))
    NEG = TMP + 5
    M = [[TMP + 6, TMP + 8], [TMP + 10, TMP + 12]]
    I("v_mov_b32", v(NEG), hx(0xff800000))
    barrier()
    stamp("kq_landed")
    I("ds_read_b128", vr(QF, 4), v(vQR))
    q = I("ds_read_b128", vr(QF + 4, 4), v(vQR), mods="offset:1024")
    if OPT["local"]:
        q = I("ds_read_b32", v(vMD), v(vMD))
    rd0 = [I("ds_read_b128", vr(KF + 4 * i, 4), v(vKR), mods="offset:%d" % (1024 * i)) for i in range(4)]
    for qq in range(2):
        for k in range(2):
            I("v_mov_b32", v(M[qq][k]), v(NEG))
    A.wait(lg=q)
    if OPT["local"]:
        I("v_readfirstlane_b32", sMODE, v(vMD))
    for i in range(8):
        I("v_and_b32", v(QF + i), v((mLo, mLo, mHi, mHi)[i & 3]), v(QF + i))

    def post(t):
        for qq in range(2):
            if not (qq <= t <= 16 + qq):
                continue
            r = S(qq, t)
            if t == qq:
                for i in range(4):
                    I("v_cndmask_b32", v(r + i), v(NEG), v(r + i), MSK[i])
            if t == 16 + qq:
                for i in range(4):
                    I("v_cndmask_b32", v(r + i), v(r + i), v(NEG), MSK[i])
            I("v_max3_f32", v(M[qq][0]), v(M[qq][0]), v(r), v(r + 1))
            I("v_max3_f32", v(M[qq][1]), v(M[qq][1]), v(r + 2), v(r + 3))

    def sphase(check):
        rd = list(rd0)
        for t in range(18):
            A.wait(lg=rd[t])
            if check and t < 16:
                l1, l2 = A.newlabel("Lsv"), A.newlabel("Lsv")
                I("s_cmp_ge_u32", sT1, 16 - t)
                I("s_cbranch_scc1", l1)
                for qq in range(2):
                    if qq <= t <= 16 + qq:
                        for i in range(4):
                            I("v_mov_b32", v(S(qq, t) + i), v(NEG))
                I("s_branch", l2)
                A.label(l1)
            for qq in range(2):
                if qq <= t <= 16 + qq:
                    I("v_mfma_f32_16x16x32_bf16", vr(S(qq, t), 4), vr(KF + 4 * (t % 4), 4), vr(QF + 4 * qq, 4), "0")
            if check and t < 16:
                A.label(l2)
            if t + 4 < 18:
                rd.append(I("ds_read_b128", vr(KF + 4 * (t % 4), 4), v(vKR), mods="offset:%d" % (1024 * (t + 4))))
            if t >= 2:
                post(t - 2)
        post(16)
        post(17)
    lx0, lsd = A.newlabel("Lx0"), A.newlabel("Lsd")
    I("s_cmp_lt_u32", sT1, 16)
    I("s_cbranch_scc1", lx0)
    sv = (A.lg, A.lg_done)
    sphase(False)
    I("s_branch", lsd)
    A.label(lx0)
    A.lg, A.lg_done = sv
    sphase(True)
    A.label(lsd)
    stamp("s_done")
    for op in ("max", "mov", "p32", "max", "mov", "p16", "max", "neg"):
        for qq in range(2):
            a, b = M[qq]
            if op == "max": I("v_max_f32", v(a), v(a), v(b))
            if op == "mov": I("v_mov_b32", v(b), v(a))
            if op == "p32": I("v_permlane32_swap_b32", v(a), v(b))
            if op == "p16": I("v_permlane16_swap_b32", v(a), v(b))
            if op == "neg": I("v_sub_f32", v(a), 0, v(a))
    for qq in range(2):
        for g in range(0, 68, 2):
            r = (SA, SB)[qq] + g
            I("v_pk_add_f32", vr(r, 2), vr(r, 2), vr(M[qq][0], 2), mods="op_sel_hi:[1,0]")

    def tiles(qq, p):
        return [t for t in (2 * p, 2 * p + 1) if qq <= t <= 16 + qq]
    def exp_ops(p):
        ops = []
        for qq in range(2):
            ts = tiles(qq, p)
            r = S(qq, ts[0])
            n = 4 * len(ts)
            ops += [lambda r=r, i=i: I("v_exp_f32", v(r + i), v(r + i)) for i in range(n)]
        return ops
    def cvt_ops(p):
        ops = []
        for qq in range(2):
            ts = tiles(qq, p)
            r = S(qq, ts[0])
            ops += [lambda r=r, i=i: I("v_cvt_pk_bf16_f32", v(r + i), v(r + 2 * i), v(r + 2 * i + 1)) for i in range(2 * len(ts))]
        return ops
    vrd = {}
    def vread_ops(p):
        d = VF + 8 * (p % 3)
        ops = []
        for a, vr_ in enumerate((vVR0, vVR1)):
            for h in range(2):
                def f(a=a, vr_=vr_, h=h):
                    vrd[p] = I("ds_read_b64_tr_b16", vr(d + 4 * a + 2 * h, 2), v(vr_), mods="offset:%d" % (2048 * p + 1024 * h))
                ops.append(f)
        return ops
    def pv_ops(p):
        d = VF + 8 * (p % 3)
        ops = [lambda: A.wait(lg=vrd[p])]
        for qq in range(2):
            ts = tiles(qq, p)
            r = S(qq, ts[0])
            o = OA + 12 * qq
            for acc, areg in ((o + 8, None), (o, d), (o + 4, d + 4)):
                if len(ts) == 2:
                    ops.append(lambda acc=acc, areg=areg, r=r: m16(acc, ONES if areg is None else areg, r, p == 0))
                else:
                    ar = ONES if areg is None else areg + (2 if qq == 1 else 0)
                    ops.append(lambda acc=acc, ar=ar, r=r: I("v_mfma_f32_16x16x16_bf16", vr(acc, 4), vr(ar, 2), vr(r, 2),
                                                            "0" if p == 0 else vr(acc, 4)))
        return ops
    LAG = OPT.get("lag", 4)
    side = []
    issued_v = 0
    done_pv = 0
    for p in range(9):
        main = exp_ops(p) + (cvt_ops(p - 1) if p else [])
        if p == LAG - 1:
            barrier()
            stamp("v_landed")
            side += vread_ops(0) + vread_ops(1)
            issued_v = 2
        if p >= LAG:
            for _ in range(2):
                if done_pv <= p - 2:
                    if issued_v < 9:
                        side += vread_ops(issued_v)
                        issued_v += 1
                    side += pv_ops(done_pv)
                    done_pv += 1
        for k, op in enumerate(main):
            op()
            if side:
                side.pop(0)()
        while side:
            side.pop(0)()
    for op in cvt_ops(8):
        op()
    stamp("softmax_done")
    while done_pv < 9:
        if issued_v < 9:
            for op in vread_ops(issued_v):
                op()
            issued_v += 1
        for op in pv_ops(done_pv):
            op()
        done_pv += 1
    for qq in range(2):
        I("v_rcp_f32", v(TMP + 12 + qq), v(OA + 12 * qq + 8))
    for qq in range(2):
        for i in range(8):
            I("v_mul_f32", v(OA + 12 * qq + i), v(OA + 12 * qq + i), v(TMP + 12 + qq))
    pack(TMP, OA, 8)
    pack(TMP + 4, OA + 12, 8)
    unswap(TMP, 2)
    for qq in range(2):
        I("v_cndmask_b32", v(TMP + 8 + 2 * qq), v(TMP + 4 * qq), v(TMP + 4 * qq + 2), "s[48:49]")
        I("v_cndmask_b32", v(TMP + 9 + 2 * qq), v(TMP + 4 * qq + 1), v(TMP + 4 * qq + 3), "s[48:49]")
    def ost(m):
        mm = "offen" + (" " + m if m else "")
        I("s_mov_b64", "exec", "s[40:41]")
        I("buffer_store_dwordx4", vr(TMP, 4), vL16, SRD_WS, "s44", mods=mm)
        I("buffer_store_dwordx4", vr(TMP + 4, 4), vL16, SRD_WS, "s45", mods=mm)
        I("s_mov_b64", "exec", "s[42:43]")
        I("buffer_store_dwordx2", vr(TMP + 8, 2), vL16, SRD_WS, "s46", mods=mm)
        I("buffer_store_dwordx2", vr(TMP + 10, 2), vL16, SRD_WS, "s47", mods=mm)
        I("s_mov_b64", "exec", -1)
    moded(ost)
    stamp("o_stored")

def att_b():
    A.cmt("---- attention (B waves)")
    barrier()
    if OPT["local"]:
        I("v_mov_b32", v(TMP + 6), hx(L_MODE))
        I("ds_read_b32", v(TMP + 6), v(TMP + 6))
    poll(v(TMP + 4))
    stamp("v_ready")
    kv_dma(R_V, L_VIMG, v(vVS))
    if OPT["local"]:
        A.wait_lg_all()
        I("v_readfirstlane_b32", sMODE, v(TMP + 6))
    lsp, lj = A.newlabel("Lbs"), A.newlabel("Lbj")
    I("s_cmp_ge_u32", sLI, 28)
    I("s_cbranch_scc1", lsp)
    sv = (A.vm, A.vm_done)
    dv = A.vm
    dma_seq(SRD_WO, 896, slot(4), (sJ128, 224 * 896), 7)
    dma_seq(SRD_W1, 896, slot(0), (sJ128, 0), 7)
    A.wait(vm=dv)
    stamp("b_vland")
    barrier()
    stamp("b_b6")
    kvdone()
    dw1 = dma_seq(SRD_W1, 896, slot(1), (sJ128, 224 * 896), 7)
    I("s_mov_b32", sA, sJ128)
    for k in range(14):
        I("buffer_load_dwordx4", vr(PARK + 4 * k, 4), vD896, SRD_W2, sA, mods="offen")
        I("s_add_u32", sA, sA, hx(32 * 896))
    stamp("b_w2iss")
    cnt_setup([23, 24, 25])
    A.wait(vm=dw1)
    arrive(bWO)
    kvdone_try()
    A.wait_vm_all(force=True)
    stamp("bg_done")
    I("s_branch", "L_cload")
    A.label(lsp)
    A.vm, A.vm_done = sv
    I("s_waitcnt", "vmcnt(0)")
    barrier()
    kvdone()
    spare_att()
    A.wait_vm_all(force=True)
    stamp("bg_done")
    barrier()
    spare_colsum()
    I("s_branch", "L_spare2")

PARK = 184
def kvdone():
    l = A.newlabel("Lkd")
    I("s_cmp_lg_u32", sW, 4)
    I("s_cbranch_scc1", l)
    I("s_lshl_b32", sA, sLI, 7)
    I("s_add_u32", sA, sA, sPAGE)
    I("s_add_u32", sA, sA, hx(R_XCC + 4))
    flag_store(sA)
    A.vm -= 1
    A.label(l)

vKVO = 43
def kvdone_try():
    I("v_lshrrev_b32", v(vKVO), 5, vLANE)
    I("v_add_u32", v(vKVO), sX, v(vKVO))
    I("v_min_u32", v(vKVO), 7, v(vKVO))
    I("v_lshlrev_b32", v(vKVO), PSH, v(vKVO))
    I("v_and_b32", v(TMP + 1), 31, vLANE)
    I("v_lshl_add_u32", v(vKVO), v(TMP + 1), 7, v(vKVO))
    I("v_add_u32", v(vKVO), hx(R_XCC + 4), v(vKVO))
    I("s_mov_b32", sXCC, 1)
    l = A.newlabel("Lkt")
    I("s_cmp_lg_u32", sW, 4)
    I("s_cbranch_scc1", l)
    I("buffer_load_dword", v(TMP + 1), v(vKVO), SRD_WS, 0, mods="offen sc1")
    A.vm -= 1
    I("s_waitcnt", "vmcnt(0)")
    I("v_cmp_ne_u32", "vcc", sTAG, v(TMP + 1))
    I("s_cmp_eq_u64", "vcc", 0)
    I("s_cselect_b32", sXCC, 1, 0)
    A.label(l)

def kvdone_check():
    l = A.newlabel("Lkc")
    I("s_cmp_eq_u32", sXCC, 1)
    I("s_cbranch_scc1", l)
    sv = (A.vm, A.vm_done)
    poll(v(vKVO), sleep=2)
    A.vm, A.vm_done = sv
    A.label(l)

def o_flag():
    A.wait_vm_all(force=True)
    def f(m):
        I("s_mov_b64", "exec", 1)
        I("buffer_store_dword", vTAG, "off", SRD_WS, "s59", mods=m)
        I("buffer_store_dword", vTAG, "off", SRD_WS, "s59", mods="offset:128" + (" " + m if m else ""))
        I("s_mov_b64", "exec", -1)
    moded(f)
    stamp("o_flag")

def ack_flag(st, name):
    A.wait(vm=st)
    moded(lambda m: flag_store(sD, m))
    stamp(name)

def store_out(preg, q_barrier=True):
    def f(m):
        frag_store(preg, sC, mods=m)
        return frag_store(preg + 4, sC, 1024, mods=m)
    return moded(f)

aM1, aP1, aX1, aM2, aP2, aX2, vDP = 36, 37, 38, 39, 40, 41, 42
vCS = 6
sR1, sR2, sGH, sFHH, sSP = "s54", "s55", "s56", "s57", "s58"
def c_setup():
    t0, t1, t2, t3 = TMP + 8, TMP + 9, TMP + 10, TMP + 11
    stat_aux()
    I("v_lshlrev_b32", v(vCS), 4, vQ4)
    I("v_add_u32", v(vCS), hx(131072), v(vCS))
    I("s_lshl_b32", sB, sX, 8)
    I("s_lshl_b32", sA, sTL, 4)
    I("s_add_u32", sB, sB, sA)
    I("v_mov_b32", v(t3), hx(OOB))
    for reg, d in ((aM1, -1), (aP1, 1), (aM2, -2), (aP2, 2)):
        I("s_add_u32", sA, sB, d)
        I("v_add_u32", v(t0), sA, vTOK)
        I("v_lshrrev_b32", v(t1), 8, v(t0))
        I("v_bfe_u32", v(t2), v(t0), 4, 4)
        I("v_mul_u32_u24", v(reg), hx(TB), v(t2))
        I("v_add_u32", v(reg), hx(R_HH), v(reg))
        I("v_and_b32", v(t2), 1, v(t2))
        I("v_mul_u32_u24", v(t2), hx(TB), v(t2))
        I("v_add_u32", v(t2), hx(R_HALO), v(t2))
        I("v_cmp_ne_u32", "vcc", sX, v(t1))
        I("v_cndmask_b32", v(reg), v(reg), v(t2), "vcc")
        I("v_lshl_add_u32", v(reg), v(t1), PSH, v(reg))
        I("v_and_b32", v(t1), 15, v(t0))
        I("v_lshl_add_u32", v(reg), v(t1), 4, v(reg))
        I("v_lshl_add_u32", v(reg), vQ4, 8, v(reg))
        I("v_cmp_gt_u32", "vcc", hx(2048), v(t0))
        if OPT.get("nohalo"):
            I("v_lshrrev_b32", v(t1), 8, v(t0))
            I("v_cmp_eq_u32", "vcc", sX, v(t1))
        I("v_cndmask_b32", v(reg), v(t3), v(reg), "vcc")
    I("v_cmp_gt_u32", "vcc", 2, vQ4)
    I("v_cndmask_b32", v(aX1), v(aP1), v(aM1), "vcc")
    I("v_cndmask_b32", v(aX2), v(aP2), v(aM2), "vcc")
    I("s_lshr_b32", sB, sB, 4)
    I("s_sub_u32", sA, sB, 1)
    I("v_min_u32", v(t0), 2, vQ4)
    I("v_add_u32", v(t0), sA, v(t0))
    I("v_max_i32", v(t0), 0, v(t0))
    I("v_min_i32", v(t0), hx(127), v(t0))
    if OPT.get("nohalo"):
        I("s_lshl_b32", sA, sX, 4)
        I("v_max_i32", v(t0), sA, v(t0))
        I("s_add_u32", sA, sA, 15)
        I("v_min_i32", v(t0), sA, v(t0))
    I("v_lshrrev_b32", v(t1), 4, v(t0))
    I("v_and_b32", v(t0), 15, v(t0))
    I("v_min_u32", v(t2), 6, vTOK)
    I("v_lshlrev_b32", v(t3), 2, v(t2))
    I("v_lshl_add_u32", v(t3), v(t0), 7, v(t3))
    I("v_lshl_add_u32", v(t3), v(t1), PSH, v(t3))
    I("v_add_u32", v(vDP), hx(R_FHH), v(t3))
    I("v_and_b32", v(t0), 1, v(t0))
    I("v_lshlrev_b32", v(t2), 7, v(t2))
    I("v_lshl_add_u32", v(t2), v(t0), 10, v(t2))
    I("v_lshl_add_u32", v(t2), v(t1), PSH, v(t2))
    I("v_add_u32", v(t2), hx(R_FHALO), v(t2))
    I("v_cmp_ne_u32", "vcc", sX, v(t1))
    I("v_cndmask_b32", v(vDP), v(vDP), v(t2), "vcc")
    tile_off(sR1, 0, TB)
    I("s_lshl_b32", sA, sJ, 11)
    I("s_add_u32", sR2, sR1, sA)
    tile_off(sSP, R_SH, 2048)
    I("s_lshl_b32", sA, sJ, 8)
    I("s_add_u32", sGH, sSP, sA)
    I("s_lshl_b32", sA, sJ, 2)
    tile_off(sFHH, R_FHH, 128, extra=sA)

def c_compute():
    aoff = lambda s: (4096 * s, TRC)
    N1, N2, N3 = OPT.get("n1", 1), OPT.get("n2", 1), OPT.get("n3", 1)
    NA = OPT.get("na", 3)
    cnt_setup([35, 43, TMP + 15])
    pk = peek(bWO)
    set_tr(slot(3))
    unpack(ACC, HP, 16)
    verify(pk, bWO, 4)
    rd = [a_read(AREG + 16 * s, *aoff(s)) for s in range(N1)]
    flag_poll_off(34, 16, R_FO, 128, 2)
    I("s_add_u32", sC2, sR1, hx(R_O))
    bl = BLoads(14, sC2)
    o_flag()
    rd += [a_read(AREG + 16 * s, *aoff(s)) for s in range(N1, N1 + NA)]
    poll_a(v(34), TMP + 13)
    rd += [a_read(AREG + 16 * s, *aoff(s)) for s in range(N1 + NA, 7)]
    arrive(aOF)
    I("s_add_u32", sC, sR2, hx(R_H))
    I("s_mov_b32", sD, sGH)
    poll_b(v(34), TMP + 13)
    A.wait_lg_all()
    stamp("c1_ready")
    bl.first()
    gemm(14, 7, 7, aoff, lambda s: BREG + 4 * s, bl=bl.ids, bissue=bl.more, zero=False, rd=rd,
         hook=lambda s: arrive(aC1P) if s == OPT.get("p1", 8) else None)
    stamp("c1_mfma")
    pack(HP, ACC, 16)
    unswap(HP, 2)
    st = store_out(HP)
    pk = peek(bCS1)
    stat_granule(HP)
    set_tr(slot(0))
    verify(pk, bCS1, 4)
    rd = [a_read(AREG + 16 * s, *aoff(s)) for s in range(N2)]
    A.wait(vm=st)
    moded(granule_store)
    stamp("h_flag")
    rd += [a_read(AREG + 16 * s, *aoff(s)) for s in range(N2, N2 + NA)]
    stat_poll_a(sSP)
    rd += [a_read(AREG + 16 * s, *aoff(s)) for s in range(N2 + NA, 7)]
    for f in range(4):
        I("ds_read_b128", vr(ACC + 4 * f, 4), v(vCS), mods="offset:%d" % (L_CS1 - 131072 + 64 * f))
    arrive(aC1Q)
    I("s_add_u32", sC2, sR1, hx(R_H))
    bl = BLoads(14, sC2)
    stat_poll(sSP)
    stamp("c2_ready")
    bl.first()
    stat_finish()
    var, nmu, ry = TMP + 7, TMP + 8, TMP + 10
    K0, K1, RI = TMP, TMP + 2, TMP + 12
    I("v_mul_f32", v(nmu), fl(-1.0 / 448), v(TMP + 4))
    A.wait_lg_all()
    for i in range(0, 16, 2):
        pk_mul_b(ACC + i, ACC + i, nmu)
    def c2late():
        mean_var(TMP + 4, TMP + 6, vMU, var)
        rstd(vRH, var)
        I("s_add_u32", sC, sR2, hx(R_HH))
        I("v_mul_f32", v(var), v(var), v(vRH))
        I("v_mul_f32", v(var), v(var), v(vRH))
        rstd(ry, var)
        I("s_add_u32", sA, sTL, 1)
        I("v_mul_f32", v(ry), v(ry), v(vRH))
        gelu_prep(ry, K0, K1, RI)
        I("s_and_b32", sD2, sA, 15)
        I("v_mov_b32", v(TMP + 4), v(vRH))
        I("v_mul_f32", v(TMP + 6), v(nmu), v(vRH))
    side = rec(c2late)
    def cfill(s, f):
        if s >= 7 and side:
            side.pop(0)()
    gemm(14, 7, 7, aoff, lambda s: BREG + 4 * s, bl=bl.ids, bissue=bl.more, zero=False, rd=rd, fill=cfill,
         hook=lambda s: arrive(aC2P) if s == OPT.get("p2", 8) else None)
    assert not side
    stamp("c2_mfma")
    gelu(ACC, 16, BREG, K0, K1, RI, HHP, True)
    unswap(HHP, 2)
    st = store_out(HHP)
    lh = A.newlabel("Lhalo")
    if OPT.get("nohalo"):
        I("s_mov_b32", sD2, 5)
    I("s_cmp_gt_u32", sD2, 1)
    I("s_cbranch_scc1", lh)
    I("s_and_b32", sB, sTL, 1)
    I("s_lshl_b32", sA, sJ, 11)
    tile_off(sC, R_HALO, TB, tl=sB, extra=sA)
    frag_store(HHP, sC)
    frag_store(HHP + 4, sC, 1024)
    A.vm -= 2
    A.label(lh)
    stamp("hh_stored")
    pk = peek(bW2)
    set_tr(slot(3))
    unswap(HP, 2)
    unpack(ACC, HP, 16)
    for i in range(0, 16, 2):
        I("v_pk_fma_f32", vr(ACC + i, 2), vr(ACC + i, 2), vr(TMP + 4, 2), vr(TMP + 6, 2), mods="op_sel_hi:[1,0,0]")
    verify(pk, bW2, 4)
    rd = [a_read(AREG + 16 * s, *aoff(s)) for s in range(N3)]
    lh, lh2 = A.newlabel("Lhalo"), A.newlabel("Lhalo")
    I("s_cmp_gt_u32", sD2, 1)
    I("s_cbranch_scc1", lh)
    I("s_waitcnt", "vmcnt(2)")
    I("s_branch", lh2)
    A.label(lh)
    A.wait(vm=st)
    A.label(lh2)
    moded(lambda m: flag_store(sFHH, m))
    stamp("hh_flag")
    rd += [a_read(AREG + 16 * s, *aoff(s)) for s in range(N3, N3 + NA)]
    poll_a(v(vDP), TMP + 13)
    rd += [a_read(AREG + 16 * s, *aoff(s)) for s in range(N3 + NA, 7)]
    arrive(aHF)
    I("s_mov_b32", sC2, 0)
    amap = [aM1] * 3 + [aX1] + [aP1] * 3 + [aM2] * 3 + [aX2] + [aP2] * 3
    bl = BLoads(14, sC2, vaddr=lambda i: v(amap[i]))
    lh = A.newlabel("Lhalo")
    I("s_cmp_gt_u32", sD2, 1)
    I("s_cbranch_scc1", lh)
    I("s_and_b32", sB, sTL, 1)
    tile_off(sC, R_FHALO, 1024, tl=sB, extra=sJ128)
    I("s_waitcnt", "vmcnt(2)")
    flag_store(sC)
    A.vm -= 1
    A.label(lh)
    poll_b(v(vDP), TMP + 13)
    A.wait_lg_all()
    stamp("d_ready")
    bl.first()
    I("s_add_u32", sC, sR2, hx(R_X1))
    I("s_add_u32", sD, sGH, hx(R_SX - R_SH))
    e_lane_a()
    gemm(14, 7, 7, aoff, lambda s: BREG + 4 * s, bl=bl.ids, bissue=bl.more, zero=False, rd=rd,
         hook=lambda s: arrive(aDP) if s == OPT.get("p3", 8) else None)
    stamp("d_mfma")
    pack(TMP, ACC, 16)
    unswap(TMP, 2)
    st = store_out(TMP)
    stat_granule(TMP)
    return st

RES = 28
def colsum(bases, ldst):
    t0, t1 = TMP, TMP + 1
    I("s_and_b32", sA, sLW, 2)
    I("s_lshl_b32", sA, sA, 5)
    I("s_and_b32", sB, sLW, 1)
    I("s_lshl_b32", sB, sB, 3)
    I("s_or_b32", sA, sA, sB)
    I("v_xor_b32", v(t0), sA, v(TRL[0][0]))
    I("v_add_u32", v(t1), hx(bases[1]), v(t0))
    I("v_add_u32", v(t0), hx(bases[0]), v(t0))
    rd = []
    for s in range(14):
        ad = v(t0 if s < 7 else t1)
        I("ds_read_b64_tr_b16", vr(AREG + 4 * s, 2), ad, mods="offset:%d" % (4096 * (s % 7)))
        rd.append(I("ds_read_b64_tr_b16", vr(AREG + 4 * s + 2, 2), ad, mods="offset:%d" % (4096 * (s % 7) + 1024)))
    A.wait_lg_all()
    for s in range(14):
        m16(ACC, AREG + 4 * s, ONES, s == 0)
    I("s_lshl_b32", sA, sLW, 6)
    I("s_add_u32", sA, sA, hx(ldst))
    I("v_lshl_add_u32", v(t0), vQ4, 4, sA)
    I("s_mov_b32", "exec_lo", hx(0x10001))
    I("s_mov_b32", "exec_hi", hx(0x10001))
    I("ds_write_b128", v(t0), vr(ACC, 4))
    I("s_mov_b64", "exec", -1)

W3S = [[2, 0], [1, 3]]
vUP = 36
def c_loader():
    A.cmt("---- C/D loader")
    CNR[:] = [23, 24, 25]
    if OPT.get("bprio", 0):
        I("s_setprio", OPT["bprio"])
    I("s_lshl_b32", sE, sJP, 8)
    e_table(False)
    I("s_lshl_b32", sA, sLW, 10)
    I("s_add_u32", sA, sA, hx(slot(3)))
    I("v_add_u32", v(vUP), sA, vL16)
    spin(aOF, 4, 1)
    colsum((slot(0), slot(1)), L_CS1)
    arrive(bCS1)
    TRG = OPT.get("trg", 2)
    spin(aC1P, TRG, 1)
    dma_seq(SRD_W3, 3584, slot(W3S[0][0]), (sE, 0), 7)
    spin(aC1P, 4, 1)
    for k in range(14):
        I("ds_write_b128", v(vUP), vr(PARK + 4 * k, 4), mods="offset:%d" % (4096 * k))
    arrive(bW2)
    I("v_and_b32", v(TMP), 3, vLANE)
    I("v_and_b32", v(TMP + 1), 48, vLANE)
    I("v_or_b32", v(TMP), v(TMP), v(TMP + 1))
    I("v_lshlrev_b32", v(TMP), 3, v(TMP))
    I("v_and_b32", v(TMP + 1), 4, vLANE)
    I("v_lshl_add_u32", v(TMP), v(TMP + 1), 4, v(TMP))
    I("v_and_b32", v(TMP + 1), 8, vLANE)
    I("v_lshl_add_u32", v(TMP), v(TMP + 1), 2, v(TMP))
    I("v_add_u32", v(TMP), hx(L_CS3), v(TMP))
    I("s_lshl_b32", sC, sE, 2)
    I("s_add_u32", sC, sC, hx(OFF_CSG))
    spin(aC1Q, 4, 1)
    spin(aC2P, TRG, 1)
    stamp("b_c2p")
    dma_seq(SRD_W3, 3584, slot(W3S[0][1]), (sE, 224 * 3584), 7)
    lcs = A.newlabel("Lcs")
    I("s_cmp_lg_u32", sW, 5)
    I("s_cbranch_scc1", lcs)
    lp, dn = A.newlabel("Lpoll"), A.newlabel("Lpd")
    I("s_mov_b32", sCNT, hx(40000))
    A.label(lp)
    I("buffer_load_dwordx4", vr(TMP + 4, 4), vL16, SRD_WS, sC, mods="offen sc1")
    I("s_sub_u32", sCNT, sCNT, 1)
    I("s_waitcnt", "vmcnt(0)")
    I("v_xor_b32", v(TMP + 5), vTAG, v(TMP + 5))
    I("v_xor_b32", v(TMP + 7), vTAG, v(TMP + 7))
    I("v_or_b32", v(TMP + 5), v(TMP + 5), v(TMP + 7))
    I("v_cmp_ne_u32", "vcc", 0, v(TMP + 5))
    I("s_cbranch_vccz", dn)
    I("s_sleep", 4)
    I("s_cmp_lg_u32", sCNT, 0)
    I("s_cbranch_scc1", lp)
    A.label(dn)
    I("ds_write2_b32", v(TMP), v(TMP + 4), v(TMP + 6), mods="offset0:0 offset1:1")
    A.label(lcs)
    A.wait_vm_all(force=True)
    stamp("b_w3ab")
    kvdone_check()
    arrive(bAB)
    spin(aC2P, 4, 1)
    spin(aDP, TRG, 1)
    dma_seq(SRD_W3, 3584, slot(W3S[1][0]), (sE, 128), 7)
    if OPT.get("d_early", 0):
        spin(aHF, 4, 1)
        dma_seq(SRD_W3, 3584, slot(W3S[1][1]), (sE, 224 * 3584 + 128), 7)

W4SL = [2, 0, 1, 3]
CL = [0, 2, 3, 1]
CNR = [16, 17, 18]
def cnt_setup(regs):
    CNR[:] = regs
    I("v_mov_b32", v(CNR[0]), hx(L_CNT))
    I("v_mov_b32", v(CNR[1]), 1)

def arrive(which, areg=None):
    I("s_mov_b64", "exec", 1)
    I("ds_add_u32", v(areg or CNR[0]), v(CNR[1]), mods="offset:%d" % (4 * which))
    I("s_mov_b64", "exec", -1)

def spin(which, target, sleep=0, areg=None):
    lp, dn = A.newlabel("Lsp"), A.newlabel("Lsd")
    if sleep:
        sleep = OPT.get("bsl", sleep)
    I("s_mov_b32", sCNT, hx(400000))
    if OPT.get("ex1", 1):
        I("s_mov_b64", "exec", 1)
    A.label(lp)
    I("ds_read_b32", v(CNR[2]), v(areg or CNR[0]), mods="offset:%d" % (4 * which))
    I("s_sub_u32", sCNT, sCNT, 1)
    A.wait_lg_all(force=True)
    I("v_cmp_gt_u32", "vcc", target, v(CNR[2]))
    I("s_cbranch_vccz", dn)
    if sleep:
        I("s_sleep", sleep)
    I("s_cmp_lg_u32", sCNT, 0)
    I("s_cbranch_scc1", lp)
    A.label(dn)
    if OPT.get("ex1", 1):
        I("s_mov_b64", "exec", -1)

GT_ = ["s18", "s19", "s20", "s21", "s22", "s23", "s3"]
sTE = "s0"
def e_table(for_a):
    I("s_lshr_b32", sA, sTG, 1)
    I("s_mul_i32", sK, sA, 3)
    I("s_lshl_b32", sA, sA, 3)
    I("s_lshl_b32", sB, sLW, 1)
    I("s_add_u32", sTE, sA, sB)
    I("s_add_u32", sK, sK, sJ)
    I("s_cmp_ge_u32", sK, 7)
    I("s_cselect_b32", sA, 7, 0)
    I("s_sub_u32", sK, sK, sA)
    I("s_bitcmp1_b32", sTG, 0)
    I("s_cselect_b32", sA, hx(16 * TB if for_a else 7 * 128 * 896), 0)
    I("s_add_u32", sA, sA, sPAGE if for_a else sJ128)
    for i in range(7):
        r = GT_[i] if for_a else "s%d" % (36 + i)
        I("s_mul_i32", r, sK, hx(2048 if for_a else 128 * 896))
        I("s_add_u32", r, r, sA)
        if i < 6:
            I("s_add_u32", sK, sK, 1)
            I("s_cmp_eq_u32", sK, 7)
            I("s_cmov_b32", sK, 0)

PK4 = 128
def w4_park(c):
    res = []
    for i in range(7):
        def th(i=i):
            I("s_add_u32", sH_, "s%d" % (36 + i), hx(32 * CL[c] * 896))
            W4ID[c] = I("buffer_load_dwordx4", vr(PK4 + 28 * (3 - c) + 4 * i, 4), vD4, SRD_W4, sH_, mods="offen")
        res.append(th)
    return res

def w4_unpark(c):
    I("v_add_u32", v(39), hx(slot(W4SL[c]) - slot(3)), v(vUP))
    A.wait(vm=W4ID[c])
    for i in range(7):
        I("ds_write_b128", v(39), vr(PK4 + 28 * (3 - c) + 4 * i, 4), mods="offset:%d" % (4096 * i))

def w4_thunks(c):
    res = []
    for i in range(7):
        def th(i=i):
            I("s_add_u32", "m0", sF, hx(slot(W4SL[c]) + 4096 * i))
            I("s_add_u32", sH_, "s%d" % (36 + i), hx(32 * CL[c] * 896))
            W4ID[c] = I("buffer_load_dwordx4", vD4, SRD_W4, sH_, mods="offen lds")
        res.append(th)
    return res
W4ID = {}

def peek(which, areg=None):
    return I("ds_read_b32", v(CNR[2]), v(areg or CNR[0]), mods="offset:%d" % (4 * which))

def verify(ld, which, target, areg=None):
    ok, lp = A.newlabel("Lvk"), A.newlabel("Lvl")
    A.wait(lg=ld)
    I("v_cmp_gt_u32", "vcc", target, v(CNR[2]))
    I("s_cbranch_vccz", ok)
    sv = (A.lg, A.lg_done)
    I("s_mov_b32", sCNT, hx(400000))
    A.label(lp)
    peek(which, areg)
    I("s_sub_u32", sCNT, sCNT, 1)
    I("s_waitcnt", "lgkmcnt(0)")
    I("v_cmp_gt_u32", "vcc", target, v(CNR[2]))
    I("s_cbranch_vccz", ok)
    I("s_cmp_lg_u32", sCNT, 0)
    I("s_cbranch_scc1", lp)
    A.lg, A.lg_done = sv
    A.label(ok)

class Inject:
    def __init__(self, thunks, first, every=None):
        self.th, self.nx, self.every, self.c = list(thunks), first, every or first, 0
    def __enter__(self):
        global I
        self.old = I
        def J(*a, **k):
            global I
            r = self.old(*a, **k)
            self.c += 1
            if self.c >= self.nx and self.th:
                self.nx += self.every
                cur = I
                I = self.old
                self.th.pop(0)()
                I = cur
            return r
        I = J
        return self
    def __exit__(self, *a):
        global I
        I = self.old
        for t in self.th:
            t()

T32 = [7, 8]
C32 = [[11, 12], [13, 14]]
def tr32_lane(dst=T32):
    t0, t1, t2 = TMP + 12, TMP + 13, TMP + 14 - 3
    I("v_bfe_u32", v(t0), vLANE, 2, 2)
    I("v_lshrrev_b32", v(t1), 5, vLANE)
    I("v_lshl_add_u32", v(t1), v(t1), 2, v(t0))
    I("v_lshlrev_b32", v(t1), 7, v(t1))
    I("v_and_b32", v(t0), 2, v(t0))
    I("v_lshl_or_b32", v(t1), v(t0), 5, v(t1))
    I("v_and_b32", v(t0), 16, vLANE)
    I("v_lshl_or_b32", v(t1), v(t0), 1, v(t1))
    I("v_and_b32", v(t0), 1, vLANE)
    I("v_lshl_or_b32", v(t1), v(t0), 4, v(t1))
    I("v_and_b32", v(t0), 2, vLANE)
    I("v_lshl_or_b32", v(dst[0]), v(t0), 2, v(t1))
    I("v_xor_b32", v(dst[1]), 64, v(dst[0]))

def bf_lane(dst):
    I("v_and_b32", v(dst), 1, vQ4)
    I("v_mul_u32_u24", v(dst), hx(TB), v(dst))
    I("v_lshl_add_u32", v(dst), vTOK, 4, v(dst))
    I("v_lshrrev_b32", v(TMP + 12), 5, vLANE)
    I("v_lshl_add_u32", v(dst), v(TMP + 12), 8, v(dst))

def set32(base, k):
    if isinstance(base, int):
        I("s_mov_b32", sA, hx(base))
        base = sA
    for b in range(2):
        I("v_add_u32", v(C32[k][b]), base, v(T32[b]))

def rec(fn):
    global I
    old = I
    groups = []
    def J(*a, **k):
        if a[0].startswith(("s_cselect", "s_cmov", "v_cndmask")):
            groups[-1].append((a, k))
        else:
            groups.append([(a, k)])
    I = J
    fn()
    I = old
    return [lambda g=g: [old(*a, **k) for a, k in g] for g in groups]

def m32(acc, areg, breg, zero):
    I("v_mfma_f32_32x32x16_bf16", vr(acc, 16), vr(areg, 4), vr(breg, 4), "0" if zero else vr(acc, 16))

def colsum32(sg):
    t0 = TMP
    I("s_mov_b32", sA, hx(slot(W3S[sg][0])))
    I("s_bitcmp1_b32", sLW, 1)
    I("s_cmov_b32", sA, hx(slot(W3S[sg][1])))
    I("s_and_b32", sB, sLW, 1)
    I("s_lshl_b32", sB, sB, 6)
    I("v_xor_b32", v(t0), sB, v(T32[0]))
    I("v_add_u32", v(t0), sA, v(t0))
    rd = []
    for k in range(14):
        I("ds_read_b64_tr_b16", vr(AREG + 4 * k, 2), v(t0), mods="offset:%d" % (2048 * k))
        rd.append(I("ds_read_b64_tr_b16", vr(AREG + 4 * k + 2, 2), v(t0), mods="offset:%d" % (2048 * k + 1024)))
    I("s_lshl_b32", sB, sB, 1)
    I("s_add_u32", sA, sB, hx(L_CS3 + 256 * sg))
    I("v_lshrrev_b32", v(t0 + 1), 5, vLANE)
    I("v_lshl_add_u32", v(t0 + 1), v(t0 + 1), 6, sA)
    A.wait_lg_all()
    for k in range(14):
        m32(ACC, AREG + 4 * k, ONES, k == 0)
    I("s_mov_b32", "exec_lo", 1)
    I("s_mov_b32", "exec_hi", 1)
    for q in range(16):
        I("ds_add_f32", v(t0 + 1), v(ACC + q), mods="offset:%d" % (4 * q))
    I("s_mov_b64", "exec", -1)

def gemm32(nk, breg, areg, rd, bl=None, bissue=None, zero=None, hook=None):
    for k in range(nk):
        if hook:
            hook(k)
        if k % 2 == 0:
            A.wait(vm=bl(k + 1) if bl else None, lg=rd[k + 1])
        for b in range(2):
            m32((ACC, ACC2)[b], areg + 8 * (k % 6) + 4 * b, breg(k), zero(k) if zero else False)
            if bissue:
                bissue(k, b)
            if k + 4 < nk:
                r = a32(areg, k + 4, b)
        if k + 4 < nk:
            rd.append(r)

def a32(areg, k, b):
    d = areg + 8 * (k % 6) + 4 * b
    ad = v(C32[(k // 14) & 1][b])
    I("ds_read_b64_tr_b16", vr(d, 2), ad, mods="offset:%d" % (2048 * (k % 14)))
    return I("ds_read_b64_tr_b16", vr(d + 2, 2), ad, mods="offset:%d" % (2048 * (k % 14) + 1024))

vRW = [120, 121, 122, 123]
vRR = [124, 125, 126, 127]
vBF, vXP = 9, 10
def e_lane_a():
    t0, t1 = TMP + 8, TMP + 9
    tr32_lane()
    bf_lane(vBF)
    I("v_min_u32", v(vXP), 6, vTOK)
    I("v_lshlrev_b32", v(vXP), 8, v(vXP))
    I("v_and_b32", v(t0), 1, vQ4)
    I("v_lshl_add_u32", v(vXP), v(t0), 11, v(vXP))
    tile_off(sA, R_SX + 4, 2048, tl=sTE)
    I("v_add_u32", v(vXP), sA, v(vXP))

def cls_check(ld, t, voff, c, name=None, sleep=0, off=0):
    ok, lp = A.newlabel("Lrk"), A.newlabel("Lrl")
    I("s_add_u32", sA, sTAG, c)
    A.wait(vm=ld)
    I("s_mov_b32", sCNT, hx(40000))
    A.label(lp)
    I("v_subrev_u32", v(t), sA, v(t))
    I("v_cmp_le_u32", "vcc", 4, v(t))
    I("s_cbranch_vccz", ok)
    I("s_sub_u32", sCNT, sCNT, 1)
    I("s_cmp_eq_u32", sCNT, 0)
    I("s_cbranch_scc1", ok)
    sv = (A.vm, A.vm_done)
    if sleep:
        I("s_sleep", sleep)
    I("buffer_load_dword", v(t), v(voff), SRD_WS, 0, mods="offen" + (" offset:%d" % off if off else "") + " sc1")
    I("s_waitcnt", "vmcnt(0)")
    A.vm, A.vm_done = sv
    I("s_branch", lp)
    A.label(ok)
    if name:
        stamp(name)

ACC2 = 224
def e_compute(st_prev):
    A.cmt("---- E (A: matrix part)")
    ZB, AR, NR = 64, 176, 12
    vS = [TMP + 4, TMP + 5]
    vG = [20, 21]
    vGP, PT = 22, 23
    vFR = [24, 25, 26, 27]
    vCW = 19
    vRP = 13
    CA = [11, 12]
    ACH = (ACC, ACC2)
    HB = [slot(W3S[0][0]), slot(W3S[0][1]), slot(W3S[1][0]), slot(W3S[1][1])] + [slot(W4SL[c]) for c in range(4)]
    tile_off(sC2, R_X1, TB, tl=sTE)
    for q in range(4):
        I("s_add_u32", "s%d" % (50 + q), sC2, hx(4096 * q))
    A.wait(vm=st_prev)
    moded(granule_store)
    stamp("x1_flag")
    cnt_setup([16, 17, 18])
    pk_ = peek(bAB)
    unpack(RES, HP, 16)
    for i in range(0, 16, 2):
        I("v_pk_add_f32", vr(RES + i, 2), vr(RES + i, 2), vr(ACC + i, 2))
    verify(pk_, bAB, 4)
    S = OPT.get("skew", 5)
    seq = []
    n0 = n1 = 0
    for end in (28, 56, 112):
        for _ in range(S if end < 112 else 1):
            seq.append((0, n0)); n0 += 1
        while n0 < end:
            seq.append((1, n1)); n1 += 1
            seq.append((0, n0)); n0 += 1
        while n1 < end:
            seq.append((1, n1)); n1 += 1
    pos = {op: i for i, op in enumerate(seq)}
    PD = OPT.get("pd", 7)
    rd = {}
    def ard(i):
        b, n = seq[i]
        if n % 14 == 0:
            I("v_add_u32", v(CA[b]), hx(HB[n // 14]), v(T32[b]))
        d = AR + 4 * (i % NR)
        I("ds_read_b64_tr_b16", vr(d, 2), v(CA[b]), mods="offset:%d" % (2048 * (n % 14)))
        rd[i] = I("ds_read_b64_tr_b16", vr(d + 2, 2), v(CA[b]), mods="offset:%d" % (2048 * (n % 14) + 1024))
    for i in range(PD):
        ard(i)
    poll(v(vXP), sleep=0)
    stamp("e1_ready")
    bl = {}
    def zload(n):
        o = (512 * n) & 4095
        bl[n] = I("buffer_load_dwordx4", vr(ZB + 4 * n, 4), v(vBF), SRD_WS, "s%d" % (50 + n // 8),
                  mods="offen" + (" offset:%d" % o if o else "") + " sc1")
    NP = OPT.get("npz", 6)
    for n in range(NP):
        zload(n)
    I("s_lshl_b32", sA, sLW, 12)
    I("s_add_u32", sB, sA, hx(L_STG))
    I("v_add_u32", v(vS[0]), sB, vL16)
    I("s_add_u32", sB, sA, hx(slot(4)))
    I("v_add_u32", v(vS[1]), sB, vL16)
    I("s_mul_i32", sA, sTE, hx(TB))
    I("v_add_u32", v(vG[1]), sA, v(vBF))
    I("v_add_u32", v(vG[0]), hx(R_G[0]), v(vG[1]))
    if R_G[1]:
        I("v_add_u32", v(vG[1]), hx(R_G[1]), v(vG[1]))
    I("s_lshl_b32", sA, sLW, 2)
    I("v_add_u32", v(vCW), sA, v(CNR[0]))
    I("s_lshl_b32", sF, sLW, 10)
    late = []
    def setup2():
        I("s_and_b32", sE, sTG, 1)
        I("s_mul_i32", sE, sE, 28)
        I("s_lshr_b32", sB, sTE, 1)
        tile_off(sG, R_FG, 128, tl=sB)
        I("s_add_u32", sA, sG, sE)
        I("v_min_u32", v(vGP), 6, vLANE)
        I("v_lshl_add_u32", v(vGP), v(vGP), 2, sA)
        I("s_lshl_b32", sD, sJP, 2)
        I("s_add_u32", sD, sD, sG)
        I("s_add_u32", sD, sD, 64)
        I("s_and_b32", sB, sB, 4)
        I("s_and_b32", sA, sLW, 1)
        I("s_lshl_b32", sA, sA, 1)
        I("s_add_u32", sB, sB, sA)
        I("s_lshl_b32", sB, sB, 1)
        I("s_lshl_b32", sA, sJ, 11)
        tile_off(sC, R_G[1], TB, tl=sB, extra=sA)
        I("s_bitcmp1_b32", sTG, 0)
        I("s_cselect_b32", sA, hx(16 * TB), 0)
        I("s_cselect_b32", sB, 0, hx(16 * TB))
        I("s_add_u32", sC2, sC, sB)
        I("s_add_u32", sC, sC, sA)
        I("s_lshl_b32", sE, sJ, 11)
        I("s_add_u32", sE, sE, sA)
        I("s_add_u32", sE, sE, sPAGE)
    def setup3():
        I("v_lshrrev_b32", v(TMP + 6), 5, vLANE)
        I("v_lshlrev_b32", v(TMP + 6), 6, v(TMP + 6))
        I("v_add_u32", v(TMP + 6), hx(L_CS3 + 256), v(TMP + 6))
        I("s_add_u32", sG, sF, hx(slot(4) + 16384))
        I("v_add_u32", v(TMP + 3), sG, vL16)
        I("v_and_b32", v(TMP), 1, vQ4)
        I("v_lshl_or_b32", v(TMP), vQ4, 1, v(TMP))
        I("v_xor_b32", v(TMP), v(TMP), vTOK)
        I("v_lshlrev_b32", v(TMP), 4, v(TMP))
        I("v_lshl_add_u32", v(TMP), vTOK, 8, v(TMP))
        I("s_lshl_b32", sG, sLW, 12)
        I("s_add_u32", sG, sG, hx(L_STG))
        I("v_add_u32", v(vFR[0]), sG, v(TMP))
        I("v_xor_b32", v(vFR[1]), 16, v(vFR[0]))
        I("v_xor_b32", v(vFR[2]), hx(128), v(vFR[0]))
        I("v_xor_b32", v(vFR[3]), hx(144), v(vFR[0]))
        I("v_lshrrev_b32", v(TMP), 5, vLANE)
        I("v_lshlrev_b32", v(TMP), 1, v(TMP))
        I("v_xor_b32", v(TMP), v(TMP), vTOK)
        I("v_lshlrev_b32", v(TMP), 4, v(TMP))
        I("v_and_b32", v(TMP + 1), 31, vLANE)
        I("v_lshl_add_u32", v(TMP), v(TMP + 1), 8, v(TMP))
        I("s_and_b32", sG, sLW, 1)
        I("s_lshl_b32", sG, sG, 13)
        I("s_add_u32", sG, sG, hx(L_STG))
        I("v_add_u32", v(TMP + 2), sG, v(TMP))
        I("s_lshr_b32", sG, sLW, 1)
        I("s_xor_b32", sG, sG, sTG)
        I("s_and_b32", sG, sG, 1)
    nxt, lim, cur = [0], [0], [0]
    pl = {}
    RW = [(0, 0), (64, 1), (64, 2), (0, 1)]
    def pissue(r):
        o = RW[r][0]
        pl[r] = I("buffer_load_dword", v(PT), v(vGP), SRD_WS, 0, mods="offen" + (" offset:%d" % o if o else "") + " sc1")
    def chk(r):
        cls_check(pl[r], PT, vGP, RW[r][1], "e2_ready%d" % r, off=RW[r][0])
        lim[0] += 14
    def gload():
        n = nxt[0]
        nxt[0] += 1
        assert pos[(1, n + 28)] < cur[0] and n < lim[0]
        r, k = divmod(n, 14)
        c = CL[r]
        o = 1024 * (c & 1) + 512 * (k & 1)
        bl[56 + n] = I("buffer_load_dwordx4", vr(ZB + 4 * (n % 28), 4), v(vG[c >> 1]), SRD_WS, GT_[k // 2],
                       mods="offen" + (" offset:%d" % o if o else "") + " sc1")
    ev = {}
    def at(i, fn):
        ev.setdefault(i, []).append(fn)
    wq = []
    wid = {}
    pk = {}
    used = set()
    def check_at(i, which, target, areg=None, then=None, move=1):
        while any(k in used for k in range(i - 3, i + 1)):
            i += move
        used.update(range(i - 3, i + 1))
        at(i - 3, lambda: pk.__setitem__(i, peek(which, areg)))
        def f():
            verify(pk[i], which, target, areg)
            if then:
                then()
        at(i, f)
    def wr(b, q):
        wid[b] = I("ds_write_b128", v(vS[b]), vr(ACH[b] + 4 * q, 4), mods="offset:%d" % (1024 * q))
    for b in range(2):
        i0 = pos[(b, 27)] + 2
        for q in range(4):
            at(i0 + q, lambda b=b, q=q: wr(b, q))
        at(i0 + 3, lambda: arrive(aH, vCW))
        at(i0 + 3, lambda b=b: stamp("e1_h%d" % b))
        at(pos[(b, 28)], lambda b=b: A.wait(lg=wid[b]))
    for h, cn in ((1, aF1), (3, aF3)):
        at(pos[(1, 14 * h + 13)] - PD + 1, lambda cn=cn: arrive(cn))
    at(pos[(0, OPT.get("zk", 10))], lambda: arrive(aH, vCW))
    IE2 = pos[(0, 56)]
    if not OPT.get("d_early", 0):
        at(pos[(0, OPT.get("zd", 18))], lambda: arrive(aZ))
        check_at(pos[(0, 42)] - PD, aXF, 4, move=-1)
    check_at(pos[(0, 20)], bW3, 4)
    def more():
        lim[0] += 14
    def prog(val, st=None):
        I("v_add_u32", v(TMP + 7), val, vTAG)
        A.wait(vm=st)
        def f(m):
            I("s_mov_b64", "exec", 1)
            I("buffer_store_dword", v(TMP + 7), "off", SRD_WS, sD, mods=m)
            I("s_mov_b64", "exec", -1)
        moded(f)
    for q, th in enumerate(rec(setup2) + rec(setup3)):
        at(pos[(0, 31)] + q // 2, th)
        assert pos[(0, 31)] + q // 2 < pos[(0, 50)]
    check_at(pos[(0, 51)], bR, 1, vCW)
    gst = {}
    KC = TMP + 8
    T, CV = 160, 120
    at(pos[(0, 52)], lambda: I("ds_read_b128", vr(KC, 4), v(TMP + 3)))
    for q in range(4):
        at(pos[(0, 53)] + q, lambda q=q: I("ds_write_b128", v(vFR[q]), vr(RES + 4 * q, 4)))
    at(pos[(0, 53)] + 3, lambda: arrive(aFIN))
    cr = {}
    assert pos[(1, 28 + 21)] < pos[(0, 55)] + 2
    for n in range(8):
        at(pos[(0, 55)] + 2 + n // 2, lambda n=n: cr.__setitem__(n, I("ds_read_b128", vr(CV + 4 * n, 4), v(TMP + 6),
                                                                     mods="offset:%d" % (128 * (n // 4) + 16 * (n % 4)))))
    units = [8 * b + 4 * (g >> 1) + (g & 1) for b in range(2) for g in range(4)]
    def init(b):
        l1, l2 = A.newlabel("Lin"), A.newlabel("Lin")
        I("s_cmp_eq_u32", sG, 0)
        I("s_cbranch_scc1", l1)
        for q in range(0, 16, 2):
            I("v_pk_mov_b32", vr(ACH[b] + q, 2), 0, 0) if False else I("v_mov_b64", vr(ACH[b] + q, 2), 0)
        I("s_branch", l2)
        A.label(l1)
        for n in range(4 * b, 4 * b + 4):
            I("v_xor_b32", v(RES + n), hx(16 * units[n]), v(TMP + 2))
            I("ds_read_b128", vr(ACH[b] + 4 * (n % 4), 4), v(RES + n))
        A.lg -= 4
        A.label(l2)
    def mid():
        stamp("e1_pass1")
        NMU, K0, K1, RI = KC, TMP + 12, KC + 2, 14
        I("v_mov_b32", v(K0), v(KC + 1))
        I("v_mov_b32", v(RI), v(KC + 3))
        p = {}
        for b in range(2):
            A.wait(lg=cr[4 * b + 3])
            for q in range(0, 16, 2):
                I("v_pk_fma_f32", vr(ACH[b] + q, 2), vr(CV + 16 * b + q, 2), vr(NMU, 2), vr(ACH[b] + q, 2), mods="op_sel_hi:[1,0,1]")
            if b == 0:
                inj = Inject([lambda: pissue(0), lambda: p.__setitem__(0, peek(bR, vCW))], 40, 20)
            else:
                def late():
                    verify(p[1], aFIN, 8)
                    init(0)
                    for i in range(IE2, IE2 + PD):
                        ard(i)
                ng = OPT.get("g0n", 6) - nxt[0]
                inj = Inject([gload] * ng + [lambda: prog(1, gst[0]), lambda: p.__setitem__(1, peek(aFIN)), late], 46 if ng == 0 else 8, 10 if ng == 0 else 60 // (ng + 2))
            with inj:
                gelu(ACH[b], 16, T, K0, K1, RI, CV + 16 * b, True)
            if b == 0:
                verify(p[0], bR, 2, vCW)
            def f(m, b=b):
                r = None
                for u in range(2):
                    o = 1024 * b + 512 * u
                    r = I("buffer_store_dwordx4", vr(CV + 16 * b + 4 * u, 4), v(vG[1]), SRD_WS, sE,
                          mods="offen" + (" offset:%d" % o if o else "") + (" " + m if m else ""))
                return r
            if b == 1:
                init(1)
            gst[b] = moded(f)
            stamp("a_g%d" % (2 + b))
            if b == 0:
                chk(0)
                for _ in range(OPT.get("b0", 6)):
                    gload()
    at(IE2, mid)
    at(IE2 + 1, lambda: A.wait_lg_all(force=True) if False else I("s_waitcnt", "lgkmcnt(2)"))
    at(IE2 + OPT.get("f3", 14), lambda: prog(2, gst[1]))
    for r, dl in ((1, OPT.get("dl1", 6)), (2, OPT.get("dl2", 2)), (3, OPT.get("dl3", 4))):
        i = pos[(0, 56 + 14 * (r - 1) + dl)]
        at(max(i - OPT.get("pg", 14), IE2 + 1), lambda r=r: pissue(r))
        at(i, lambda r=r: chk(r))
    if OPT.get("u3", 0):
        check_at(pos[(0, 84)] - PD, aL2, 4, move=-1)
        check_at(pos[(0, 98)] - PD, aL3, 4, move=-1)
    else:
        check_at(pos[(0, 84)] - PD, aL3, 4, move=-1)
    at(pos[(0, 56 + 42)], lambda: arrive(aH, vCW))
    SND, RCV, W, o0 = 64, 120, 96, 104
    t0, t1 = TMP + 8, TMP + 9
    rp = {}
    def fin_setup():
        for q in range(16):
            I("v_mov_b32", v(SND + 2 * q + 1), vTAG)
        I("v_lshrrev_b32", v(t0), 1, vTOK)
        I("v_lshrrev_b32", v(t1), 5, vLANE)
        I("v_xor_b32", v(t0), v(t0), v(t1))
        I("v_lshlrev_b32", v(t0), 4, v(t0))
        I("v_and_b32", v(t1), 31, vLANE)
        I("v_lshl_add_u32", v(t0), v(t1), 7, v(t0))
        I("s_lshl_b32", sE, sLW, 12)
        I("s_add_u32", sE, sE, hx(slot(4)))
        I("v_add_u32", v(W), sE, v(t0))
        for n in range(1, 4):
            I("v_xor_b32", v(W + n), hx(32 * n), v(W))
        I("v_lshrrev_b32", v(o0), 3, vLANE)
        I("v_and_b32", v(t1), 7, vLANE)
        I("v_xor_b32", v(t1), v(t1), vQ4)
        I("v_mul_u32_u24", v(o0), hx(896), v(o0))
        I("v_lshl_add_u32", v(o0), v(t1), 4, v(o0))
        I("v_xor_b32", v(t1), 4, v(t1))
        I("v_lshrrev_b32", v(o0 + 1), 3, vLANE)
        I("v_mul_u32_u24", v(o0 + 1), hx(896), v(o0 + 1))
        I("v_lshl_add_u32", v(o0 + 1), v(t1), 4, v(o0 + 1))
        I("s_lshl_b32", sE, sX, 4)
        I("s_add_u32", sE, sE, sTE)
        I("s_mul_i32", sB, sE, hx(16 * 896))
        I("s_add_u32", sB, sB, sJ128)
        for n in range(4):
            I("s_add_u32", "s%d" % (4 + n), sC, hx(TB * n))
            I("s_add_u32", "s%d" % (8 + n), sC2, hx(TB * n))
            I("s_add_u32", "s%d" % (12 + n), sB, hx(8 * 896 * n))
    fs = rec(fin_setup)
    i1 = pos[(1, 56 + 42)] + 1
    for q, th in enumerate(fs):
        at(i1 + q // 3, th)
    assert i1 + len(fs) // 3 < pos[(0, 111)]
    check_at(pos[(0, 111)], bR, 3, vCW, move=-1)
    def finish():
        lown, lend = A.newlabel("Lown"), A.newlabel("Lend")
        sv = (A.vm, A.vm_done, A.lg, A.lg_done)
        I("s_cmp_eq_u32", sG, 0)
        I("s_cbranch_scc1", lown)
        def snd(m):
            for n in range(8):
                for e in range(2):
                    q = 2 * n + e
                    I("v_cvt_pk_bf16_f32", v(SND + 2 * q), v(ACH[q // 8] + 2 * (q % 8)), v(ACH[q // 8] + 2 * (q % 8) + 1))
                I("buffer_store_dwordx4", vr(SND + 4 * n, 4), vL16, SRD_WS, "s%d" % (4 + n // 2),
                  mods="offen" + (" offset:1024" if n & 1 else "") + (" " + m if m else ""))
        moded(snd)
        stamp("x_sent")
        I("s_branch", lend)
        A.label(lown)
        l0, d0 = A.newlabel("Lpoll"), A.newlabel("Lpd")
        I("s_mov_b32", sCNT, hx(40000))
        I("s_mov_b64", "exec", 1)
        A.label(l0)
        I("buffer_load_dword", v(t0), "off", SRD_WS, "s%d" % (8 + OPT.get("wp", 2) // 2), mods="offset:%d sc1" % (4 + 1024 * (OPT.get("wp", 2) & 1)))
        I("s_sub_u32", sCNT, sCNT, 1)
        I("s_waitcnt", "vmcnt(0)")
        I("v_cmp_ne_u32", "vcc", sTAG, v(t0))
        I("s_cbranch_vccz", d0)
        I("s_cmp_lg_u32", sCNT, 0)
        I("s_cbranch_scc1", l0)
        A.label(d0)
        I("s_mov_b64", "exec", -1)
        lp, dn = A.newlabel("Lpoll"), A.newlabel("Lpd")
        A.label(lp)
        for n in range(8):
            I("buffer_load_dwordx4", vr(RCV + 4 * n, 4), vL16, SRD_WS, "s%d" % (8 + n // 2),
              mods="offen" + (" offset:1024" if n & 1 else "") + " sc1")
        I("v_mov_b32", v(t0), vTAG)
        I("v_mov_b32", v(t1), vTAG)
        I("s_sub_u32", sCNT, sCNT, 1)
        for k, n in enumerate(range(8)):
            I("s_waitcnt", "vmcnt(%d)" % (7 - k))
            I("v_min3_u32", v(t0), v(t0), v(RCV + 4 * n + 1), v(RCV + 4 * n + 3))
            I("v_max3_u32", v(t1), v(t1), v(RCV + 4 * n + 1), v(RCV + 4 * n + 3))
            for e in range(2):
                q = 2 * n + e
                I("v_and_b32", v(RCV + 2 * q + 1), hx(0xffff0000), v(RCV + 2 * q))
                I("v_lshlrev_b32", v(RCV + 2 * q), 16, v(RCV + 2 * q))
        I("v_cmp_ne_u32", "vcc", v(t0), v(t1))
        I("s_cbranch_vccz", dn)
        I("s_cmp_gt_i32", sCNT, 0)
        I("s_cbranch_scc1", lp)
        A.label(dn)
        stamp("x_recv")
        for n in range(4):
            ac = ACH[n // 2] + 8 * (n % 2)
            for e in range(0, 8, 2):
                I("v_pk_add_f32", vr(ac + e, 2), vr(ac + e, 2), vr(RCV + 8 * n + e, 2))
            pack(SND + 4 * n, ac, 8)
            I("ds_write_b128", v(W + n), vr(SND + 4 * n, 4))
        rr = [I("ds_read_b128", vr(ACC + 4 * n, 4), v(vS[1]), mods="offset:%d" % (1024 * n)) for n in range(4)]
        for n in range(4):
            A.wait(lg=rr[n])
            I("buffer_store_dwordx4", vr(ACC + 4 * n, 4), v(o0 + (n & 1)), SRD_OUT, "s%d" % (12 + n), mods="offen" + (" sc1" if OPT.get("outsc1") else "") + (" nt" if OPT.get("outnt") else ""))
        A.label(lend)
        A.vm, A.vm_done, A.lg, A.lg_done = sv
    zn = [NP]
    for i, (b, n) in enumerate(seq):
        if OPT.get("fine") and i % 8 == 0:
            fstamp("op%03d" % i)
        for fn in ev.get(i, ()):
            fn()
        key = n if n < 28 else (n if n >= 56 else None)
        A.wait(vm=bl[key] if (b == 0 and key is not None) else None, lg=rd[(i | 1) if (i | 1) in rd else i])
        m32(ACH[b], AR + 4 * (i % NR), ZB + 4 * (n % 28), n in (0, 28))
        cur[0] = i + 1
        done1 = max([m for (bb, m) in seq[:i + 1] if bb == 1], default=-1)
        if zn[0] < 28:
            if b == 0:
                zload(zn[0]); zn[0] += 1
        elif nxt[0] < lim[0] and nxt[0] + 28 <= done1:
            gload()
        elif wq:
            wq.pop(0)()
        if i + PD < len(seq) and not (i < IE2 <= i + PD):
            ard(i + PD)
    assert not wq and nxt[0] == 56
    stamp("e2_mfma")
    finish()
    stamp("end")

def e_helper_setup():
    vS0, vS1, vRC, RT, vFL, vSO, vSO3, vW3 = 28, 29, 30, 31, 32, 33, 34, 35
    I("v_lshrrev_b32", v(vCS), 5, vLANE)
    I("v_lshlrev_b32", v(vCS), 6, v(vCS))
    I("v_add_u32", v(vCS), hx(131072), v(vCS))
    bf_lane(vBF)
    I("s_lshl_b32", sA, sLW, 12)
    I("s_add_u32", sB, sA, hx(L_STG))
    I("v_add_u32", v(vS0), sB, vL16)
    I("s_add_u32", sB, sA, hx(slot(4)))
    I("v_add_u32", v(vS1), sB, vL16)
    I("s_lshl_b32", sA, sJP, 11)
    I("s_cmp_ge_u32", sJP, 7)
    I("s_cselect_b32", sB, hx(15 * TB), 0)
    I("s_add_u32", sA, sA, sB)
    tile_off(sC, R_G[0], TB, tl=sTE, extra=sA)
    I("s_lshr_b32", sB, sTE, 1)
    tile_off(sG, R_FG, 128, tl=sB)
    I("s_lshl_b32", sA, sJP, 2)
    I("s_add_u32", sD, sG, sA)
    vGP, vRP = 37, 38
    I("s_and_b32", sE, sTG, 1)
    I("s_mul_i32", sE, sE, 28)
    I("s_add_u32", sA, sG, sE)
    I("v_min_u32", v(TMP), 6, vLANE)
    I("v_lshl_add_u32", v(vGP), v(TMP), 2, sA)
    I("s_and_b32", sB, sB, 4)
    tile_off(sA, R_FG + 64, 128, tl=sB, extra=sE)
    I("v_min_u32", v(vRP), 6, vTOK)
    I("v_lshl_add_u32", v(vRP), v(vRP), 2, sA)
    I("v_lshl_add_u32", v(vRP), vQ4, 7, v(vRP))
    I("v_min_u32", v(TMP), 13, vTOK)
    I("s_add_u32", sA, sG, 64)
    I("v_lshl_add_u32", v(vRC), v(TMP), 2, sA)
    I("v_lshrrev_b32", v(TMP), 5, vLANE)
    I("v_mul_u32_u24", v(TMP), 3, v(TMP))
    I("s_sub_u32", sA, sTE, 1)
    I("v_add_u32", v(TMP), sA, v(TMP))
    I("v_max_i32", v(TMP), 0, v(TMP))
    I("v_min_i32", v(TMP), 15, v(TMP))
    I("v_min_u32", v(TMP + 1), 6, vTOK)
    I("v_lshlrev_b32", v(TMP + 1), 8, v(TMP + 1))
    I("v_lshl_add_u32", v(TMP), v(TMP), 11, v(TMP + 1))
    I("s_add_u32", sA, sPAGE, hx(R_SX + 4))
    I("v_add_u32", v(TMP), sA, v(TMP))
    I("v_cmp_ne_u32", "vcc", 0, vQ4)
    I("v_cndmask_b32", v(vRC), v(vRC), v(TMP), "vcc")
    I("s_lshl_b32", sF, sLW, 10)
    tile_off(sSP, R_SX, 2048, tl=sTE)
    I("v_and_b32", v(vSO3), 1, vQ4)
    I("v_lshlrev_b32", v(vSO3), 11, v(vSO3))
    I("v_lshl_add_u32", v(vSO3), vTOK, 4, v(vSO3))
    I("v_lshrrev_b32", v(TMP), 5, vLANE)
    I("v_lshl_add_u32", v(vSO), v(TMP), 8, v(vSO3))
    I("v_cvt_f32_u32", v(vW3), v(TMP))
    I("v_sub_f32", v(vW3), 1.0, v(vW3))

def e_helper():
    A.cmt("---- E (B: activation)")
    X, CS, GT = 64, 96, 48
    NMU, K0, K1, RI = 20, 21, 22, 23
    vS0, vS1, vRC, RT, vFL, vSO, vSO3, vW3 = 28, 29, 30, 31, 32, 33, 34, 35
    I("v_mov_b32", v(40), vD3584)
    I("s_add_u32", "s43", sE, hx(224 * 3584 + 128))
    e_helper_setup()
    cnt_setup([16, 17, 18])
    spin(bAB, 4, 1)
    for n in range(8):
        I("ds_read_b128", vr(CS + 4 * n, 4), v(vCS), mods="offset:%d" % (L_CS3 - 131072 + 128 * (n // 4) + 16 * (n % 4)))
    vCW = 19
    I("s_lshl_b32", sA, sLW, 2)
    I("v_add_u32", v(vCW), sA, v(CNR[0]))
    spin(aDP, 4, 1)
    A.wait_vm_all()
    arrive(bW3)
    stamp("b_r5")
    spin(aH, 1, 2, vCW)
    stamp("b_r6")
    lp, dn = A.newlabel("Lpoll"), A.newlabel("Lpd")
    G = X
    I("s_mov_b32", sCNT, hx(40000))
    A.label(lp)
    for q in range(3):
        I("buffer_load_dwordx4", vr(G + 4 * q, 4), v(vSO), SRD_WS, sSP, mods="offen offset:%d sc1" % (512 * q))
    I("buffer_load_dwordx4", vr(G + 12, 4), v(vSO3), SRD_WS, sSP, mods="offen offset:1536 sc1")
    I("s_sub_u32", sCNT, sCNT, 1)
    A.wait_vm_all(force=True)
    I("v_mov_b32", v(TMP), vTAG)
    I("v_mov_b32", v(TMP + 1), vTAG)
    for q in range(4):
        I("v_min3_u32", v(TMP), v(TMP), v(G + 4 * q + 1), v(G + 4 * q + 3))
        I("v_max3_u32", v(TMP + 1), v(TMP + 1), v(G + 4 * q + 1), v(G + 4 * q + 3))
    I("v_cmp_ne_u32", "vcc", v(TMP), v(TMP + 1))
    I("s_cbranch_vccz", dn)
    I("s_cmp_lg_u32", sCNT, 0)
    I("s_cbranch_scc1", lp)
    A.label(dn)
    for o in (0, 2):
        I("v_add_f32", v(G + o), v(G + o), v(G + 4 + o))
        I("v_add_f32", v(G + o), v(G + o), v(G + 8 + o))
        I("v_fmac_f32", v(G + o), v(G + 12 + o), v(vW3))
        I("v_mov_b32", v(G + o + 1), v(G + o))
        I("v_permlane32_swap_b32", v(G + o), v(G + o + 1))
        I("v_add_f32", v(G + o), v(G + o), v(G + o + 1))
    mean_var(G, G + 2, NMU, TMP + 7)
    rstd(TMP + 8, TMP + 7)
    I("v_sub_f32", v(NMU), 0, v(NMU))
    gelu_prep(TMP + 8, K0, K1, RI)
    stamp("b_ready")
    if not OPT.get("d_early", 0):
        spin(aZ, OPT.get("trg", 2), 1)
        for k in range(7):
            I("s_add_u32", "m0", sF, hx(slot(W3S[1][1]) + 4096 * k))
            I("s_add_u32", sH_, "s43", hx(32 * 3584 * k))
            dd = I("buffer_load_dwordx4", v(40), SRD_W3, sH_, mods="offen lds")
        A.wait(vm=dd)
        arrive(aXF)
    def fetch(c):
        spin(aH, c + 2, 1, vCW)
        stamp("b_h%d" % c)
        for q in range(4):
            I("ds_read_b128", vr(X + 16 * (c & 1) + 4 * q, 4), v((vS0, vS1)[c & 1]), mods="offset:%d" % (1024 * q))
        A.wait_lg_all()
    def act(c):
        b = c & 1
        x = X + 16 * b
        for i in range(16):
            I("v_fmac_f32", v(x + i), v(CS + 16 * c + i), v(NMU))
        gelu(x, 16, GT, K0, K1, RI, TMP, False)
    def put(c):
        def f(m):
            r = None
            for u in range(2):
                o = 1024 * (c & 1) + 512 * u
                r = I("buffer_store_dwordx4", vr(TMP + 4 * u, 4), v(vBF), SRD_WS, sC,
                      mods="offen" + (" offset:%d" % o if o else "") + (" " + m if m else ""))
            return r
        r = moded(f)
        stamp("b_g%d" % c)
        return r
    def flag(c, st, off=0):
        I("v_add_u32", v(vFL), c, vTAG)
        A.wait(vm=st)
        def f(m):
            I("s_mov_b64", "exec", 1)
            I("buffer_store_dword", v(vFL), "off", SRD_WS, sD, mods=("offset:%d " % off if off else "") + m)
            I("s_mov_b64", "exec", -1)
        moded(f)
    FD = OPT.get("fd", 50)
    fetch(0)
    I("s_add_u32", sA, sF, hx(slot(4) + 16384))
    I("v_add_u32", v(TMP), sA, vL16)
    I("ds_write_b128", v(TMP), vr(NMU, 4))
    arrive(bR, vCW)
    vGP, vRP = 37, 38
    pl = {}
    def pissue(k, voff, off=0):
        pl[k] = I("buffer_load_dword", v(RT), v(voff), SRD_WS, 0, mods="offen" + (" offset:%d" % off if off else "") + " sc1")
    def level(k, voff, val, off=0, name=None):
        cls_check(pl[k], RT, voff, val, name, sleep=1, off=off)
    flag(0, None, 64)
    o4 = [1, 2, 3] if OPT.get("pk0", 0) else [0, 1, 2, 3]
    with Inject(w4_park(o4[0]) + w4_park(o4[1]) + [lambda: pissue(0, vRC)], 2, OPT.get("iv", 6)):
        act(0)
    st0 = put(0)
    for th in w4_park(o4[2]):
        th()
    level(0, vRC, 0)
    arrive(bR, vCW)
    flag(0, st0)
    for c in o4[3:]:
        for th in w4_park(c):
            th()
    stamp("b_f0")
    spin(aF1, 4, 1)
    w4_unpark(0)
    w4_unpark(1)
    arrive(aFIN)
    stamp("b_l3")
    spin(aF3, 4, 1)
    w4_unpark(2)
    if OPT.get("u3", 0):
        arrive(aL2)
        fetch(1)
        act(1)
        st1 = put(1)
        w4_unpark(3)
        arrive(aL3)
    else:
        w4_unpark(3)
        arrive(aL3)
        fetch(1)
        act(1)
        st1 = put(1)
    flag(1, st1)
    stamp("b_f1")
    spin(aH, 4, 1, vCW)
    flag(3, None, 64)
    pissue(5, vRP)
    level(5, vRP, 3)
    arrive(bR, vCW)
    A.wait_lg_all()

def dump_stamps():
    if not OPT["stamp"]:
        return
    A.wait_vm_all(force=True)
    stamp("drained")
    I("s_memrealtime", sST)
    A.wait_lg_all(force=True)
    I("v_writelane_b32", vSTAMP, "s98", 1)
    I("s_lshl_b32", sA, "s2", 3)
    I("s_add_u32", sA, sA, sW)
    I("s_lshl_b32", sA, sA, 8)
    I("s_add_u32", sA, sA, hx(OFF_STAMP))
    I("v_lshlrev_b32", v(TMP), 2, vLANE)
    I("buffer_store_dword", vSTAMP, v(TMP), SRD_WS, sA, mods="offen")

def epoch_update():
    l = A.newlabel("Lep")
    I("s_cmp_lg_u32", "s2", hx(255))
    I("s_cbranch_scc1", l)
    I("s_cmp_lg_u32", sW, 0)
    I("s_cbranch_scc1", l)
    lp, dn = A.newlabel("Lpoll"), A.newlabel("Lpd")
    I("v_lshrrev_b32", v(TMP), 3, vLANE)
    I("v_lshlrev_b32", v(TMP), PSH, v(TMP))
    I("v_and_b32", v(TMP + 1), 7, vLANE)
    I("v_lshl_add_u32", v(TMP), v(TMP + 1), 7, v(TMP))
    I("s_mov_b32", sA, hx(R_XCC))
    I("s_mov_b32", sCNT, hx(40000))
    A.label(lp)
    for i in range(4):
        I("buffer_load_dword", v(TMP + 4 + i), v(TMP), SRD_WS, sA, mods="offen offset:%d sc1" % (1024 * i))
    A.wait_vm_all(force=True)
    for i in range(4):
        I("v_subrev_u32", v(TMP + 4 + i), sTAG, v(TMP + 4 + i))
    I("v_max_u32", v(TMP + 4), v(TMP + 4), v(TMP + 5))
    I("v_max3_u32", v(TMP + 4), v(TMP + 4), v(TMP + 6), v(TMP + 7))
    I("v_cmp_le_u32", "vcc", 16, v(TMP + 4))
    I("s_cbranch_vccz", dn)
    I("s_sleep", 2)
    I("s_sub_u32", sCNT, sCNT, 1)
    I("s_cmp_lg_u32", sCNT, 0)
    I("s_cbranch_scc1", lp)
    A.label(dn)
    I("s_mov_b32", sA, hx(OFF_EPOCH))
    flag_store(sA)
    A.label(l)

def touch(srd, base, nbytes, mods=""):
    n = -(-nbytes // (32 * 8192))
    if isinstance(base, int):
        I("s_mov_b32", sA, hx(base))
    else:
        I("s_mov_b32", sA, base)
    lim = None
    for i in range(n):
        rem = nbytes - i * 32 * 8192
        if rem < 32 * 8192:
            I("v_cmp_gt_u32", "vcc", hx(rem), v(TMP + 8))
            I("v_cndmask_b32", v(TMP + 10), v(TMP + 9), v(TMP + 8), "vcc")
            va = v(TMP + 10)
        else:
            va = v(TMP + 8)
        I("buffer_load_dword", v(TMP + 11), va, srd, sA, mods="offen" + (" " + mods if mods else ""))
        if i + 1 < n:
            I("s_add_u32", sA, sA, hx(32 * 8192))

def touch_setup():
    I("s_sub_u32", sA, sLI, 28)
    I("s_lshl_b32", sB, sW, 2)
    I("s_add_u32", sA, sA, sB)
    I("s_lshl_b32", sA, sA, 13)
    I("v_lshl_add_u32", v(TMP + 8), vLANE, 7, sA)
    I("v_mov_b32", v(TMP + 9), hx(OOB))

def spare_pre():
    A.cmt("---- spare CU: prefetch")
    I("v_mov_b32", v(TMP + 4), 0)
    I("v_and_b32", vTOK, 15, vLANE)
    touch_setup()
    I("s_getpc_b64", "s[64:65]")
    A.label("L_pc")
    I("s_sub_u32", "s64", "s64", "L_pc-%s_kernel" % NAME)
    I("s_subb_u32", "s65", "s65", 0)
    I("s_and_b32", "s65", "s65", hx(0xffff))
    I("s_mov_b32", "s66", "L_codeend-%s_kernel" % NAME)
    I("s_mov_b32", "s67", hx(0x20000))
    I("s_sub_u32", sA, sLI, 28)
    I("s_lshl_b32", sB, sW, 2)
    I("s_add_u32", sA, sA, sB)
    I("s_lshl_b32", sD, sA, 11)
    I("v_lshlrev_b32", v(TMP + 12), 7, vTOK)
    touch1(SRD_BG, v(TMP + 12), sD)
    A.wait_lg_all(force=True)
    epoch_load()
    srds([60, 8, 4, 12, 16, 20, 24, 28, 32])
    I("v_lshlrev_b32", v(TMP + 11), 7, vLANE)
    def mall(items, off):
        for srd, n in items:
            l = A.newlabel("Lml")
            I("s_sub_u32", sA, sE, hx(off))
            I("s_and_b32", sA, sA, hx(255))
            I("s_cmp_ge_u32", sA, hx(n))
            I("s_cbranch_scc1", l)
            I("s_lshl_b32", sA, sA, 13)
            touch1(srd, v(TMP + 11), sA)
            A.label(l)
            off += n
        return off
    I("s_sub_u32", sA, sLI, 28)
    I("s_lshl_b32", sA, sA, 3)
    I("s_add_u32", sA, sA, sX)
    I("s_lshl_b32", sB, sW, 5)
    I("s_add_u32", sE, sA, sB)
    off = mall([(SRD_WQKV, 147), (SRD_WO, 49), (SRD_W1, 49)], 0)
    I("s_lshl_b32", sG, sD, 2)
    I("s_add_u32", sG, sG, sPAGE)
    I("s_mov_b32", sA, sG)
    I("s_cmp_ge_u32", sD, hx(28 << 11))
    I("s_cmov_b32", sA, hx(OOB))
    I("s_add_u32", sB, sPAGE, hx(R_LOC))
    I("s_cmp_eq_u32", sD, hx(31 << 11))
    I("s_cmov_b32", sA, sB)
    touch1(SRD_WS, v(TMP + 11), sA)
    tag_publish()
    late_consts()
    dma_lane_consts()
    barrier()
    tag_read_finish(tag_read_issue())
    off = mall([(SRD_W2, 49)], off)
    I("s_add_u32", sA, sG, hx(R_2))
    I("s_add_u32", sB, sG, hx(R_SH - 28 * 8192))
    I("s_cmp_ge_u32", sD, hx(28 << 11))
    I("s_cmov_b32", sA, sB)
    touch1(SRD_WS, v(TMP + 11), sA)
    I("s_add_u32", sA, sB, hx(32768))
    I("s_cmp_lt_u32", sD, hx(28 << 11))
    I("s_cmov_b32", sA, hx(OOB))
    touch1(SRD_WS, v(TMP + 11), sA)
    if not OPT["alias"]:
        I("s_add_u32", sB, sPAGE, hx(1 << 21))
        touch(SRD_WS, sB, 112 * TB)
    if OPT["mall"] > 1:
        off = mall([(SRD_W3, 196)], off)
    mode_issue()
    A.wait_vm_all(force=True)
    stamp("sp_mall")
    att_ids()

def spare_att():
    I("s_sub_u32", sE, sLI, 28)
    I("s_lshl_b32", sE, sE, 3)
    I("s_add_u32", sE, sE, sX)
    I("s_lshl_b32", sE, sE, 7)
    l = A.newlabel("Lsa")
    I("s_cmp_ge_u32", sE, hx(28 * 128))
    I("s_cbranch_scc1", l)
    dma_seq(SRD_W3, 3584, slot(3), (sE, 0), 14)
    A.label(l)

def spare_colsum():
    l = A.newlabel("Lsc")
    I("s_cmp_ge_u32", sE, hx(28 * 128))
    I("s_cbranch_scc1", l)
    cl_lane()
    t0 = TMP
    I("v_add_u32", v(t0), hx(slot(3)), v(vCL))
    for s_ in range(14):
        I("ds_read_b64_tr_b16", vr(AREG + 4 * s_, 2), v(t0), mods="offset:%d" % (4096 * s_))
        I("ds_read_b64_tr_b16", vr(AREG + 4 * s_ + 2, 2), v(t0), mods="offset:%d" % (4096 * s_ + 1024))
    I("v_lshlrev_b32", v(TMP + 1), 5, vQ4)
    I("v_lshl_add_u32", v(TMP + 1), vTOK, 4, v(TMP + 1))
    I("s_lshl_b32", sA, sE, 2)
    I("s_lshl_b32", sB, sLW, 7)
    I("s_add_u32", sA, sA, sB)
    I("s_add_u32", sA, sA, hx(OFF_CSG))
    I("v_mov_b32", v(TMP + 5), vTAG)
    I("v_mov_b32", v(TMP + 7), vTAG)
    I("v_cmp_eq_u32", "vcc", 0, vTOK)
    A.wait_lg_all()
    for s_ in range(14):
        m16(ACC, AREG + 4 * s_, ONES, s_ == 0)
    I("v_cndmask_b32", v(TMP + 4), v(ACC + 2), v(ACC), "vcc")
    I("v_cndmask_b32", v(TMP + 6), v(ACC + 3), v(ACC + 1), "vcc")
    I("s_mov_b32", "exec_lo", hx(0x30003))
    I("s_mov_b32", "exec_hi", hx(0x30003))
    I("buffer_store_dwordx4", vr(TMP + 4, 4), v(TMP + 1), SRD_WS, sA, mods="offen sc1")
    I("s_mov_b64", "exec", -1)
    A.label(l)

def cl_lane():
    t0, t1, t2 = TMP, TMP + 1, TMP + 2
    I("v_bfe_u32", v(t0), vLANE, 2, 2)
    I("v_and_b32", v(t1), 1, vQ4)
    I("v_lshl_add_u32", v(t1), v(t1), 2, v(t0))
    I("v_lshrrev_b32", v(t2), 1, vQ4)
    I("v_lshl_add_u32", v(t1), v(t2), 4, v(t1))
    I("v_and_b32", v(t0), 2, v(t0))
    I("v_lshlrev_b32", v(t0), 5, v(t0))
    I("s_lshl_b32", sA, sLW, 5)
    I("v_xor_b32", v(t0), sA, v(t0))
    I("v_lshl_add_u32", v(t0), v(t1), 7, v(t0))
    I("v_and_b32", v(t1), 3, vLANE)
    I("v_lshl_add_u32", v(vCL), v(t1), 3, v(t0))

def spare_post():
    if OPT["warm"]:
        touch_setup()
        I("v_lshlrev_b32", v(TMP + 10), 1, v(TMP + 8))
        I("v_cmp_gt_u32", "vcc", hx(17 * 16384), v(TMP + 10))
        I("v_cndmask_b32", v(TMP + 12), v(TMP + 9), v(TMP + 10), "vcc")
        def w4mall():
            I("s_sub_u32", sA, sLI, 28)
            I("s_lshl_b32", sA, sA, 3)
            I("s_add_u32", sA, sA, sX)
            I("s_lshl_b32", sB, sW, 5)
            I("s_add_u32", sA, sA, sB)
            I("s_lshl_b32", sA, sA, 13)
            I("v_lshlrev_b32", v(TMP + 13), 7, vLANE)
            touch1(SRD_W4, v(TMP + 13), sA)
        for qn, (sg, hi) in enumerate(((0, 0), (0, 1), (1, 0), (1, 1))[:OPT.get("nq", 4)]):
            if qn == OPT.get("w4m", 0):
                w4mall()
            I("s_mov_b32", sA, hx(128 * sg + hi * 224 * 3584))
            touch1(SRD_W3, v(TMP + 10), sA)
            I("s_add_u32", sA, sA, hx(32 * 16384))
            touch1(SRD_W3, v(TMP + 12), sA)
            barrier()
        if OPT.get("w4m", 0) == OPT.get("nq", 4):
            w4mall()
            I("s_waitcnt", "vmcnt(0)")
            barrier()
        stamp("sp_w3")
        I("s_sub_u32", sB, sLI, 28)
        I("s_lshl_b32", sB, sB, 3)
        I("s_add_u32", sB, sB, sW)
        I("v_lshlrev_b32", v(TMP + 10), 7, vLANE)
        def kvr():
            I("s_add_u32", sA, sPAGE, hx(R_K))
            touch1(SRD_WS, v(TMP + 8), sA)
            I("s_add_u32", sA, sA, hx(32 * TB - 32 * 8192))
            touch1(SRD_WS, v(TMP + 8), sA)
        for sg in range(2):
            if OPT.get("kvr", 0) >> sg & 1:
                kvr()
            for i in range(4):
                I("s_add_u32", sC, sB, 32 * i)
                I("s_mul_i32", sD, sC, hx(147))
                I("s_lshr_b32", sD, sD, 10)
                I("s_mul_i32", sA, sD, hx(128 * 896 - 7 * 8192))
                I("s_lshl_b32", sC, sC, 13)
                I("s_add_u32", sA, sA, sC)
                if sg:
                    I("s_add_u32", sA, sA, hx(64 * 896))
                touch1(SRD_W4, v(TMP + 10), sA)
                if i & 1:
                    barrier()
        if OPT.get("kvr", 0) & 4:
            kvr()
        A.wait_vm_all(force=True)
        stamp("sp_w4")

def reset():
    A.vm = A.vm_done = A.lg = A.lg_done = 0

prologue()
I("s_cmp_ge_u32", sLI, 28)
I("s_cbranch_scc1", "L_spare")
I("s_cmp_ge_u32", sW, 4)
I("s_cbranch_scc1", "L_aload")
phase_a_compute()
A.label("L_att")
reset()
att_a()
I("s_cmp_ge_u32", sLI, 28)
I("s_cbranch_scc1", "L_spare2a")
st = c_compute()
e_compute(st)
dump_stamps()
I("s_endpgm")
A.label("L_spare")
reset()
spare_pre()
I("s_cmp_ge_u32", sW, 4)
I("s_cbranch_scc1", "L_sp4")
att_consts()
I("s_branch", "L_att")
A.label("L_sp4")
mode_check()
att_consts_b()
kv_poll_off(TMP + 4, 0)
I("s_branch", "L_attpre")
A.label("L_aload")
ROLE[0] = "B"
reset()
phase_a_loader()
A.label("L_attpre")
att_loader_pre()
att_b()
A.label("L_cload")
c_loader()
e_helper()
dump_stamps()
I("s_endpgm")
A.label("L_spare2a")
ROLE[0] = "A"
reset()
o_flag()
epoch_update()
I("s_waitcnt", "vmcnt(0)")
barrier()
A.label("L_spare2")
spare_post()
dump_stamps()
A.label("L_end")
I("s_endpgm")
A.label("L_codeend")

body = A.finalize()
hdr = open("cdna_kernels/%s.s.ref" % NAME).read().split("; Override launch")[0]
out = hdr + "; @launch grid=(256,1,1) block=(512,1,1) lds=%d\n" % LDS_SIZE
out += """.amdgcn_target "amdgcn-amd-amdhsa--gfx950"
.text
.globl %s_kernel
.p2align 8
.type %s_kernel,@function
%s_kernel:
""" % (NAME, NAME, NAME)
out += body
out += """.section .rodata,"a"
.p2align 6
.amdhsa_kernel %s_kernel
  .amdhsa_next_free_vgpr 256
  .amdhsa_next_free_sgpr 102
  .amdhsa_accum_offset 256
  .amdhsa_group_segment_fixed_size 0
  .amdhsa_kernarg_size 88
  .amdhsa_user_sgpr_count 2
  .amdhsa_user_sgpr_kernarg_segment_ptr 1
  .amdhsa_system_sgpr_workgroup_id_x 1
.end_amdhsa_kernel
""" % NAME
open(sys.argv[1], "w").write(out)
json.dump(dict(stamps=stamp_names, stamps_b=stamp_names_b, PSH=PSH, v5=1, OFF=dict(Q=R_Q, K=R_K, V=R_V, O=R_O, H=R_H, HH=R_HH, X1=R_X1, G=R_G[0], G1=R_G[1],
               STAMP=OFF_STAMP, WS=WS_SIZE)), open(sys.argv[1] + ".json", "w"))
```

```python
import sys, struct, json
from asmlib import Asm

NAME = "sequential_preLN__sliding_block__mixer_s_mlp__prompt"
OPT = dict(stamp=0, alias=1, local=1, warm=1, clean=0, npre=5, fk=11, mall=1, ta=1, tb=1)
KEEP = []
HOLD = []
for a in sys.argv[2:]:
    k, v_ = a.split("=")
    if k == "hold":
        HOLD = [v_]
        continue
    if k == "keep":
        KEEP = v_.split(",")
        continue
    OPT[k] = int(v_)

def f2u(x): return struct.unpack("<I", struct.pack("<f", x))[0]
def hx(x): return "0x%x" % (x & 0xffffffff)
def fl(x): return hx(f2u(x))

TB = 14336
PSH = 21 if OPT["alias"] else 22
R_Q, R_2, R_K, R_V = 0, 16 * TB, 32 * TB, 48 * TB
R_HALO = 64 * TB
R_LOC = R_HALO + 2 * TB
R_FO = R_LOC
R_FHH = R_FO + 2048
R_FQ = R_FHH + 2048
R_FG = R_FQ + 2048
R_SH = R_FG + 2048
R_SX = R_SH + 32768
R_FQKV = R_SX + 32768
R_FHALO = R_FQKV + 16384
R_XCC = R_FHALO + 2048
R_END = R_XCC + 4096
assert R_END <= (1 << 21)
if OPT["alias"]:
    R_O, R_HH, R_H, R_X1 = R_Q, R_Q, R_2, R_2
    R_G = (R_K, R_Q)
else:
    R_H = R_2
    R_O = 1 << 21
    R_X1 = R_O + 16 * TB
    R_HH = R_X1 + 16 * TB
    R_G = (R_HH + 48 * TB, R_HH + 16 * TB)
OFF_EPOCH = 8 << PSH
OFF_CSG = OFF_EPOCH + 4096
OFF_STAMP = OFF_CSG + 16384
WS_SIZE = OFF_STAMP + 256 * 8 * 256
OOB = 0x40000000

SLOT = 28672
def slot(i): return SLOT * i
L_XIMG = 3 * SLOT
L_QIMG = 5 * SLOT
L_STG = L_QIMG
L_CS1 = L_QIMG + 16384
L_CS3 = L_CS1 + 256
L_MODE = L_CS3 + 1024
L_TAG = L_MODE + 4
L_CNT = L_MODE + 16
L_CSA = L_CNT + 256
aO, aOF, aC1P, aC1Q, aC2P, aC2Q, aHF, aDP, aXF, bWO, bW1, bCS1, bW2, bAB, bW3 = range(4, 19)
aZ, aF0, aF1, aF2, aF3, aL01, aL2, aL3, aFIN = range(19, 28)
aH, bR = 32, 36
L_CST = L_CSA
L_STA = L_CSA + 768
assert L_STA + 1024 <= 163840
LDS_SIZE = 163840

SRD_X, SRD_WQKV, SRD_WO, SRD_W1, SRD_W2, SRD_W3, SRD_W4, SRD_OUT = ["s[%d:%d]" % (4 * i, 4 * i + 3) for i in range(1, 9)]
SRD_WS, SRD_BG = "s[60:63]", "s[64:67]"
sX, sLI, sTG, sJ, sW, sLW, sPAGE, sTAG, sTL = ["s%d" % i for i in range(68, 77)]
sMODE, sJ128, sK, sROT, sXCC = "s77", "s78", "s79", "s80", "s81"
sODD = "s[82:83]"
sA, sB, sC, sD, sE, sF, sG, sH_ = ["s%d" % i for i in range(84, 92)]
sHEAD, sTQ0, sC0, sJP, sT1 = "s92", "s93", "s94", "s95", "s96"
sCNT = "s97"
sST = "s[98:99]"
sD2, sC2 = "s100", "s101"

vLANE, vTOK, vQ4, vL16 = "v0", "v1", "v2", "v3"
vD896, vD2688, vD3584, vD4 = "v4", "v5", "v6", "v44"
TRL = [[7, 8], [9, 10]]
TRC = [[11, 12], [13, 14]]
vTAG = "v15"
ONES = 16
HP = 20
HHP = 80
X1P = 36
vMU, vRH, vSTAMP = 44, 45, "v47"
vSPO, vSPW = 5, 46
ACC = 48
BREG = 64
AREG = 128
TMP = 240

def v(i): return "v%d" % i
def vr(i, n): return "v[%d:%d]" % (i, i + n - 1)

A = Asm()
I = A.I
stamp_names = []
stamp_names_b = ["start", "drained"] + ["sp_mall", "sp_w3", "sp_w4"]
stamp_names += stamp_names_b
ROLE = ["A"]

def stamp(name):
    if name in HOLD and ROLE[0] == "A":
        l = A.newlabel("Lhold")
        le = A.newlabel("Lholde")
        if "hwg" in OPT:
            I("s_cmp_lg_u32", "s2", hx(OPT["hwg"]))
            I("s_cbranch_scc1", le)
        A.label(l)
        I("s_memrealtime", sST)
        A.wait_lg_all(force=True)
        I("s_sub_u32", "s98", "s98", "s1")
        I("s_cmp_lt_u32", "s98", hx(5000))
        I("s_cbranch_scc1", l)
        A.label(le)
    if not OPT["stamp"]:
        return
    if OPT["stamp"] == 2 and name not in ("start", "drained") and name not in KEEP:
        return
    lst = stamp_names_b if ROLE[0] == "B" else stamp_names
    if name not in lst:
        lst.append(name)
    idx = lst.index(name) + 2
    assert idx < 64
    I("s_memrealtime" if OPT.get("rt") else "s_memtime", sST)
    A.wait_lg_all(force=True)
    I("v_writelane_b32", vSTAMP, "s98", idx)

FS = []
def fstamp(name):
    k = len(FS)
    FS.append(name)
    I("s_getreg_b32", "s98", "hwreg(HW_REG_SHADER_CYCLES)") if False else None
    KEEP.append(name)
    stamp(name)

def barrier():
    I("s_barrier")

def sync_counts():
    A.vm_done = A.vm
    A.lg_done = A.lg

def poll(vOff, sleep=1):
    sleep = max(sleep, OPT.get("psl", 0))
    lp, dn = A.newlabel("Lpoll"), A.newlabel("Lpd")
    t = v(TMP + 15)
    I("s_mov_b32", sCNT, hx(40000))
    A.label(lp)
    I("buffer_load_dword", t, vOff, SRD_WS, 0, mods="offen sc1")
    A.wait_vm_all(force=True)
    I("v_cmp_ne_u32", "vcc", sTAG, t)
    I("s_cbranch_vccz", dn)
    if sleep:
        I("s_sleep", sleep)
    I("s_sub_u32", sCNT, sCNT, 1)
    I("s_cmp_lg_u32", sCNT, 0)
    I("s_cbranch_scc1", lp)
    A.label(dn)

def poll_a(vOff, t):
    I("buffer_load_dword", v(t), vOff, SRD_WS, 0, mods="offen sc1")

def poll_b(vOff, t):
    lp, dn = A.newlabel("Lpoll"), A.newlabel("Lpd")
    I("s_mov_b32", sCNT, hx(40000))
    A.label(lp)
    A.wait_vm_all(force=True)
    I("v_cmp_ne_u32", "vcc", sTAG, v(t))
    I("s_cbranch_vccz", dn)
    I("s_sub_u32", sCNT, sCNT, 1)
    I("s_cmp_eq_u32", sCNT, 0)
    I("s_cbranch_scc1", dn)
    poll_a(vOff, t)
    A.vm -= 1
    I("s_branch", lp)
    A.label(dn)

def moded(fn):
    if not OPT["local"]:
        return fn("sc1")
    l1, l2 = A.newlabel("Lsl"), A.newlabel("Lse")
    I("s_cmp_eq_u32", sMODE, 1)
    I("s_cbranch_scc0", l1)
    vm0 = A.vm
    fn("")
    I("s_branch", l2)
    A.label(l1)
    A.vm = vm0
    r = fn("sc1")
    A.label(l2)
    return r

def flag_store(soff, mods="sc1"):
    I("s_mov_b64", "exec", 1)
    r = I("buffer_store_dword", vTAG, "off", SRD_WS, soff, mods=mods)
    I("s_mov_b64", "exec", -1)
    return r

def frag_store(preg, soff, off=0, mods="sc1"):
    m = "offen" + (" offset:%d" % off if off else "") + (" " + mods if mods else "")
    return I("buffer_store_dwordx4", vr(preg, 4), vL16, SRD_WS, soff, mods=m)

def dma_seq(srd, pitch, lds_base, glob, n, mod=None, start=None, w4=None):
    vofs = {896: vD896, 2688: vD2688, 3584: vD3584}[pitch]
    if start is None:
        I("s_mov_b32", sK, 0)
    elif start != "cont":
        I("s_mov_b32", sK, start)
    I("s_lshl_b32", sF, sLW, 10)
    I("s_add_u32", sF, sF, hx(lds_base) if isinstance(lds_base, int) else lds_base)
    if glob[1]:
        I("s_add_u32", sG, glob[0], hx(glob[1]))
    else:
        I("s_mov_b32", sG, glob[0])
    I("s_mov_b32", sCNT, n)
    lp = A.newlabel("Ldma")
    A.label(lp)
    if w4 is None:
        I("s_lshl_b32", sH_, sK, 12)
        I("s_add_u32", "m0", sH_, sF)
        I("s_mul_i32", sH_, sK, hx(32 * pitch))
    else:
        I("s_mov_b32", "m0", sF)
        I("s_add_u32", sF, sF, hx(4096))
        I("s_and_b32", sH_, sK, hx(0xfffe))
        I("s_add_u32", sH_, sH_, sK)
        I("s_mul_i32", sH_, sH_, hx(32 * pitch))
    I("s_add_u32", sH_, sH_, sG)
    I("buffer_load_dwordx4", vofs, srd, sH_, mods="offen lds")
    I("s_add_u32", sK, sK, 1)
    if mod:
        I("s_cmp_eq_u32", sK, mod)
        I("s_cmov_b32", sK, 0)
    I("s_sub_u32", sCNT, sCNT, 1)
    I("s_cmp_lg_u32", sCNT, 0)
    I("s_cbranch_scc1", lp)
    A.vm += n - 1
    return A.vm

def set_tr(base, dst=None, src=None):
    dst = dst or TRC
    src = src or TRL
    if isinstance(base, int):
        I("s_mov_b32", sA, hx(base))
        base = sA
    for b in range(2):
        for a in range(2):
            I("v_add_u32", v(dst[b][a]), base, v(src[b][a]))

def a_frag(dst, f, off, trc=None):
    trc = trc or TRC
    b, a = divmod(f, 2)
    I("ds_read_b64_tr_b16", vr(dst + 4 * f, 2), v(trc[b][a]), mods="offset:%d" % off)
    return I("ds_read_b64_tr_b16", vr(dst + 4 * f + 2, 2), v(trc[b][a]), mods="offset:%d" % (off + 1024))

def a_read(dst, off, trc=None):
    return [a_frag(dst, f, off, trc) for f in range(4)]

def m16(acc, areg, breg, zero):
    I("v_mfma_f32_16x16x32_bf16", vr(acc, 4), vr(areg, 4), vr(breg, 4), "0" if zero else vr(acc, 4))

def gemm(nk, nbuf, npre, aoff, breg, bl=None, bissue=None, zero=True, acc=ACC, areg=AREG, rd=None, fill=None, hook=None):
    if rd is None:
        rd = [a_read(areg + 16 * s, *aoff(s)) for s in range(npre)]
    for s in range(nk):
        if hook:
            hook(s)
        nxt = s + npre
        new = []
        A.wait(vm=bl[s] if bl is not None else None, lg=rd[s][3])
        for f in range(4):
            m16(acc + 4 * f, areg + 16 * (s % nbuf) + 4 * f, breg(s), zero and s == 0)
            if f == 0 and bissue:
                bissue(s)
            if nxt < nk:
                new.append(a_frag(areg + 16 * (nxt % nbuf), f, *aoff(nxt)))
            if fill:
                fill(s, f)
        if nxt < nk:
            rd.append(new)

def stats_reduce(a, b):
    I("v_permlane32_swap_b32", v(a), v(b))
    I("v_add_f32", v(a), v(a), v(b))
    I("v_mov_b32", v(b), v(a))
    I("v_permlane16_swap_b32", v(a), v(b))
    I("v_add_f32", v(a), v(a), v(b))
    I("v_mov_b32", v(b), v(a))
    I("v_permlane32_swap_b32", v(a), v(b))

def mean_var(s_sum, s_sq, mu, var):
    I("v_mul_f32", v(mu), fl(1.0 / 448), v(s_sum))
    I("v_mul_f32", v(var), fl(1.0 / 448), v(s_sq))
    I("v_fma_f32", v(var), "-" + v(mu), v(mu), v(var))
    I("v_max_f32", v(var), 0, v(var))

def rstd(dst, var):
    I("v_add_f32", v(dst), fl(1e-5), v(var))
    I("v_rsq_f32", v(dst), v(dst))

def unswap(p, nfr):
    I("s_mov_b64", "exec", sODD)
    for k in range(nfr):
        I("v_swap_b32", v(p + 4 * k), v(p + 4 * k + 2))
        I("v_swap_b32", v(p + 4 * k + 1), v(p + 4 * k + 3))
    I("s_mov_b64", "exec", -1)

def pack(dst, src, n):
    for i in range(n // 2):
        I("v_cvt_pk_bf16_f32", v(dst + i), v(src + 2 * i), v(src + 2 * i + 1))

def unpack(dst, src, n):
    for i in range(n // 2):
        I("v_lshlrev_b32", v(dst + 2 * i), 16, v(src + i))
        I("v_and_b32", v(dst + 2 * i + 1), hx(0xffff0000), v(src + i))

BC = "op_sel_hi:[1,0]"
def pk_mul_b(d, a, s):
    I("v_pk_mul_f32", vr(d, 2), vr(a, 2), vr(s, 2), mods="op_sel_hi:[1,0]")

GC0 = -2.0 * 0.7978845608028654 * 1.4426950408889634
GC1 = GC0 * 0.044715
def gelu_prep(r, k0, k1, ri):
    I("v_rcp_f32", v(ri), v(r))
    I("v_mul_f32", v(k1), v(r), v(r))
    I("v_mul_f32", v(k0), fl(GC0), v(r))
    I("v_mul_f32", v(k1), v(k1), v(r))
    I("v_mul_f32", v(k1), fl(GC1), v(k1))

def gelu(x, n, t, k0, k1, ri, dst, packed):
    if packed:
        P = range(0, n, 2)
        for i in P: I("v_pk_mul_f32", vr(t + i, 2), vr(x + i, 2), vr(x + i, 2))
        for i in P: I("v_pk_fma_f32", vr(t + i, 2), vr(t + i, 2), vr(k1, 2), vr(k0, 2), mods="op_sel_hi:[1,0,0]")
        for i in P: I("v_pk_mul_f32", vr(t + i, 2), vr(t + i, 2), vr(x + i, 2))
        for i in range(n): I("v_exp_f32", v(t + i), v(t + i))
        for i in P: I("v_pk_fma_f32", vr(t + i, 2), vr(t + i, 2), vr(ri, 2), vr(ri, 2), mods="op_sel_hi:[1,0,0]")
        for i in range(n): I("v_rcp_f32", v(t + i), v(t + i))
        for i in P: I("v_pk_mul_f32", vr(x + i, 2), vr(x + i, 2), vr(t + i, 2))
    else:
        for i in range(n): I("v_mul_f32", v(t + i), v(x + i), v(x + i))
        for i in range(n): I("v_fma_f32", v(t + i), v(t + i), v(k1), v(k0))
        for i in range(n): I("v_mul_f32", v(t + i), v(t + i), v(x + i))
        for i in range(n): I("v_exp_f32", v(t + i), v(t + i))
        for i in range(n): I("v_fma_f32", v(t + i), v(t + i), v(ri), v(ri))
        for i in range(n): I("v_rcp_f32", v(t + i), v(t + i))
        for i in range(n): I("v_mul_f32", v(x + i), v(x + i), v(t + i))
    pack(dst, x, n)

def stat_granule(p):
    a, b = TMP + 8, TMP + 10
    I("v_mov_b32", v(a), 0)
    I("v_mov_b32", v(b), 0)
    for i in range(8):
        I("v_dot2c_f32_bf16", v(a), v(p + i), v(ONES))
        I("v_dot2c_f32_bf16", v(b), v(p + i), v(p + i))
    I("v_mov_b32", v(TMP + 9), vTAG)
    I("v_mov_b32", v(TMP + 11), vTAG)
    stats_reduce(a, b)

def granule_store(m):
    I("s_mov_b64", "exec", hx(0xffff))
    r = I("buffer_store_dwordx4", vr(TMP + 8, 4), vL16, SRD_WS, sD, mods="offen" + (" " + m if m else ""))
    I("s_mov_b64", "exec", -1)
    return r

def stat_aux():
    I("v_cmp_gt_u32", "vcc", 3, vQ4)
    I("v_subrev_u32", v(vSPO), hx(256), vL16)
    I("v_cndmask_b32", v(vSPO), v(vSPO), vL16, "vcc")
    I("v_mov_b32", v(vSPW), 1.0)
    I("v_cndmask_b32", v(vSPW), 0, v(vSPW), "vcc")

def stat_poll_a(soff):
    I("buffer_load_dwordx4", vr(TMP + 4, 4), vL16, SRD_WS, soff, mods="offen sc1")
    I("buffer_load_dwordx4", vr(TMP + 8, 4), v(vSPO), SRD_WS, soff, mods="offen offset:1024 sc1")

def stat_poll(soff):
    lp, dn = A.newlabel("Lpoll"), A.newlabel("Lpd")
    I("s_mov_b32", sCNT, hx(40000))
    A.label(lp)
    A.wait_vm_all(force=True)
    I("v_min3_u32", v(TMP + 12), v(TMP + 5), v(TMP + 7), v(TMP + 9))
    I("v_max3_u32", v(TMP + 13), v(TMP + 5), v(TMP + 7), v(TMP + 9))
    I("v_min3_u32", v(TMP + 12), v(TMP + 12), v(TMP + 11), vTAG)
    I("v_max3_u32", v(TMP + 13), v(TMP + 13), v(TMP + 11), vTAG)
    I("v_cmp_ne_u32", "vcc", v(TMP + 12), v(TMP + 13))
    I("s_cbranch_vccz", dn)
    I("s_sub_u32", sCNT, sCNT, 1)
    I("s_cmp_eq_u32", sCNT, 0)
    I("s_cbranch_scc1", dn)
    stat_poll_a(soff)
    A.vm -= 2
    I("s_branch", lp)
    A.label(dn)

def stat_finish():
    I("v_fmac_f32", v(TMP + 4), v(TMP + 8), v(vSPW))
    I("v_fmac_f32", v(TMP + 6), v(TMP + 10), v(vSPW))
    stats_reduce(TMP + 4, TMP + 6)

def tile_off(dst, reg, stride, tl=sTL, extra=None):
    I("s_mul_i32", dst, tl, hx(stride))
    I("s_add_u32", dst, dst, sPAGE)
    if reg:
        I("s_add_u32", dst, dst, hx(reg))
    if extra:
        I("s_add_u32", dst, dst, extra)

def out_offs(reg, stride, freg, fstride, fsh):
    I("s_lshl_b32", sA, sJ, 11)
    tile_off(sC, reg, stride, extra=sA)
    I("s_lshl_b32", sA, sJ, fsh)
    tile_off(sD, freg, fstride, extra=sA)

def flag_poll_off(dst, n, freg, fstride, shift, tl=sTL):
    I("v_min_u32", v(dst), n - 1, vLANE)
    tile_off(sA, freg, fstride, tl)
    I("v_lshl_add_u32", v(dst), v(dst), shift, sA)

class BLoads:
    def __init__(self, n, soff, vaddr=None, breg=BREG):
        self.n, self.vaddr, self.breg, self.ids = n, vaddr, breg, {}
        for q in range(4):
            I("s_add_u32", "s%d" % (50 + q), soff, hx(4096 * q))
    def issue(self, i):
        if i >= self.n:
            return
        va = self.vaddr(i) if self.vaddr else vL16
        o = (1024 * i) & 4095
        self.ids[i] = I("buffer_load_dwordx4", vr(self.breg + 4 * i, 4), va, SRD_WS, "s%d" % (50 + i // 4),
                        mods="offen" + (" offset:%d" % o if o else "") + " sc1")
    def first(self):
        for i in range(OPT["npre"]):
            self.issue(i)
    def more(self, s):
        self.issue(s + OPT["npre"])
    def last_step(self):
        return self.n - OPT["npre"]

def only(grp, fn):
    l = A.newlabel("Lo")
    I("s_cmp_lt_u32" if grp == "B" else "s_cmp_ge_u32", sW, 4)
    I("s_cbranch_scc1", l)
    sv = (A.vm, A.vm_done, A.lg, A.lg_done)
    fn()
    A.vm, A.vm_done, A.lg, A.lg_done = sv
    A.label(l)

def main_only(fn):
    l = A.newlabel("Lm")
    I("s_cmp_ge_u32", sLI, 28)
    I("s_cbranch_scc1", l)
    sv = (A.vm, A.vm_done, A.lg, A.lg_done)
    fn()
    A.vm, A.vm_done, A.lg, A.lg_done = sv
    A.label(l)

vJUNK = v(254)
def touch1(srd, vofs, soff, mods=""):
    return I("buffer_load_dword", vJUNK, vofs, srd, soff, mods="offen" + (" " + mods if mods else ""))

def grp_touch(srd, base, stride_sh, count):
    I("s_lshl_b32", sA, sLW, 5)
    I("s_add_u32", sA, sA, sLI)
    I("s_lshl_b32", sA, sA, 6 + stride_sh)
    I("v_lshlrev_b32", v(TMP + 12), stride_sh, vLANE)
    if base:
        I("s_add_u32", sA, sA, hx(base))
    for i in range(count):
        touch1(srd, v(TMP + 12), sA)
        if i + 1 < count:
            I("s_add_u32", sA, sA, hx(128 * 64 << stride_sh))

def tr_lane(dst, qadd):
    t0, t1, t2, t3 = TMP, TMP + 1, TMP + 2, TMP + 3
    if qadd:
        I("v_add_u32", v(t3), qadd, vQ4)
        q = v(t3)
    else:
        q = vQ4
    I("v_bfe_u32", v(t0), vLANE, 2, 2)
    I("v_and_b32", v(t1), 1, q)
    I("v_lshl_add_u32", v(t2), v(t1), 2, v(t0))
    I("v_lshrrev_b32", v(t3), 1, q)
    I("v_lshl_add_u32", v(t2), v(t3), 4, v(t2))
    I("v_lshrrev_b32", v(t0), 1, v(t0))
    I("v_lshl_or_b32", v(t0), v(t1), 2, v(t0))
    I("v_and_b32", v(t1), 3, vLANE)
    I("v_xor_b32", v(t0), v(t0), v(t1))
    I("v_lshlrev_b32", v(t0), 4, v(t0))
    I("v_lshl_add_u32", v(t0), v(t2), 7, v(t0))
    I("v_and_b32", v(t1), 1, v(t1))
    I("v_lshl_or_b32", v(dst[0][0]), v(t1), 3, v(t0))
    I("v_xor_b32", v(dst[0][1]), 8, v(dst[0][0]))
    I("v_xor_b32", v(dst[1][0]), 64, v(dst[0][0]))
    I("v_xor_b32", v(dst[1][1]), 64, v(dst[0][1]))

SRDS = {4: (36, 1835008), 8: (38, 448 * 1344 * 2), 60: (56, WS_SIZE), 12: (40, 448 * 448 * 2), 16: (44, 448 * 448 * 2),
        20: (46, 448 * 448 * 2), 24: (48, 448 * 1792 * 2), 28: (50, 448 * 1792 * 2), 32: (52, 1835008)}
def srds(which):
    for d in which:
        src, n = SRDS[d]
        I("s_mov_b32", "s%d" % d, "s%d" % src)
        I("s_and_b32", "s%d" % (d + 1), "s%d" % (src + 1), hx(0xffff))
        I("s_mov_b32", "s%d" % (d + 2), hx(n))
        I("s_mov_b32", "s%d" % (d + 3), hx(0x20000))

def prologue():
    I("s_cmp_ge_u32", "s2", hx(256))
    I("s_cbranch_scc1", "L_end")
    if OPT["stamp"]:
        I("v_mov_b32", vSTAMP, 0)
        I("s_memrealtime", sST)
        A.wait_lg_all(force=True)
        I("v_writelane_b32", vSTAMP, "s98", 0)
        stamp("start")
    I("s_load_dwordx16", "s[36:51]", "s[0:1]", 0)
    I("s_load_dwordx4", "s[52:55]", "s[0:1]", 64)
    I("s_load_dwordx2", "s[56:57]", "s[0:1]", 80)
    if HOLD:
        I("s_memrealtime", sST)
        A.wait_lg_all(force=True)
        I("s_mov_b32", "s1", "s98")
    I("v_lshrrev_b32", v(TMP), 6, "v0")
    I("v_and_b32", vLANE, 63, "v0")
    I("v_readfirstlane_b32", sW, v(TMP))
    I("s_and_b32", sX, "s2", 7)
    I("s_lshr_b32", sLI, "s2", 3)
    I("s_mul_i32", sTG, sLI, 37)
    I("s_lshr_b32", sTG, sTG, 8)
    I("s_mul_i32", sROT, sTG, 7)
    I("s_sub_u32", sJ, sLI, sROT)
    I("s_lshr_b32", sROT, sROT, 1)
    I("s_lshl_b32", sJ128, sJ, 7)
    I("s_and_b32", sLW, sW, 3)
    I("s_lshl_b32", sTL, sTG, 2)
    I("s_add_u32", sTL, sTL, sLW)
    I("s_lshl_b32", sPAGE, sX, PSH)
    I("v_lshrrev_b32", vQ4, 4, vLANE)

def dma_lane_consts(for_a=False):
    t0, t1, t2 = TMP, TMP + 1, TMP + 2
    I("v_bfe_u32", v(t0), vLANE, 3, 2)
    I("v_lshrrev_b32", v(t1), 5, vLANE)
    I("v_lshl_add_u32", v(t2), v(t1), 3, v(t0))
    I("s_and_b32", sA, sLW, 1)
    I("s_lshl_b32", sA, sA, 2)
    I("s_and_b32", sB, sLW, 2)
    I("s_lshl_b32", sB, sB, 3)
    I("s_add_u32", sA, sA, sB)
    I("v_add_u32", v(t2), sA, v(t2))
    I("v_lshrrev_b32", v(t0), 1, v(t0))
    I("v_lshl_or_b32", v(t0), v(t1), 2, v(t0))
    I("v_and_b32", v(t1), 7, vLANE)
    I("v_xor_b32", v(t0), v(t0), v(t1))
    I("v_lshlrev_b32", v(t0), 4, v(t0))
    for reg, pitch in ((vD896, 896),) + (((vD2688, 2688),) if (PA == 1 and not for_a) else ()):
        I("v_mul_u32_u24", reg, hx(pitch), v(t2))
        I("v_add_u32", reg, reg, v(t0))
    I("v_and_b32", v(t0), 16, vLANE)
    I("v_lshrrev_b32", v(t0), 2, v(t0))
    I("v_xor_b32", v(t0), v(t0), v(t1))
    I("v_lshlrev_b32", v(t0), 4, v(t0))
    for reg, pitch in ((vD4, 896),) + (() if for_a else ((vD3584, 3584),) if PA == 1 else ((vD2688, 2688), (vD3584, 3584))):
        I("v_mul_u32_u24", reg, hx(pitch), v(t2))
        I("v_add_u32", reg, reg, v(t0))

def late_consts1():
    I("v_and_b32", vTOK, 15, vLANE)
    I("v_lshlrev_b32", vL16, 4, vLANE)
    I("s_mov_b32", "s82", hx(0xffff0000))
    I("s_mov_b32", "s83", hx(0xffff0000))
    I("s_mov_b32", sMODE, 0)
    for i in range(4):
        I("v_mov_b32", v(ONES + i), hx(0x3f803f80))

def late_consts2():
    I("s_lshr_b32", sA, sTG, 1)
    I("s_mul_i32", sJP, sA, 14)
    I("s_sub_u32", sJP, sLI, sJP)
    tr_lane(TRL, 0)

def late_consts():
    late_consts1()
    late_consts2()
    for i in range(36, 44):
        I("v_mov_b32", v(i), 0)

def epoch_load():
    l = A.newlabel("Lel")
    I("s_add_u32", "s58", "s56", hx(OFF_EPOCH))
    I("s_addc_u32", "s59", "s57", 0)
    I("s_cmp_lg_u32", sW, 4)
    I("s_cbranch_scc1", l)
    I("s_load_dword", sTAG, "s[58:59]", 0)
    A.label(l)

def tag_publish():
    l = A.newlabel("Lpx")
    I("s_getreg_b32", sXCC, "hwreg(HW_REG_XCC_ID)")
    I("s_and_b32", sXCC, sXCC, 15)
    I("s_cmp_lg_u32", sW, 4)
    I("s_cbranch_scc1", l)
    I("s_lshl_b32", sC, sLI, 7)
    I("s_add_u32", sC, sC, sPAGE)
    I("s_add_u32", sC, sC, hx(R_XCC))
    I("v_mov_b32", v(TMP + 12), hx(L_TAG))
    I("s_waitcnt", "lgkmcnt(0)")
    I("s_mul_i32", sTAG, sTAG, hx(1664525))
    I("s_add_u32", sTAG, sTAG, hx(1013904223))
    I("v_mov_b32", vTAG, sTAG)
    I("s_add_u32", sA, sTAG, sXCC)
    I("v_mov_b32", v(TMP + 13), sA)
    I("ds_write_b32", v(TMP + 12), vTAG)
    A.lg -= 1
    I("s_mov_b64", "exec", 1)
    I("buffer_store_dword", v(TMP + 13), "off", SRD_WS, sC, mods="sc1")
    A.vm -= 1
    I("s_mov_b64", "exec", -1)
    I("s_waitcnt", "lgkmcnt(0)")
    A.label(l)

def tag_read_issue():
    I("v_mov_b32", vTAG, hx(L_TAG))
    return I("ds_read_b32", vTAG, vTAG)

def tag_read_finish(r):
    A.wait(lg=r)
    I("v_readfirstlane_b32", sTAG, vTAG)

def phase_a_compute():
    A.cmt("---- phase A compute")
    t0, t1, t2, t3 = TMP + 4, TMP + 5, TMP + 6, TMP + 7
    I("v_lshrrev_b32", v(t0), 3, vLANE)
    I("v_and_b32", v(t2), 7, vLANE)
    I("v_xor_b32", v(t1), vQ4, v(t2))
    I("v_mul_u32_u24", v(t0), hx(896), v(t0))
    I("v_lshl_add_u32", v(t2), v(t1), 4, v(t0))
    I("v_xor_b32", v(t1), 4, v(t1))
    I("v_lshl_add_u32", v(t3), v(t1), 4, v(t0))
    I("s_lshl_b32", sA, sX, 4)
    I("s_add_u32", sA, sA, sTL)
    I("s_mul_i32", sB, sA, hx(16 * 896))
    I("s_mul_i32", sF, sLW, hx(TB))
    I("s_add_u32", sF, sF, hx(L_XIMG))
    I("s_mov_b32", sK, sJ)
    I("s_mov_b32", sCNT, 7)
    A.wait_lg_all(force=True)
    stamp("kernarg")
    srds([4])
    A.label("L_xdma")
    I("s_lshl_b32", sA, sK, 11)
    I("s_add_u32", "m0", sA, sF)
    I("s_lshl_b32", sA, sK, 7)
    I("s_add_u32", sA, sA, sB)
    I("s_add_u32", sE, sA, hx(8 * 896 - 1024))
    I("buffer_load_dwordx4", v(t2), SRD_X, sA, mods="offen lds")
    I("buffer_load_dwordx4", v(t3), SRD_X, sE, mods="offen offset:1024 lds")
    I("s_add_u32", sK, sK, 1)
    I("s_cmp_eq_u32", sK, 7)
    I("s_cmov_b32", sK, 0)
    I("s_sub_u32", sCNT, sCNT, 1)
    I("s_cmp_lg_u32", sCNT, 0)
    I("s_cbranch_scc1", "L_xdma")
    I("v_mov_b32", v(ACC), 0)
    I("v_lshlrev_b32", v(ACC + 1), 2, vLANE)
    I("ds_write_b32", v(ACC + 1), v(ACC), mods="offset:%d" % 0) if False else None
    I("v_add_u32", v(ACC + 1), hx(L_CNT), v(ACC + 1))
    I("ds_write_b32", v(ACC + 1), v(ACC))
    I("v_add_u32", v(ACC + 1), hx(L_CS3 - L_CNT), v(ACC + 1))
    I("ds_write_b32", v(ACC + 1), v(ACC))
    I("ds_write_b32", v(ACC + 1), v(ACC), mods="offset:256")
    A.wait_lg_all()
    barrier()
    srds([60])
    late_consts1()
    XB, AR, CS = 64, 176, 208
    vB, vT = 35, 43
    xa = [208, 209, 210, 211]
    I("v_lshrrev_b32", v(t0), 1, vTOK)
    I("v_xor_b32", v(t1), v(t0), vQ4)
    I("v_lshlrev_b32", v(t1), 4, v(t1))
    I("v_lshl_add_u32", v(t1), vTOK, 7, v(t1))
    I("s_lshl_b32", sA, sJ, 11)
    I("s_add_u32", sA, sA, sF)
    I("v_add_u32", v(212), sA, v(t1))
    I("v_xor_b32", v(213), 64, v(212))
    I("v_lshrrev_b32", v(t1), 5, vLANE)
    I("v_xor_b32", v(t1), v(t1), v(t0))
    I("v_lshlrev_b32", v(t1), 4, v(t1))
    I("v_lshl_add_u32", v(t1), vTOK, 7, v(t1))
    I("v_and_b32", v(t2), 1, vQ4)
    I("v_mul_u32_u24", v(t2), hx(TB), v(t2))
    I("s_and_b32", sA, sLW, 2)
    I("s_mul_i32", sA, sA, hx(TB))
    I("s_add_u32", sA, sA, hx(L_XIMG))
    I("v_add3_u32", v(xa[0]), v(t1), v(t2), sA)
    for q in range(1, 4):
        I("v_xor_b32", v(xa[q]), hx(32 * q), v(xa[0]))
    tr32_lane([vT, t3])
    I("s_and_b32", sA, sLW, 1)
    I("s_lshl_b32", sA, sA, 6)
    I("v_xor_b32", v(vT), sA, v(vT))
    bf_lane(vB)
    cnt_setup([TMP + 13, TMP + 12, TMP + 11])
    vCA, vSW_, vSR_ = 13, 14, TMP + 10
    I("v_lshrrev_b32", v(vCA), 5, vLANE)
    I("s_lshl_b32", sA, sA, 1)
    I("s_add_u32", sA, sA, hx(L_CSA))
    I("v_lshl_add_u32", v(vCA), v(vCA), 5, sA)
    I("s_lshl_b32", sA, sLW, 8)
    I("s_add_u32", sA, sA, hx(L_STA))
    I("v_lshl_add_u32", v(vSW_), vLANE, 2, sA)
    I("s_and_b32", sA, sLW, 2)
    I("s_lshl_b32", sA, sA, 8)
    I("s_add_u32", sA, sA, hx(L_STA))
    I("v_and_b32", v(vSR_), 31, vLANE)
    I("v_lshl_add_u32", v(vSR_), v(vSR_), 2, sA)
    I("s_lshl_b32", sB, sJ, 1)
    I("s_and_b32", sA, sLW, 1)
    I("s_add_u32", sB, sB, sA)
    I("s_and_b32", sE, sTL, hx(0xfe))
    I("s_lshl_b32", sA, sB, 10)
    tile_off(sC, 0, TB, tl=sE, extra=sA)
    I("s_lshl_b32", sA, sB, 7)
    tile_off(sD, R_FQKV, 1024, tl=sE, extra=sA)
    I("s_lshl_b32", sA, sB, 2)
    tile_off(sD2, R_FQ, 64, tl=sE, extra=sA)
    HB = [slot(0), slot(1), slot(2), slot(3), slot(4), slot(0)]
    TA = [11, 12]
    for h in range(2):
        I("v_add_u32", v(TA[h]), hx(HB[h]), v(vT))
    stamp("setup_done")
    A.wait_vm_all()
    arrive(2)
    I("ds_read_b128", vr(HP, 4), v(212))
    I("ds_read_b128", vr(HP + 4, 4), v(213))
    spin(2, 4)
    stamp("x_dma")
    s_sum, s_sq = TMP + 2, TMP + 3
    I("v_mov_b32", v(s_sum), 0)
    I("v_mov_b32", v(s_sq), 0)
    unswap(HP, 2)
    def xpath(order):
        xl = {}
        def rdx(k):
            xl[k] = I("ds_read_b128", vr(XB + 4 * k, 4), v(xa[k & 3]), mods="offset:%d" % (2048 * (k >> 2)))
        for k in order[:14]:
            rdx(k)
        for n, k in enumerate(order[:14]):
            A.wait(lg=xl[k])
            rdx(order[14 + n])
            for i in range(4):
                I("v_dot2c_f32_bf16", v(s_sum), v(XB + 4 * k + i), v(ONES))
                I("v_dot2c_f32_bf16", v(s_sq), v(XB + 4 * k + i), v(XB + 4 * k + i))
    l1, l2 = A.newlabel("Lxs"), A.newlabel("Lxs")
    I("s_bitcmp1_b32", sW, 0)
    I("s_cbranch_scc1", l1)
    sv = (A.lg, A.lg_done)
    xpath(list(range(28)))
    I("s_branch", l2)
    A.label(l1)
    A.lg, A.lg_done = sv
    xpath(list(range(14, 28)) + list(range(14)))
    A.label(l2)
    I("v_permlane32_swap_b32", v(s_sum), v(s_sq))
    I("v_add_f32", v(s_sum), v(s_sum), v(s_sq))
    I("ds_write_b32", v(vSW_), v(s_sum))
    A.wait_lg_all()
    stamp("stats_done")
    barrier()
    stamp("strip0_landed")
    D, NR = 6, 8
    rd = {}
    def ard(n):
        d = AR + 4 * (n % NR)
        ad = v(TA[(n // 14) & 1])
        I("ds_read_b64_tr_b16", vr(d, 2), ad, mods="offset:%d" % (2048 * (n % 14)))
        rd[n] = I("ds_read_b64_tr_b16", vr(d + 2, 2), ad, mods="offset:%d" % (2048 * (n % 14) + 1024))
    I("ds_read2_b32", vr(TMP + 4, 2), v(vSR_), mods="offset0:0 offset1:32")
    I("ds_read2_b32", vr(TMP + 6, 2), v(vSR_), mods="offset0:64 offset1:96")
    tg_ = tag_read_issue()
    for n in range(D):
        ard(n)
    side = []
    def rec(fn):
        global I
        old = I
        out = []
        def J(*a, **k):
            out.append(lambda a=a, k=k: old(*a, **k))
        I = J
        fn()
        I = old
        return out
    def lnfin():
        I("v_readfirstlane_b32", sTAG, vTAG)
        I("v_add_f32", v(TMP + 4), v(TMP + 4), v(TMP + 6))
        I("v_add_f32", v(TMP + 5), v(TMP + 5), v(TMP + 7))
        mean_var(TMP + 4, TMP + 5, vMU, TMP + 6)
        rstd(vRH, TMP + 6)
        I("v_sub_f32", v(vMU), 0, v(vMU))
        I("v_mul_f32", v(TMP + 8), fl(1.4426950408889634 / 28 ** 0.5), v(vRH))
    st = {}
    def cs_read(i):
        r = None
        for g in range(4):
            r = I("ds_read_b128", vr(CS + 4 * g, 4), v(vCA), mods="offset:%d" % (256 * i + 64 * (g >> 1) + 16 * (g & 1)))
        return r
    def epi_pre():
        for q in range(16):
            I("v_mul_f32", v(CS + q), v(CS + q), v(vMU))
    def epi_add(ac):
        for q in range(16):
            I("v_add_f32", v(CS + q), v(CS + q), v(ac + q))
    def epi_valu(i):
        for q in range(16):
            I("v_mul_f32", v(CS + q), v(CS + q), v(vRH if i < 2 else TMP + 8))
        pack(TMP, CS, 16)
    def epi_store(i, m="sc1"):
        I("s_add_u32", sA, sC, hx((R_K, R_V, R_Q)[i]))
        for u in range(2):
            st[i] = I("buffer_store_dwordx4", vr(TMP + 4 * u, 4), v(vB), SRD_WS, sA,
                      mods="offen" + (" offset:512" if u else "") + (" " + m if m else ""))
        return st[i]
    FK = OPT.get("fk2", 62)
    for n in range(84):
        i, k = divmod(n, 28)
        if k == 28 - D and i < 2:
            A.wait_lg_all()
            barrier()
            stamp("strip%d_landed" % (i + 1))
            csr = cs_read(i)
            if i == 1 and OPT["local"]:
                I("ds_read_b32", v(TMP + 9), v(CNR[0]), mods="offset:%d" % (65536 + L_MODE - L_CNT)) if False else None
                I("v_mov_b32", v(TMP + 9), hx(L_MODE))
                I("ds_read_b32", v(TMP + 9), v(TMP + 9))
        if n % 14 == 14 - D and n // 14 + 2 < 6:
            I("v_add_u32", v(TA[(n // 14) & 1]), hx(HB[n // 14 + 2]), v(vT))
        if n == 1:
            side += rec(lnfin)
        if k == 24 and i < 2:
            A.wait(lg=csr)
            side += rec(epi_pre)
        if k < 2 and i > 0:
            assert not side
            epi_add((ACC, ACC2)[k])
        if k == 2 and i > 0:
            side += rec(lambda: epi_valu(i - 1)) + [lambda i=i: (epi_store(i - 1), stamp("stored%d" % (i - 1)))]
        if n == FK:
            A.wait(vm=st[0])
            flag_store(sD)
            stamp("flag0")
        if n == 78:
            spin(3, 4)
            csr = cs_read(2)
        if n == 80:
            A.wait(lg=csr)
            side += rec(epi_pre)
        if n % 2 == 0:
            A.wait(lg=rd[n + 1])
        m32((ACC, ACC2)[n & 1], AR + 4 * (n % NR), XB + 4 * k, k < 2)
        if n + D < 84:
            ard(n + D)
        for _ in range(4):
            if side:
                side.pop(0)()
    assert not side
    if OPT["local"]:
        I("v_readfirstlane_b32", sMODE, v(TMP + 9))
    I("s_add_u32", sD, sD, 4)
    epi_add(ACC)
    epi_add(ACC2)
    epi_valu(2)
    moded(lambda m: epi_store(2, m))
    stamp("q_stored")
    A.wait(vm=st[1])
    flag_store(sD)
    stamp("flag1")
    A.wait(vm=st[2])
    moded(lambda m: flag_store(sD2, m))
    stamp("q_flag")
    srds([24, 28, 32])
    late_consts2()
    att_ids()
    att_consts()
    c_setup()
    e_table(True)
    stamp("setup2")

def phase_a_compute1():
    A.cmt("---- phase A compute")
    t0, t1, t2, t3 = TMP + 4, TMP + 5, TMP + 6, TMP + 7
    I("v_lshrrev_b32", v(t0), 3, vLANE)
    I("v_and_b32", v(t2), 7, vLANE)
    I("v_xor_b32", v(t1), vQ4, v(t2))
    I("v_mul_u32_u24", v(t0), hx(896), v(t0))
    I("v_lshl_add_u32", v(t2), v(t1), 4, v(t0))
    I("v_xor_b32", v(t1), 4, v(t1))
    I("v_lshl_add_u32", v(t3), v(t1), 4, v(t0))
    I("s_lshl_b32", sA, sX, 4)
    I("s_add_u32", sA, sA, sTL)
    I("s_mul_i32", sB, sA, hx(16 * 896))
    I("s_mul_i32", sF, sLW, hx(TB))
    I("s_add_u32", sF, sF, hx(L_XIMG))
    I("s_mov_b32", sK, sJ)
    I("s_mov_b32", sCNT, 7)
    A.wait_lg_all(force=True)
    stamp("kernarg")
    srds([4])
    A.label("L_xdma")
    I("s_lshl_b32", sA, sK, 11)
    I("s_add_u32", "m0", sA, sF)
    I("s_lshl_b32", sA, sK, 7)
    I("s_add_u32", sA, sA, sB)
    I("s_add_u32", sE, sA, hx(8 * 896 - 1024))
    I("buffer_load_dwordx4", v(t2), SRD_X, sA, mods="offen lds")
    I("buffer_load_dwordx4", v(t3), SRD_X, sE, mods="offen offset:1024 lds")
    I("s_add_u32", sK, sK, 1)
    I("s_cmp_eq_u32", sK, 7)
    I("s_cmov_b32", sK, 0)
    I("s_sub_u32", sCNT, sCNT, 1)
    I("s_cmp_lg_u32", sCNT, 0)
    I("s_cbranch_scc1", "L_xdma")
    I("v_mov_b32", v(ACC), 0)
    I("v_lshlrev_b32", v(ACC + 1), 2, vLANE)
    I("ds_write_b32", v(ACC + 1), v(ACC), mods="offset:%d" % 0) if False else None
    I("v_add_u32", v(ACC + 1), hx(L_CNT), v(ACC + 1))
    I("ds_write_b32", v(ACC + 1), v(ACC))
    I("v_add_u32", v(ACC + 1), hx(L_CS3 - L_CNT), v(ACC + 1))
    I("ds_write_b32", v(ACC + 1), v(ACC))
    I("ds_write_b32", v(ACC + 1), v(ACC), mods="offset:256")
    barrier()
    srds([60, 24, 28, 32])
    late_consts1()
    late_consts2()
    I("v_lshrrev_b32", v(t0), 1, vTOK)
    I("v_xor_b32", v(t0), v(t0), vQ4)
    I("v_lshlrev_b32", v(t0), 4, v(t0))
    I("v_lshl_add_u32", v(t0), vTOK, 7, v(t0))
    I("v_add_u32", v(t0), sF, v(t0))
    I("v_xor_b32", v(t1), 64, v(t0))
    I("s_lshl_b32", sA, sJ, 11)
    I("v_add_u32", v(t2), sA, v(t0))
    I("v_add_u32", v(t3), sA, v(t1))
    c_setup()
    stamp("setup_done")
    A.wait_vm_all()
    stamp("x_dma")
    xl = [I("ds_read_b128", vr(BREG + 4 * s, 4), v(t1 if s & 1 else t0), mods="offset:%d" % (2048 * (s >> 1))) for s in range(14)]
    I("ds_read_b128", vr(HP, 4), v(t2))
    xr = I("ds_read_b128", vr(HP + 4, 4), v(t3))
    s_sum, s_sq = TMP + 4, TMP + 5
    s_sum, s_sq = TMP + 2, TMP + 3
    I("v_mov_b32", v(s_sum), 0)
    I("v_mov_b32", v(s_sq), 0)
    for s in range(14):
        A.wait(lg=xl[s])
        for i in range(4):
            I("v_dot2c_f32_bf16", v(s_sum), v(BREG + 4 * s + i), v(ONES))
            I("v_dot2c_f32_bf16", v(s_sq), v(BREG + 4 * s + i), v(BREG + 4 * s + i))
    stamp("x_landed")
    stats_reduce(s_sum, s_sq)
    mu, var, r = TMP + 6, TMP + 7, TMP + 8
    mean_var(s_sum, s_sq, mu, var)
    rstd(r, var)
    I("v_mul_f32", v(mu), "-" + v(mu), v(r), mods="") if False else I("v_mul_f32", v(mu), v(mu), v(r))
    I("v_sub_f32", v(mu), 0, v(mu))
    for i in range(56):
        lo = TMP + 10 + 2 * (i & 1)
        I("v_lshlrev_b32", v(lo), 16, v(BREG + i))
        I("v_and_b32", v(lo + 1), hx(0xffff0000), v(BREG + i))
        I("v_pk_fma_f32", vr(lo, 2), vr(lo, 2), vr(r, 2), vr(mu, 2), mods="op_sel_hi:[1,0,0]")
        if i:
            p = TMP + 10 + 2 * ((i - 1) & 1)
            I("v_cvt_pk_bf16_f32", v(BREG + i - 1), v(p), v(p + 1))
    I("v_cvt_pk_bf16_f32", v(BREG + 55), v(TMP + 12), v(TMP + 13))
    A.wait(lg=xr)
    unswap(HP, 2)
    stamp("ln_done")
    TR2 = [[120, 121], [122, 123]]
    pend = [None]

    def strip(i):
        if i == 0:
            set_tr(slot(0))
            aoff = lambda s: (4096 * s, TRC)
        else:
            s1, s2 = ((2, 3), (4, 0))[i - 1]
            I("s_mov_b32", sB, hx(slot(s1)))
            I("s_mov_b32", sE, hx(slot(s2)))
            I("s_bitcmp1_b32", sTG, 0)
            I("s_cselect_b32", sF, sE, sB)
            I("s_cselect_b32", sE, sB, sE)
            set_tr(sF)
            set_tr(sE, dst=TR2)
            aoff = lambda s: (4096 * (s % 7), TRC if s < 7 else TR2)
        if i == 2 and OPT["local"]:
            I("v_mov_b32", v(TMP + 9), hx(L_MODE))
        barrier()
        stamp("strip%d_landed" % i)
        if i == 0:
            tg_ = tag_read_issue()
        if i == 2 and OPT["local"]:
            I("ds_read_b32", v(TMP + 9), v(TMP + 9))
        def hook(s):
            if s == OPT["fk"] and pend[0] is not None:
                A.wait(vm=pend[0])
                flag_store(sD)
                stamp("flag%d" % (i - 1))
        gemm(14, 4, 2, aoff, lambda s: BREG + 4 * s, hook=hook)
        if i == 0:
            tag_read_finish(tg_)
        if i < 2:
            out_offs((R_K, R_V)[i], TB, R_FQKV + 4 * i, 1024, 7)
        else:
            out_offs(R_Q, TB, R_FQ, 128, 2)
            if OPT["local"]:
                I("v_readfirstlane_b32", sMODE, v(TMP + 9))
            I("v_mov_b32", v(TMP + 8), fl(1.4426950408889634 / 28 ** 0.5))
            for k in range(0, 16, 2):
                pk_mul_b(ACC + k, ACC + k, TMP + 8)
        pack(TMP, ACC, 16)
        unswap(TMP, 2)
        if i < 2:
            frag_store(TMP, sC)
            pend[0] = frag_store(TMP + 4, sC, 1024)
        else:
            pend[0] = store_out(TMP)
    for i in range(3):
        strip(i)
    stamp("q_stored")
    att_ids()
    e_table(True)
    ack_flag(pend[0], "q_flag")
    att_consts()
    stamp("setup2")

def half_bases(col):
    I("s_bitcmp1_b32", sTG, 0)
    I("s_cselect_b32", sB, hx(224 * 2688), 0)
    I("s_cselect_b32", sE, 0, hx(224 * 2688))
    I("s_add_u32", sB, sB, sJ128)
    I("s_add_u32", sE, sE, sJ128)

def phase_a_loader1():
    A.cmt("---- phase A loader")
    dma_lane_consts()
    half_bases(0)
    A.wait_lg_all(force=True)
    epoch_load()
    srds([8, 60, 4, 12, 16, 20, 24, 28, 32])
    late_consts()
    barrier()
    dma_seq(SRD_WQKV, 2688, slot(0), (sJ128, 896), 4, mod=14, start=sROT)
    tag_publish()
    d0 = dma_seq(SRD_WQKV, 2688, slot(0), (sJ128, 896), 10, mod=14, start="cont")
    dma_seq(SRD_WQKV, 2688, slot(2), (sB, 1792), 7)
    A.wait(vm=d0)
    barrier()
    tag_read_finish(tag_read_issue())
    mode_issue()
    d1 = dma_seq(SRD_WQKV, 2688, slot(3), (sE, 1792), 7)
    dma_seq(SRD_WQKV, 2688, slot(4), (sB, 0), 7)
    A.wait(vm=d1)
    barrier()
    d2 = dma_seq(SRD_WQKV, 2688, slot(0), (sE, 0), 7)
    mode_check()
    att_ids()
    att_consts_b()
    kv_poll_off(TMP + 4, 0)
    A.wait(vm=d2)
    barrier()
    dma_seq(SRD_WO, 896, slot(3), (sJ128, 0), 7)

def colsum_a(i, bases):
    if OPT.get("nocs"):
        return
    t0, t1 = TMP, TMP + 1
    I("v_add_u32", v(t0), hx(bases[0]), v(vCL))
    I("v_add_u32", v(t1), hx(bases[1]), v(vCL))
    rd = []
    for s_ in range(14):
        ad = v(t0 if s_ < 7 else t1)
        I("ds_read_b64_tr_b16", vr(AREG + 4 * s_, 2), ad, mods="offset:%d" % (4096 * (s_ % 7)))
        rd.append(I("ds_read_b64_tr_b16", vr(AREG + 4 * s_ + 2, 2), ad, mods="offset:%d" % (4096 * (s_ % 7) + 1024)))
    A.wait_lg_all()
    for s_ in range(14):
        m16(ACC, AREG + 4 * s_, ONES, s_ == 0)
    I("s_mov_b32", "exec_lo", hx(0x10001))
    I("s_mov_b32", "exec_hi", hx(0x10001))
    I("ds_write_b128", v(vCW), vr(ACC, 4), mods="offset:%d" % (256 * i))
    I("s_mov_b64", "exec", -1)
    A.wait_lg_all()

vCL, vCW = 20, 21
def phase_a_loader():
    A.cmt("---- phase A loader")
    dma_lane_consts()
    A.wait_lg_all(force=True)
    epoch_load()
    srds([8, 60])
    barrier()
    dma_seq(SRD_WQKV, 2688, slot(0), (sJ128, 896), 4, mod=14, start=sROT)
    tag_publish()
    d0 = dma_seq(SRD_WQKV, 2688, slot(0), (sJ128, 896), 10, mod=14, start="cont")
    dma_seq(SRD_WQKV, 2688, slot(2), (sJ128, 1792), 7)
    late_consts1()
    t0, t1, t2 = TMP, TMP + 1, TMP + 2
    I("v_bfe_u32", v(t0), vLANE, 2, 2)
    I("v_and_b32", v(t1), 1, vQ4)
    I("v_lshl_add_u32", v(t1), v(t1), 2, v(t0))
    I("v_lshrrev_b32", v(t2), 1, vQ4)
    I("v_lshl_add_u32", v(t1), v(t2), 4, v(t1))
    I("v_and_b32", v(t0), 2, v(t0))
    I("v_lshlrev_b32", v(t0), 5, v(t0))
    I("s_lshl_b32", sA, sLW, 5)
    I("v_xor_b32", v(t0), sA, v(t0))
    I("v_lshl_add_u32", v(t0), v(t1), 7, v(t0))
    I("v_and_b32", v(t1), 3, vLANE)
    I("v_lshl_add_u32", v(vCL), v(t1), 3, v(t0))
    I("s_lshl_b32", sA, sLW, 6)
    I("s_add_u32", sA, sA, hx(L_CSA))
    I("v_lshl_add_u32", v(vCW), vQ4, 4, sA)
    cnt_setup([23, 24, 25])
    A.wait(vm=d0)
    stamp("b_k")
    barrier()
    d1 = dma_seq(SRD_WQKV, 2688, slot(3), (sJ128, 1792 + 224 * 2688), 7)
    tag_read_finish(tag_read_issue())
    mode_issue()
    dma_seq(SRD_WQKV, 2688, slot(4), (sJ128, 0), 7)
    I("s_setprio", 2)
    colsum_a(0, (slot(0), slot(1)))
    A.wait(vm=d1)
    stamp("b_v")
    barrier()
    d2 = dma_seq(SRD_WQKV, 2688, slot(0), (sJ128, 224 * 2688), 7)
    colsum_a(1, (slot(2), slot(3)))
    A.wait(vm=d2)
    mode_check()
    stamp("b_q")
    barrier()
    colsum_a(2, (slot(4), slot(0)))
    arrive(3)
    I("s_setprio", 0)
    srds([12, 16, 20, 24, 28, 32])
    dma_seq(SRD_WO, 896, slot(3), (sJ128, 0), 7)
    late_consts2()
    I("v_mov_b32", v(43), 0)
    att_ids()
    att_consts_b()
    kv_poll_off(TMP + 4, 0)

L_KIMG, L_VIMG = slot(1), slot(2)
def att_ids():
    I("s_and_b32", sHEAD, sLI, 15)
    I("s_lshr_b32", sA, sLI, 4)
    I("s_lshl_b32", sA, sA, 3)
    I("s_lshl_b32", sTQ0, sX, 4)
    I("s_add_u32", sTQ0, sTQ0, sA)
    I("s_mul_i32", sC0, sHEAD, 7)
    I("s_lshr_b32", sC0, sC0, 1)
    I("s_lshl_b32", sA, sLW, 1)
    I("s_add_u32", sT1, sTQ0, sA)

def kv_poll_off(dst, e):
    t0, t2, t3 = TMP, TMP + 2, TMP + 3
    I("s_lshr_b32", sA, sC0, 2)
    I("s_add_u32", sB, sC0, 3)
    I("s_lshr_b32", sB, sB, 2)
    I("s_sub_u32", sB, sB, sA)
    I("v_and_b32", v(t0), sB, vLANE)
    I("v_add_u32", v(t0), sA, v(t0))
    if e is None:
        I("s_and_b32", sA, sT1, 15)
        I("s_lshl_b32", sA, sA, 6)
        I("s_add_u32", sA, sA, sPAGE)
        I("s_add_u32", sA, sA, hx(R_FQ))
        I("v_lshl_add_u32", v(dst), v(t0), 2, sA)
        return
    I("v_lshlrev_b32", v(t0), 7, v(t0))
    I("s_mul_i32", sA, sLW, 6)
    I("s_add_u32", sA, sA, sTQ0)
    I("s_sub_u32", sA, sA, 16)
    I("v_and_b32", v(t2), hx(0xfe), vLANE)
    I("v_min_u32", v(t2), 4, v(t2))
    I("v_add_u32", v(t3), sA, v(t2))
    I("v_max_i32", v(t3), 0, v(t3))
    I("v_lshrrev_b32", v(dst), 4, v(t3))
    I("v_lshlrev_b32", v(dst), PSH, v(dst))
    I("v_add_u32", v(dst), v(dst), v(t0))
    I("v_and_b32", v(t0), 15, v(t3))
    I("v_lshl_add_u32", v(dst), v(t0), 10, v(dst))
    I("v_add_u32", v(dst), hx(R_FQKV + 4 * e), v(dst))

def kv_poll_off1(dst, e):
    t0, t2, t3 = TMP, TMP + 2, TMP + 3
    I("s_lshr_b32", sA, sC0, 3)
    I("s_add_u32", sB, sC0, 3)
    I("s_lshr_b32", sB, sB, 3)
    I("s_sub_u32", sB, sB, sA)
    I("v_and_b32", v(t0), sB, vLANE)
    I("v_add_u32", v(t0), sA, v(t0))
    I("v_lshrrev_b32", v(t2), 1, vLANE)
    if e is None:
        I("s_and_b32", sA, sTQ0, 15)
        I("s_lshl_b32", sB, sLW, 1)
        I("s_add_u32", sA, sA, sB)
        I("v_and_b32", v(t2), 1, v(t2))
        I("v_add_u32", v(t2), sA, v(t2))
        I("v_lshlrev_b32", v(t0), 2, v(t0))
        I("v_lshl_add_u32", v(t0), v(t2), 7, v(t0))
        I("s_add_u32", sA, sPAGE, hx(R_FQ))
        I("v_add_u32", v(dst), sA, v(t0))
        return
    I("v_lshlrev_b32", v(t0), 7, v(t0))
    I("s_mul_i32", sA, sLW, 6)
    I("s_add_u32", sA, sA, sTQ0)
    I("s_sub_u32", sA, sA, 16)
    I("v_min_u32", v(t2), 5, v(t2))
    I("v_add_u32", v(t3), sA, v(t2))
    I("v_max_i32", v(t3), 0, v(t3))
    I("v_lshrrev_b32", v(dst), 4, v(t3))
    I("v_lshlrev_b32", v(dst), PSH, v(dst))
    I("v_add_u32", v(dst), v(dst), v(t0))
    I("v_and_b32", v(t0), 15, v(t3))
    I("v_lshl_add_u32", v(dst), v(t0), 10, v(dst))
    I("v_add_u32", v(dst), hx(R_FQKV + 4 * e), v(dst))

PA = OPT.get('pa', 1)
if PA == 1:
    kv_poll_off = kv_poll_off1
    phase_a_compute = phase_a_compute1
    phase_a_loader = phase_a_loader1

def kv_dma(reg, img, vsrc):
    last = None
    I("s_mul_i32", sC, sLW, 6)
    I("s_lshl_b32", sF, sC, 10)
    I("s_add_u32", sF, sF, hx(img))
    I("s_add_u32", sC, sC, sTQ0)
    I("s_sub_u32", sC, sC, 16)
    I("s_lshl_b32", sE, sC0, 8)
    I("s_add_u32", sE, sE, hx(reg))
    for i in range(6):
        I("s_add_u32", "m0", sF, hx(1024 * i))
        I("s_add_u32", sA, sC, i)
        I("s_lshr_b32", sB, sA, 4)
        I("s_lshl_b32", sB, sB, PSH)
        I("s_and_b32", sG, sA, 15)
        I("s_mul_i32", sG, sG, hx(TB))
        I("s_add_u32", sB, sB, sG)
        I("s_add_u32", sB, sB, sE)
        I("s_cmp_lt_i32", sA, 0)
        I("s_cmov_b32", sB, hx(OOB))
        last = I("buffer_load_dwordx4", vsrc, SRD_WS, sB, mods="offen sc1 lds")
    return last

def w1_touches():
    I("s_cmp_lt_u32", sLW, 2)
    I("s_cselect_b32", "s64", "s12", "s16")
    I("s_cselect_b32", "s65", "s13", "s17")
    I("s_mov_b32", "s66", hx(448 * 448 * 2))
    I("s_mov_b32", "s67", hx(0x20000))
    I("s_and_b32", sA, sLW, 1)
    I("s_mul_i32", sA, sA, 28)
    I("s_add_u32", sA, sA, sLI)
    I("s_lshl_b32", sA, sA, 13)
    I("v_lshlrev_b32", v(TMP + 12), 7, vLANE)
    touch1(SRD_BG, v(TMP + 12), sA)
    I("s_lshl_b32", sA, sJ, 11)
    tile_off(sC, R_2, TB, extra=sA)
    I("v_lshlrev_b32", v(TMP + 12), 7, vTOK)
    touch1(SRD_WS, v(TMP + 12), sC)
    if not OPT["alias"]:
        for reg in (R_X1, R_HH, R_O, R_G[0], R_G[0] + 16 * TB, R_G[1], R_G[1] + 16 * TB):
            tile_off(sC, reg, TB, extra=sA)
            touch1(SRD_WS, v(TMP + 12), sC)
    I("s_lshl_b32", sA, sJ, 8)
    tile_off(sC, R_SH, 2048, extra=sA)
    I("v_and_b32", v(TMP + 12), 1, vLANE)
    I("v_lshlrev_b32", v(TMP + 12), 7, v(TMP + 12))
    I("v_and_b32", v(TMP + 13), 2, vLANE)
    I("v_lshl_add_u32", v(TMP + 12), v(TMP + 13), 14, v(TMP + 12))
    touch1(SRD_WS, v(TMP + 12), sC)

def w2_touches():
    I("s_lshl_b32", sA, sLW, 5)
    I("s_add_u32", sA, sA, sLI)
    I("s_sub_u32", sB, hx(127), sA)
    I("s_lshl_b32", sA, sA, 14)
    I("s_lshl_b32", sB, sB, 13)
    I("v_lshlrev_b32", v(TMP + 12), 7, vLANE)
    I("v_lshlrev_b32", v(TMP + 13), 8, vLANE)
    touch1(SRD_W2, v(TMP + 12), sB)
    touch1(SRD_W3, v(TMP + 13), sA)
    if OPT["ta"] > 1:
        I("s_add_u32", sA, sA, hx(128))
        touch1(SRD_W3, v(TMP + 13), sA)

def mode_issue():
    if not OPT["local"]:
        return
    I("v_and_b32", v(TMP + 6), 31, vLANE)
    I("s_add_u32", sA, sPAGE, hx(R_XCC))
    I("v_lshl_add_u32", v(TMP + 6), v(TMP + 6), 7, sA)
    l = A.newlabel("Lmi")
    I("s_cmp_lg_u32", sW, 4)
    I("s_cbranch_scc1", l)
    I("buffer_load_dword", v(TMP + 7), v(TMP + 6), SRD_WS, 0, mods="offen sc1")
    A.vm -= 1
    A.label(l)

def mode_check():
    if not OPT["local"]:
        return
    l = A.newlabel("Lmc")
    I("s_cmp_lg_u32", sW, 4)
    I("s_cbranch_scc1", l)
    sv = (A.vm, A.vm_done, A.lg, A.lg_done)
    lp, dn = A.newlabel("Lpoll"), A.newlabel("Lpd")
    I("s_mov_b32", sCNT, hx(40000))
    A.label(lp)
    I("v_subrev_u32", v(TMP + 7), sTAG, v(TMP + 7))
    I("v_cmp_le_u32", "vcc", 16, v(TMP + 7))
    I("s_cbranch_vccz", dn)
    I("s_sub_u32", sCNT, sCNT, 1)
    I("s_cmp_eq_u32", sCNT, 0)
    I("s_cbranch_scc1", dn)
    I("s_sleep", 4)
    I("buffer_load_dword", v(TMP + 7), v(TMP + 6), SRD_WS, 0, mods="offen sc1")
    A.wait_vm_all(force=True)
    I("s_branch", lp)
    A.label(dn)
    I("v_cmp_ne_u32", "vcc", sXCC, v(TMP + 7))
    I("s_cmp_eq_u64", "vcc", 0)
    I("s_cselect_b32", sA, 1, 0)
    I("v_mov_b32", v(TMP), sA)
    I("v_mov_b32", v(TMP + 1), hx(L_MODE))
    I("ds_write_b32", v(TMP + 1), v(TMP))
    A.wait_lg_all(force=True)
    A.vm, A.vm_done, A.lg, A.lg_done = sv
    A.label(l)

def att_loader_pre():
    poll(v(TMP + 4), sleep=2)
    stamp("k_ready")
    kv_dma(R_K, L_KIMG, vL16)
    kv_poll_off(TMP + 5, None)
    I("v_add_u32", v(TMP + 4), 4, v(TMP + 4))
    I("s_and_b32", sA, sTQ0, 15)
    I("s_lshl_b32", sB, sLW, 1)
    I("s_add_u32", sA, sA, sB)
    I("s_lshl_b32", sE, sC0, 8)
    tile_off(sC, R_Q, TB, tl=sA, extra=sE)
    I("s_lshl_b32", sB, sB, 10)
    I("s_add_u32", "m0", sB, hx(L_QIMG))
    I("s_add_u32", sE, sC, hx(TB - 1024))
    poll(v(TMP + 5), sleep=0)
    stamp("q_ready")
    I("buffer_load_dwordx4", vL16, SRD_WS, sC, mods="offen sc1 lds")
    dq = I("buffer_load_dwordx4", vL16, SRD_WS, sE, mods="offen offset:1024 sc1 lds")
    A.wait(vm=dq)
VP = [None]

mLo, mHi, vQR, vMD, vKR, vVR0, vVR1 = 28, 29, 30, 31, 32, 33, 34
vVS = 96
def att_consts_b():
    I("v_and_b32", v(vVS), 32, vLANE)
    I("v_lshlrev_b32", v(vVS), 2, v(vVS))
    I("v_xor_b32", v(vVS), v(vVS), vL16)

def att_consts():
    t0, t1, t2 = TMP + 8, TMP + 9, TMP + 10
    I("s_and_b32", sA, sHEAD, 1)
    I("s_cmp_eq_u32", sA, 1)
    I("s_cselect_b32", sB, 0, 9)
    I("s_cselect_b32", sE, 9, 3)
    I("v_mov_b32", v(t0), -1)
    I("v_cmp_ne_u32", "vcc", sB, vQ4)
    I("v_cndmask_b32", v(mLo), 0, v(t0), "vcc")
    I("v_cmp_ne_u32", "vcc", sE, vQ4)
    I("v_cndmask_b32", v(mHi), 0, v(t0), "vcc")
    I("s_lshl_b32", sA, sLW, 11)
    I("s_add_u32", sB, sA, hx(L_KIMG))
    I("v_add_u32", v(vKR), sB, vL16)
    I("v_and_b32", v(t0), 3, vLANE)
    I("v_lshrrev_b32", v(t1), 2, vLANE)
    I("v_and_b32", v(t2), 2, v(t0))
    I("v_lshlrev_b32", v(t2), 2, v(t2))
    I("v_xor_b32", v(t1), v(t1), v(t2))
    I("v_lshlrev_b32", v(t1), 4, v(t1))
    I("v_lshl_add_u32", v(t1), v(t0), 8, v(t1))
    I("v_and_b32", v(t0), 1, v(t0))
    I("v_lshl_or_b32", v(t1), v(t0), 3, v(t1))
    I("s_add_u32", sB, sA, hx(L_VIMG))
    I("v_add_u32", v(vVR0), sB, v(t1))
    I("v_xor_b32", v(vVR1), 8, v(vVR0))
    I("s_add_u32", sB, sA, hx(L_QIMG))
    I("v_add_u32", v(vQR), sB, vL16)
    I("v_mov_b32", v(vMD), hx(L_MODE))
    I("v_lshlrev_b32", v(t0), 2, vQ4)
    for i, sm in enumerate(MSK):
        I("v_add_u32", v(t1), i, v(t0))
        I("v_cmp_gt_u32", sm, v(t1), vTOK)
    I("s_and_b32", sB, sT1, 15)
    I("s_lshl_b32", sA, sC0, 8)
    tile_off("s44", R_O, TB, tl=sB, extra=sA)
    I("s_lshl_b32", sA, sHEAD, 2)
    tile_off("s59", R_FO, 128, tl=sB, extra=sA)
    I("s_bitcmp1_b32", sHEAD, 0)
    I("s_cselect_b32", "s42", hx(0xffff), 0)
    I("s_cselect_b32", "s43", 0, hx(0xffff0000))
    I("s_cselect_b32", "s46", 8, 0)
    I("s_mov_b32", "s48", hx(0xffff))
    I("s_mov_b32", "s49", 0)
    I("s_not_b64", "s[40:41]", "s[42:43]")
    I("s_add_u32", "s46", "s46", "s44")
    I("s_add_u32", "s45", "s44", hx(TB))
    I("s_add_u32", "s47", "s46", hx(TB))
MSK = ["s[36:37]", "s[38:39]", "s[50:51]", "s[52:53]"]

def att_a():
    A.cmt("---- attention (A waves)")
    OA, QF, KF, VF, SA, SB = 48, 72, 80, 72, 104, 172
    S = lambda q, t: (SA + 4 * t) if q == 0 else (SB + 4 * (t - 1))
    NEG = TMP + 5
    M = [[TMP + 6, TMP + 8], [TMP + 10, TMP + 12]]
    I("v_mov_b32", v(NEG), hx(0xff800000))
    barrier()
    stamp("kq_landed")
    I("ds_read_b128", vr(QF, 4), v(vQR))
    q = I("ds_read_b128", vr(QF + 4, 4), v(vQR), mods="offset:1024")
    if OPT["local"]:
        q = I("ds_read_b32", v(vMD), v(vMD))
    rd0 = [I("ds_read_b128", vr(KF + 4 * i, 4), v(vKR), mods="offset:%d" % (1024 * i)) for i in range(4)]
    for qq in range(2):
        for k in range(2):
            I("v_mov_b32", v(M[qq][k]), v(NEG))
    A.wait(lg=q)
    if OPT["local"]:
        I("v_readfirstlane_b32", sMODE, v(vMD))
    for i in range(8):
        I("v_and_b32", v(QF + i), v((mLo, mLo, mHi, mHi)[i & 3]), v(QF + i))

    def post(t):
        for qq in range(2):
            if not (qq <= t <= 16 + qq):
                continue
            r = S(qq, t)
            if t == qq:
                for i in range(4):
                    I("v_cndmask_b32", v(r + i), v(NEG), v(r + i), MSK[i])
            if t == 16 + qq:
                for i in range(4):
                    I("v_cndmask_b32", v(r + i), v(r + i), v(NEG), MSK[i])
            I("v_max3_f32", v(M[qq][0]), v(M[qq][0]), v(r), v(r + 1))
            I("v_max3_f32", v(M[qq][1]), v(M[qq][1]), v(r + 2), v(r + 3))

    def sphase(check):
        rd = list(rd0)
        for t in range(18):
            A.wait(lg=rd[t])
            if check and t < 16:
                l1, l2 = A.newlabel("Lsv"), A.newlabel("Lsv")
                I("s_cmp_ge_u32", sT1, 16 - t)
                I("s_cbranch_scc1", l1)
                for qq in range(2):
                    if qq <= t <= 16 + qq:
                        for i in range(4):
                            I("v_mov_b32", v(S(qq, t) + i), v(NEG))
                I("s_branch", l2)
                A.label(l1)
            for qq in range(2):
                if qq <= t <= 16 + qq:
                    I("v_mfma_f32_16x16x32_bf16", vr(S(qq, t), 4), vr(KF + 4 * (t % 4), 4), vr(QF + 4 * qq, 4), "0")
            if check and t < 16:
                A.label(l2)
            if t + 4 < 18:
                rd.append(I("ds_read_b128", vr(KF + 4 * (t % 4), 4), v(vKR), mods="offset:%d" % (1024 * (t + 4))))
            if t >= 2:
                post(t - 2)
        post(16)
        post(17)
    lx0, lsd = A.newlabel("Lx0"), A.newlabel("Lsd")
    I("s_cmp_lt_u32", sT1, 16)
    I("s_cbranch_scc1", lx0)
    sv = (A.lg, A.lg_done)
    sphase(False)
    I("s_branch", lsd)
    A.label(lx0)
    A.lg, A.lg_done = sv
    sphase(True)
    A.label(lsd)
    stamp("s_done")
    for op in ("max", "mov", "p32", "max", "mov", "p16", "max", "neg"):
        for qq in range(2):
            a, b = M[qq]
            if op == "max": I("v_max_f32", v(a), v(a), v(b))
            if op == "mov": I("v_mov_b32", v(b), v(a))
            if op == "p32": I("v_permlane32_swap_b32", v(a), v(b))
            if op == "p16": I("v_permlane16_swap_b32", v(a), v(b))
            if op == "neg": I("v_sub_f32", v(a), 0, v(a))
    for qq in range(2):
        for g in range(0, 68, 2):
            r = (SA, SB)[qq] + g
            I("v_pk_add_f32", vr(r, 2), vr(r, 2), vr(M[qq][0], 2), mods="op_sel_hi:[1,0]")

    def tiles(qq, p):
        return [t for t in (2 * p, 2 * p + 1) if qq <= t <= 16 + qq]
    def exp_ops(p):
        ops = []
        for qq in range(2):
            ts = tiles(qq, p)
            r = S(qq, ts[0])
            n = 4 * len(ts)
            ops += [lambda r=r, i=i: I("v_exp_f32", v(r + i), v(r + i)) for i in range(n)]
        return ops
    def cvt_ops(p):
        ops = []
        for qq in range(2):
            ts = tiles(qq, p)
            r = S(qq, ts[0])
            ops += [lambda r=r, i=i: I("v_cvt_pk_bf16_f32", v(r + i), v(r + 2 * i), v(r + 2 * i + 1)) for i in range(2 * len(ts))]
        return ops
    vrd = {}
    def vread_ops(p):
        d = VF + 8 * (p % 3)
        ops = []
        for a, vr_ in enumerate((vVR0, vVR1)):
            for h in range(2):
                def f(a=a, vr_=vr_, h=h):
                    vrd[p] = I("ds_read_b64_tr_b16", vr(d + 4 * a + 2 * h, 2), v(vr_), mods="offset:%d" % (2048 * p + 1024 * h))
                ops.append(f)
        return ops
    def pv_ops(p):
        d = VF + 8 * (p % 3)
        ops = [lambda: A.wait(lg=vrd[p])]
        for qq in range(2):
            ts = tiles(qq, p)
            r = S(qq, ts[0])
            o = OA + 12 * qq
            for acc, areg in ((o + 8, None), (o, d), (o + 4, d + 4)):
                if len(ts) == 2:
                    ops.append(lambda acc=acc, areg=areg, r=r: m16(acc, ONES if areg is None else areg, r, p == 0))
                else:
                    ar = ONES if areg is None else areg + (2 if qq == 1 else 0)
                    ops.append(lambda acc=acc, ar=ar, r=r: I("v_mfma_f32_16x16x16_bf16", vr(acc, 4), vr(ar, 2), vr(r, 2),
                                                            "0" if p == 0 else vr(acc, 4)))
        return ops
    LAG = OPT.get("lag", 4)
    side = []
    issued_v = 0
    done_pv = 0
    for p in range(9):
        main = exp_ops(p) + (cvt_ops(p - 1) if p else [])
        if p == LAG - 1:
            barrier()
            stamp("v_landed")
            side += vread_ops(0) + vread_ops(1)
            issued_v = 2
        if p >= LAG:
            for _ in range(2):
                if done_pv <= p - 2:
                    if issued_v < 9:
                        side += vread_ops(issued_v)
                        issued_v += 1
                    side += pv_ops(done_pv)
                    done_pv += 1
        for k, op in enumerate(main):
            op()
            if side:
                side.pop(0)()
        while side:
            side.pop(0)()
    for op in cvt_ops(8):
        op()
    stamp("softmax_done")
    while done_pv < 9:
        if issued_v < 9:
            for op in vread_ops(issued_v):
                op()
            issued_v += 1
        for op in pv_ops(done_pv):
            op()
        done_pv += 1
    for qq in range(2):
        I("v_rcp_f32", v(TMP + 12 + qq), v(OA + 12 * qq + 8))
    for qq in range(2):
        for i in range(8):
            I("v_mul_f32", v(OA + 12 * qq + i), v(OA + 12 * qq + i), v(TMP + 12 + qq))
    pack(TMP, OA, 8)
    pack(TMP + 4, OA + 12, 8)
    unswap(TMP, 2)
    for qq in range(2):
        I("v_cndmask_b32", v(TMP + 8 + 2 * qq), v(TMP + 4 * qq), v(TMP + 4 * qq + 2), "s[48:49]")
        I("v_cndmask_b32", v(TMP + 9 + 2 * qq), v(TMP + 4 * qq + 1), v(TMP + 4 * qq + 3), "s[48:49]")
    def ost(m):
        mm = "offen" + (" " + m if m else "")
        I("s_mov_b64", "exec", "s[40:41]")
        I("buffer_store_dwordx4", vr(TMP, 4), vL16, SRD_WS, "s44", mods=mm)
        I("buffer_store_dwordx4", vr(TMP + 4, 4), vL16, SRD_WS, "s45", mods=mm)
        I("s_mov_b64", "exec", "s[42:43]")
        I("buffer_store_dwordx2", vr(TMP + 8, 2), vL16, SRD_WS, "s46", mods=mm)
        I("buffer_store_dwordx2", vr(TMP + 10, 2), vL16, SRD_WS, "s47", mods=mm)
        I("s_mov_b64", "exec", -1)
    moded(ost)
    stamp("o_stored")

def att_b():
    A.cmt("---- attention (B waves)")
    barrier()
    if OPT["local"]:
        I("v_mov_b32", v(TMP + 6), hx(L_MODE))
        I("ds_read_b32", v(TMP + 6), v(TMP + 6))
    poll(v(TMP + 4))
    stamp("v_ready")
    kv_dma(R_V, L_VIMG, v(vVS))
    if OPT["local"]:
        A.wait_lg_all()
        I("v_readfirstlane_b32", sMODE, v(TMP + 6))
    lsp, lj = A.newlabel("Lbs"), A.newlabel("Lbj")
    I("s_cmp_ge_u32", sLI, 28)
    I("s_cbranch_scc1", lsp)
    sv = (A.vm, A.vm_done)
    dv = A.vm
    dma_seq(SRD_WO, 896, slot(4), (sJ128, 224 * 896), 7)
    dma_seq(SRD_W1, 896, slot(0), (sJ128, 0), 7)
    A.wait(vm=dv)
    stamp("b_vland")
    barrier()
    stamp("b_b6")
    kvdone()
    dw1 = dma_seq(SRD_W1, 896, slot(1), (sJ128, 224 * 896), 7)
    I("s_mov_b32", sA, sJ128)
    for k in range(14):
        I("buffer_load_dwordx4", vr(PARK + 4 * k, 4), vD896, SRD_W2, sA, mods="offen")
        I("s_add_u32", sA, sA, hx(32 * 896))
    stamp("b_w2iss")
    cnt_setup([23, 24, 25])
    A.wait(vm=dw1)
    arrive(bWO)
    kvdone_try()
    A.wait_vm_all(force=True)
    stamp("bg_done")
    I("s_branch", "L_cload")
    A.label(lsp)
    A.vm, A.vm_done = sv
    I("s_waitcnt", "vmcnt(0)")
    barrier()
    kvdone()
    spare_att()
    A.wait_vm_all(force=True)
    stamp("bg_done")
    barrier()
    spare_colsum()
    I("s_branch", "L_spare2")

PARK = 184
def kvdone():
    l = A.newlabel("Lkd")
    I("s_cmp_lg_u32", sW, 4)
    I("s_cbranch_scc1", l)
    I("s_lshl_b32", sA, sLI, 7)
    I("s_add_u32", sA, sA, sPAGE)
    I("s_add_u32", sA, sA, hx(R_XCC + 4))
    flag_store(sA)
    A.vm -= 1
    A.label(l)

vKVO = 43
def kvdone_try():
    I("v_lshrrev_b32", v(vKVO), 5, vLANE)
    I("v_add_u32", v(vKVO), sX, v(vKVO))
    I("v_min_u32", v(vKVO), 7, v(vKVO))
    I("v_lshlrev_b32", v(vKVO), PSH, v(vKVO))
    I("v_and_b32", v(TMP + 1), 31, vLANE)
    I("v_lshl_add_u32", v(vKVO), v(TMP + 1), 7, v(vKVO))
    I("v_add_u32", v(vKVO), hx(R_XCC + 4), v(vKVO))
    I("s_mov_b32", sXCC, 1)
    l = A.newlabel("Lkt")
    I("s_cmp_lg_u32", sW, 4)
    I("s_cbranch_scc1", l)
    I("buffer_load_dword", v(TMP + 1), v(vKVO), SRD_WS, 0, mods="offen sc1")
    A.vm -= 1
    I("s_waitcnt", "vmcnt(0)")
    I("v_cmp_ne_u32", "vcc", sTAG, v(TMP + 1))
    I("s_cmp_eq_u64", "vcc", 0)
    I("s_cselect_b32", sXCC, 1, 0)
    A.label(l)

def kvdone_check():
    l = A.newlabel("Lkc")
    I("s_cmp_eq_u32", sXCC, 1)
    I("s_cbranch_scc1", l)
    sv = (A.vm, A.vm_done)
    poll(v(vKVO), sleep=2)
    A.vm, A.vm_done = sv
    A.label(l)

def o_flag():
    A.wait_vm_all(force=True)
    def f(m):
        I("s_mov_b64", "exec", 1)
        I("buffer_store_dword", vTAG, "off", SRD_WS, "s59", mods=m)
        I("buffer_store_dword", vTAG, "off", SRD_WS, "s59", mods="offset:128" + (" " + m if m else ""))
        I("s_mov_b64", "exec", -1)
    moded(f)
    stamp("o_flag")

def ack_flag(st, name):
    A.wait(vm=st)
    moded(lambda m: flag_store(sD, m))
    stamp(name)

def store_out(preg, q_barrier=True):
    def f(m):
        frag_store(preg, sC, mods=m)
        return frag_store(preg + 4, sC, 1024, mods=m)
    return moded(f)

aM1, aP1, aX1, aM2, aP2, aX2, vDP = 36, 37, 38, 39, 40, 41, 42
vCS = 6
sR1, sR2, sGH, sFHH, sSP = "s54", "s55", "s56", "s57", "s58"
def c_setup():
    t0, t1, t2, t3 = TMP + 8, TMP + 9, TMP + 10, TMP + 11
    stat_aux()
    I("v_lshlrev_b32", v(vCS), 4, vQ4)
    I("v_add_u32", v(vCS), hx(131072), v(vCS))
    I("s_lshl_b32", sB, sX, 8)
    I("s_lshl_b32", sA, sTL, 4)
    I("s_add_u32", sB, sB, sA)
    I("v_mov_b32", v(t3), hx(OOB))
    for reg, d in ((aM1, -1), (aP1, 1), (aM2, -2), (aP2, 2)):
        I("s_add_u32", sA, sB, d)
        I("v_add_u32", v(t0), sA, vTOK)
        I("v_lshrrev_b32", v(t1), 8, v(t0))
        I("v_bfe_u32", v(t2), v(t0), 4, 4)
        I("v_mul_u32_u24", v(reg), hx(TB), v(t2))
        I("v_add_u32", v(reg), hx(R_HH), v(reg))
        I("v_and_b32", v(t2), 1, v(t2))
        I("v_mul_u32_u24", v(t2), hx(TB), v(t2))
        I("v_add_u32", v(t2), hx(R_HALO), v(t2))
        I("v_cmp_ne_u32", "vcc", sX, v(t1))
        I("v_cndmask_b32", v(reg), v(reg), v(t2), "vcc")
        I("v_lshl_add_u32", v(reg), v(t1), PSH, v(reg))
        I("v_and_b32", v(t1), 15, v(t0))
        I("v_lshl_add_u32", v(reg), v(t1), 4, v(reg))
        I("v_lshl_add_u32", v(reg), vQ4, 8, v(reg))
        I("v_cmp_gt_u32", "vcc", hx(2048), v(t0))
        if OPT.get("nohalo"):
            I("v_lshrrev_b32", v(t1), 8, v(t0))
            I("v_cmp_eq_u32", "vcc", sX, v(t1))
        I("v_cndmask_b32", v(reg), v(t3), v(reg), "vcc")
    I("v_cmp_gt_u32", "vcc", 2, vQ4)
    I("v_cndmask_b32", v(aX1), v(aP1), v(aM1), "vcc")
    I("v_cndmask_b32", v(aX2), v(aP2), v(aM2), "vcc")
    I("s_lshr_b32", sB, sB, 4)
    I("s_sub_u32", sA, sB, 1)
    I("v_min_u32", v(t0), 2, vQ4)
    I("v_add_u32", v(t0), sA, v(t0))
    I("v_max_i32", v(t0), 0, v(t0))
    I("v_min_i32", v(t0), hx(127), v(t0))
    if OPT.get("nohalo"):
        I("s_lshl_b32", sA, sX, 4)
        I("v_max_i32", v(t0), sA, v(t0))
        I("s_add_u32", sA, sA, 15)
        I("v_min_i32", v(t0), sA, v(t0))
    I("v_lshrrev_b32", v(t1), 4, v(t0))
    I("v_and_b32", v(t0), 15, v(t0))
    I("v_min_u32", v(t2), 6, vTOK)
    I("v_lshlrev_b32", v(t3), 2, v(t2))
    I("v_lshl_add_u32", v(t3), v(t0), 7, v(t3))
    I("v_lshl_add_u32", v(t3), v(t1), PSH, v(t3))
    I("v_add_u32", v(vDP), hx(R_FHH), v(t3))
    I("v_and_b32", v(t0), 1, v(t0))
    I("v_lshlrev_b32", v(t2), 7, v(t2))
    I("v_lshl_add_u32", v(t2), v(t0), 10, v(t2))
    I("v_lshl_add_u32", v(t2), v(t1), PSH, v(t2))
    I("v_add_u32", v(t2), hx(R_FHALO), v(t2))
    I("v_cmp_ne_u32", "vcc", sX, v(t1))
    I("v_cndmask_b32", v(vDP), v(vDP), v(t2), "vcc")
    tile_off(sR1, 0, TB)
    I("s_lshl_b32", sA, sJ, 11)
    I("s_add_u32", sR2, sR1, sA)
    tile_off(sSP, R_SH, 2048)
    I("s_lshl_b32", sA, sJ, 8)
    I("s_add_u32", sGH, sSP, sA)
    I("s_lshl_b32", sA, sJ, 2)
    tile_off(sFHH, R_FHH, 128, extra=sA)

def c_compute():
    aoff = lambda s: (4096 * s, TRC)
    N1, N2, N3 = OPT.get("n1", 1), OPT.get("n2", 1), OPT.get("n3", 1)
    NA = OPT.get("na", 3)
    cnt_setup([35, 43, TMP + 15])
    pk = peek(bWO)
    set_tr(slot(3))
    unpack(ACC, HP, 16)
    verify(pk, bWO, 4)
    rd = [a_read(AREG + 16 * s, *aoff(s)) for s in range(N1)]
    flag_poll_off(34, 16, R_FO, 128, 2)
    I("s_add_u32", sC2, sR1, hx(R_O))
    bl = BLoads(14, sC2)
    o_flag()
    rd += [a_read(AREG + 16 * s, *aoff(s)) for s in range(N1, N1 + NA)]
    poll_a(v(34), TMP + 13)
    rd += [a_read(AREG + 16 * s, *aoff(s)) for s in range(N1 + NA, 7)]
    arrive(aOF)
    I("s_add_u32", sC, sR2, hx(R_H))
    I("s_mov_b32", sD, sGH)
    poll_b(v(34), TMP + 13)
    A.wait_lg_all()
    stamp("c1_ready")
    bl.first()
    gemm(14, 7, 7, aoff, lambda s: BREG + 4 * s, bl=bl.ids, bissue=bl.more, zero=False, rd=rd,
         hook=lambda s: arrive(aC1P) if s == OPT.get("p1", 8) else None)
    stamp("c1_mfma")
    pack(HP, ACC, 16)
    unswap(HP, 2)
    st = store_out(HP)
    pk = peek(bCS1)
    stat_granule(HP)
    set_tr(slot(0))
    verify(pk, bCS1, 4)
    rd = [a_read(AREG + 16 * s, *aoff(s)) for s in range(N2)]
    A.wait(vm=st)
    moded(granule_store)
    stamp("h_flag")
    rd += [a_read(AREG + 16 * s, *aoff(s)) for s in range(N2, N2 + NA)]
    stat_poll_a(sSP)
    rd += [a_read(AREG + 16 * s, *aoff(s)) for s in range(N2 + NA, 7)]
    for f in range(4):
        I("ds_read_b128", vr(ACC + 4 * f, 4), v(vCS), mods="offset:%d" % (L_CS1 - 131072 + 64 * f))
    arrive(aC1Q)
    I("s_add_u32", sC2, sR1, hx(R_H))
    bl = BLoads(14, sC2)
    stat_poll(sSP)
    stamp("c2_ready")
    bl.first()
    stat_finish()
    var, nmu, ry = TMP + 7, TMP + 8, TMP + 10
    K0, K1, RI = TMP, TMP + 2, TMP + 12
    I("v_mul_f32", v(nmu), fl(-1.0 / 448), v(TMP + 4))
    A.wait_lg_all()
    for i in range(0, 16, 2):
        pk_mul_b(ACC + i, ACC + i, nmu)
    def c2late():
        mean_var(TMP + 4, TMP + 6, vMU, var)
        rstd(vRH, var)
        I("s_add_u32", sC, sR2, hx(R_HH))
        I("v_mul_f32", v(var), v(var), v(vRH))
        I("v_mul_f32", v(var), v(var), v(vRH))
        rstd(ry, var)
        I("s_add_u32", sA, sTL, 1)
        I("v_mul_f32", v(ry), v(ry), v(vRH))
        gelu_prep(ry, K0, K1, RI)
        I("s_and_b32", sD2, sA, 15)
        I("v_mov_b32", v(TMP + 4), v(vRH))
        I("v_mul_f32", v(TMP + 6), v(nmu), v(vRH))
    side = rec(c2late)
    def cfill(s, f):
        if s >= 7 and side:
            side.pop(0)()
    gemm(14, 7, 7, aoff, lambda s: BREG + 4 * s, bl=bl.ids, bissue=bl.more, zero=False, rd=rd, fill=cfill,
         hook=lambda s: arrive(aC2P) if s == OPT.get("p2", 8) else None)
    assert not side
    stamp("c2_mfma")
    gelu(ACC, 16, BREG, K0, K1, RI, HHP, True)
    unswap(HHP, 2)
    st = store_out(HHP)
    lh = A.newlabel("Lhalo")
    if OPT.get("nohalo"):
        I("s_mov_b32", sD2, 5)
    I("s_cmp_gt_u32", sD2, 1)
    I("s_cbranch_scc1", lh)
    I("s_and_b32", sB, sTL, 1)
    I("s_lshl_b32", sA, sJ, 11)
    tile_off(sC, R_HALO, TB, tl=sB, extra=sA)
    frag_store(HHP, sC)
    frag_store(HHP + 4, sC, 1024)
    A.vm -= 2
    A.label(lh)
    stamp("hh_stored")
    pk = peek(bW2)
    set_tr(slot(3))
    unswap(HP, 2)
    unpack(ACC, HP, 16)
    for i in range(0, 16, 2):
        I("v_pk_fma_f32", vr(ACC + i, 2), vr(ACC + i, 2), vr(TMP + 4, 2), vr(TMP + 6, 2), mods="op_sel_hi:[1,0,0]")
    verify(pk, bW2, 4)
    rd = [a_read(AREG + 16 * s, *aoff(s)) for s in range(N3)]
    lh, lh2 = A.newlabel("Lhalo"), A.newlabel("Lhalo")
    I("s_cmp_gt_u32", sD2, 1)
    I("s_cbranch_scc1", lh)
    I("s_waitcnt", "vmcnt(2)")
    I("s_branch", lh2)
    A.label(lh)
    A.wait(vm=st)
    A.label(lh2)
    moded(lambda m: flag_store(sFHH, m))
    stamp("hh_flag")
    rd += [a_read(AREG + 16 * s, *aoff(s)) for s in range(N3, N3 + NA)]
    poll_a(v(vDP), TMP + 13)
    rd += [a_read(AREG + 16 * s, *aoff(s)) for s in range(N3 + NA, 7)]
    arrive(aHF)
    I("s_mov_b32", sC2, 0)
    amap = [aM1] * 3 + [aX1] + [aP1] * 3 + [aM2] * 3 + [aX2] + [aP2] * 3
    bl = BLoads(14, sC2, vaddr=lambda i: v(amap[i]))
    lh = A.newlabel("Lhalo")
    I("s_cmp_gt_u32", sD2, 1)
    I("s_cbranch_scc1", lh)
    I("s_and_b32", sB, sTL, 1)
    tile_off(sC, R_FHALO, 1024, tl=sB, extra=sJ128)
    I("s_waitcnt", "vmcnt(2)")
    flag_store(sC)
    A.vm -= 1
    A.label(lh)
    poll_b(v(vDP), TMP + 13)
    A.wait_lg_all()
    stamp("d_ready")
    bl.first()
    I("s_add_u32", sC, sR2, hx(R_X1))
    I("s_add_u32", sD, sGH, hx(R_SX - R_SH))
    e_lane_a()
    gemm(14, 7, 7, aoff, lambda s: BREG + 4 * s, bl=bl.ids, bissue=bl.more, zero=False, rd=rd,
         hook=lambda s: arrive(aDP) if s == OPT.get("p3", 8) else None)
    stamp("d_mfma")
    pack(TMP, ACC, 16)
    unswap(TMP, 2)
    st = store_out(TMP)
    stat_granule(TMP)
    return st

RES = 28
def colsum(bases, ldst):
    t0, t1 = TMP, TMP + 1
    I("s_and_b32", sA, sLW, 2)
    I("s_lshl_b32", sA, sA, 5)
    I("s_and_b32", sB, sLW, 1)
    I("s_lshl_b32", sB, sB, 3)
    I("s_or_b32", sA, sA, sB)
    I("v_xor_b32", v(t0), sA, v(TRL[0][0]))
    I("v_add_u32", v(t1), hx(bases[1]), v(t0))
    I("v_add_u32", v(t0), hx(bases[0]), v(t0))
    rd = []
    for s in range(14):
        ad = v(t0 if s < 7 else t1)
        I("ds_read_b64_tr_b16", vr(AREG + 4 * s, 2), ad, mods="offset:%d" % (4096 * (s % 7)))
        rd.append(I("ds_read_b64_tr_b16", vr(AREG + 4 * s + 2, 2), ad, mods="offset:%d" % (4096 * (s % 7) + 1024)))
    A.wait_lg_all()
    for s in range(14):
        m16(ACC, AREG + 4 * s, ONES, s == 0)
    I("s_lshl_b32", sA, sLW, 6)
    I("s_add_u32", sA, sA, hx(ldst))
    I("v_lshl_add_u32", v(t0), vQ4, 4, sA)
    I("s_mov_b32", "exec_lo", hx(0x10001))
    I("s_mov_b32", "exec_hi", hx(0x10001))
    I("ds_write_b128", v(t0), vr(ACC, 4))
    I("s_mov_b64", "exec", -1)

W3S = [[2, 0], [1, 3]]
vUP = 36
def c_loader():
    A.cmt("---- C/D loader")
    CNR[:] = [23, 24, 25]
    if OPT.get("bprio", 0):
        I("s_setprio", OPT["bprio"])
    I("s_lshl_b32", sE, sJP, 8)
    e_table(False)
    I("s_lshl_b32", sA, sLW, 10)
    I("s_add_u32", sA, sA, hx(slot(3)))
    I("v_add_u32", v(vUP), sA, vL16)
    spin(aOF, 4, 1)
    colsum((slot(0), slot(1)), L_CS1)
    arrive(bCS1)
    TRG = OPT.get("trg", 2)
    spin(aC1P, TRG, 1)
    dma_seq(SRD_W3, 3584, slot(W3S[0][0]), (sE, 0), 7)
    spin(aC1P, 4, 1)
    for k in range(14):
        I("ds_write_b128", v(vUP), vr(PARK + 4 * k, 4), mods="offset:%d" % (4096 * k))
    arrive(bW2)
    I("v_and_b32", v(TMP), 3, vLANE)
    I("v_and_b32", v(TMP + 1), 48, vLANE)
    I("v_or_b32", v(TMP), v(TMP), v(TMP + 1))
    I("v_lshlrev_b32", v(TMP), 3, v(TMP))
    I("v_and_b32", v(TMP + 1), 4, vLANE)
    I("v_lshl_add_u32", v(TMP), v(TMP + 1), 4, v(TMP))
    I("v_and_b32", v(TMP + 1), 8, vLANE)
    I("v_lshl_add_u32", v(TMP), v(TMP + 1), 2, v(TMP))
    I("v_add_u32", v(TMP), hx(L_CS3), v(TMP))
    I("s_lshl_b32", sC, sE, 2)
    I("s_add_u32", sC, sC, hx(OFF_CSG))
    spin(aC1Q, 4, 1)
    spin(aC2P, TRG, 1)
    stamp("b_c2p")
    dma_seq(SRD_W3, 3584, slot(W3S[0][1]), (sE, 224 * 3584), 7)
    lcs = A.newlabel("Lcs")
    I("s_cmp_lg_u32", sW, 5)
    I("s_cbranch_scc1", lcs)
    lp, dn = A.newlabel("Lpoll"), A.newlabel("Lpd")
    I("s_mov_b32", sCNT, hx(40000))
    A.label(lp)
    I("buffer_load_dwordx4", vr(TMP + 4, 4), vL16, SRD_WS, sC, mods="offen sc1")
    I("s_sub_u32", sCNT, sCNT, 1)
    I("s_waitcnt", "vmcnt(0)")
    I("v_xor_b32", v(TMP + 5), vTAG, v(TMP + 5))
    I("v_xor_b32", v(TMP + 7), vTAG, v(TMP + 7))
    I("v_or_b32", v(TMP + 5), v(TMP + 5), v(TMP + 7))
    I("v_cmp_ne_u32", "vcc", 0, v(TMP + 5))
    I("s_cbranch_vccz", dn)
    I("s_sleep", 4)
    I("s_cmp_lg_u32", sCNT, 0)
    I("s_cbranch_scc1", lp)
    A.label(dn)
    I("ds_write2_b32", v(TMP), v(TMP + 4), v(TMP + 6), mods="offset0:0 offset1:1")
    A.label(lcs)
    A.wait_vm_all(force=True)
    stamp("b_w3ab")
    kvdone_check()
    arrive(bAB)
    spin(aC2P, 4, 1)
    spin(aDP, TRG, 1)
    dma_seq(SRD_W3, 3584, slot(W3S[1][0]), (sE, 128), 7)
    if OPT.get("d_early", 0):
        spin(aHF, 4, 1)
        dma_seq(SRD_W3, 3584, slot(W3S[1][1]), (sE, 224 * 3584 + 128), 7)

W4SL = [2, 0, 1, 3]
CL = [0, 2, 3, 1]
CNR = [16, 17, 18]
def cnt_setup(regs):
    CNR[:] = regs
    I("v_mov_b32", v(CNR[0]), hx(L_CNT))
    I("v_mov_b32", v(CNR[1]), 1)

def arrive(which, areg=None):
    I("s_mov_b64", "exec", 1)
    I("ds_add_u32", v(areg or CNR[0]), v(CNR[1]), mods="offset:%d" % (4 * which))
    I("s_mov_b64", "exec", -1)

def spin(which, target, sleep=0, areg=None):
    lp, dn = A.newlabel("Lsp"), A.newlabel("Lsd")
    if sleep:
        sleep = OPT.get("bsl", sleep)
    I("s_mov_b32", sCNT, hx(400000))
    if OPT.get("ex1", 1):
        I("s_mov_b64", "exec", 1)
    A.label(lp)
    I("ds_read_b32", v(CNR[2]), v(areg or CNR[0]), mods="offset:%d" % (4 * which))
    I("s_sub_u32", sCNT, sCNT, 1)
    A.wait_lg_all(force=True)
    I("v_cmp_gt_u32", "vcc", target, v(CNR[2]))
    I("s_cbranch_vccz", dn)
    if sleep:
        I("s_sleep", sleep)
    I("s_cmp_lg_u32", sCNT, 0)
    I("s_cbranch_scc1", lp)
    A.label(dn)
    if OPT.get("ex1", 1):
        I("s_mov_b64", "exec", -1)

GT_ = ["s18", "s19", "s20", "s21", "s22", "s23", "s3"]
sTE = "s0"
def e_table(for_a):
    I("s_lshr_b32", sA, sTG, 1)
    I("s_mul_i32", sK, sA, 3)
    I("s_lshl_b32", sA, sA, 3)
    I("s_lshl_b32", sB, sLW, 1)
    I("s_add_u32", sTE, sA, sB)
    I("s_add_u32", sK, sK, sJ)
    I("s_cmp_ge_u32", sK, 7)
    I("s_cselect_b32", sA, 7, 0)
    I("s_sub_u32", sK, sK, sA)
    I("s_bitcmp1_b32", sTG, 0)
    I("s_cselect_b32", sA, hx(16 * TB if for_a else 7 * 128 * 896), 0)
    I("s_add_u32", sA, sA, sPAGE if for_a else sJ128)
    for i in range(7):
        r = GT_[i] if for_a else "s%d" % (36 + i)
        I("s_mul_i32", r, sK, hx(2048 if for_a else 128 * 896))
        I("s_add_u32", r, r, sA)
        if i < 6:
            I("s_add_u32", sK, sK, 1)
            I("s_cmp_eq_u32", sK, 7)
            I("s_cmov_b32", sK, 0)

PK4 = 128
def w4_park(c):
    res = []
    for i in range(7):
        def th(i=i):
            I("s_add_u32", sH_, "s%d" % (36 + i), hx(32 * CL[c] * 896))
            W4ID[c] = I("buffer_load_dwordx4", vr(PK4 + 28 * (3 - c) + 4 * i, 4), vD4, SRD_W4, sH_, mods="offen")
        res.append(th)
    return res

def w4_unpark(c):
    I("v_add_u32", v(39), hx(slot(W4SL[c]) - slot(3)), v(vUP))
    A.wait(vm=W4ID[c])
    for i in range(7):
        I("ds_write_b128", v(39), vr(PK4 + 28 * (3 - c) + 4 * i, 4), mods="offset:%d" % (4096 * i))

def w4_thunks(c):
    res = []
    for i in range(7):
        def th(i=i):
            I("s_add_u32", "m0", sF, hx(slot(W4SL[c]) + 4096 * i))
            I("s_add_u32", sH_, "s%d" % (36 + i), hx(32 * CL[c] * 896))
            W4ID[c] = I("buffer_load_dwordx4", vD4, SRD_W4, sH_, mods="offen lds")
        res.append(th)
    return res
W4ID = {}

def peek(which, areg=None):
    return I("ds_read_b32", v(CNR[2]), v(areg or CNR[0]), mods="offset:%d" % (4 * which))

def verify(ld, which, target, areg=None):
    ok, lp = A.newlabel("Lvk"), A.newlabel("Lvl")
    A.wait(lg=ld)
    I("v_cmp_gt_u32", "vcc", target, v(CNR[2]))
    I("s_cbranch_vccz", ok)
    sv = (A.lg, A.lg_done)
    I("s_mov_b32", sCNT, hx(400000))
    A.label(lp)
    peek(which, areg)
    I("s_sub_u32", sCNT, sCNT, 1)
    I("s_waitcnt", "lgkmcnt(0)")
    I("v_cmp_gt_u32", "vcc", target, v(CNR[2]))
    I("s_cbranch_vccz", ok)
    I("s_cmp_lg_u32", sCNT, 0)
    I("s_cbranch_scc1", lp)
    A.lg, A.lg_done = sv
    A.label(ok)

class Inject:
    def __init__(self, thunks, first, every=None):
        self.th, self.nx, self.every, self.c = list(thunks), first, every or first, 0
    def __enter__(self):
        global I
        self.old = I
        def J(*a, **k):
            global I
            r = self.old(*a, **k)
            self.c += 1
            if self.c >= self.nx and self.th:
                self.nx += self.every
                cur = I
                I = self.old
                self.th.pop(0)()
                I = cur
            return r
        I = J
        return self
    def __exit__(self, *a):
        global I
        I = self.old
        for t in self.th:
            t()

T32 = [7, 8]
C32 = [[11, 12], [13, 14]]
def tr32_lane(dst=T32):
    t0, t1, t2 = TMP + 12, TMP + 13, TMP + 14 - 3
    I("v_bfe_u32", v(t0), vLANE, 2, 2)
    I("v_lshrrev_b32", v(t1), 5, vLANE)
    I("v_lshl_add_u32", v(t1), v(t1), 2, v(t0))
    I("v_lshlrev_b32", v(t1), 7, v(t1))
    I("v_and_b32", v(t0), 2, v(t0))
    I("v_lshl_or_b32", v(t1), v(t0), 5, v(t1))
    I("v_and_b32", v(t0), 16, vLANE)
    I("v_lshl_or_b32", v(t1), v(t0), 1, v(t1))
    I("v_and_b32", v(t0), 1, vLANE)
    I("v_lshl_or_b32", v(t1), v(t0), 4, v(t1))
    I("v_and_b32", v(t0), 2, vLANE)
    I("v_lshl_or_b32", v(dst[0]), v(t0), 2, v(t1))
    I("v_xor_b32", v(dst[1]), 64, v(dst[0]))

def bf_lane(dst):
    I("v_and_b32", v(dst), 1, vQ4)
    I("v_mul_u32_u24", v(dst), hx(TB), v(dst))
    I("v_lshl_add_u32", v(dst), vTOK, 4, v(dst))
    I("v_lshrrev_b32", v(TMP + 12), 5, vLANE)
    I("v_lshl_add_u32", v(dst), v(TMP + 12), 8, v(dst))

def set32(base, k):
    if isinstance(base, int):
        I("s_mov_b32", sA, hx(base))
        base = sA
    for b in range(2):
        I("v_add_u32", v(C32[k][b]), base, v(T32[b]))

def rec(fn):
    global I
    old = I
    groups = []
    def J(*a, **k):
        if a[0].startswith(("s_cselect", "s_cmov", "v_cndmask")):
            groups[-1].append((a, k))
        else:
            groups.append([(a, k)])
    I = J
    fn()
    I = old
    return [lambda g=g: [old(*a, **k) for a, k in g] for g in groups]

def m32(acc, areg, breg, zero):
    I("v_mfma_f32_32x32x16_bf16", vr(acc, 16), vr(areg, 4), vr(breg, 4), "0" if zero else vr(acc, 16))

def colsum32(sg):
    t0 = TMP
    I("s_mov_b32", sA, hx(slot(W3S[sg][0])))
    I("s_bitcmp1_b32", sLW, 1)
    I("s_cmov_b32", sA, hx(slot(W3S[sg][1])))
    I("s_and_b32", sB, sLW, 1)
    I("s_lshl_b32", sB, sB, 6)
    I("v_xor_b32", v(t0), sB, v(T32[0]))
    I("v_add_u32", v(t0), sA, v(t0))
    rd = []
    for k in range(14):
        I("ds_read_b64_tr_b16", vr(AREG + 4 * k, 2), v(t0), mods="offset:%d" % (2048 * k))
        rd.append(I("ds_read_b64_tr_b16", vr(AREG + 4 * k + 2, 2), v(t0), mods="offset:%d" % (2048 * k + 1024)))
    I("s_lshl_b32", sB, sB, 1)
    I("s_add_u32", sA, sB, hx(L_CS3 + 256 * sg))
    I("v_lshrrev_b32", v(t0 + 1), 5, vLANE)
    I("v_lshl_add_u32", v(t0 + 1), v(t0 + 1), 6, sA)
    A.wait_lg_all()
    for k in range(14):
        m32(ACC, AREG + 4 * k, ONES, k == 0)
    I("s_mov_b32", "exec_lo", 1)
    I("s_mov_b32", "exec_hi", 1)
    for q in range(16):
        I("ds_add_f32", v(t0 + 1), v(ACC + q), mods="offset:%d" % (4 * q))
    I("s_mov_b64", "exec", -1)

def gemm32(nk, breg, areg, rd, bl=None, bissue=None, zero=None, hook=None):
    for k in range(nk):
        if hook:
            hook(k)
        if k % 2 == 0:
            A.wait(vm=bl(k + 1) if bl else None, lg=rd[k + 1])
        for b in range(2):
            m32((ACC, ACC2)[b], areg + 8 * (k % 6) + 4 * b, breg(k), zero(k) if zero else False)
            if bissue:
                bissue(k, b)
            if k + 4 < nk:
                r = a32(areg, k + 4, b)
        if k + 4 < nk:
            rd.append(r)

def a32(areg, k, b):
    d = areg + 8 * (k % 6) + 4 * b
    ad = v(C32[(k // 14) & 1][b])
    I("ds_read_b64_tr_b16", vr(d, 2), ad, mods="offset:%d" % (2048 * (k % 14)))
    return I("ds_read_b64_tr_b16", vr(d + 2, 2), ad, mods="offset:%d" % (2048 * (k % 14) + 1024))

vRW = [120, 121, 122, 123]
vRR = [124, 125, 126, 127]
vBF, vXP = 9, 10
def e_lane_a():
    t0, t1 = TMP + 8, TMP + 9
    tr32_lane()
    bf_lane(vBF)
    I("v_min_u32", v(vXP), 6, vTOK)
    I("v_lshlrev_b32", v(vXP), 8, v(vXP))
    I("v_and_b32", v(t0), 1, vQ4)
    I("v_lshl_add_u32", v(vXP), v(t0), 11, v(vXP))
    tile_off(sA, R_SX + 4, 2048, tl=sTE)
    I("v_add_u32", v(vXP), sA, v(vXP))

def cls_check(ld, t, voff, c, name=None, sleep=0, off=0):
    ok, lp = A.newlabel("Lrk"), A.newlabel("Lrl")
    I("s_add_u32", sA, sTAG, c)
    A.wait(vm=ld)
    I("s_mov_b32", sCNT, hx(40000))
    A.label(lp)
    I("v_subrev_u32", v(t), sA, v(t))
    I("v_cmp_le_u32", "vcc", 4, v(t))
    I("s_cbranch_vccz", ok)
    I("s_sub_u32", sCNT, sCNT, 1)
    I("s_cmp_eq_u32", sCNT, 0)
    I("s_cbranch_scc1", ok)
    sv = (A.vm, A.vm_done)
    if sleep:
        I("s_sleep", sleep)
    I("buffer_load_dword", v(t), v(voff), SRD_WS, 0, mods="offen" + (" offset:%d" % off if off else "") + " sc1")
    I("s_waitcnt", "vmcnt(0)")
    A.vm, A.vm_done = sv
    I("s_branch", lp)
    A.label(ok)
    if name:
        stamp(name)

ACC2 = 224
def e_compute(st_prev):
    A.cmt("---- E (A: matrix part)")
    ZB, AR, NR = 64, 176, 12
    vS = [TMP + 4, TMP + 5]
    vG = [20, 21]
    vGP, PT = 22, 23
    vFR = [24, 25, 26, 27]
    vCW = 19
    vRP = 13
    CA = [11, 12]
    ACH = (ACC, ACC2)
    HB = [slot(W3S[0][0]), slot(W3S[0][1]), slot(W3S[1][0]), slot(W3S[1][1])] + [slot(W4SL[c]) for c in range(4)]
    tile_off(sC2, R_X1, TB, tl=sTE)
    for q in range(4):
        I("s_add_u32", "s%d" % (50 + q), sC2, hx(4096 * q))
    A.wait(vm=st_prev)
    moded(granule_store)
    stamp("x1_flag")
    cnt_setup([16, 17, 18])
    pk_ = peek(bAB)
    unpack(RES, HP, 16)
    for i in range(0, 16, 2):
        I("v_pk_add_f32", vr(RES + i, 2), vr(RES + i, 2), vr(ACC + i, 2))
    verify(pk_, bAB, 4)
    S = OPT.get("skew", 5)
    seq = []
    n0 = n1 = 0
    for end in (28, 56, 112):
        for _ in range(S if end < 112 else 1):
            seq.append((0, n0)); n0 += 1
        while n0 < end:
            seq.append((1, n1)); n1 += 1
            seq.append((0, n0)); n0 += 1
        while n1 < end:
            seq.append((1, n1)); n1 += 1
    pos = {op: i for i, op in enumerate(seq)}
    PD = OPT.get("pd", 7)
    rd = {}
    def ard(i):
        b, n = seq[i]
        if n % 14 == 0:
            I("v_add_u32", v(CA[b]), hx(HB[n // 14]), v(T32[b]))
        d = AR + 4 * (i % NR)
        I("ds_read_b64_tr_b16", vr(d, 2), v(CA[b]), mods="offset:%d" % (2048 * (n % 14)))
        rd[i] = I("ds_read_b64_tr_b16", vr(d + 2, 2), v(CA[b]), mods="offset:%d" % (2048 * (n % 14) + 1024))
    for i in range(PD):
        ard(i)
    poll(v(vXP), sleep=0)
    stamp("e1_ready")
    bl = {}
    def zload(n):
        o = (512 * n) & 4095
        bl[n] = I("buffer_load_dwordx4", vr(ZB + 4 * n, 4), v(vBF), SRD_WS, "s%d" % (50 + n // 8),
                  mods="offen" + (" offset:%d" % o if o else "") + " sc1")
    NP = OPT.get("npz", 6)
    for n in range(NP):
        zload(n)
    I("s_lshl_b32", sA, sLW, 12)
    I("s_add_u32", sB, sA, hx(L_STG))
    I("v_add_u32", v(vS[0]), sB, vL16)
    I("s_add_u32", sB, sA, hx(slot(4)))
    I("v_add_u32", v(vS[1]), sB, vL16)
    I("s_mul_i32", sA, sTE, hx(TB))
    I("v_add_u32", v(vG[1]), sA, v(vBF))
    I("v_add_u32", v(vG[0]), hx(R_G[0]), v(vG[1]))
    if R_G[1]:
        I("v_add_u32", v(vG[1]), hx(R_G[1]), v(vG[1]))
    I("s_lshl_b32", sA, sLW, 2)
    I("v_add_u32", v(vCW), sA, v(CNR[0]))
    I("s_lshl_b32", sF, sLW, 10)
    late = []
    def setup2():
        I("s_and_b32", sE, sTG, 1)
        I("s_mul_i32", sE, sE, 28)
        I("s_lshr_b32", sB, sTE, 1)
        tile_off(sG, R_FG, 128, tl=sB)
        I("s_add_u32", sA, sG, sE)
        I("v_min_u32", v(vGP), 6, vLANE)
        I("v_lshl_add_u32", v(vGP), v(vGP), 2, sA)
        I("s_lshl_b32", sD, sJP, 2)
        I("s_add_u32", sD, sD, sG)
        I("s_add_u32", sD, sD, 64)
        I("s_and_b32", sB, sB, 4)
        I("s_and_b32", sA, sLW, 1)
        I("s_lshl_b32", sA, sA, 1)
        I("s_add_u32", sB, sB, sA)
        I("s_lshl_b32", sB, sB, 1)
        I("s_lshl_b32", sA, sJ, 11)
        tile_off(sC, R_G[1], TB, tl=sB, extra=sA)
        I("s_bitcmp1_b32", sTG, 0)
        I("s_cselect_b32", sA, hx(16 * TB), 0)
        I("s_cselect_b32", sB, 0, hx(16 * TB))
        I("s_add_u32", sC2, sC, sB)
        I("s_add_u32", sC, sC, sA)
        I("s_lshl_b32", sE, sJ, 11)
        I("s_add_u32", sE, sE, sA)
        I("s_add_u32", sE, sE, sPAGE)
    def setup3():
        I("v_lshrrev_b32", v(TMP + 6), 5, vLANE)
        I("v_lshlrev_b32", v(TMP + 6), 6, v(TMP + 6))
        I("v_add_u32", v(TMP + 6), hx(L_CS3 + 256), v(TMP + 6))
        I("s_add_u32", sG, sF, hx(slot(4) + 16384))
        I("v_add_u32", v(TMP + 3), sG, vL16)
        I("v_and_b32", v(TMP), 1, vQ4)
        I("v_lshl_or_b32", v(TMP), vQ4, 1, v(TMP))
        I("v_xor_b32", v(TMP), v(TMP), vTOK)
        I("v_lshlrev_b32", v(TMP), 4, v(TMP))
        I("v_lshl_add_u32", v(TMP), vTOK, 8, v(TMP))
        I("s_lshl_b32", sG, sLW, 12)
        I("s_add_u32", sG, sG, hx(L_STG))
        I("v_add_u32", v(vFR[0]), sG, v(TMP))
        I("v_xor_b32", v(vFR[1]), 16, v(vFR[0]))
        I("v_xor_b32", v(vFR[2]), hx(128), v(vFR[0]))
        I("v_xor_b32", v(vFR[3]), hx(144), v(vFR[0]))
        I("v_lshrrev_b32", v(TMP), 5, vLANE)
        I("v_lshlrev_b32", v(TMP), 1, v(TMP))
        I("v_xor_b32", v(TMP), v(TMP), vTOK)
        I("v_lshlrev_b32", v(TMP), 4, v(TMP))
        I("v_and_b32", v(TMP + 1), 31, vLANE)
        I("v_lshl_add_u32", v(TMP), v(TMP + 1), 8, v(TMP))
        I("s_and_b32", sG, sLW, 1)
        I("s_lshl_b32", sG, sG, 13)
        I("s_add_u32", sG, sG, hx(L_STG))
        I("v_add_u32", v(TMP + 2), sG, v(TMP))
        I("s_lshr_b32", sG, sLW, 1)
        I("s_xor_b32", sG, sG, sTG)
        I("s_and_b32", sG, sG, 1)
    nxt, lim, cur = [0], [0], [0]
    pl = {}
    RW = [(0, 0), (64, 1), (64, 2), (0, 1)]
    def pissue(r):
        o = RW[r][0]
        pl[r] = I("buffer_load_dword", v(PT), v(vGP), SRD_WS, 0, mods="offen" + (" offset:%d" % o if o else "") + " sc1")
    def chk(r):
        cls_check(pl[r], PT, vGP, RW[r][1], "e2_ready%d" % r, off=RW[r][0])
        lim[0] += 14
    def gload():
        n = nxt[0]
        nxt[0] += 1
        assert pos[(1, n + 28)] < cur[0] and n < lim[0]
        r, k = divmod(n, 14)
        c = CL[r]
        o = 1024 * (c & 1) + 512 * (k & 1)
        bl[56 + n] = I("buffer_load_dwordx4", vr(ZB + 4 * (n % 28), 4), v(vG[c >> 1]), SRD_WS, GT_[k // 2],
                       mods="offen" + (" offset:%d" % o if o else "") + " sc1")
    ev = {}
    def at(i, fn):
        ev.setdefault(i, []).append(fn)
    wq = []
    wid = {}
    pk = {}
    used = set()
    def check_at(i, which, target, areg=None, then=None, move=1):
        while any(k in used for k in range(i - 3, i + 1)):
            i += move
        used.update(range(i - 3, i + 1))
        at(i - 3, lambda: pk.__setitem__(i, peek(which, areg)))
        def f():
            verify(pk[i], which, target, areg)
            if then:
                then()
        at(i, f)
    def wr(b, q):
        wid[b] = I("ds_write_b128", v(vS[b]), vr(ACH[b] + 4 * q, 4), mods="offset:%d" % (1024 * q))
    for b in range(2):
        i0 = pos[(b, 27)] + 2
        for q in range(4):
            at(i0 + q, lambda b=b, q=q: wr(b, q))
        at(i0 + 3, lambda: arrive(aH, vCW))
        at(i0 + 3, lambda b=b: stamp("e1_h%d" % b))
        at(pos[(b, 28)], lambda b=b: A.wait(lg=wid[b]))
    for h, cn in ((1, aF1), (3, aF3)):
        at(pos[(1, 14 * h + 13)] - PD + 1, lambda cn=cn: arrive(cn))
    at(pos[(0, OPT.get("zk", 10))], lambda: arrive(aH, vCW))
    IE2 = pos[(0, 56)]
    if not OPT.get("d_early", 0):
        at(pos[(0, OPT.get("zd", 18))], lambda: arrive(aZ))
        check_at(pos[(0, 42)] - PD, aXF, 4, move=-1)
    check_at(pos[(0, 20)], bW3, 4)
    def more():
        lim[0] += 14
    def prog(val, st=None):
        I("v_add_u32", v(TMP + 7), val, vTAG)
        A.wait(vm=st)
        def f(m):
            I("s_mov_b64", "exec", 1)
            I("buffer_store_dword", v(TMP + 7), "off", SRD_WS, sD, mods=m)
            I("s_mov_b64", "exec", -1)
        moded(f)
    for q, th in enumerate(rec(setup2) + rec(setup3)):
        at(pos[(0, 31)] + q // 2, th)
        assert pos[(0, 31)] + q // 2 < pos[(0, 50)]
    check_at(pos[(0, 51)], bR, 1, vCW)
    gst = {}
    KC = TMP + 8
    T, CV = 160, 120
    at(pos[(0, 52)], lambda: I("ds_read_b128", vr(KC, 4), v(TMP + 3)))
    for q in range(4):
        at(pos[(0, 53)] + q, lambda q=q: I("ds_write_b128", v(vFR[q]), vr(RES + 4 * q, 4)))
    at(pos[(0, 53)] + 3, lambda: arrive(aFIN))
    cr = {}
    assert pos[(1, 28 + 21)] < pos[(0, 55)] + 2
    for n in range(8):
        at(pos[(0, 55)] + 2 + n // 2, lambda n=n: cr.__setitem__(n, I("ds_read_b128", vr(CV + 4 * n, 4), v(TMP + 6),
                                                                     mods="offset:%d" % (128 * (n // 4) + 16 * (n % 4)))))
    units = [8 * b + 4 * (g >> 1) + (g & 1) for b in range(2) for g in range(4)]
    def init(b):
        l1, l2 = A.newlabel("Lin"), A.newlabel("Lin")
        I("s_cmp_eq_u32", sG, 0)
        I("s_cbranch_scc1", l1)
        for q in range(0, 16, 2):
            I("v_pk_mov_b32", vr(ACH[b] + q, 2), 0, 0) if False else I("v_mov_b64", vr(ACH[b] + q, 2), 0)
        I("s_branch", l2)
        A.label(l1)
        for n in range(4 * b, 4 * b + 4):
            I("v_xor_b32", v(RES + n), hx(16 * units[n]), v(TMP + 2))
            I("ds_read_b128", vr(ACH[b] + 4 * (n % 4), 4), v(RES + n))
        A.lg -= 4
        A.label(l2)
    def mid():
        stamp("e1_pass1")
        NMU, K0, K1, RI = KC, TMP + 12, KC + 2, 14
        I("v_mov_b32", v(K0), v(KC + 1))
        I("v_mov_b32", v(RI), v(KC + 3))
        p = {}
        for b in range(2):
            A.wait(lg=cr[4 * b + 3])
            for q in range(0, 16, 2):
                I("v_pk_fma_f32", vr(ACH[b] + q, 2), vr(CV + 16 * b + q, 2), vr(NMU, 2), vr(ACH[b] + q, 2), mods="op_sel_hi:[1,0,1]")
            if b == 0:
                inj = Inject([lambda: pissue(0), lambda: p.__setitem__(0, peek(bR, vCW))], 40, 20)
            else:
                def late():
                    verify(p[1], aFIN, 8)
                    init(0)
                    for i in range(IE2, IE2 + PD):
                        ard(i)
                ng = OPT.get("g0n", 6) - nxt[0]
                inj = Inject([gload] * ng + [lambda: prog(1, gst[0]), lambda: p.__setitem__(1, peek(aFIN)), late], 46 if ng == 0 else 8, 10 if ng == 0 else 60 // (ng + 2))
            with inj:
                gelu(ACH[b], 16, T, K0, K1, RI, CV + 16 * b, True)
            if b == 0:
                verify(p[0], bR, 2, vCW)
            def f(m, b=b):
                r = None
                for u in range(2):
                    o = 1024 * b + 512 * u
                    r = I("buffer_store_dwordx4", vr(CV + 16 * b + 4 * u, 4), v(vG[1]), SRD_WS, sE,
                          mods="offen" + (" offset:%d" % o if o else "") + (" " + m if m else ""))
                return r
            if b == 1:
                init(1)
            gst[b] = moded(f)
            stamp("a_g%d" % (2 + b))
            if b == 0:
                chk(0)
                for _ in range(OPT.get("b0", 6)):
                    gload()
    at(IE2, mid)
    at(IE2 + 1, lambda: A.wait_lg_all(force=True) if False else I("s_waitcnt", "lgkmcnt(2)"))
    at(IE2 + OPT.get("f3", 14), lambda: prog(2, gst[1]))
    for r, dl in ((1, OPT.get("dl1", 6)), (2, OPT.get("dl2", 2)), (3, OPT.get("dl3", 4))):
        i = pos[(0, 56 + 14 * (r - 1) + dl)]
        at(max(i - OPT.get("pg", 14), IE2 + 1), lambda r=r: pissue(r))
        at(i, lambda r=r: chk(r))
    if OPT.get("u3", 0):
        check_at(pos[(0, 84)] - PD, aL2, 4, move=-1)
        check_at(pos[(0, 98)] - PD, aL3, 4, move=-1)
    else:
        check_at(pos[(0, 84)] - PD, aL3, 4, move=-1)
    at(pos[(0, 56 + 42)], lambda: arrive(aH, vCW))
    SND, RCV, W, o0 = 64, 120, 96, 104
    t0, t1 = TMP + 8, TMP + 9
    rp = {}
    def fin_setup():
        for q in range(16):
            I("v_mov_b32", v(SND + 2 * q + 1), vTAG)
        I("v_lshrrev_b32", v(t0), 1, vTOK)
        I("v_lshrrev_b32", v(t1), 5, vLANE)
        I("v_xor_b32", v(t0), v(t0), v(t1))
        I("v_lshlrev_b32", v(t0), 4, v(t0))
        I("v_and_b32", v(t1), 31, vLANE)
        I("v_lshl_add_u32", v(t0), v(t1), 7, v(t0))
        I("s_lshl_b32", sE, sLW, 12)
        I("s_add_u32", sE, sE, hx(slot(4)))
        I("v_add_u32", v(W), sE, v(t0))
        for n in range(1, 4):
            I("v_xor_b32", v(W + n), hx(32 * n), v(W))
        I("v_lshrrev_b32", v(o0), 3, vLANE)
        I("v_and_b32", v(t1), 7, vLANE)
        I("v_xor_b32", v(t1), v(t1), vQ4)
        I("v_mul_u32_u24", v(o0), hx(896), v(o0))
        I("v_lshl_add_u32", v(o0), v(t1), 4, v(o0))
        I("v_xor_b32", v(t1), 4, v(t1))
        I("v_lshrrev_b32", v(o0 + 1), 3, vLANE)
        I("v_mul_u32_u24", v(o0 + 1), hx(896), v(o0 + 1))
        I("v_lshl_add_u32", v(o0 + 1), v(t1), 4, v(o0 + 1))
        I("s_lshl_b32", sE, sX, 4)
        I("s_add_u32", sE, sE, sTE)
        I("s_mul_i32", sB, sE, hx(16 * 896))
        I("s_add_u32", sB, sB, sJ128)
        for n in range(4):
            I("s_add_u32", "s%d" % (4 + n), sC, hx(TB * n))
            I("s_add_u32", "s%d" % (8 + n), sC2, hx(TB * n))
            I("s_add_u32", "s%d" % (12 + n), sB, hx(8 * 896 * n))
    fs = rec(fin_setup)
    i1 = pos[(1, 56 + 42)] + 1
    for q, th in enumerate(fs):
        at(i1 + q // 3, th)
    assert i1 + len(fs) // 3 < pos[(0, 111)]
    check_at(pos[(0, 111)], bR, 3, vCW, move=-1)
    def finish():
        lown, lend = A.newlabel("Lown"), A.newlabel("Lend")
        sv = (A.vm, A.vm_done, A.lg, A.lg_done)
        I("s_cmp_eq_u32", sG, 0)
        I("s_cbranch_scc1", lown)
        def snd(m):
            for n in range(8):
                for e in range(2):
                    q = 2 * n + e
                    I("v_cvt_pk_bf16_f32", v(SND + 2 * q), v(ACH[q // 8] + 2 * (q % 8)), v(ACH[q // 8] + 2 * (q % 8) + 1))
                I("buffer_store_dwordx4", vr(SND + 4 * n, 4), vL16, SRD_WS, "s%d" % (4 + n // 2),
                  mods="offen" + (" offset:1024" if n & 1 else "") + (" " + m if m else ""))
        moded(snd)
        stamp("x_sent")
        I("s_branch", lend)
        A.label(lown)
        l0, d0 = A.newlabel("Lpoll"), A.newlabel("Lpd")
        I("s_mov_b32", sCNT, hx(40000))
        I("s_mov_b64", "exec", 1)
        A.label(l0)
        I("buffer_load_dword", v(t0), "off", SRD_WS, "s%d" % (8 + OPT.get("wp", 2) // 2), mods="offset:%d sc1" % (4 + 1024 * (OPT.get("wp", 2) & 1)))
        I("s_sub_u32", sCNT, sCNT, 1)
        I("s_waitcnt", "vmcnt(0)")
        I("v_cmp_ne_u32", "vcc", sTAG, v(t0))
        I("s_cbranch_vccz", d0)
        I("s_cmp_lg_u32", sCNT, 0)
        I("s_cbranch_scc1", l0)
        A.label(d0)
        I("s_mov_b64", "exec", -1)
        lp, dn = A.newlabel("Lpoll"), A.newlabel("Lpd")
        A.label(lp)
        for n in range(8):
            I("buffer_load_dwordx4", vr(RCV + 4 * n, 4), vL16, SRD_WS, "s%d" % (8 + n // 2),
              mods="offen" + (" offset:1024" if n & 1 else "") + " sc1")
        I("v_mov_b32", v(t0), vTAG)
        I("v_mov_b32", v(t1), vTAG)
        I("s_sub_u32", sCNT, sCNT, 1)
        for k, n in enumerate(range(8)):
            I("s_waitcnt", "vmcnt(%d)" % (7 - k))
            I("v_min3_u32", v(t0), v(t0), v(RCV + 4 * n + 1), v(RCV + 4 * n + 3))
            I("v_max3_u32", v(t1), v(t1), v(RCV + 4 * n + 1), v(RCV + 4 * n + 3))
            for e in range(2):
                q = 2 * n + e
                I("v_and_b32", v(RCV + 2 * q + 1), hx(0xffff0000), v(RCV + 2 * q))
                I("v_lshlrev_b32", v(RCV + 2 * q), 16, v(RCV + 2 * q))
        I("v_cmp_ne_u32", "vcc", v(t0), v(t1))
        I("s_cbranch_vccz", dn)
        I("s_cmp_gt_i32", sCNT, 0)
        I("s_cbranch_scc1", lp)
        A.label(dn)
        stamp("x_recv")
        for n in range(4):
            ac = ACH[n // 2] + 8 * (n % 2)
            for e in range(0, 8, 2):
                I("v_pk_add_f32", vr(ac + e, 2), vr(ac + e, 2), vr(RCV + 8 * n + e, 2))
            pack(SND + 4 * n, ac, 8)
            I("ds_write_b128", v(W + n), vr(SND + 4 * n, 4))
        rr = [I("ds_read_b128", vr(ACC + 4 * n, 4), v(vS[1]), mods="offset:%d" % (1024 * n)) for n in range(4)]
        for n in range(4):
            A.wait(lg=rr[n])
            I("buffer_store_dwordx4", vr(ACC + 4 * n, 4), v(o0 + (n & 1)), SRD_OUT, "s%d" % (12 + n), mods="offen" + (" sc1" if OPT.get("outsc1") else "") + (" nt" if OPT.get("outnt") else ""))
        A.label(lend)
        A.vm, A.vm_done, A.lg, A.lg_done = sv
    zn = [NP]
    for i, (b, n) in enumerate(seq):
        if OPT.get("fine") and i % 8 == 0:
            fstamp("op%03d" % i)
        for fn in ev.get(i, ()):
            fn()
        key = n if n < 28 else (n if n >= 56 else None)
        A.wait(vm=bl[key] if (b == 0 and key is not None) else None, lg=rd[(i | 1) if (i | 1) in rd else i])
        m32(ACH[b], AR + 4 * (i % NR), ZB + 4 * (n % 28), n in (0, 28))
        cur[0] = i + 1
        done1 = max([m for (bb, m) in seq[:i + 1] if bb == 1], default=-1)
        if zn[0] < 28:
            if b == 0:
                zload(zn[0]); zn[0] += 1
        elif nxt[0] < lim[0] and nxt[0] + 28 <= done1:
            gload()
        elif wq:
            wq.pop(0)()
        if i + PD < len(seq) and not (i < IE2 <= i + PD):
            ard(i + PD)
    assert not wq and nxt[0] == 56
    stamp("e2_mfma")
    finish()
    stamp("end")

def e_helper_setup():
    vS0, vS1, vRC, RT, vFL, vSO, vSO3, vW3 = 28, 29, 30, 31, 32, 33, 34, 35
    I("v_lshrrev_b32", v(vCS), 5, vLANE)
    I("v_lshlrev_b32", v(vCS), 6, v(vCS))
    I("v_add_u32", v(vCS), hx(131072), v(vCS))
    bf_lane(vBF)
    I("s_lshl_b32", sA, sLW, 12)
    I("s_add_u32", sB, sA, hx(L_STG))
    I("v_add_u32", v(vS0), sB, vL16)
    I("s_add_u32", sB, sA, hx(slot(4)))
    I("v_add_u32", v(vS1), sB, vL16)
    I("s_lshl_b32", sA, sJP, 11)
    I("s_cmp_ge_u32", sJP, 7)
    I("s_cselect_b32", sB, hx(15 * TB), 0)
    I("s_add_u32", sA, sA, sB)
    tile_off(sC, R_G[0], TB, tl=sTE, extra=sA)
    I("s_lshr_b32", sB, sTE, 1)
    tile_off(sG, R_FG, 128, tl=sB)
    I("s_lshl_b32", sA, sJP, 2)
    I("s_add_u32", sD, sG, sA)
    vGP, vRP = 37, 38
    I("s_and_b32", sE, sTG, 1)
    I("s_mul_i32", sE, sE, 28)
    I("s_add_u32", sA, sG, sE)
    I("v_min_u32", v(TMP), 6, vLANE)
    I("v_lshl_add_u32", v(vGP), v(TMP), 2, sA)
    I("s_and_b32", sB, sB, 4)
    tile_off(sA, R_FG + 64, 128, tl=sB, extra=sE)
    I("v_min_u32", v(vRP), 6, vTOK)
    I("v_lshl_add_u32", v(vRP), v(vRP), 2, sA)
    I("v_lshl_add_u32", v(vRP), vQ4, 7, v(vRP))
    I("v_min_u32", v(TMP), 13, vTOK)
    I("s_add_u32", sA, sG, 64)
    I("v_lshl_add_u32", v(vRC), v(TMP), 2, sA)
    I("v_lshrrev_b32", v(TMP), 5, vLANE)
    I("v_mul_u32_u24", v(TMP), 3, v(TMP))
    I("s_sub_u32", sA, sTE, 1)
    I("v_add_u32", v(TMP), sA, v(TMP))
    I("v_max_i32", v(TMP), 0, v(TMP))
    I("v_min_i32", v(TMP), 15, v(TMP))
    I("v_min_u32", v(TMP + 1), 6, vTOK)
    I("v_lshlrev_b32", v(TMP + 1), 8, v(TMP + 1))
    I("v_lshl_add_u32", v(TMP), v(TMP), 11, v(TMP + 1))
    I("s_add_u32", sA, sPAGE, hx(R_SX + 4))
    I("v_add_u32", v(TMP), sA, v(TMP))
    I("v_cmp_ne_u32", "vcc", 0, vQ4)
    I("v_cndmask_b32", v(vRC), v(vRC), v(TMP), "vcc")
    I("s_lshl_b32", sF, sLW, 10)
    tile_off(sSP, R_SX, 2048, tl=sTE)
    I("v_and_b32", v(vSO3), 1, vQ4)
    I("v_lshlrev_b32", v(vSO3), 11, v(vSO3))
    I("v_lshl_add_u32", v(vSO3), vTOK, 4, v(vSO3))
    I("v_lshrrev_b32", v(TMP), 5, vLANE)
    I("v_lshl_add_u32", v(vSO), v(TMP), 8, v(vSO3))
    I("v_cvt_f32_u32", v(vW3), v(TMP))
    I("v_sub_f32", v(vW3), 1.0, v(vW3))

def e_helper():
    A.cmt("---- E (B: activation)")
    X, CS, GT = 64, 96, 48
    NMU, K0, K1, RI = 20, 21, 22, 23
    vS0, vS1, vRC, RT, vFL, vSO, vSO3, vW3 = 28, 29, 30, 31, 32, 33, 34, 35
    I("v_mov_b32", v(40), vD3584)
    I("s_add_u32", "s43", sE, hx(224 * 3584 + 128))
    e_helper_setup()
    cnt_setup([16, 17, 18])
    spin(bAB, 4, 1)
    for n in range(8):
        I("ds_read_b128", vr(CS + 4 * n, 4), v(vCS), mods="offset:%d" % (L_CS3 - 131072 + 128 * (n // 4) + 16 * (n % 4)))
    vCW = 19
    I("s_lshl_b32", sA, sLW, 2)
    I("v_add_u32", v(vCW), sA, v(CNR[0]))
    spin(aDP, 4, 1)
    A.wait_vm_all()
    arrive(bW3)
    stamp("b_r5")
    spin(aH, 1, 2, vCW)
    stamp("b_r6")
    lp, dn = A.newlabel("Lpoll"), A.newlabel("Lpd")
    G = X
    I("s_mov_b32", sCNT, hx(40000))
    A.label(lp)
    for q in range(3):
        I("buffer_load_dwordx4", vr(G + 4 * q, 4), v(vSO), SRD_WS, sSP, mods="offen offset:%d sc1" % (512 * q))
    I("buffer_load_dwordx4", vr(G + 12, 4), v(vSO3), SRD_WS, sSP, mods="offen offset:1536 sc1")
    I("s_sub_u32", sCNT, sCNT, 1)
    A.wait_vm_all(force=True)
    I("v_mov_b32", v(TMP), vTAG)
    I("v_mov_b32", v(TMP + 1), vTAG)
    for q in range(4):
        I("v_min3_u32", v(TMP), v(TMP), v(G + 4 * q + 1), v(G + 4 * q + 3))
        I("v_max3_u32", v(TMP + 1), v(TMP + 1), v(G + 4 * q + 1), v(G + 4 * q + 3))
    I("v_cmp_ne_u32", "vcc", v(TMP), v(TMP + 1))
    I("s_cbranch_vccz", dn)
    I("s_cmp_lg_u32", sCNT, 0)
    I("s_cbranch_scc1", lp)
    A.label(dn)
    for o in (0, 2):
        I("v_add_f32", v(G + o), v(G + o), v(G + 4 + o))
        I("v_add_f32", v(G + o), v(G + o), v(G + 8 + o))
        I("v_fmac_f32", v(G + o), v(G + 12 + o), v(vW3))
        I("v_mov_b32", v(G + o + 1), v(G + o))
        I("v_permlane32_swap_b32", v(G + o), v(G + o + 1))
        I("v_add_f32", v(G + o), v(G + o), v(G + o + 1))
    mean_var(G, G + 2, NMU, TMP + 7)
    rstd(TMP + 8, TMP + 7)
    I("v_sub_f32", v(NMU), 0, v(NMU))
    gelu_prep(TMP + 8, K0, K1, RI)
    stamp("b_ready")
    if not OPT.get("d_early", 0):
        spin(aZ, OPT.get("trg", 2), 1)
        for k in range(7):
            I("s_add_u32", "m0", sF, hx(slot(W3S[1][1]) + 4096 * k))
            I("s_add_u32", sH_, "s43", hx(32 * 3584 * k))
            dd = I("buffer_load_dwordx4", v(40), SRD_W3, sH_, mods="offen lds")
        A.wait(vm=dd)
        arrive(aXF)
    def fetch(c):
        spin(aH, c + 2, 1, vCW)
        stamp("b_h%d" % c)
        for q in range(4):
            I("ds_read_b128", vr(X + 16 * (c & 1) + 4 * q, 4), v((vS0, vS1)[c & 1]), mods="offset:%d" % (1024 * q))
        A.wait_lg_all()
    def act(c):
        b = c & 1
        x = X + 16 * b
        for i in range(16):
            I("v_fmac_f32", v(x + i), v(CS + 16 * c + i), v(NMU))
        gelu(x, 16, GT, K0, K1, RI, TMP, False)
    def put(c):
        def f(m):
            r = None
            for u in range(2):
                o = 1024 * (c & 1) + 512 * u
                r = I("buffer_store_dwordx4", vr(TMP + 4 * u, 4), v(vBF), SRD_WS, sC,
                      mods="offen" + (" offset:%d" % o if o else "") + (" " + m if m else ""))
            return r
        r = moded(f)
        stamp("b_g%d" % c)
        return r
    def flag(c, st, off=0):
        I("v_add_u32", v(vFL), c, vTAG)
        A.wait(vm=st)
        def f(m):
            I("s_mov_b64", "exec", 1)
            I("buffer_store_dword", v(vFL), "off", SRD_WS, sD, mods=("offset:%d " % off if off else "") + m)
            I("s_mov_b64", "exec", -1)
        moded(f)
    FD = OPT.get("fd", 50)
    fetch(0)
    I("s_add_u32", sA, sF, hx(slot(4) + 16384))
    I("v_add_u32", v(TMP), sA, vL16)
    I("ds_write_b128", v(TMP), vr(NMU, 4))
    arrive(bR, vCW)
    vGP, vRP = 37, 38
    pl = {}
    def pissue(k, voff, off=0):
        pl[k] = I("buffer_load_dword", v(RT), v(voff), SRD_WS, 0, mods="offen" + (" offset:%d" % off if off else "") + " sc1")
    def level(k, voff, val, off=0, name=None):
        cls_check(pl[k], RT, voff, val, name, sleep=1, off=off)
    flag(0, None, 64)
    o4 = [1, 2, 3] if OPT.get("pk0", 0) else [0, 1, 2, 3]
    with Inject(w4_park(o4[0]) + w4_park(o4[1]) + [lambda: pissue(0, vRC)], 2, OPT.get("iv", 6)):
        act(0)
    st0 = put(0)
    for th in w4_park(o4[2]):
        th()
    level(0, vRC, 0)
    arrive(bR, vCW)
    flag(0, st0)
    for c in o4[3:]:
        for th in w4_park(c):
            th()
    stamp("b_f0")
    spin(aF1, 4, 1)
    w4_unpark(0)
    w4_unpark(1)
    arrive(aFIN)
    stamp("b_l3")
    spin(aF3, 4, 1)
    w4_unpark(2)
    if OPT.get("u3", 0):
        arrive(aL2)
        fetch(1)
        act(1)
        st1 = put(1)
        w4_unpark(3)
        arrive(aL3)
    else:
        w4_unpark(3)
        arrive(aL3)
        fetch(1)
        act(1)
        st1 = put(1)
    flag(1, st1)
    stamp("b_f1")
    spin(aH, 4, 1, vCW)
    flag(3, None, 64)
    pissue(5, vRP)
    level(5, vRP, 3)
    arrive(bR, vCW)
    A.wait_lg_all()

def dump_stamps():
    if not OPT["stamp"]:
        return
    A.wait_vm_all(force=True)
    stamp("drained")
    I("s_memrealtime", sST)
    A.wait_lg_all(force=True)
    I("v_writelane_b32", vSTAMP, "s98", 1)
    I("s_lshl_b32", sA, "s2", 3)
    I("s_add_u32", sA, sA, sW)
    I("s_lshl_b32", sA, sA, 8)
    I("s_add_u32", sA, sA, hx(OFF_STAMP))
    I("v_lshlrev_b32", v(TMP), 2, vLANE)
    I("buffer_store_dword", vSTAMP, v(TMP), SRD_WS, sA, mods="offen")

def epoch_update():
    l = A.newlabel("Lep")
    I("s_cmp_lg_u32", "s2", hx(255))
    I("s_cbranch_scc1", l)
    I("s_cmp_lg_u32", sW, 0)
    I("s_cbranch_scc1", l)
    lp, dn = A.newlabel("Lpoll"), A.newlabel("Lpd")
    I("v_lshrrev_b32", v(TMP), 3, vLANE)
    I("v_lshlrev_b32", v(TMP), PSH, v(TMP))
    I("v_and_b32", v(TMP + 1), 7, vLANE)
    I("v_lshl_add_u32", v(TMP), v(TMP + 1), 7, v(TMP))
    I("s_mov_b32", sA, hx(R_XCC))
    I("s_mov_b32", sCNT, hx(40000))
    A.label(lp)
    for i in range(4):
        I("buffer_load_dword", v(TMP + 4 + i), v(TMP), SRD_WS, sA, mods="offen offset:%d sc1" % (1024 * i))
    A.wait_vm_all(force=True)
    for i in range(4):
        I("v_subrev_u32", v(TMP + 4 + i), sTAG, v(TMP + 4 + i))
    I("v_max_u32", v(TMP + 4), v(TMP + 4), v(TMP + 5))
    I("v_max3_u32", v(TMP + 4), v(TMP + 4), v(TMP + 6), v(TMP + 7))
    I("v_cmp_le_u32", "vcc", 16, v(TMP + 4))
    I("s_cbranch_vccz", dn)
    I("s_sleep", 2)
    I("s_sub_u32", sCNT, sCNT, 1)
    I("s_cmp_lg_u32", sCNT, 0)
    I("s_cbranch_scc1", lp)
    A.label(dn)
    I("s_mov_b32", sA, hx(OFF_EPOCH))
    flag_store(sA)
    A.label(l)

def touch(srd, base, nbytes, mods=""):
    n = -(-nbytes // (32 * 8192))
    if isinstance(base, int):
        I("s_mov_b32", sA, hx(base))
    else:
        I("s_mov_b32", sA, base)
    lim = None
    for i in range(n):
        rem = nbytes - i * 32 * 8192
        if rem < 32 * 8192:
            I("v_cmp_gt_u32", "vcc", hx(rem), v(TMP + 8))
            I("v_cndmask_b32", v(TMP + 10), v(TMP + 9), v(TMP + 8), "vcc")
            va = v(TMP + 10)
        else:
            va = v(TMP + 8)
        I("buffer_load_dword", v(TMP + 11), va, srd, sA, mods="offen" + (" " + mods if mods else ""))
        if i + 1 < n:
            I("s_add_u32", sA, sA, hx(32 * 8192))

def touch_setup():
    I("s_sub_u32", sA, sLI, 28)
    I("s_lshl_b32", sB, sW, 2)
    I("s_add_u32", sA, sA, sB)
    I("s_lshl_b32", sA, sA, 13)
    I("v_lshl_add_u32", v(TMP + 8), vLANE, 7, sA)
    I("v_mov_b32", v(TMP + 9), hx(OOB))

def spare_pre():
    A.cmt("---- spare CU: prefetch")
    I("v_mov_b32", v(TMP + 4), 0)
    I("v_and_b32", vTOK, 15, vLANE)
    touch_setup()
    I("s_getpc_b64", "s[64:65]")
    A.label("L_pc")
    I("s_sub_u32", "s64", "s64", "L_pc-%s_kernel" % NAME)
    I("s_subb_u32", "s65", "s65", 0)
    I("s_and_b32", "s65", "s65", hx(0xffff))
    I("s_mov_b32", "s66", "L_codeend-%s_kernel" % NAME)
    I("s_mov_b32", "s67", hx(0x20000))
    I("s_sub_u32", sA, sLI, 28)
    I("s_lshl_b32", sB, sW, 2)
    I("s_add_u32", sA, sA, sB)
    I("s_lshl_b32", sD, sA, 11)
    I("v_lshlrev_b32", v(TMP + 12), 7, vTOK)
    touch1(SRD_BG, v(TMP + 12), sD)
    A.wait_lg_all(force=True)
    epoch_load()
    srds([60, 8, 4, 12, 16, 20, 24, 28, 32])
    I("v_lshlrev_b32", v(TMP + 11), 7, vLANE)
    def mall(items, off):
        for srd, n in items:
            l = A.newlabel("Lml")
            I("s_sub_u32", sA, sE, hx(off))
            I("s_and_b32", sA, sA, hx(255))
            I("s_cmp_ge_u32", sA, hx(n))
            I("s_cbranch_scc1", l)
            I("s_lshl_b32", sA, sA, 13)
            touch1(srd, v(TMP + 11), sA)
            A.label(l)
            off += n
        return off
    I("s_sub_u32", sA, sLI, 28)
    I("s_lshl_b32", sA, sA, 3)
    I("s_add_u32", sA, sA, sX)
    I("s_lshl_b32", sB, sW, 5)
    I("s_add_u32", sE, sA, sB)
    off = mall([(SRD_WQKV, 147), (SRD_WO, 49), (SRD_W1, 49)], 0)
    I("s_lshl_b32", sG, sD, 2)
    I("s_add_u32", sG, sG, sPAGE)
    I("s_mov_b32", sA, sG)
    I("s_cmp_ge_u32", sD, hx(28 << 11))
    I("s_cmov_b32", sA, hx(OOB))
    I("s_add_u32", sB, sPAGE, hx(R_LOC))
    I("s_cmp_eq_u32", sD, hx(31 << 11))
    I("s_cmov_b32", sA, sB)
    touch1(SRD_WS, v(TMP + 11), sA)
    tag_publish()
    late_consts()
    dma_lane_consts()
    barrier()
    tag_read_finish(tag_read_issue())
    off = mall([(SRD_W2, 49)], off)
    I("s_add_u32", sA, sG, hx(R_2))
    I("s_add_u32", sB, sG, hx(R_SH - 28 * 8192))
    I("s_cmp_ge_u32", sD, hx(28 << 11))
    I("s_cmov_b32", sA, sB)
    touch1(SRD_WS, v(TMP + 11), sA)
    I("s_add_u32", sA, sB, hx(32768))
    I("s_cmp_lt_u32", sD, hx(28 << 11))
    I("s_cmov_b32", sA, hx(OOB))
    touch1(SRD_WS, v(TMP + 11), sA)
    if not OPT["alias"]:
        I("s_add_u32", sB, sPAGE, hx(1 << 21))
        touch(SRD_WS, sB, 112 * TB)
    if OPT["mall"] > 1:
        off = mall([(SRD_W3, 196)], off)
    mode_issue()
    A.wait_vm_all(force=True)
    stamp("sp_mall")
    att_ids()

def spare_att():
    I("s_sub_u32", sE, sLI, 28)
    I("s_lshl_b32", sE, sE, 3)
    I("s_add_u32", sE, sE, sX)
    I("s_lshl_b32", sE, sE, 7)
    l = A.newlabel("Lsa")
    I("s_cmp_ge_u32", sE, hx(28 * 128))
    I("s_cbranch_scc1", l)
    dma_seq(SRD_W3, 3584, slot(3), (sE, 0), 14)
    A.label(l)

def spare_colsum():
    l = A.newlabel("Lsc")
    I("s_cmp_ge_u32", sE, hx(28 * 128))
    I("s_cbranch_scc1", l)
    cl_lane()
    t0 = TMP
    I("v_add_u32", v(t0), hx(slot(3)), v(vCL))
    for s_ in range(14):
        I("ds_read_b64_tr_b16", vr(AREG + 4 * s_, 2), v(t0), mods="offset:%d" % (4096 * s_))
        I("ds_read_b64_tr_b16", vr(AREG + 4 * s_ + 2, 2), v(t0), mods="offset:%d" % (4096 * s_ + 1024))
    I("v_lshlrev_b32", v(TMP + 1), 5, vQ4)
    I("v_lshl_add_u32", v(TMP + 1), vTOK, 4, v(TMP + 1))
    I("s_lshl_b32", sA, sE, 2)
    I("s_lshl_b32", sB, sLW, 7)
    I("s_add_u32", sA, sA, sB)
    I("s_add_u32", sA, sA, hx(OFF_CSG))
    I("v_mov_b32", v(TMP + 5), vTAG)
    I("v_mov_b32", v(TMP + 7), vTAG)
    I("v_cmp_eq_u32", "vcc", 0, vTOK)
    A.wait_lg_all()
    for s_ in range(14):
        m16(ACC, AREG + 4 * s_, ONES, s_ == 0)
    I("v_cndmask_b32", v(TMP + 4), v(ACC + 2), v(ACC), "vcc")
    I("v_cndmask_b32", v(TMP + 6), v(ACC + 3), v(ACC + 1), "vcc")
    I("s_mov_b32", "exec_lo", hx(0x30003))
    I("s_mov_b32", "exec_hi", hx(0x30003))
    I("buffer_store_dwordx4", vr(TMP + 4, 4), v(TMP + 1), SRD_WS, sA, mods="offen sc1")
    I("s_mov_b64", "exec", -1)
    A.label(l)

def cl_lane():
    t0, t1, t2 = TMP, TMP + 1, TMP + 2
    I("v_bfe_u32", v(t0), vLANE, 2, 2)
    I("v_and_b32", v(t1), 1, vQ4)
    I("v_lshl_add_u32", v(t1), v(t1), 2, v(t0))
    I("v_lshrrev_b32", v(t2), 1, vQ4)
    I("v_lshl_add_u32", v(t1), v(t2), 4, v(t1))
    I("v_and_b32", v(t0), 2, v(t0))
    I("v_lshlrev_b32", v(t0), 5, v(t0))
    I("s_lshl_b32", sA, sLW, 5)
    I("v_xor_b32", v(t0), sA, v(t0))
    I("v_lshl_add_u32", v(t0), v(t1), 7, v(t0))
    I("v_and_b32", v(t1), 3, vLANE)
    I("v_lshl_add_u32", v(vCL), v(t1), 3, v(t0))

def spare_post():
    if OPT["warm"]:
        touch_setup()
        I("v_lshlrev_b32", v(TMP + 10), 1, v(TMP + 8))
        I("v_cmp_gt_u32", "vcc", hx(17 * 16384), v(TMP + 10))
        I("v_cndmask_b32", v(TMP + 12), v(TMP + 9), v(TMP + 10), "vcc")
        def w4mall():
            I("s_sub_u32", sA, sLI, 28)
            I("s_lshl_b32", sA, sA, 3)
            I("s_add_u32", sA, sA, sX)
            I("s_lshl_b32", sB, sW, 5)
            I("s_add_u32", sA, sA, sB)
            I("s_lshl_b32", sA, sA, 13)
            I("v_lshlrev_b32", v(TMP + 13), 7, vLANE)
            touch1(SRD_W4, v(TMP + 13), sA)
        for qn, (sg, hi) in enumerate(((0, 0), (0, 1), (1, 0), (1, 1))[:OPT.get("nq", 4)]):
            if qn == OPT.get("w4m", 0):
                w4mall()
            I("s_mov_b32", sA, hx(128 * sg + hi * 224 * 3584))
            touch1(SRD_W3, v(TMP + 10), sA)
            I("s_add_u32", sA, sA, hx(32 * 16384))
            touch1(SRD_W3, v(TMP + 12), sA)
            barrier()
        if OPT.get("w4m", 0) == OPT.get("nq", 4):
            w4mall()
            I("s_waitcnt", "vmcnt(0)")
            barrier()
        stamp("sp_w3")
        I("s_sub_u32", sB, sLI, 28)
        I("s_lshl_b32", sB, sB, 3)
        I("s_add_u32", sB, sB, sW)
        I("v_lshlrev_b32", v(TMP + 10), 7, vLANE)
        def kvr():
            I("s_add_u32", sA, sPAGE, hx(R_K))
            touch1(SRD_WS, v(TMP + 8), sA)
            I("s_add_u32", sA, sA, hx(32 * TB - 32 * 8192))
            touch1(SRD_WS, v(TMP + 8), sA)
        for sg in range(2):
            if OPT.get("kvr", 0) >> sg & 1:
                kvr()
            for i in range(4):
                I("s_add_u32", sC, sB, 32 * i)
                I("s_mul_i32", sD, sC, hx(147))
                I("s_lshr_b32", sD, sD, 10)
                I("s_mul_i32", sA, sD, hx(128 * 896 - 7 * 8192))
                I("s_lshl_b32", sC, sC, 13)
                I("s_add_u32", sA, sA, sC)
                if sg:
                    I("s_add_u32", sA, sA, hx(64 * 896))
                touch1(SRD_W4, v(TMP + 10), sA)
                if i & 1:
                    barrier()
        if OPT.get("kvr", 0) & 4:
            kvr()
        A.wait_vm_all(force=True)
        stamp("sp_w4")

def reset():
    A.vm = A.vm_done = A.lg = A.lg_done = 0

prologue()
I("s_cmp_ge_u32", sLI, 28)
I("s_cbranch_scc1", "L_spare")
I("s_cmp_ge_u32", sW, 4)
I("s_cbranch_scc1", "L_aload")
phase_a_compute()
A.label("L_att")
reset()
att_a()
I("s_cmp_ge_u32", sLI, 28)
I("s_cbranch_scc1", "L_spare2a")
st = c_compute()
e_compute(st)
dump_stamps()
I("s_endpgm")
A.label("L_spare")
reset()
spare_pre()
I("s_cmp_ge_u32", sW, 4)
I("s_cbranch_scc1", "L_sp4")
att_consts()
I("s_branch", "L_att")
A.label("L_sp4")
mode_check()
att_consts_b()
kv_poll_off(TMP + 4, 0)
I("s_branch", "L_attpre")
A.label("L_aload")
ROLE[0] = "B"
reset()
phase_a_loader()
A.label("L_attpre")
att_loader_pre()
att_b()
A.label("L_cload")
c_loader()
e_helper()
dump_stamps()
I("s_endpgm")
A.label("L_spare2a")
ROLE[0] = "A"
reset()
o_flag()
epoch_update()
I("s_waitcnt", "vmcnt(0)")
barrier()
A.label("L_spare2")
spare_post()
dump_stamps()
A.label("L_end")
I("s_endpgm")
A.label("L_codeend")

body = A.finalize()
hdr = open("cdna_kernels/%s.s.ref" % NAME).read().split("; Override launch")[0]
out = hdr + "; @launch grid=(256,1,1) block=(512,1,1) lds=%d\n" % LDS_SIZE
out += """.amdgcn_target "amdgcn-amd-amdhsa--gfx950"
.text
.globl %s_kernel
.p2align 8
.type %s_kernel,@function
%s_kernel:
""" % (NAME, NAME, NAME)
out += body
out += """.section .rodata,"a"
.p2align 6
.amdhsa_kernel %s_kernel
  .amdhsa_next_free_vgpr 256
  .amdhsa_next_free_sgpr 102
  .amdhsa_accum_offset 256
  .amdhsa_group_segment_fixed_size 0
  .amdhsa_kernarg_size 88
  .amdhsa_user_sgpr_count 2
  .amdhsa_user_sgpr_kernarg_segment_ptr 1
  .amdhsa_system_sgpr_workgroup_id_x 1
.end_amdhsa_kernel
""" % NAME
open(sys.argv[1], "w").write(out)
json.dump(dict(stamps=stamp_names, stamps_b=stamp_names_b, PSH=PSH, v5=1, OFF=dict(Q=R_Q, K=R_K, V=R_V, O=R_O, H=R_H, HH=R_HH, X1=R_X1, G=R_G[0], G1=R_G[1],
               STAMP=OFF_STAMP, WS=WS_SIZE)), open(sys.argv[1] + ".json", "w"))
```

```python
import sys, struct, json
from asmlib import Asm

NAME = "sequential_preLN__sliding_block__mixer_s_mlp__prompt"
OPT = dict(stamp=0, alias=1, local=1, warm=1, clean=0, npre=5, fk=9, wolo=3, kvt=0, mall=1, lag=4, w4m=1, u3=1, wp=5, d_early=1, na=4)
KEEP = []
for a in sys.argv[2:]:
    k, v_ = a.split("=")
    if k == "keep":
        KEEP = v_.split(",")
        continue
    OPT[k] = int(v_)

def f2u(x): return struct.unpack("<I", struct.pack("<f", x))[0]
def hx(x): return "0x%x" % (x & 0xffffffff)
def fl(x): return hx(f2u(x))

TB = 14336
PSH = 21 if OPT["alias"] else 22
R_Q, R_2, R_K, R_V = 0, 16 * TB, 32 * TB, 48 * TB
R_HALO = 64 * TB
R_LOC = R_HALO + 2 * TB
R_FO = R_LOC
R_FHH = R_FO + 2048
R_FQ = R_FHH + 2048
R_FG = R_FQ + 2048
R_SH = R_FG + 2048
R_SX = R_SH + 32768
R_FQKV = R_SX + 32768
R_FHALO = R_FQKV + 16384
R_XCC = R_FHALO + 2048
R_END = R_XCC + 4096
assert R_END <= (1 << 21)
if OPT["alias"]:
    R_O, R_HH, R_H, R_X1 = R_Q, R_Q, R_2, R_2
    R_G = (R_K, R_Q)
else:
    R_H = R_2
    R_O = 1 << 21
    R_X1 = R_O + 16 * TB
    R_HH = R_X1 + 16 * TB
    R_G = (R_HH + 48 * TB, R_HH + 16 * TB)
OFF_EPOCH = 8 << PSH
OFF_CSG = OFF_EPOCH + 4096
OFF_STAMP = OFF_CSG + 16384
WS_SIZE = OFF_STAMP + 256 * 8 * 256
OOB = 0x40000000

SLOT = 28672
def slot(i): return SLOT * i
L_XIMG = 3 * SLOT
L_QIMG = 5 * SLOT
L_STG = L_QIMG
L_CS1 = L_QIMG + 16384
L_CS3 = L_CS1 + 256
L_MODE = L_CS3 + 1024
L_TAG = L_MODE + 4
L_CNT = L_MODE + 16
L_CSA = L_CNT + 256
aO, aOF, aC1P, aC1Q, aC2P, aC2Q, aHF, aDP, aXF, bWO, bW1, bCS1, bW2, bAB, bW3 = range(4, 19)
aZ, aF0, aF1, aF2, aF3, aL01, aL2, aL3, aFIN = range(19, 28)
bQ, aV = 28, 29
aH, bR = 32, 36
L_CST = L_CSA
L_STA = L_CSA + 768
assert L_STA + 1024 <= 163840
LDS_SIZE = 163840

SRD_X, SRD_WQKV, SRD_WO, SRD_W1, SRD_W2, SRD_W3, SRD_W4, SRD_OUT = ["s[%d:%d]" % (4 * i, 4 * i + 3) for i in range(1, 9)]
SRD_WS, SRD_BG = "s[60:63]", "s[64:67]"
sX, sLI, sTG, sJ, sW, sLW, sPAGE, sTAG, sTL = ["s%d" % i for i in range(68, 77)]
sMODE, sJ128, sK, sROT, sXCC = "s77", "s78", "s79", "s80", "s81"
sODD = "s[82:83]"
sA, sB, sC, sD, sE, sF, sG, sH_ = ["s%d" % i for i in range(84, 92)]
sHEAD, sTQ0, sC0, sJP, sT1 = "s92", "s93", "s94", "s95", "s96"
sCNT = "s97"
sST = "s[98:99]"
sD2, sC2 = "s100", "s101"

vLANE, vTOK, vQ4, vL16 = "v0", "v1", "v2", "v3"
vD896, vD2688, vD3584, vD4 = "v4", "v5", "v6", "v44"
TRL = [[7, 8], [9, 10]]
TRC = [[11, 12], [13, 14]]
vTAG = "v15"
ONES = 16
HP = 20
HHP = 80
X1P = 36
vMU, vRH, vSTAMP = 44, 45, "v47"
vSPO, vSPW = 5, 46
ACC = 48
BREG = 64
AREG = 128
TMP = 240

def v(i): return "v%d" % i
def vr(i, n): return "v[%d:%d]" % (i, i + n - 1)

A = Asm()
I = A.I
stamp_names = []
stamp_names_b = ["start", "drained"] + ["sp_mall", "sp_w3", "sp_w4"]
stamp_names += stamp_names_b
ROLE = ["A"]

def stamp(name):
    if not OPT["stamp"]:
        return
    if OPT["stamp"] == 2 and name not in ("start", "drained") and name not in KEEP:
        return
    lst = stamp_names_b if ROLE[0] == "B" else stamp_names
    if name not in lst:
        lst.append(name)
    idx = lst.index(name) + 2
    assert idx < 64
    I("s_memrealtime" if OPT.get("rt") else "s_memtime", sST)
    A.wait_lg_all(force=True)
    I("v_writelane_b32", vSTAMP, "s98", idx)

FS = []
def fstamp(name):
    k = len(FS)
    FS.append(name)
    I("s_getreg_b32", "s98", "hwreg(HW_REG_SHADER_CYCLES)") if False else None
    KEEP.append(name)
    stamp(name)

def barrier():
    I("s_barrier")

def sync_counts():
    A.vm_done = A.vm
    A.lg_done = A.lg

def poll(vOff, sleep=1):
    sleep = max(sleep, OPT.get("psl", 0))
    lp, dn = A.newlabel("Lpoll"), A.newlabel("Lpd")
    t = v(TMP + 15)
    I("s_mov_b32", sCNT, hx(40000))
    A.label(lp)
    I("buffer_load_dword", t, vOff, SRD_WS, 0, mods="offen sc1")
    A.wait_vm_all(force=True)
    I("v_cmp_ne_u32", "vcc", sTAG, t)
    I("s_cbranch_vccz", dn)
    if sleep:
        I("s_sleep", sleep)
    I("s_sub_u32", sCNT, sCNT, 1)
    I("s_cmp_lg_u32", sCNT, 0)
    I("s_cbranch_scc1", lp)
    A.label(dn)

def poll_a(vOff, t):
    I("buffer_load_dword", v(t), vOff, SRD_WS, 0, mods="offen sc1")

def poll_b(vOff, t):
    lp, dn = A.newlabel("Lpoll"), A.newlabel("Lpd")
    I("s_mov_b32", sCNT, hx(40000))
    A.label(lp)
    A.wait_vm_all(force=True)
    I("v_cmp_ne_u32", "vcc", sTAG, v(t))
    I("s_cbranch_vccz", dn)
    I("s_sub_u32", sCNT, sCNT, 1)
    I("s_cmp_eq_u32", sCNT, 0)
    I("s_cbranch_scc1", dn)
    poll_a(vOff, t)
    A.vm -= 1
    I("s_branch", lp)
    A.label(dn)

def moded(fn):
    if not OPT["local"]:
        return fn("sc1")
    l1, l2 = A.newlabel("Lsl"), A.newlabel("Lse")
    I("s_cmp_eq_u32", sMODE, 1)
    I("s_cbranch_scc0", l1)
    vm0 = A.vm
    fn("")
    I("s_branch", l2)
    A.label(l1)
    A.vm = vm0
    r = fn("sc1")
    A.label(l2)
    return r

def flag_store(soff, mods="sc1"):
    I("s_mov_b64", "exec", 1)
    r = I("buffer_store_dword", vTAG, "off", SRD_WS, soff, mods=mods)
    I("s_mov_b64", "exec", -1)
    return r

def frag_store(preg, soff, off=0, mods="sc1"):
    m = "offen" + (" offset:%d" % off if off else "") + (" " + mods if mods else "")
    return I("buffer_store_dwordx4", vr(preg, 4), vL16, SRD_WS, soff, mods=m)

def dma_seq(srd, pitch, lds_base, glob, n, mod=None, start=None, w4=None):
    vofs = {896: vD896, 2688: vD2688, 3584: vD3584}[pitch]
    if start is None:
        I("s_mov_b32", sK, 0)
    elif start != "cont":
        I("s_mov_b32", sK, start)
    I("s_lshl_b32", sF, sLW, 10)
    I("s_add_u32", sF, sF, hx(lds_base) if isinstance(lds_base, int) else lds_base)
    if glob[1]:
        I("s_add_u32", sG, glob[0], hx(glob[1]))
    else:
        I("s_mov_b32", sG, glob[0])
    I("s_mov_b32", sCNT, n)
    lp = A.newlabel("Ldma")
    A.label(lp)
    if w4 is None:
        I("s_lshl_b32", sH_, sK, 12)
        I("s_add_u32", "m0", sH_, sF)
        I("s_mul_i32", sH_, sK, hx(32 * pitch))
    else:
        I("s_mov_b32", "m0", sF)
        I("s_add_u32", sF, sF, hx(4096))
        I("s_and_b32", sH_, sK, hx(0xfffe))
        I("s_add_u32", sH_, sH_, sK)
        I("s_mul_i32", sH_, sH_, hx(32 * pitch))
    I("s_add_u32", sH_, sH_, sG)
    I("buffer_load_dwordx4", vofs, srd, sH_, mods="offen lds")
    I("s_add_u32", sK, sK, 1)
    if mod:
        I("s_cmp_eq_u32", sK, mod)
        I("s_cmov_b32", sK, 0)
    I("s_sub_u32", sCNT, sCNT, 1)
    I("s_cmp_lg_u32", sCNT, 0)
    I("s_cbranch_scc1", lp)
    A.vm += n - 1
    return A.vm

def set_tr(base, dst=None, src=None):
    dst = dst or TRC
    src = src or TRL
    if isinstance(base, int):
        I("s_mov_b32", sA, hx(base))
        base = sA
    for b in range(2):
        for a in range(2):
            I("v_add_u32", v(dst[b][a]), base, v(src[b][a]))

def a_frag(dst, f, off, trc=None):
    trc = trc or TRC
    b, a = divmod(f, 2)
    I("ds_read_b64_tr_b16", vr(dst + 4 * f, 2), v(trc[b][a]), mods="offset:%d" % off)
    return I("ds_read_b64_tr_b16", vr(dst + 4 * f + 2, 2), v(trc[b][a]), mods="offset:%d" % (off + 1024))

def a_read(dst, off, trc=None):
    return [a_frag(dst, f, off, trc) for f in range(4)]

def m16(acc, areg, breg, zero):
    I("v_mfma_f32_16x16x32_bf16", vr(acc, 4), vr(areg, 4), vr(breg, 4), "0" if zero else vr(acc, 4))

def gemm(nk, nbuf, npre, aoff, breg, bl=None, bissue=None, zero=True, acc=ACC, areg=AREG, rd=None, fill=None, hook=None):
    if rd is None:
        rd = [a_read(areg + 16 * s, *aoff(s)) for s in range(npre)]
    for s in range(nk):
        if hook:
            hook(s)
        nxt = s + npre
        new = []
        A.wait(vm=bl[s] if bl is not None else None, lg=rd[s][3])
        for f in range(4):
            m16(acc + 4 * f, areg + 16 * (s % nbuf) + 4 * f, breg(s), zero and s == 0)
            if f == 0 and bissue:
                bissue(s)
            if nxt < nk:
                new.append(a_frag(areg + 16 * (nxt % nbuf), f, *aoff(nxt)))
            if fill:
                fill(s, f)
        if nxt < nk:
            rd.append(new)

def stats_reduce(a, b):
    I("v_permlane32_swap_b32", v(a), v(b))
    I("v_add_f32", v(a), v(a), v(b))
    I("v_mov_b32", v(b), v(a))
    I("v_permlane16_swap_b32", v(a), v(b))
    I("v_add_f32", v(a), v(a), v(b))
    I("v_mov_b32", v(b), v(a))
    I("v_permlane32_swap_b32", v(a), v(b))

def mean_var(s_sum, s_sq, mu, var):
    I("v_mul_f32", v(mu), fl(1.0 / 448), v(s_sum))
    I("v_mul_f32", v(var), fl(1.0 / 448), v(s_sq))
    I("v_fma_f32", v(var), "-" + v(mu), v(mu), v(var))
    I("v_max_f32", v(var), 0, v(var))

def rstd(dst, var):
    I("v_add_f32", v(dst), fl(1e-5), v(var))
    I("v_rsq_f32", v(dst), v(dst))

def unswap(p, nfr):
    I("s_mov_b64", "exec", sODD)
    for k in range(nfr):
        I("v_swap_b32", v(p + 4 * k), v(p + 4 * k + 2))
        I("v_swap_b32", v(p + 4 * k + 1), v(p + 4 * k + 3))
    I("s_mov_b64", "exec", -1)

def pack(dst, src, n):
    for i in range(n // 2):
        I("v_cvt_pk_bf16_f32", v(dst + i), v(src + 2 * i), v(src + 2 * i + 1))

def unpack(dst, src, n):
    for i in range(n // 2):
        I("v_lshlrev_b32", v(dst + 2 * i), 16, v(src + i))
        I("v_and_b32", v(dst + 2 * i + 1), hx(0xffff0000), v(src + i))

BC = "op_sel_hi:[1,0]"
def pk_mul_b(d, a, s):
    I("v_pk_mul_f32", vr(d, 2), vr(a, 2), vr(s, 2), mods="op_sel_hi:[1,0]")

GC0 = -2.0 * 0.7978845608028654 * 1.4426950408889634
GC1 = GC0 * 0.044715
def gelu_prep(r, k0, k1, ri):
    I("v_rcp_f32", v(ri), v(r))
    I("v_mul_f32", v(k1), v(r), v(r))
    I("v_mul_f32", v(k0), fl(GC0), v(r))
    I("v_mul_f32", v(k1), v(k1), v(r))
    I("v_mul_f32", v(k1), fl(GC1), v(k1))

def gelu(x, n, t, k0, k1, ri, dst, packed):
    if packed:
        P = range(0, n, 2)
        for i in P: I("v_pk_mul_f32", vr(t + i, 2), vr(x + i, 2), vr(x + i, 2))
        for i in P: I("v_pk_fma_f32", vr(t + i, 2), vr(t + i, 2), vr(k1, 2), vr(k0, 2), mods="op_sel_hi:[1,0,0]")
        for i in P: I("v_pk_mul_f32", vr(t + i, 2), vr(t + i, 2), vr(x + i, 2))
        for i in range(n): I("v_exp_f32", v(t + i), v(t + i))
        for i in P: I("v_pk_fma_f32", vr(t + i, 2), vr(t + i, 2), vr(ri, 2), vr(ri, 2), mods="op_sel_hi:[1,0,0]")
        for i in range(n): I("v_rcp_f32", v(t + i), v(t + i))
        for i in P: I("v_pk_mul_f32", vr(x + i, 2), vr(x + i, 2), vr(t + i, 2))
    else:
        for i in range(n): I("v_mul_f32", v(t + i), v(x + i), v(x + i))
        for i in range(n): I("v_fma_f32", v(t + i), v(t + i), v(k1), v(k0))
        for i in range(n): I("v_mul_f32", v(t + i), v(t + i), v(x + i))
        for i in range(n): I("v_exp_f32", v(t + i), v(t + i))
        for i in range(n): I("v_fma_f32", v(t + i), v(t + i), v(ri), v(ri))
        for i in range(n): I("v_rcp_f32", v(t + i), v(t + i))
        for i in range(n): I("v_mul_f32", v(x + i), v(x + i), v(t + i))
    pack(dst, x, n)

def stat_granule(p):
    a, b = TMP + 8, TMP + 10
    I("v_mov_b32", v(a), 0)
    I("v_mov_b32", v(b), 0)
    for i in range(8):
        I("v_dot2c_f32_bf16", v(a), v(p + i), v(ONES))
        I("v_dot2c_f32_bf16", v(b), v(p + i), v(p + i))
    I("v_mov_b32", v(TMP + 9), vTAG)
    I("v_mov_b32", v(TMP + 11), vTAG)
    stats_reduce(a, b)

def granule_store(m):
    I("s_mov_b64", "exec", hx(0xffff))
    r = I("buffer_store_dwordx4", vr(TMP + 8, 4), vL16, SRD_WS, sD, mods="offen" + (" " + m if m else ""))
    I("s_mov_b64", "exec", -1)
    return r

def stat_aux():
    I("v_cmp_gt_u32", "vcc", 3, vQ4)
    I("v_subrev_u32", v(vSPO), hx(256), vL16)
    I("v_cndmask_b32", v(vSPO), v(vSPO), vL16, "vcc")
    I("v_mov_b32", v(vSPW), 1.0)
    I("v_cndmask_b32", v(vSPW), 0, v(vSPW), "vcc")

def stat_poll_a(soff):
    I("buffer_load_dwordx4", vr(TMP + 4, 4), vL16, SRD_WS, soff, mods="offen sc1")
    I("buffer_load_dwordx4", vr(TMP + 8, 4), v(vSPO), SRD_WS, soff, mods="offen offset:1024 sc1")

def stat_poll(soff):
    lp, dn = A.newlabel("Lpoll"), A.newlabel("Lpd")
    I("s_mov_b32", sCNT, hx(40000))
    A.label(lp)
    A.wait_vm_all(force=True)
    I("v_min3_u32", v(TMP + 12), v(TMP + 5), v(TMP + 7), v(TMP + 9))
    I("v_max3_u32", v(TMP + 13), v(TMP + 5), v(TMP + 7), v(TMP + 9))
    I("v_min3_u32", v(TMP + 12), v(TMP + 12), v(TMP + 11), vTAG)
    I("v_max3_u32", v(TMP + 13), v(TMP + 13), v(TMP + 11), vTAG)
    I("v_cmp_ne_u32", "vcc", v(TMP + 12), v(TMP + 13))
    I("s_cbranch_vccz", dn)
    I("s_sub_u32", sCNT, sCNT, 1)
    I("s_cmp_eq_u32", sCNT, 0)
    I("s_cbranch_scc1", dn)
    stat_poll_a(soff)
    A.vm -= 2
    I("s_branch", lp)
    A.label(dn)

def stat_finish():
    I("v_fmac_f32", v(TMP + 4), v(TMP + 8), v(vSPW))
    I("v_fmac_f32", v(TMP + 6), v(TMP + 10), v(vSPW))
    stats_reduce(TMP + 4, TMP + 6)

def tile_off(dst, reg, stride, tl=sTL, extra=None):
    I("s_mul_i32", dst, tl, hx(stride))
    I("s_add_u32", dst, dst, sPAGE)
    if reg:
        I("s_add_u32", dst, dst, hx(reg))
    if extra:
        I("s_add_u32", dst, dst, extra)

def out_offs(reg, stride, freg, fstride, fsh):
    I("s_lshl_b32", sA, sJ, 11)
    tile_off(sC, reg, stride, extra=sA)
    I("s_lshl_b32", sA, sJ, fsh)
    tile_off(sD, freg, fstride, extra=sA)

def flag_poll_off(dst, n, freg, fstride, shift, tl=sTL):
    I("v_min_u32", v(dst), n - 1, vLANE)
    tile_off(sA, freg, fstride, tl)
    I("v_lshl_add_u32", v(dst), v(dst), shift, sA)

class BLoads:
    def __init__(self, n, soff, vaddr=None, breg=BREG):
        self.n, self.vaddr, self.breg, self.ids = n, vaddr, breg, {}
        for q in range(4):
            I("s_add_u32", "s%d" % (50 + q), soff, hx(4096 * q))
    def issue(self, i):
        if i >= self.n:
            return
        va = self.vaddr(i) if self.vaddr else vL16
        o = (1024 * i) & 4095
        self.ids[i] = I("buffer_load_dwordx4", vr(self.breg + 4 * i, 4), va, SRD_WS, "s%d" % (50 + i // 4),
                        mods="offen" + (" offset:%d" % o if o else "") + " sc1")
    def first(self):
        for i in range(OPT["npre"]):
            self.issue(i)
    def more(self, s):
        self.issue(s + OPT["npre"])
    def last_step(self):
        return self.n - OPT["npre"]

def only(grp, fn):
    l = A.newlabel("Lo")
    I("s_cmp_lt_u32" if grp == "B" else "s_cmp_ge_u32", sW, 4)
    I("s_cbranch_scc1", l)
    sv = (A.vm, A.vm_done, A.lg, A.lg_done)
    fn()
    A.vm, A.vm_done, A.lg, A.lg_done = sv
    A.label(l)

def main_only(fn):
    l = A.newlabel("Lm")
    I("s_cmp_ge_u32", sLI, 28)
    I("s_cbranch_scc1", l)
    sv = (A.vm, A.vm_done, A.lg, A.lg_done)
    fn()
    A.vm, A.vm_done, A.lg, A.lg_done = sv
    A.label(l)

vJUNK = v(254)
def touch1(srd, vofs, soff, mods=""):
    return I("buffer_load_dword", vJUNK, vofs, srd, soff, mods="offen" + (" " + mods if mods else ""))

def grp_touch(srd, base, stride_sh, count):
    I("s_lshl_b32", sA, sLW, 5)
    I("s_add_u32", sA, sA, sLI)
    I("s_lshl_b32", sA, sA, 6 + stride_sh)
    I("v_lshlrev_b32", v(TMP + 12), stride_sh, vLANE)
    if base:
        I("s_add_u32", sA, sA, hx(base))
    for i in range(count):
        touch1(srd, v(TMP + 12), sA)
        if i + 1 < count:
            I("s_add_u32", sA, sA, hx(128 * 64 << stride_sh))

def tr_lane(dst, qadd):
    t0, t1, t2, t3 = TMP, TMP + 1, TMP + 2, TMP + 3
    if qadd:
        I("v_add_u32", v(t3), qadd, vQ4)
        q = v(t3)
    else:
        q = vQ4
    I("v_bfe_u32", v(t0), vLANE, 2, 2)
    I("v_and_b32", v(t1), 1, q)
    I("v_lshl_add_u32", v(t2), v(t1), 2, v(t0))
    I("v_lshrrev_b32", v(t3), 1, q)
    I("v_lshl_add_u32", v(t2), v(t3), 4, v(t2))
    I("v_lshrrev_b32", v(t0), 1, v(t0))
    I("v_lshl_or_b32", v(t0), v(t1), 2, v(t0))
    I("v_and_b32", v(t1), 3, vLANE)
    I("v_xor_b32", v(t0), v(t0), v(t1))
    I("v_lshlrev_b32", v(t0), 4, v(t0))
    I("v_lshl_add_u32", v(t0), v(t2), 7, v(t0))
    I("v_and_b32", v(t1), 1, v(t1))
    I("v_lshl_or_b32", v(dst[0][0]), v(t1), 3, v(t0))
    I("v_xor_b32", v(dst[0][1]), 8, v(dst[0][0]))
    I("v_xor_b32", v(dst[1][0]), 64, v(dst[0][0]))
    I("v_xor_b32", v(dst[1][1]), 64, v(dst[0][1]))

SRDS = {4: (36, 1835008), 8: (38, 448 * 1344 * 2), 60: (56, WS_SIZE), 12: (40, 448 * 448 * 2), 16: (44, 448 * 448 * 2),
        20: (46, 448 * 448 * 2), 24: (48, 448 * 1792 * 2), 28: (50, 448 * 1792 * 2), 32: (52, 1835008)}
def srds(which):
    for d in which:
        src, n = SRDS[d]
        I("s_mov_b32", "s%d" % d, "s%d" % src)
        I("s_and_b32", "s%d" % (d + 1), "s%d" % (src + 1), hx(0xffff))
        I("s_mov_b32", "s%d" % (d + 2), hx(n))
        I("s_mov_b32", "s%d" % (d + 3), hx(0x20000))

def prologue():
    I("s_cmp_ge_u32", "s2", hx(256))
    I("s_cbranch_scc1", "L_end")
    if OPT["stamp"]:
        I("v_mov_b32", vSTAMP, 0)
        I("s_memrealtime", sST)
        A.wait_lg_all(force=True)
        I("v_writelane_b32", vSTAMP, "s98", 0)
        stamp("start")
    I("s_load_dwordx16", "s[36:51]", "s[0:1]", 0)
    I("s_load_dwordx4", "s[52:55]", "s[0:1]", 64)
    I("s_load_dwordx2", "s[56:57]", "s[0:1]", 80)
    I("v_lshrrev_b32", v(TMP), 6, "v0")
    I("v_and_b32", vLANE, 63, "v0")
    I("v_readfirstlane_b32", sW, v(TMP))
    I("s_and_b32", sX, "s2", 7)
    I("s_lshr_b32", sLI, "s2", 3)
    I("s_mul_i32", sTG, sLI, 37)
    I("s_lshr_b32", sTG, sTG, 8)
    I("s_mul_i32", sROT, sTG, 7)
    I("s_sub_u32", sJ, sLI, sROT)
    I("s_lshr_b32", sROT, sROT, 1)
    I("s_lshl_b32", sJ128, sJ, 7)
    I("s_and_b32", sLW, sW, 3)
    I("s_lshl_b32", sTL, sTG, 2)
    I("s_add_u32", sTL, sTL, sLW)
    I("s_lshl_b32", sPAGE, sX, PSH)
    I("v_lshrrev_b32", vQ4, 4, vLANE)

def dma_lane_consts(for_a=False):
    t0, t1, t2 = TMP, TMP + 1, TMP + 2
    I("v_bfe_u32", v(t0), vLANE, 3, 2)
    I("v_lshrrev_b32", v(t1), 5, vLANE)
    I("v_lshl_add_u32", v(t2), v(t1), 3, v(t0))
    I("s_and_b32", sA, sLW, 1)
    I("s_lshl_b32", sA, sA, 2)
    I("s_and_b32", sB, sLW, 2)
    I("s_lshl_b32", sB, sB, 3)
    I("s_add_u32", sA, sA, sB)
    I("v_add_u32", v(t2), sA, v(t2))
    I("v_lshrrev_b32", v(t0), 1, v(t0))
    I("v_lshl_or_b32", v(t0), v(t1), 2, v(t0))
    I("v_and_b32", v(t1), 7, vLANE)
    I("v_xor_b32", v(t0), v(t0), v(t1))
    I("v_lshlrev_b32", v(t0), 4, v(t0))
    for reg, pitch in ((vD896, 896),) + (((vD2688, 2688),) if (PA == 1 and not for_a) else ()):
        I("v_mul_u32_u24", reg, hx(pitch), v(t2))
        I("v_add_u32", reg, reg, v(t0))
    I("v_and_b32", v(t0), 16, vLANE)
    I("v_lshrrev_b32", v(t0), 2, v(t0))
    I("v_xor_b32", v(t0), v(t0), v(t1))
    I("v_lshlrev_b32", v(t0), 4, v(t0))
    for reg, pitch in ((vD4, 896),) + (() if for_a else ((vD3584, 3584),) if PA == 1 else ((vD2688, 2688), (vD3584, 3584))):
        I("v_mul_u32_u24", reg, hx(pitch), v(t2))
        I("v_add_u32", reg, reg, v(t0))

def late_consts1():
    I("v_and_b32", vTOK, 15, vLANE)
    I("v_lshlrev_b32", vL16, 4, vLANE)
    I("s_mov_b32", "s82", hx(0xffff0000))
    I("s_mov_b32", "s83", hx(0xffff0000))
    I("s_mov_b32", sMODE, 0)
    for i in range(4):
        I("v_mov_b32", v(ONES + i), hx(0x3f803f80))

def late_consts2():
    I("s_lshr_b32", sA, sTG, 1)
    I("s_mul_i32", sJP, sA, 14)
    I("s_sub_u32", sJP, sLI, sJP)
    tr_lane(TRL, 0)

def late_consts():
    late_consts1()
    late_consts2()
    for i in range(36, 44):
        I("v_mov_b32", v(i), 0)

def epoch_load():
    l = A.newlabel("Lel")
    I("s_add_u32", "s58", "s56", hx(OFF_EPOCH))
    I("s_addc_u32", "s59", "s57", 0)
    I("s_cmp_lg_u32", sW, 4)
    I("s_cbranch_scc1", l)
    I("s_load_dword", sTAG, "s[58:59]", 0)
    A.label(l)

def tag_publish():
    l = A.newlabel("Lpx")
    I("s_getreg_b32", sXCC, "hwreg(HW_REG_XCC_ID)")
    I("s_and_b32", sXCC, sXCC, 15)
    I("s_cmp_lg_u32", sW, 4)
    I("s_cbranch_scc1", l)
    I("s_lshl_b32", sC, sLI, 7)
    I("s_add_u32", sC, sC, sPAGE)
    I("s_add_u32", sC, sC, hx(R_XCC))
    I("v_mov_b32", v(TMP + 12), hx(L_TAG))
    I("s_waitcnt", "lgkmcnt(0)")
    I("s_mul_i32", sTAG, sTAG, hx(1664525))
    I("s_add_u32", sTAG, sTAG, hx(1013904223))
    I("v_mov_b32", vTAG, sTAG)
    I("s_add_u32", sA, sTAG, sXCC)
    I("v_mov_b32", v(TMP + 13), sA)
    I("ds_write_b32", v(TMP + 12), vTAG)
    A.lg -= 1
    I("s_mov_b64", "exec", 1)
    I("buffer_store_dword", v(TMP + 13), "off", SRD_WS, sC, mods="sc1")
    A.vm -= 1
    I("s_mov_b64", "exec", -1)
    I("s_waitcnt", "lgkmcnt(0)")
    A.label(l)

def tag_read_issue():
    I("v_mov_b32", vTAG, hx(L_TAG))
    return I("ds_read_b32", vTAG, vTAG)

def tag_read_finish(r):
    A.wait(lg=r)
    I("v_readfirstlane_b32", sTAG, vTAG)

def phase_a_compute():
    A.cmt("---- phase A compute")
    t0, t1, t2, t3 = TMP + 4, TMP + 5, TMP + 6, TMP + 7
    I("v_lshrrev_b32", v(t0), 3, vLANE)
    I("v_and_b32", v(t2), 7, vLANE)
    I("v_xor_b32", v(t1), vQ4, v(t2))
    I("v_mul_u32_u24", v(t0), hx(896), v(t0))
    I("v_lshl_add_u32", v(t2), v(t1), 4, v(t0))
    I("v_xor_b32", v(t1), 4, v(t1))
    I("v_lshl_add_u32", v(t3), v(t1), 4, v(t0))
    I("s_lshl_b32", sA, sX, 4)
    I("s_add_u32", sA, sA, sTL)
    I("s_mul_i32", sB, sA, hx(16 * 896))
    I("s_mul_i32", sF, sLW, hx(TB))
    I("s_add_u32", sF, sF, hx(L_XIMG))
    I("s_mov_b32", sK, sJ)
    I("s_mov_b32", sCNT, 7)
    A.wait_lg_all(force=True)
    stamp("kernarg")
    srds([4])
    A.label("L_xdma")
    I("s_lshl_b32", sA, sK, 11)
    I("s_add_u32", "m0", sA, sF)
    I("s_lshl_b32", sA, sK, 7)
    I("s_add_u32", sA, sA, sB)
    I("s_add_u32", sE, sA, hx(8 * 896 - 1024))
    I("buffer_load_dwordx4", v(t2), SRD_X, sA, mods="offen lds")
    I("buffer_load_dwordx4", v(t3), SRD_X, sE, mods="offen offset:1024 lds")
    I("s_add_u32", sK, sK, 1)
    I("s_cmp_eq_u32", sK, 7)
    I("s_cmov_b32", sK, 0)
    I("s_sub_u32", sCNT, sCNT, 1)
    I("s_cmp_lg_u32", sCNT, 0)
    I("s_cbranch_scc1", "L_xdma")
    I("v_mov_b32", v(ACC), 0)
    I("v_lshlrev_b32", v(ACC + 1), 2, vLANE)
    I("ds_write_b32", v(ACC + 1), v(ACC), mods="offset:%d" % 0) if False else None
    I("v_add_u32", v(ACC + 1), hx(L_CNT), v(ACC + 1))
    I("ds_write_b32", v(ACC + 1), v(ACC))
    I("v_add_u32", v(ACC + 1), hx(L_CS3 - L_CNT), v(ACC + 1))
    I("ds_write_b32", v(ACC + 1), v(ACC))
    I("ds_write_b32", v(ACC + 1), v(ACC), mods="offset:256")
    A.wait_lg_all()
    barrier()
    srds([60])
    late_consts1()
    XB, AR, CS = 64, 176, 208
    vB, vT = 35, 43
    xa = [208, 209, 210, 211]
    I("v_lshrrev_b32", v(t0), 1, vTOK)
    I("v_xor_b32", v(t1), v(t0), vQ4)
    I("v_lshlrev_b32", v(t1), 4, v(t1))
    I("v_lshl_add_u32", v(t1), vTOK, 7, v(t1))
    I("s_lshl_b32", sA, sJ, 11)
    I("s_add_u32", sA, sA, sF)
    I("v_add_u32", v(212), sA, v(t1))
    I("v_xor_b32", v(213), 64, v(212))
    I("v_lshrrev_b32", v(t1), 5, vLANE)
    I("v_xor_b32", v(t1), v(t1), v(t0))
    I("v_lshlrev_b32", v(t1), 4, v(t1))
    I("v_lshl_add_u32", v(t1), vTOK, 7, v(t1))
    I("v_and_b32", v(t2), 1, vQ4)
    I("v_mul_u32_u24", v(t2), hx(TB), v(t2))
    I("s_and_b32", sA, sLW, 2)
    I("s_mul_i32", sA, sA, hx(TB))
    I("s_add_u32", sA, sA, hx(L_XIMG))
    I("v_add3_u32", v(xa[0]), v(t1), v(t2), sA)
    for q in range(1, 4):
        I("v_xor_b32", v(xa[q]), hx(32 * q), v(xa[0]))
    tr32_lane([vT, t3])
    I("s_and_b32", sA, sLW, 1)
    I("s_lshl_b32", sA, sA, 6)
    I("v_xor_b32", v(vT), sA, v(vT))
    bf_lane(vB)
    cnt_setup([TMP + 13, TMP + 12, TMP + 11])
    vCA, vSW_, vSR_ = 13, 14, TMP + 10
    I("v_lshrrev_b32", v(vCA), 5, vLANE)
    I("s_lshl_b32", sA, sA, 1)
    I("s_add_u32", sA, sA, hx(L_CSA))
    I("v_lshl_add_u32", v(vCA), v(vCA), 5, sA)
    I("s_lshl_b32", sA, sLW, 8)
    I("s_add_u32", sA, sA, hx(L_STA))
    I("v_lshl_add_u32", v(vSW_), vLANE, 2, sA)
    I("s_and_b32", sA, sLW, 2)
    I("s_lshl_b32", sA, sA, 8)
    I("s_add_u32", sA, sA, hx(L_STA))
    I("v_and_b32", v(vSR_), 31, vLANE)
    I("v_lshl_add_u32", v(vSR_), v(vSR_), 2, sA)
    I("s_lshl_b32", sB, sJ, 1)
    I("s_and_b32", sA, sLW, 1)
    I("s_add_u32", sB, sB, sA)
    I("s_and_b32", sE, sTL, hx(0xfe))
    I("s_lshl_b32", sA, sB, 10)
    tile_off(sC, 0, TB, tl=sE, extra=sA)
    I("s_lshl_b32", sA, sB, 7)
    tile_off(sD, R_FQKV, 1024, tl=sE, extra=sA)
    I("s_lshl_b32", sA, sB, 2)
    tile_off(sD2, R_FQ, 64, tl=sE, extra=sA)
    HB = [slot(0), slot(1), slot(2), slot(3), slot(4), slot(0)]
    TA = [11, 12]
    for h in range(2):
        I("v_add_u32", v(TA[h]), hx(HB[h]), v(vT))
    stamp("setup_done")
    A.wait_vm_all()
    arrive(2)
    I("ds_read_b128", vr(HP, 4), v(212))
    I("ds_read_b128", vr(HP + 4, 4), v(213))
    spin(2, 4)
    stamp("x_dma")
    s_sum, s_sq = TMP + 2, TMP + 3
    I("v_mov_b32", v(s_sum), 0)
    I("v_mov_b32", v(s_sq), 0)
    unswap(HP, 2)
    def xpath(order):
        xl = {}
        def rdx(k):
            xl[k] = I("ds_read_b128", vr(XB + 4 * k, 4), v(xa[k & 3]), mods="offset:%d" % (2048 * (k >> 2)))
        for k in order[:14]:
            rdx(k)
        for n, k in enumerate(order[:14]):
            A.wait(lg=xl[k])
            rdx(order[14 + n])
            for i in range(4):
                I("v_dot2c_f32_bf16", v(s_sum), v(XB + 4 * k + i), v(ONES))
                I("v_dot2c_f32_bf16", v(s_sq), v(XB + 4 * k + i), v(XB + 4 * k + i))
    l1, l2 = A.newlabel("Lxs"), A.newlabel("Lxs")
    I("s_bitcmp1_b32", sW, 0)
    I("s_cbranch_scc1", l1)
    sv = (A.lg, A.lg_done)
    xpath(list(range(28)))
    I("s_branch", l2)
    A.label(l1)
    A.lg, A.lg_done = sv
    xpath(list(range(14, 28)) + list(range(14)))
    A.label(l2)
    I("v_permlane32_swap_b32", v(s_sum), v(s_sq))
    I("v_add_f32", v(s_sum), v(s_sum), v(s_sq))
    I("ds_write_b32", v(vSW_), v(s_sum))
    A.wait_lg_all()
    stamp("stats_done")
    barrier()
    stamp("strip0_landed")
    D, NR = 6, 8
    rd = {}
    def ard(n):
        d = AR + 4 * (n % NR)
        ad = v(TA[(n // 14) & 1])
        I("ds_read_b64_tr_b16", vr(d, 2), ad, mods="offset:%d" % (2048 * (n % 14)))
        rd[n] = I("ds_read_b64_tr_b16", vr(d + 2, 2), ad, mods="offset:%d" % (2048 * (n % 14) + 1024))
    I("ds_read2_b32", vr(TMP + 4, 2), v(vSR_), mods="offset0:0 offset1:32")
    I("ds_read2_b32", vr(TMP + 6, 2), v(vSR_), mods="offset0:64 offset1:96")
    tg_ = tag_read_issue()
    for n in range(D):
        ard(n)
    side = []
    def rec(fn):
        global I
        old = I
        out = []
        def J(*a, **k):
            out.append(lambda a=a, k=k: old(*a, **k))
        I = J
        fn()
        I = old
        return out
    def lnfin():
        I("v_readfirstlane_b32", sTAG, vTAG)
        I("v_add_f32", v(TMP + 4), v(TMP + 4), v(TMP + 6))
        I("v_add_f32", v(TMP + 5), v(TMP + 5), v(TMP + 7))
        mean_var(TMP + 4, TMP + 5, vMU, TMP + 6)
        rstd(vRH, TMP + 6)
        I("v_sub_f32", v(vMU), 0, v(vMU))
        I("v_mul_f32", v(TMP + 8), fl(1.4426950408889634 / 28 ** 0.5), v(vRH))
    st = {}
    def cs_read(i):
        r = None
        for g in range(4):
            r = I("ds_read_b128", vr(CS + 4 * g, 4), v(vCA), mods="offset:%d" % (256 * i + 64 * (g >> 1) + 16 * (g & 1)))
        return r
    def epi_pre():
        for q in range(16):
            I("v_mul_f32", v(CS + q), v(CS + q), v(vMU))
    def epi_add(ac):
        for q in range(16):
            I("v_add_f32", v(CS + q), v(CS + q), v(ac + q))
    def epi_valu(i):
        for q in range(16):
            I("v_mul_f32", v(CS + q), v(CS + q), v(vRH if i < 2 else TMP + 8))
        pack(TMP, CS, 16)
    def epi_store(i, m="sc1"):
        I("s_add_u32", sA, sC, hx((R_K, R_V, R_Q)[i]))
        for u in range(2):
            st[i] = I("buffer_store_dwordx4", vr(TMP + 4 * u, 4), v(vB), SRD_WS, sA,
                      mods="offen" + (" offset:512" if u else "") + (" " + m if m else ""))
        return st[i]
    FK = OPT.get("fk2", 62)
    for n in range(84):
        i, k = divmod(n, 28)
        if k == 28 - D and i < 2:
            A.wait_lg_all()
            barrier()
            stamp("strip%d_landed" % (i + 1))
            csr = cs_read(i)
            if i == 1 and OPT["local"]:
                I("ds_read_b32", v(TMP + 9), v(CNR[0]), mods="offset:%d" % (65536 + L_MODE - L_CNT)) if False else None
                I("v_mov_b32", v(TMP + 9), hx(L_MODE))
                I("ds_read_b32", v(TMP + 9), v(TMP + 9))
        if n % 14 == 14 - D and n // 14 + 2 < 6:
            I("v_add_u32", v(TA[(n // 14) & 1]), hx(HB[n // 14 + 2]), v(vT))
        if n == 1:
            side += rec(lnfin)
        if k == 24 and i < 2:
            A.wait(lg=csr)
            side += rec(epi_pre)
        if k < 2 and i > 0:
            assert not side
            epi_add((ACC, ACC2)[k])
        if k == 2 and i > 0:
            side += rec(lambda: epi_valu(i - 1)) + [lambda i=i: (epi_store(i - 1), stamp("stored%d" % (i - 1)))]
        if n == FK:
            A.wait(vm=st[0])
            flag_store(sD)
            stamp("flag0")
        if n == 78:
            spin(3, 4)
            csr = cs_read(2)
        if n == 80:
            A.wait(lg=csr)
            side += rec(epi_pre)
        if n % 2 == 0:
            A.wait(lg=rd[n + 1])
        m32((ACC, ACC2)[n & 1], AR + 4 * (n % NR), XB + 4 * k, k < 2)
        if n + D < 84:
            ard(n + D)
        for _ in range(4):
            if side:
                side.pop(0)()
    assert not side
    if OPT["local"]:
        I("v_readfirstlane_b32", sMODE, v(TMP + 9))
    I("s_add_u32", sD, sD, 4)
    epi_add(ACC)
    epi_add(ACC2)
    epi_valu(2)
    moded(lambda m: epi_store(2, m))
    stamp("q_stored")
    A.wait(vm=st[1])
    flag_store(sD)
    stamp("flag1")
    A.wait(vm=st[2])
    moded(lambda m: flag_store(sD2, m))
    stamp("q_flag")
    srds([24, 28, 32])
    late_consts2()
    att_ids()
    att_consts()
    c_setup()
    e_table(True)
    stamp("setup2")

def phase_a_compute1():
    A.cmt("---- phase A compute")
    t0, t1, t2, t3 = TMP + 4, TMP + 5, TMP + 6, TMP + 7
    I("v_lshrrev_b32", v(t0), 3, vLANE)
    I("v_and_b32", v(t2), 7, vLANE)
    I("v_xor_b32", v(t1), vQ4, v(t2))
    I("v_mul_u32_u24", v(t0), hx(896), v(t0))
    I("v_lshl_add_u32", v(t2), v(t1), 4, v(t0))
    I("v_xor_b32", v(t1), 4, v(t1))
    I("v_lshl_add_u32", v(t3), v(t1), 4, v(t0))
    I("s_lshl_b32", sA, sX, 4)
    I("s_add_u32", sA, sA, sTL)
    I("s_mul_i32", sB, sA, hx(16 * 896))
    I("s_mul_i32", sF, sLW, hx(TB))
    I("s_add_u32", sF, sF, hx(L_XIMG))
    I("s_mov_b32", sK, sJ)
    I("s_mov_b32", sCNT, 7)
    A.wait_lg_all(force=True)
    stamp("kernarg")
    srds([4])
    A.label("L_xdma")
    I("s_lshl_b32", sA, sK, 11)
    I("s_add_u32", "m0", sA, sF)
    I("s_lshl_b32", sA, sK, 7)
    I("s_add_u32", sA, sA, sB)
    I("s_add_u32", sE, sA, hx(8 * 896 - 1024))
    I("buffer_load_dwordx4", v(t2), SRD_X, sA, mods="offen lds")
    I("buffer_load_dwordx4", v(t3), SRD_X, sE, mods="offen offset:1024 lds")
    I("s_add_u32", sK, sK, 1)
    I("s_cmp_eq_u32", sK, 7)
    I("s_cmov_b32", sK, 0)
    I("s_sub_u32", sCNT, sCNT, 1)
    I("s_cmp_lg_u32", sCNT, 0)
    I("s_cbranch_scc1", "L_xdma")
    I("v_mov_b32", v(ACC), 0)
    I("v_lshlrev_b32", v(ACC + 1), 2, vLANE)
    I("ds_write_b32", v(ACC + 1), v(ACC), mods="offset:%d" % 0) if False else None
    I("v_add_u32", v(ACC + 1), hx(L_CNT), v(ACC + 1))
    I("ds_write_b32", v(ACC + 1), v(ACC))
    I("v_add_u32", v(ACC + 1), hx(L_CS3 - L_CNT), v(ACC + 1))
    I("ds_write_b32", v(ACC + 1), v(ACC))
    I("ds_write_b32", v(ACC + 1), v(ACC), mods="offset:256")
    barrier()
    srds([60, 24, 28, 32])
    late_consts1()
    late_consts2()
    I("v_lshrrev_b32", v(t0), 1, vTOK)
    I("v_xor_b32", v(t0), v(t0), vQ4)
    I("v_lshlrev_b32", v(t0), 4, v(t0))
    I("v_lshl_add_u32", v(t0), vTOK, 7, v(t0))
    I("v_add_u32", v(t0), sF, v(t0))
    I("v_xor_b32", v(t1), 64, v(t0))
    I("s_lshl_b32", sA, sJ, 11)
    I("v_add_u32", v(t2), sA, v(t0))
    I("v_add_u32", v(t3), sA, v(t1))
    c_setup()
    stamp("setup_done")
    A.wait_vm_all()
    stamp("x_dma")
    xl = [I("ds_read_b128", vr(BREG + 4 * s, 4), v(t1 if s & 1 else t0), mods="offset:%d" % (2048 * (s >> 1))) for s in range(14)]
    I("ds_read_b128", vr(HP, 4), v(t2))
    xr = I("ds_read_b128", vr(HP + 4, 4), v(t3))
    s_sum, s_sq = TMP + 4, TMP + 5
    s_sum, s_sq = TMP + 2, TMP + 3
    I("v_mov_b32", v(s_sum), 0)
    I("v_mov_b32", v(s_sq), 0)
    for s in range(14):
        A.wait(lg=xl[s])
        for i in range(4):
            I("v_dot2c_f32_bf16", v(s_sum), v(BREG + 4 * s + i), v(ONES))
            I("v_dot2c_f32_bf16", v(s_sq), v(BREG + 4 * s + i), v(BREG + 4 * s + i))
    stamp("x_landed")
    stats_reduce(s_sum, s_sq)
    mu, var, r = TMP + 6, TMP + 7, TMP + 8
    mean_var(s_sum, s_sq, mu, var)
    rstd(r, var)
    I("v_mul_f32", v(mu), "-" + v(mu), v(r), mods="") if False else I("v_mul_f32", v(mu), v(mu), v(r))
    I("v_sub_f32", v(mu), 0, v(mu))
    for i in range(56):
        lo = TMP + 10 + 2 * (i & 1)
        I("v_lshlrev_b32", v(lo), 16, v(BREG + i))
        I("v_and_b32", v(lo + 1), hx(0xffff0000), v(BREG + i))
        I("v_pk_fma_f32", vr(lo, 2), vr(lo, 2), vr(r, 2), vr(mu, 2), mods="op_sel_hi:[1,0,0]")
        if i:
            p = TMP + 10 + 2 * ((i - 1) & 1)
            I("v_cvt_pk_bf16_f32", v(BREG + i - 1), v(p), v(p + 1))
    I("v_cvt_pk_bf16_f32", v(BREG + 55), v(TMP + 12), v(TMP + 13))
    A.wait(lg=xr)
    unswap(HP, 2)
    stamp("ln_done")
    TR2 = [[120, 121], [122, 123]]
    pend = [None]
    pq = [None]
    cnt_setup([124, 125, 126])

    def strip(i):
        if i == 0:
            set_tr(slot(0))
            aoff = lambda s: (4096 * s, TRC)
        else:
            s1, s2 = ((2, 3), (4, 0))[i - 1]
            I("s_mov_b32", sB, hx(slot(s1)))
            I("s_mov_b32", sE, hx(slot(s2)))
            I("s_bitcmp1_b32", sTG, 0)
            I("s_cselect_b32", sF, sE, sB)
            I("s_cselect_b32", sE, sB, sE)
            set_tr(sF)
            set_tr(sE, dst=TR2)
            aoff = lambda s: (4096 * (s % 7), TRC if s < 7 else TR2)
        if i == 2 and OPT["local"]:
            I("v_mov_b32", v(TMP + 9), hx(L_MODE))
        if i < 2:
            barrier()
        else:
            verify(pq[0], bQ, 4)
        stamp("strip%d_landed" % i)
        if i == 0:
            tg_ = tag_read_issue()
        if i == 2 and OPT["local"]:
            I("ds_read_b32", v(TMP + 9), v(TMP + 9))
        def hook(s):
            if s == OPT["fk"] and pend[0] is not None:
                A.wait(vm=pend[0])
                flag_store(sD)
                stamp("flag%d" % (i - 1))
        gemm(14, 4, 2, aoff, lambda s: BREG + 4 * s, hook=hook)
        if i == 1:
            arrive(aV)
            pq[0] = peek(bQ)
        if i == 0:
            tag_read_finish(tg_)
        if i < 2:
            out_offs((R_K, R_V)[i], TB, R_FQKV + 4 * i, 1024, 7)
        else:
            out_offs(R_Q, TB, R_FQ, 128, 2)
            if OPT["local"]:
                I("v_readfirstlane_b32", sMODE, v(TMP + 9))
            I("v_mov_b32", v(TMP + 8), fl(1.4426950408889634 / 28 ** 0.5))
            for k in range(0, 16, 2):
                pk_mul_b(ACC + k, ACC + k, TMP + 8)
        pack(TMP, ACC, 16)
        unswap(TMP, 2)
        if i < 2:
            frag_store(TMP, sC)
            pend[0] = frag_store(TMP + 4, sC, 1024)
        else:
            pend[0] = store_out(TMP)
    for i in range(3):
        strip(i)
    stamp("q_stored")
    att_ids()
    e_table(True)
    ack_flag(pend[0], "q_flag")
    att_consts()
    stamp("setup2")

def half_bases(col):
    I("s_bitcmp1_b32", sTG, 0)
    I("s_cselect_b32", sB, hx(224 * 2688), 0)
    I("s_cselect_b32", sE, 0, hx(224 * 2688))
    I("s_add_u32", sB, sB, sJ128)
    I("s_add_u32", sE, sE, sJ128)

def phase_a_loader1():
    A.cmt("---- phase A loader")
    dma_lane_consts()
    half_bases(0)
    A.wait_lg_all(force=True)
    epoch_load()
    srds([8, 60, 4, 12, 16, 20, 24, 28, 32])
    late_consts()
    barrier()
    dma_seq(SRD_WQKV, 2688, slot(0), (sJ128, 896), 4, mod=14, start=sROT)
    tag_publish()
    TP = OPT.get("tvq", 0)
    def lead():
        I("s_mul_i32", sA, sTG, hx(112))
        I("s_and_b32", sC, sLW, 1)
        I("s_mul_i32", sC, sC, 56)
        I("s_add_u32", sA, sA, sC)
        I("v_min_u32", v(TMP + 9), 55, vLANE)
        I("v_add_u32", v(TMP + 9), sA, v(TMP + 9))
        I("v_mul_u32_u24", v(TMP + 9), hx(2688), v(TMP + 9))
        I("s_cmp_lt_u32", sLW, 2)
        I("s_cselect_b32", sA, hx(1792), 0)
        I("s_add_u32", sA, sA, sJ128)
        touch1(SRD_WQKV, v(TMP + 9), sA)
    if TP and TP < 10:
        dma_seq(SRD_WQKV, 2688, slot(0), (sJ128, 896), TP, mod=14, start="cont")
        lead()
        d0 = dma_seq(SRD_WQKV, 2688, slot(0), (sJ128, 896), 10 - TP, mod=14, start="cont")
    else:
        d0 = dma_seq(SRD_WQKV, 2688, slot(0), (sJ128, 896), 10, mod=14, start="cont")
        if TP:
            lead()
    dma_seq(SRD_WQKV, 2688, slot(2), (sB, 1792), OPT.get("v1n", 7))
    A.wait(vm=d0)
    barrier()
    if not OPT.get("ml", 1):
        tag_read_finish(tag_read_issue())
        mode_issue()
    if OPT.get("v1n", 7) < 7:
        dma_seq(SRD_WQKV, 2688, slot(2), (sB, 1792), 7 - OPT["v1n"], start="cont")
    d1 = dma_seq(SRD_WQKV, 2688, slot(3), (sE, 1792), 7)
    dma_seq(SRD_WQKV, 2688, slot(4), (sB, 0), 7)
    if OPT.get("ml", 1):
        tag_read_finish(tag_read_issue())
        mode_issue(True)
    A.wait(vm=d1)
    barrier()
    d2 = dma_seq(SRD_WQKV, 2688, slot(0), (sE, 0), 7)
    att_ids()
    att_consts_b()
    kv_poll_off(TMP + 4, 0)
    cnt_setup([23, 24, 25])
    A.wait(vm=d2)
    mode_check()
    arrive(bQ)
    stamp("b_q")
    WL = OPT.get("wolo", 1)
    if WL == 1:
        spin(aV, 4, 1)
        dma_seq(SRD_WO, 896, slot(3), (sJ128, 0), 7)
    if WL == 3:
        I("s_mov_b32", sA, sJ128)
        for k in range(7):
            I("buffer_load_dwordx4", vr(PARK + 4 * k, 4), vD896, SRD_W2, sA, mods="offen")
            I("s_add_u32", sA, sA, hx(32 * 896))

def colsum_a(i, bases):
    if OPT.get("nocs"):
        return
    t0, t1 = TMP, TMP + 1
    I("v_add_u32", v(t0), hx(bases[0]), v(vCL))
    I("v_add_u32", v(t1), hx(bases[1]), v(vCL))
    rd = []
    for s_ in range(14):
        ad = v(t0 if s_ < 7 else t1)
        I("ds_read_b64_tr_b16", vr(AREG + 4 * s_, 2), ad, mods="offset:%d" % (4096 * (s_ % 7)))
        rd.append(I("ds_read_b64_tr_b16", vr(AREG + 4 * s_ + 2, 2), ad, mods="offset:%d" % (4096 * (s_ % 7) + 1024)))
    A.wait_lg_all()
    for s_ in range(14):
        m16(ACC, AREG + 4 * s_, ONES, s_ == 0)
    I("s_mov_b32", "exec_lo", hx(0x10001))
    I("s_mov_b32", "exec_hi", hx(0x10001))
    I("ds_write_b128", v(vCW), vr(ACC, 4), mods="offset:%d" % (256 * i))
    I("s_mov_b64", "exec", -1)
    A.wait_lg_all()

vCL, vCW = 20, 21
def phase_a_loader():
    A.cmt("---- phase A loader")
    dma_lane_consts()
    A.wait_lg_all(force=True)
    epoch_load()
    srds([8, 60])
    barrier()
    dma_seq(SRD_WQKV, 2688, slot(0), (sJ128, 896), 4, mod=14, start=sROT)
    tag_publish()
    d0 = dma_seq(SRD_WQKV, 2688, slot(0), (sJ128, 896), 10, mod=14, start="cont")
    dma_seq(SRD_WQKV, 2688, slot(2), (sJ128, 1792), 7)
    late_consts1()
    t0, t1, t2 = TMP, TMP + 1, TMP + 2
    I("v_bfe_u32", v(t0), vLANE, 2, 2)
    I("v_and_b32", v(t1), 1, vQ4)
    I("v_lshl_add_u32", v(t1), v(t1), 2, v(t0))
    I("v_lshrrev_b32", v(t2), 1, vQ4)
    I("v_lshl_add_u32", v(t1), v(t2), 4, v(t1))
    I("v_and_b32", v(t0), 2, v(t0))
    I("v_lshlrev_b32", v(t0), 5, v(t0))
    I("s_lshl_b32", sA, sLW, 5)
    I("v_xor_b32", v(t0), sA, v(t0))
    I("v_lshl_add_u32", v(t0), v(t1), 7, v(t0))
    I("v_and_b32", v(t1), 3, vLANE)
    I("v_lshl_add_u32", v(vCL), v(t1), 3, v(t0))
    I("s_lshl_b32", sA, sLW, 6)
    I("s_add_u32", sA, sA, hx(L_CSA))
    I("v_lshl_add_u32", v(vCW), vQ4, 4, sA)
    cnt_setup([23, 24, 25])
    A.wait(vm=d0)
    stamp("b_k")
    barrier()
    d1 = dma_seq(SRD_WQKV, 2688, slot(3), (sJ128, 1792 + 224 * 2688), 7)
    tag_read_finish(tag_read_issue())
    mode_issue()
    dma_seq(SRD_WQKV, 2688, slot(4), (sJ128, 0), 7)
    I("s_setprio", 2)
    colsum_a(0, (slot(0), slot(1)))
    A.wait(vm=d1)
    stamp("b_v")
    barrier()
    d2 = dma_seq(SRD_WQKV, 2688, slot(0), (sJ128, 224 * 2688), 7)
    colsum_a(1, (slot(2), slot(3)))
    A.wait(vm=d2)
    mode_check()
    stamp("b_q")
    barrier()
    colsum_a(2, (slot(4), slot(0)))
    arrive(3)
    I("s_setprio", 0)
    srds([12, 16, 20, 24, 28, 32])
    dma_seq(SRD_WO, 896, slot(3), (sJ128, 0), 7)
    late_consts2()
    I("v_mov_b32", v(43), 0)
    att_ids()
    att_consts_b()
    kv_poll_off(TMP + 4, 0)

L_KIMG, L_VIMG = slot(1), slot(2)
def att_ids():
    I("s_and_b32", sHEAD, sLI, 15)
    I("s_lshr_b32", sA, sLI, 4)
    I("s_lshl_b32", sA, sA, 3)
    I("s_lshl_b32", sTQ0, sX, 4)
    I("s_add_u32", sTQ0, sTQ0, sA)
    I("s_mul_i32", sC0, sHEAD, 7)
    I("s_lshr_b32", sC0, sC0, 1)
    I("s_lshl_b32", sA, sLW, 1)
    I("s_add_u32", sT1, sTQ0, sA)

def kv_poll_off(dst, e):
    t0, t2, t3 = TMP, TMP + 2, TMP + 3
    I("s_lshr_b32", sA, sC0, 2)
    I("s_add_u32", sB, sC0, 3)
    I("s_lshr_b32", sB, sB, 2)
    I("s_sub_u32", sB, sB, sA)
    I("v_and_b32", v(t0), sB, vLANE)
    I("v_add_u32", v(t0), sA, v(t0))
    if e is None:
        I("s_and_b32", sA, sT1, 15)
        I("s_lshl_b32", sA, sA, 6)
        I("s_add_u32", sA, sA, sPAGE)
        I("s_add_u32", sA, sA, hx(R_FQ))
        I("v_lshl_add_u32", v(dst), v(t0), 2, sA)
        return
    I("v_lshlrev_b32", v(t0), 7, v(t0))
    I("s_mul_i32", sA, sLW, 6)
    I("s_add_u32", sA, sA, sTQ0)
    I("s_sub_u32", sA, sA, 16)
    I("v_and_b32", v(t2), hx(0xfe), vLANE)
    I("v_min_u32", v(t2), 4, v(t2))
    I("v_add_u32", v(t3), sA, v(t2))
    I("v_max_i32", v(t3), 0, v(t3))
    I("v_lshrrev_b32", v(dst), 4, v(t3))
    I("v_lshlrev_b32", v(dst), PSH, v(dst))
    I("v_add_u32", v(dst), v(dst), v(t0))
    I("v_and_b32", v(t0), 15, v(t3))
    I("v_lshl_add_u32", v(dst), v(t0), 10, v(dst))
    I("v_add_u32", v(dst), hx(R_FQKV + 4 * e), v(dst))

def kv_poll_off1(dst, e):
    t0, t2, t3 = TMP, TMP + 2, TMP + 3
    I("s_lshr_b32", sA, sC0, 3)
    I("s_add_u32", sB, sC0, 3)
    I("s_lshr_b32", sB, sB, 3)
    I("s_sub_u32", sB, sB, sA)
    I("v_and_b32", v(t0), sB, vLANE)
    I("v_add_u32", v(t0), sA, v(t0))
    I("v_lshrrev_b32", v(t2), 1, vLANE)
    if e is None:
        I("s_and_b32", sA, sTQ0, 15)
        I("s_lshl_b32", sB, sLW, 1)
        I("s_add_u32", sA, sA, sB)
        I("v_and_b32", v(t2), 1, v(t2))
        I("v_add_u32", v(t2), sA, v(t2))
        I("v_lshlrev_b32", v(t0), 2, v(t0))
        I("v_lshl_add_u32", v(t0), v(t2), 7, v(t0))
        I("s_add_u32", sA, sPAGE, hx(R_FQ))
        I("v_add_u32", v(dst), sA, v(t0))
        return
    I("v_lshlrev_b32", v(t0), 7, v(t0))
    I("s_mul_i32", sA, sLW, 6)
    I("s_add_u32", sA, sA, sTQ0)
    I("s_sub_u32", sA, sA, 16)
    I("v_min_u32", v(t2), 5, v(t2))
    I("v_add_u32", v(t3), sA, v(t2))
    I("v_max_i32", v(t3), 0, v(t3))
    I("v_lshrrev_b32", v(dst), 4, v(t3))
    I("v_lshlrev_b32", v(dst), PSH, v(dst))
    I("v_add_u32", v(dst), v(dst), v(t0))
    I("v_and_b32", v(t0), 15, v(t3))
    I("v_lshl_add_u32", v(dst), v(t0), 10, v(dst))
    I("v_add_u32", v(dst), hx(R_FQKV + 4 * e), v(dst))

PA = OPT.get('pa', 1)
if PA == 1:
    kv_poll_off = kv_poll_off1
    phase_a_compute = phase_a_compute1
    phase_a_loader = phase_a_loader1

def kv_dma(reg, img, vsrc):
    last = None
    I("s_mul_i32", sC, sLW, 6)
    I("s_lshl_b32", sF, sC, 10)
    I("s_add_u32", sF, sF, hx(img))
    I("s_add_u32", sC, sC, sTQ0)
    I("s_sub_u32", sC, sC, 16)
    I("s_lshl_b32", sE, sC0, 8)
    I("s_add_u32", sE, sE, hx(reg))
    for i in range(6):
        I("s_add_u32", "m0", sF, hx(1024 * i))
        I("s_add_u32", sA, sC, i)
        I("s_lshr_b32", sB, sA, 4)
        I("s_lshl_b32", sB, sB, PSH)
        I("s_and_b32", sG, sA, 15)
        I("s_mul_i32", sG, sG, hx(TB))
        I("s_add_u32", sB, sB, sG)
        I("s_add_u32", sB, sB, sE)
        I("s_cmp_lt_i32", sA, 0)
        I("s_cmov_b32", sB, hx(OOB))
        last = I("buffer_load_dwordx4", vsrc, SRD_WS, sB, mods="offen sc1 lds")
    return last

def w1_touches():
    I("s_cmp_lt_u32", sLW, 2)
    I("s_cselect_b32", "s64", "s12", "s16")
    I("s_cselect_b32", "s65", "s13", "s17")
    I("s_mov_b32", "s66", hx(448 * 448 * 2))
    I("s_mov_b32", "s67", hx(0x20000))
    I("s_and_b32", sA, sLW, 1)
    I("s_mul_i32", sA, sA, 28)
    I("s_add_u32", sA, sA, sLI)
    I("s_lshl_b32", sA, sA, 13)
    I("v_lshlrev_b32", v(TMP + 12), 7, vLANE)
    touch1(SRD_BG, v(TMP + 12), sA)
    I("s_lshl_b32", sA, sJ, 11)
    tile_off(sC, R_2, TB, extra=sA)
    I("v_lshlrev_b32", v(TMP + 12), 7, vTOK)
    touch1(SRD_WS, v(TMP + 12), sC)
    if not OPT["alias"]:
        for reg in (R_X1, R_HH, R_O, R_G[0], R_G[0] + 16 * TB, R_G[1], R_G[1] + 16 * TB):
            tile_off(sC, reg, TB, extra=sA)
            touch1(SRD_WS, v(TMP + 12), sC)
    I("s_lshl_b32", sA, sJ, 8)
    tile_off(sC, R_SH, 2048, extra=sA)
    I("v_and_b32", v(TMP + 12), 1, vLANE)
    I("v_lshlrev_b32", v(TMP + 12), 7, v(TMP + 12))
    I("v_and_b32", v(TMP + 13), 2, vLANE)
    I("v_lshl_add_u32", v(TMP + 12), v(TMP + 13), 14, v(TMP + 12))
    touch1(SRD_WS, v(TMP + 12), sC)

def w2_touches():
    I("s_lshl_b32", sA, sLW, 5)
    I("s_add_u32", sA, sA, sLI)
    I("s_sub_u32", sB, hx(127), sA)
    I("s_lshl_b32", sA, sA, 14)
    I("s_lshl_b32", sB, sB, 13)
    I("v_lshlrev_b32", v(TMP + 12), 7, vLANE)
    I("v_lshlrev_b32", v(TMP + 13), 8, vLANE)
    touch1(SRD_W2, v(TMP + 12), sB)
    touch1(SRD_W3, v(TMP + 13), sA)
    if OPT["ta"] > 1:
        I("s_add_u32", sA, sA, hx(128))
        touch1(SRD_W3, v(TMP + 13), sA)

def mode_issue(count=False):
    if not OPT["local"]:
        return
    I("v_and_b32", v(TMP + 6), 31, vLANE)
    I("s_add_u32", sA, sPAGE, hx(R_XCC))
    I("v_lshl_add_u32", v(TMP + 6), v(TMP + 6), 7, sA)
    l = A.newlabel("Lmi")
    I("s_cmp_lg_u32", sW, 4)
    I("s_cbranch_scc1", l)
    I("buffer_load_dword", v(TMP + 7), v(TMP + 6), SRD_WS, 0, mods="offen sc1")
    A.vm -= 1
    A.label(l)

def mode_check():
    if not OPT["local"]:
        return
    l = A.newlabel("Lmc")
    I("s_cmp_lg_u32", sW, 4)
    I("s_cbranch_scc1", l)
    sv = (A.vm, A.vm_done, A.lg, A.lg_done)
    lp, dn = A.newlabel("Lpoll"), A.newlabel("Lpd")
    I("s_mov_b32", sCNT, hx(40000))
    A.label(lp)
    I("v_subrev_u32", v(TMP + 7), sTAG, v(TMP + 7))
    I("v_cmp_le_u32", "vcc", 16, v(TMP + 7))
    I("s_cbranch_vccz", dn)
    I("s_sub_u32", sCNT, sCNT, 1)
    I("s_cmp_eq_u32", sCNT, 0)
    I("s_cbranch_scc1", dn)
    I("s_sleep", 4)
    I("buffer_load_dword", v(TMP + 7), v(TMP + 6), SRD_WS, 0, mods="offen sc1")
    A.wait_vm_all(force=True)
    I("s_branch", lp)
    A.label(dn)
    I("v_cmp_ne_u32", "vcc", sXCC, v(TMP + 7))
    I("s_cmp_eq_u64", "vcc", 0)
    I("s_cselect_b32", sA, 1, 0)
    I("v_mov_b32", v(TMP), sA)
    I("v_mov_b32", v(TMP + 1), hx(L_MODE))
    I("ds_write_b32", v(TMP + 1), v(TMP))
    A.wait_lg_all(force=True)
    A.vm, A.vm_done, A.lg, A.lg_done = sv
    A.label(l)

def att_loader_pre():
    poll(v(TMP + 4), sleep=2)
    stamp("k_ready")
    kv_dma(R_K, L_KIMG, vL16)
    if OPT.get("wolo", 1) == 2:
        def m():
            spin(aV, 4, 1)
            dma_seq(SRD_WO, 896, slot(3), (sJ128, 0), 7)
        main_only(m)
    kv_poll_off(TMP + 5, None)
    I("v_add_u32", v(TMP + 4), 4, v(TMP + 4))
    I("s_and_b32", sA, sTQ0, 15)
    I("s_lshl_b32", sB, sLW, 1)
    I("s_add_u32", sA, sA, sB)
    I("s_lshl_b32", sE, sC0, 8)
    tile_off(sC, R_Q, TB, tl=sA, extra=sE)
    I("s_lshl_b32", sB, sB, 10)
    I("s_add_u32", "m0", sB, hx(L_QIMG))
    I("s_add_u32", sE, sC, hx(TB - 1024))
    poll(v(TMP + 5), sleep=0)
    stamp("q_ready")
    I("buffer_load_dwordx4", vL16, SRD_WS, sC, mods="offen sc1 lds")
    dq = I("buffer_load_dwordx4", vL16, SRD_WS, sE, mods="offen offset:1024 sc1 lds")
    A.wait(vm=dq)
VP = [None]

mLo, mHi, vQR, vMD, vKR, vVR0, vVR1 = 28, 29, 30, 31, 32, 33, 34
vVS = 96
def att_consts_b():
    I("v_and_b32", v(vVS), 32, vLANE)
    I("v_lshlrev_b32", v(vVS), 2, v(vVS))
    I("v_xor_b32", v(vVS), v(vVS), vL16)

def att_consts():
    t0, t1, t2 = TMP + 8, TMP + 9, TMP + 10
    I("s_and_b32", sA, sHEAD, 1)
    I("s_cmp_eq_u32", sA, 1)
    I("s_cselect_b32", sB, 0, 9)
    I("s_cselect_b32", sE, 9, 3)
    I("v_mov_b32", v(t0), -1)
    I("v_cmp_ne_u32", "vcc", sB, vQ4)
    I("v_cndmask_b32", v(mLo), 0, v(t0), "vcc")
    I("v_cmp_ne_u32", "vcc", sE, vQ4)
    I("v_cndmask_b32", v(mHi), 0, v(t0), "vcc")
    I("s_lshl_b32", sA, sLW, 11)
    I("s_add_u32", sB, sA, hx(L_KIMG))
    I("v_add_u32", v(vKR), sB, vL16)
    I("v_and_b32", v(t0), 3, vLANE)
    I("v_lshrrev_b32", v(t1), 2, vLANE)
    I("v_and_b32", v(t2), 2, v(t0))
    I("v_lshlrev_b32", v(t2), 2, v(t2))
    I("v_xor_b32", v(t1), v(t1), v(t2))
    I("v_lshlrev_b32", v(t1), 4, v(t1))
    I("v_lshl_add_u32", v(t1), v(t0), 8, v(t1))
    I("v_and_b32", v(t0), 1, v(t0))
    I("v_lshl_or_b32", v(t1), v(t0), 3, v(t1))
    I("s_add_u32", sB, sA, hx(L_VIMG))
    I("v_add_u32", v(vVR0), sB, v(t1))
    I("v_xor_b32", v(vVR1), 8, v(vVR0))
    I("s_add_u32", sB, sA, hx(L_QIMG))
    I("v_add_u32", v(vQR), sB, vL16)
    I("v_mov_b32", v(vMD), hx(L_MODE))
    I("v_lshlrev_b32", v(t0), 2, vQ4)
    for i, sm in enumerate(MSK):
        I("v_add_u32", v(t1), i, v(t0))
        I("v_cmp_gt_u32", sm, v(t1), vTOK)
    I("s_and_b32", sB, sT1, 15)
    I("s_lshl_b32", sA, sC0, 8)
    tile_off("s44", R_O, TB, tl=sB, extra=sA)
    I("s_lshl_b32", sA, sHEAD, 2)
    tile_off("s59", R_FO, 128, tl=sB, extra=sA)
    I("s_bitcmp1_b32", sHEAD, 0)
    I("s_cselect_b32", "s42", hx(0xffff), 0)
    I("s_cselect_b32", "s43", 0, hx(0xffff0000))
    I("s_cselect_b32", "s46", 8, 0)
    I("s_mov_b32", "s48", hx(0xffff))
    I("s_mov_b32", "s49", 0)
    I("s_not_b64", "s[40:41]", "s[42:43]")
    I("s_add_u32", "s46", "s46", "s44")
    I("s_add_u32", "s45", "s44", hx(TB))
    I("s_add_u32", "s47", "s46", hx(TB))
TAILS = []
MSK = ["s[36:37]", "s[38:39]", "s[50:51]", "s[52:53]"]

def att_a():
    A.cmt("---- attention (A waves)")
    OA, QF, KF, VF, SA, SB = 48, 72, 80, 72, 104, 172
    S = lambda q, t: (SA + 4 * t) if q == 0 else (SB + 4 * (t - 1))
    NEG = TMP + 5
    M = [[TMP + 6, TMP + 8], [TMP + 10, TMP + 12]]
    I("v_mov_b32", v(NEG), hx(0xff800000))
    for qq in range(2):
        for k in range(2):
            I("v_mov_b32", v(M[qq][k]), v(NEG))
    lpf = A.newlabel("Lpf")
    I("s_cmp_ge_u32", sT1, 16)
    I("s_cbranch_scc1", lpf)
    I("v_mov_b32", v(NEG - 1), v(NEG))
    for r in list(range(SA, SA + 64, 2)) + list(range(SB, SB + 60, 2)):
        I("v_mov_b64", vr(r, 2), vr(NEG - 1, 2))
    A.label(lpf)
    barrier()
    stamp("kq_landed")
    I("ds_read_b128", vr(QF, 4), v(vQR))
    q = I("ds_read_b128", vr(QF + 4, 4), v(vQR), mods="offset:1024")
    if OPT["local"]:
        q = I("ds_read_b32", v(vMD), v(vMD))
    def kread(t):
        return I("ds_read_b128", vr(KF + 4 * (t % 4), 4), v(vKR), mods="offset:%d" % (1024 * t))
    def qprep(n):
        I("s_waitcnt", "lgkmcnt(%d)" % n)
        if OPT["local"]:
            I("v_readfirstlane_b32", sMODE, v(vMD))
        for i in range(8):
            I("v_and_b32", v(QF + i), v((mLo, mLo, mHi, mHi)[i & 3]), v(QF + i))

    def post(t):
        for qq in range(2):
            if not (qq <= t <= 16 + qq):
                continue
            r = S(qq, t)
            if t == qq:
                for i in range(4):
                    I("v_cndmask_b32", v(r + i), v(NEG), v(r + i), MSK[i])
            if t == 16 + qq:
                for i in range(4):
                    I("v_cndmask_b32", v(r + i), v(r + i), v(NEG), MSK[i])
            I("v_max3_f32", v(M[qq][0]), v(M[qq][0]), v(r), v(r + 1))
            I("v_max3_f32", v(M[qq][1]), v(M[qq][1]), v(r + 2), v(r + 3))

    lx0 = A.newlabel("Lx0")
    ent = {t: A.newlabel("Lst") for t in range(2, 18, 2)}
    I("s_cmp_lt_u32", sT1, 16)
    I("s_cbranch_scc1", lx0)
    rd = [kread(t) for t in range(4)]
    qprep(4)
    for t in range(18):
        if t in ent:
            A.label(ent[t])
        I("s_waitcnt", "lgkmcnt(%d)" % min(3, 17 - t))
        for qq in range(2):
            if qq <= t <= 16 + qq:
                I("v_mfma_f32_16x16x32_bf16", vr(S(qq, t), 4), vr(KF + 4 * (t % 4), 4), vr(QF + 4 * qq, 4), "0")
        if t + 4 < 18:
            kread(t + 4)
        if t >= 2:
            post(t - 2)
    post(16)
    post(17)
    A.lg_done = A.lg
    def stubs():
        A.label(lx0)
        qprep(0)
        for t0 in range(2, 18, 2):
            nx = A.newlabel("Lnx")
            if t0 < 16:
                I("s_cmp_lg_u32", sT1, 16 - t0)
                I("s_cbranch_scc1", nx)
            for t in range(t0, min(t0 + 4, 18)):
                kread(t)
            I("s_branch", ent[t0])
            A.label(nx)
    TAILS.append(stubs)
    stamp("s_done")
    for op in ("max", "mov", "p32", "max", "mov", "p16", "max", "neg"):
        for qq in range(2):
            a, b = M[qq]
            if op == "max": I("v_max_f32", v(a), v(a), v(b))
            if op == "mov": I("v_mov_b32", v(b), v(a))
            if op == "p32": I("v_permlane32_swap_b32", v(a), v(b))
            if op == "p16": I("v_permlane16_swap_b32", v(a), v(b))
            if op == "neg": I("v_sub_f32", v(a), 0, v(a))
    for qq in range(2):
        for g in range(0, 68, 2):
            r = (SA, SB)[qq] + g
            I("v_pk_add_f32", vr(r, 2), vr(r, 2), vr(M[qq][0], 2), mods="op_sel_hi:[1,0]")

    def tiles(qq, p):
        return [t for t in (2 * p, 2 * p + 1) if qq <= t <= 16 + qq]
    def exp_ops(p):
        ops = []
        for qq in range(2):
            ts = tiles(qq, p)
            r = S(qq, ts[0])
            n = 4 * len(ts)
            ops += [lambda r=r, i=i: I("v_exp_f32", v(r + i), v(r + i)) for i in range(n)]
        return ops
    def cvt_ops(p):
        ops = []
        for qq in range(2):
            ts = tiles(qq, p)
            r = S(qq, ts[0])
            ops += [lambda r=r, i=i: I("v_cvt_pk_bf16_f32", v(r + i), v(r + 2 * i), v(r + 2 * i + 1)) for i in range(2 * len(ts))]
        return ops
    vrd = {}
    def vread_ops(p):
        d = VF + 8 * (p % 3)
        ops = []
        for a, vr_ in enumerate((vVR0, vVR1)):
            for h in range(2):
                def f(a=a, vr_=vr_, h=h):
                    vrd[p] = I("ds_read_b64_tr_b16", vr(d + 4 * a + 2 * h, 2), v(vr_), mods="offset:%d" % (2048 * p + 1024 * h))
                ops.append(f)
        return ops
    def pv_ops(p):
        d = VF + 8 * (p % 3)
        ops = [lambda: A.wait(lg=vrd[p])]
        for qq in range(2):
            ts = tiles(qq, p)
            r = S(qq, ts[0])
            o = OA + 12 * qq
            for acc, areg in ((o + 8, None), (o, d), (o + 4, d + 4)):
                if len(ts) == 2:
                    ops.append(lambda acc=acc, areg=areg, r=r: m16(acc, ONES if areg is None else areg, r, p == 0))
                else:
                    ar = ONES if areg is None else areg + (2 if qq == 1 else 0)
                    ops.append(lambda acc=acc, ar=ar, r=r: I("v_mfma_f32_16x16x16_bf16", vr(acc, 4), vr(ar, 2), vr(r, 2),
                                                            "0" if p == 0 else vr(acc, 4)))
        return ops
    LAG = OPT.get("lag", 4)
    side = []
    issued_v = 0
    done_pv = 0
    for p in range(9):
        main = exp_ops(p) + (cvt_ops(p - 1) if p else [])
        if p == LAG - 1:
            barrier()
            stamp("v_landed")
            side += vread_ops(0) + vread_ops(1)
            issued_v = 2
        if p >= LAG:
            for _ in range(2):
                if done_pv <= p - 2:
                    if issued_v < 9:
                        side += vread_ops(issued_v)
                        issued_v += 1
                    side += pv_ops(done_pv)
                    done_pv += 1
        for k, op in enumerate(main):
            op()
            if side:
                side.pop(0)()
        while side:
            side.pop(0)()
    for op in cvt_ops(8):
        op()
    stamp("softmax_done")
    while done_pv < 9:
        if issued_v < 9:
            for op in vread_ops(issued_v):
                op()
            issued_v += 1
        for op in pv_ops(done_pv):
            op()
        done_pv += 1
    for qq in range(2):
        I("v_rcp_f32", v(TMP + 12 + qq), v(OA + 12 * qq + 8))
    for qq in range(2):
        for i in range(8):
            I("v_mul_f32", v(OA + 12 * qq + i), v(OA + 12 * qq + i), v(TMP + 12 + qq))
    pack(TMP, OA, 8)
    pack(TMP + 4, OA + 12, 8)
    unswap(TMP, 2)
    for qq in range(2):
        I("v_cndmask_b32", v(TMP + 8 + 2 * qq), v(TMP + 4 * qq), v(TMP + 4 * qq + 2), "s[48:49]")
        I("v_cndmask_b32", v(TMP + 9 + 2 * qq), v(TMP + 4 * qq + 1), v(TMP + 4 * qq + 3), "s[48:49]")
    def ost(m):
        mm = "offen" + (" " + m if m else "")
        I("s_mov_b64", "exec", "s[40:41]")
        I("buffer_store_dwordx4", vr(TMP, 4), vL16, SRD_WS, "s44", mods=mm)
        I("buffer_store_dwordx4", vr(TMP + 4, 4), vL16, SRD_WS, "s45", mods=mm)
        I("s_mov_b64", "exec", "s[42:43]")
        I("buffer_store_dwordx2", vr(TMP + 8, 2), vL16, SRD_WS, "s46", mods=mm)
        I("buffer_store_dwordx2", vr(TMP + 10, 2), vL16, SRD_WS, "s47", mods=mm)
        I("s_mov_b64", "exec", -1)
    moded(ost)
    stamp("o_stored")

def att_b():
    A.cmt("---- attention (B waves)")
    barrier()
    if OPT["local"]:
        I("v_mov_b32", v(TMP + 6), hx(L_MODE))
        I("ds_read_b32", v(TMP + 6), v(TMP + 6))
    poll(v(TMP + 4))
    stamp("v_ready")
    kv_dma(R_V, L_VIMG, v(vVS))
    if OPT["local"]:
        A.wait_lg_all()
        I("v_readfirstlane_b32", sMODE, v(TMP + 6))
    lsp, lj = A.newlabel("Lbs"), A.newlabel("Lbj")
    I("s_cmp_ge_u32", sLI, 28)
    I("s_cbranch_scc1", lsp)
    sv = (A.vm, A.vm_done)
    dv = A.vm
    dma_seq(SRD_WO, 896, slot(4), (sJ128, 224 * 896), 7)
    if OPT.get("wolo", 1) in (1, 2):
        dma_seq(SRD_W1, 896, slot(0), (sJ128, 0), 7)
    else:
        dma_seq(SRD_WO, 896, slot(3), (sJ128, 0), 7)
    A.wait(vm=dv)
    stamp("b_vland")
    barrier()
    stamp("b_b6")
    kvdone()
    if OPT.get("wolo", 1) not in (1, 2):
        dma_seq(SRD_W1, 896, slot(0), (sJ128, 0), 7)
    dw1 = dma_seq(SRD_W1, 896, slot(1), (sJ128, 224 * 896), 7)
    k0 = 7 if OPT.get("wolo", 1) == 3 else 0
    I("s_add_u32", sA, sJ128, hx(32 * 896 * k0))
    for k in range(k0, 14):
        I("buffer_load_dwordx4", vr(PARK + 4 * k, 4), vD896, SRD_W2, sA, mods="offen")
        I("s_add_u32", sA, sA, hx(32 * 896))
    stamp("b_w2iss")
    cnt_setup([23, 24, 25])
    A.wait(vm=dw1)
    arrive(bWO)
    if OPT.get("kvt", 1):
        kvdone_try()
    A.wait_vm_all(force=True)
    stamp("bg_done")
    I("s_branch", "L_cload")
    A.label(lsp)
    A.vm, A.vm_done = sv
    SE = OPT.get("se", 5)
    I("s_waitcnt", "vmcnt(0)")
    if SE:
        spare_att(0, SE)
    barrier()
    kvdone()
    spare_att(SE, 14)
    A.wait_vm_all(force=True)
    stamp("bg_done")
    barrier()
    spare_colsum()
    I("s_branch", "L_spare2")

PARK = 184
def kvdone():
    l = A.newlabel("Lkd")
    I("s_cmp_lg_u32", sW, 4)
    I("s_cbranch_scc1", l)
    I("s_lshl_b32", sA, sLI, 7)
    I("s_add_u32", sA, sA, sPAGE)
    I("s_add_u32", sA, sA, hx(R_XCC + 4))
    flag_store(sA)
    A.vm -= 1
    A.label(l)

vKVO = 43
def kvdone_try():
    I("v_lshrrev_b32", v(vKVO), 5, vLANE)
    I("v_add_u32", v(vKVO), sX, v(vKVO))
    I("v_min_u32", v(vKVO), 7, v(vKVO))
    I("v_lshlrev_b32", v(vKVO), PSH, v(vKVO))
    I("v_and_b32", v(TMP + 1), 31, vLANE)
    I("v_lshl_add_u32", v(vKVO), v(TMP + 1), 7, v(vKVO))
    I("v_add_u32", v(vKVO), hx(R_XCC + 4), v(vKVO))
    I("s_mov_b32", sXCC, 1)
    l = A.newlabel("Lkt")
    I("s_cmp_lg_u32", sW, 4)
    I("s_cbranch_scc1", l)
    I("buffer_load_dword", v(TMP + 1), v(vKVO), SRD_WS, 0, mods="offen sc1")
    A.vm -= 1
    I("s_waitcnt", "vmcnt(0)")
    I("v_cmp_ne_u32", "vcc", sTAG, v(TMP + 1))
    I("s_cmp_eq_u64", "vcc", 0)
    I("s_cselect_b32", sXCC, 1, 0)
    A.label(l)

def kvdone_check():
    l = A.newlabel("Lkc")
    I("s_cmp_eq_u32", sXCC, 1)
    I("s_cbranch_scc1", l)
    sv = (A.vm, A.vm_done)
    poll(v(vKVO), sleep=2)
    A.vm, A.vm_done = sv
    A.label(l)

def o_flag():
    A.wait_vm_all(force=True)
    def f(m):
        I("s_mov_b64", "exec", 1)
        I("buffer_store_dword", vTAG, "off", SRD_WS, "s59", mods=m)
        I("buffer_store_dword", vTAG, "off", SRD_WS, "s59", mods="offset:128" + (" " + m if m else ""))
        I("s_mov_b64", "exec", -1)
    moded(f)
    stamp("o_flag")

def ack_flag(st, name):
    A.wait(vm=st)
    moded(lambda m: flag_store(sD, m))
    stamp(name)

def store_out(preg, q_barrier=True):
    def f(m):
        frag_store(preg, sC, mods=m)
        return frag_store(preg + 4, sC, 1024, mods=m)
    return moded(f)

aM1, aP1, aX1, aM2, aP2, aX2, vDP = 36, 37, 38, 39, 40, 41, 42
vCS = 6
sR1, sR2, sGH, sFHH, sSP = "s54", "s55", "s56", "s57", "s58"
def c_setup():
    t0, t1, t2, t3 = TMP + 8, TMP + 9, TMP + 10, TMP + 11
    stat_aux()
    I("v_lshlrev_b32", v(vCS), 4, vQ4)
    I("v_add_u32", v(vCS), hx(131072), v(vCS))
    I("s_lshl_b32", sB, sX, 8)
    I("s_lshl_b32", sA, sTL, 4)
    I("s_add_u32", sB, sB, sA)
    I("v_mov_b32", v(t3), hx(OOB))
    for reg, d in ((aM1, -1), (aP1, 1), (aM2, -2), (aP2, 2)):
        I("s_add_u32", sA, sB, d)
        I("v_add_u32", v(t0), sA, vTOK)
        I("v_lshrrev_b32", v(t1), 8, v(t0))
        I("v_bfe_u32", v(t2), v(t0), 4, 4)
        I("v_mul_u32_u24", v(reg), hx(TB), v(t2))
        I("v_add_u32", v(reg), hx(R_HH), v(reg))
        I("v_and_b32", v(t2), 1, v(t2))
        I("v_mul_u32_u24", v(t2), hx(TB), v(t2))
        I("v_add_u32", v(t2), hx(R_HALO), v(t2))
        I("v_cmp_ne_u32", "vcc", sX, v(t1))
        I("v_cndmask_b32", v(reg), v(reg), v(t2), "vcc")
        I("v_lshl_add_u32", v(reg), v(t1), PSH, v(reg))
        I("v_and_b32", v(t1), 15, v(t0))
        I("v_lshl_add_u32", v(reg), v(t1), 4, v(reg))
        I("v_lshl_add_u32", v(reg), vQ4, 8, v(reg))
        I("v_cmp_gt_u32", "vcc", hx(2048), v(t0))
        if OPT.get("nohalo"):
            I("v_lshrrev_b32", v(t1), 8, v(t0))
            I("v_cmp_eq_u32", "vcc", sX, v(t1))
        I("v_cndmask_b32", v(reg), v(t3), v(reg), "vcc")
    I("v_cmp_gt_u32", "vcc", 2, vQ4)
    I("v_cndmask_b32", v(aX1), v(aP1), v(aM1), "vcc")
    I("v_cndmask_b32", v(aX2), v(aP2), v(aM2), "vcc")
    I("s_lshr_b32", sB, sB, 4)
    I("s_sub_u32", sA, sB, 1)
    I("v_min_u32", v(t0), 2, vQ4)
    I("v_add_u32", v(t0), sA, v(t0))
    I("v_max_i32", v(t0), 0, v(t0))
    I("v_min_i32", v(t0), hx(127), v(t0))
    if OPT.get("nohalo"):
        I("s_lshl_b32", sA, sX, 4)
        I("v_max_i32", v(t0), sA, v(t0))
        I("s_add_u32", sA, sA, 15)
        I("v_min_i32", v(t0), sA, v(t0))
    I("v_lshrrev_b32", v(t1), 4, v(t0))
    I("v_and_b32", v(t0), 15, v(t0))
    I("v_min_u32", v(t2), 6, vTOK)
    I("v_lshlrev_b32", v(t3), 2, v(t2))
    I("v_lshl_add_u32", v(t3), v(t0), 7, v(t3))
    I("v_lshl_add_u32", v(t3), v(t1), PSH, v(t3))
    I("v_add_u32", v(vDP), hx(R_FHH), v(t3))
    I("v_and_b32", v(t0), 1, v(t0))
    I("v_lshlrev_b32", v(t2), 7, v(t2))
    I("v_lshl_add_u32", v(t2), v(t0), 10, v(t2))
    I("v_lshl_add_u32", v(t2), v(t1), PSH, v(t2))
    I("v_add_u32", v(t2), hx(R_FHALO), v(t2))
    I("v_cmp_ne_u32", "vcc", sX, v(t1))
    I("v_cndmask_b32", v(vDP), v(vDP), v(t2), "vcc")
    tile_off(sR1, 0, TB)
    I("s_lshl_b32", sA, sJ, 11)
    I("s_add_u32", sR2, sR1, sA)
    tile_off(sSP, R_SH, 2048)
    I("s_lshl_b32", sA, sJ, 8)
    I("s_add_u32", sGH, sSP, sA)
    I("s_lshl_b32", sA, sJ, 2)
    tile_off(sFHH, R_FHH, 128, extra=sA)

def c_compute():
    aoff = lambda s: (4096 * s, TRC)
    N1, N2, N3 = OPT.get("n1", 1), OPT.get("n2", 1), OPT.get("n3", 1)
    NA = OPT.get("na", 3)
    cnt_setup([35, 43, TMP + 15])
    pk = peek(bWO)
    set_tr(slot(3))
    unpack(ACC, HP, 16)
    verify(pk, bWO, 4)
    rd = [a_read(AREG + 16 * s, *aoff(s)) for s in range(N1)]
    flag_poll_off(34, 16, R_FO, 128, 2)
    I("s_add_u32", sC2, sR1, hx(R_O))
    bl = BLoads(14, sC2)
    o_flag()
    rd += [a_read(AREG + 16 * s, *aoff(s)) for s in range(N1, N1 + NA)]
    poll_a(v(34), TMP + 13)
    rd += [a_read(AREG + 16 * s, *aoff(s)) for s in range(N1 + NA, 7)]
    arrive(aOF)
    I("s_add_u32", sC, sR2, hx(R_H))
    I("s_mov_b32", sD, sGH)
    poll_b(v(34), TMP + 13)
    A.wait_lg_all()
    stamp("c1_ready")
    bl.first()
    gemm(14, 7, 7, aoff, lambda s: BREG + 4 * s, bl=bl.ids, bissue=bl.more, zero=False, rd=rd,
         hook=lambda s: arrive(aC1P) if s == OPT.get("p1", 8) else None)
    stamp("c1_mfma")
    pack(HP, ACC, 16)
    unswap(HP, 2)
    st = store_out(HP)
    pk = peek(bCS1)
    stat_granule(HP)
    set_tr(slot(0))
    verify(pk, bCS1, 4)
    rd = [a_read(AREG + 16 * s, *aoff(s)) for s in range(N2)]
    A.wait(vm=st)
    moded(granule_store)
    stamp("h_flag")
    rd += [a_read(AREG + 16 * s, *aoff(s)) for s in range(N2, N2 + NA)]
    stat_poll_a(sSP)
    rd += [a_read(AREG + 16 * s, *aoff(s)) for s in range(N2 + NA, 7)]
    for f in range(4):
        I("ds_read_b128", vr(ACC + 4 * f, 4), v(vCS), mods="offset:%d" % (L_CS1 - 131072 + 64 * f))
    arrive(aC1Q)
    I("s_add_u32", sC2, sR1, hx(R_H))
    bl = BLoads(14, sC2)
    stat_poll(sSP)
    stamp("c2_ready")
    bl.first()
    stat_finish()
    var, nmu, ry = TMP + 7, TMP + 8, TMP + 10
    K0, K1, RI = TMP, TMP + 2, TMP + 12
    I("v_mul_f32", v(nmu), fl(-1.0 / 448), v(TMP + 4))
    A.wait_lg_all()
    for i in range(0, 16, 2):
        pk_mul_b(ACC + i, ACC + i, nmu)
    def c2late():
        mean_var(TMP + 4, TMP + 6, vMU, var)
        rstd(vRH, var)
        I("s_add_u32", sC, sR2, hx(R_HH))
        I("v_mul_f32", v(var), v(var), v(vRH))
        I("v_mul_f32", v(var), v(var), v(vRH))
        rstd(ry, var)
        I("s_add_u32", sA, sTL, 1)
        I("v_mul_f32", v(ry), v(ry), v(vRH))
        gelu_prep(ry, K0, K1, RI)
        I("s_and_b32", sD2, sA, 15)
        I("v_mov_b32", v(TMP + 4), v(vRH))
        I("v_mul_f32", v(TMP + 6), v(nmu), v(vRH))
    side = rec(c2late)
    def cfill(s, f):
        if s >= 7 and side:
            side.pop(0)()
    gemm(14, 7, 7, aoff, lambda s: BREG + 4 * s, bl=bl.ids, bissue=bl.more, zero=False, rd=rd, fill=cfill,
         hook=lambda s: arrive(aC2P) if s == OPT.get("p2", 8) else None)
    assert not side
    stamp("c2_mfma")
    gelu(ACC, 16, BREG, K0, K1, RI, HHP, True)
    unswap(HHP, 2)
    st = store_out(HHP)
    lh = A.newlabel("Lhalo")
    if OPT.get("nohalo"):
        I("s_mov_b32", sD2, 5)
    I("s_cmp_gt_u32", sD2, 1)
    I("s_cbranch_scc1", lh)
    I("s_and_b32", sB, sTL, 1)
    I("s_lshl_b32", sA, sJ, 11)
    tile_off(sC, R_HALO, TB, tl=sB, extra=sA)
    frag_store(HHP, sC)
    frag_store(HHP + 4, sC, 1024)
    A.vm -= 2
    A.label(lh)
    stamp("hh_stored")
    pk = peek(bW2)
    set_tr(slot(3))
    unswap(HP, 2)
    unpack(ACC, HP, 16)
    for i in range(0, 16, 2):
        I("v_pk_fma_f32", vr(ACC + i, 2), vr(ACC + i, 2), vr(TMP + 4, 2), vr(TMP + 6, 2), mods="op_sel_hi:[1,0,0]")
    verify(pk, bW2, 4)
    rd = [a_read(AREG + 16 * s, *aoff(s)) for s in range(N3)]
    lh, lh2 = A.newlabel("Lhalo"), A.newlabel("Lhalo")
    I("s_cmp_gt_u32", sD2, 1)
    I("s_cbranch_scc1", lh)
    I("s_waitcnt", "vmcnt(2)")
    I("s_branch", lh2)
    A.label(lh)
    A.wait(vm=st)
    A.label(lh2)
    moded(lambda m: flag_store(sFHH, m))
    stamp("hh_flag")
    rd += [a_read(AREG + 16 * s, *aoff(s)) for s in range(N3, N3 + NA)]
    poll_a(v(vDP), TMP + 13)
    rd += [a_read(AREG + 16 * s, *aoff(s)) for s in range(N3 + NA, 7)]
    arrive(aHF)
    I("s_mov_b32", sC2, 0)
    amap = [aM1] * 3 + [aX1] + [aP1] * 3 + [aM2] * 3 + [aX2] + [aP2] * 3
    bl = BLoads(14, sC2, vaddr=lambda i: v(amap[i]))
    lh = A.newlabel("Lhalo")
    I("s_cmp_gt_u32", sD2, 1)
    I("s_cbranch_scc1", lh)
    I("s_and_b32", sB, sTL, 1)
    tile_off(sC, R_FHALO, 1024, tl=sB, extra=sJ128)
    I("s_waitcnt", "vmcnt(2)")
    flag_store(sC)
    A.vm -= 1
    A.label(lh)
    poll_b(v(vDP), TMP + 13)
    A.wait_lg_all()
    stamp("d_ready")
    bl.first()
    I("s_add_u32", sC, sR2, hx(R_X1))
    I("s_add_u32", sD, sGH, hx(R_SX - R_SH))
    e_lane_a()
    gemm(14, 7, 7, aoff, lambda s: BREG + 4 * s, bl=bl.ids, bissue=bl.more, zero=False, rd=rd,
         hook=lambda s: arrive(aDP) if s == OPT.get("p3", 8) else None)
    stamp("d_mfma")
    pack(TMP, ACC, 16)
    unswap(TMP, 2)
    st = store_out(TMP)
    stat_granule(TMP)
    return st

RES = 28
def colsum(bases, ldst):
    t0, t1 = TMP, TMP + 1
    I("s_and_b32", sA, sLW, 2)
    I("s_lshl_b32", sA, sA, 5)
    I("s_and_b32", sB, sLW, 1)
    I("s_lshl_b32", sB, sB, 3)
    I("s_or_b32", sA, sA, sB)
    I("v_xor_b32", v(t0), sA, v(TRL[0][0]))
    I("v_add_u32", v(t1), hx(bases[1]), v(t0))
    I("v_add_u32", v(t0), hx(bases[0]), v(t0))
    rd = []
    for s in range(14):
        ad = v(t0 if s < 7 else t1)
        I("ds_read_b64_tr_b16", vr(AREG + 4 * s, 2), ad, mods="offset:%d" % (4096 * (s % 7)))
        rd.append(I("ds_read_b64_tr_b16", vr(AREG + 4 * s + 2, 2), ad, mods="offset:%d" % (4096 * (s % 7) + 1024)))
    A.wait_lg_all()
    for s in range(14):
        m16(ACC, AREG + 4 * s, ONES, s == 0)
    I("s_lshl_b32", sA, sLW, 6)
    I("s_add_u32", sA, sA, hx(ldst))
    I("v_lshl_add_u32", v(t0), vQ4, 4, sA)
    I("s_mov_b32", "exec_lo", hx(0x10001))
    I("s_mov_b32", "exec_hi", hx(0x10001))
    I("ds_write_b128", v(t0), vr(ACC, 4))
    I("s_mov_b64", "exec", -1)

W3S = [[2, 0], [1, 3]]
vUP = 36
def c_loader():
    A.cmt("---- C/D loader")
    CNR[:] = [23, 24, 25]
    if OPT.get("bprio", 0):
        I("s_setprio", OPT["bprio"])
    I("s_lshl_b32", sE, sJP, 8)
    e_table(False)
    I("s_lshl_b32", sA, sLW, 10)
    I("s_add_u32", sA, sA, hx(slot(3)))
    I("v_add_u32", v(vUP), sA, vL16)
    spin(aOF, 4, 1)
    colsum((slot(0), slot(1)), L_CS1)
    arrive(bCS1)
    TRG = OPT.get("trg", 2)
    spin(aC1P, TRG, 1)
    dma_seq(SRD_W3, 3584, slot(W3S[0][0]), (sE, 0), 7)
    spin(aC1P, 4, 1)
    for k in range(14):
        I("ds_write_b128", v(vUP), vr(PARK + 4 * k, 4), mods="offset:%d" % (4096 * k))
    arrive(bW2)
    I("v_and_b32", v(TMP), 3, vLANE)
    I("v_and_b32", v(TMP + 1), 48, vLANE)
    I("v_or_b32", v(TMP), v(TMP), v(TMP + 1))
    I("v_lshlrev_b32", v(TMP), 3, v(TMP))
    I("v_and_b32", v(TMP + 1), 4, vLANE)
    I("v_lshl_add_u32", v(TMP), v(TMP + 1), 4, v(TMP))
    I("v_and_b32", v(TMP + 1), 8, vLANE)
    I("v_lshl_add_u32", v(TMP), v(TMP + 1), 2, v(TMP))
    I("v_add_u32", v(TMP), hx(L_CS3), v(TMP))
    I("s_lshl_b32", sC, sE, 2)
    I("s_add_u32", sC, sC, hx(OFF_CSG))
    spin(aC1Q, 4, 1)
    spin(aC2P, TRG, 1)
    stamp("b_c2p")
    dma_seq(SRD_W3, 3584, slot(W3S[0][1]), (sE, 224 * 3584), 7)
    lcs = A.newlabel("Lcs")
    I("s_cmp_lg_u32", sW, 5)
    I("s_cbranch_scc1", lcs)
    lp, dn = A.newlabel("Lpoll"), A.newlabel("Lpd")
    I("s_mov_b32", sCNT, hx(40000))
    A.label(lp)
    I("buffer_load_dwordx4", vr(TMP + 4, 4), vL16, SRD_WS, sC, mods="offen sc1")
    I("s_sub_u32", sCNT, sCNT, 1)
    I("s_waitcnt", "vmcnt(0)")
    I("v_xor_b32", v(TMP + 5), vTAG, v(TMP + 5))
    I("v_xor_b32", v(TMP + 7), vTAG, v(TMP + 7))
    I("v_or_b32", v(TMP + 5), v(TMP + 5), v(TMP + 7))
    I("v_cmp_ne_u32", "vcc", 0, v(TMP + 5))
    I("s_cbranch_vccz", dn)
    I("s_sleep", 4)
    I("s_cmp_lg_u32", sCNT, 0)
    I("s_cbranch_scc1", lp)
    A.label(dn)
    I("ds_write2_b32", v(TMP), v(TMP + 4), v(TMP + 6), mods="offset0:0 offset1:1")
    A.label(lcs)
    if not OPT.get("kvt", 1):
        kvdone_try()
    A.wait_vm_all(force=True)
    stamp("b_w3ab")
    kvdone_check()
    arrive(bAB)
    spin(aC2P, 4, 1)
    spin(aDP, TRG, 1)
    dma_seq(SRD_W3, 3584, slot(W3S[1][0]), (sE, 128), 7)
    if OPT.get("d_early", 0):
        spin(aHF, 4, 1)
        dma_seq(SRD_W3, 3584, slot(W3S[1][1]), (sE, 224 * 3584 + 128), 7)

W4SL = [2, 0, 1, 3]
CL = [0, 2, 3, 1]
CNR = [16, 17, 18]
def cnt_setup(regs):
    CNR[:] = regs
    I("v_mov_b32", v(CNR[0]), hx(L_CNT))
    I("v_mov_b32", v(CNR[1]), 1)

def arrive(which, areg=None):
    I("s_mov_b64", "exec", 1)
    I("ds_add_u32", v(areg or CNR[0]), v(CNR[1]), mods="offset:%d" % (4 * which))
    I("s_mov_b64", "exec", -1)

def spin(which, target, sleep=0, areg=None):
    lp, dn = A.newlabel("Lsp"), A.newlabel("Lsd")
    if sleep:
        sleep = OPT.get("bsl", sleep)
    I("s_mov_b32", sCNT, hx(400000))
    if OPT.get("ex1", 1):
        I("s_mov_b64", "exec", 1)
    A.label(lp)
    I("ds_read_b32", v(CNR[2]), v(areg or CNR[0]), mods="offset:%d" % (4 * which))
    I("s_sub_u32", sCNT, sCNT, 1)
    A.wait_lg_all(force=True)
    I("v_cmp_gt_u32", "vcc", target, v(CNR[2]))
    I("s_cbranch_vccz", dn)
    if sleep:
        I("s_sleep", sleep)
    I("s_cmp_lg_u32", sCNT, 0)
    I("s_cbranch_scc1", lp)
    A.label(dn)
    if OPT.get("ex1", 1):
        I("s_mov_b64", "exec", -1)

GT_ = ["s18", "s19", "s20", "s21", "s22", "s23", "s3"]
sTE = "s0"
def e_table(for_a):
    I("s_lshr_b32", sA, sTG, 1)
    I("s_mul_i32", sK, sA, 3)
    I("s_lshl_b32", sA, sA, 3)
    I("s_lshl_b32", sB, sLW, 1)
    I("s_add_u32", sTE, sA, sB)
    I("s_add_u32", sK, sK, sJ)
    I("s_cmp_ge_u32", sK, 7)
    I("s_cselect_b32", sA, 7, 0)
    I("s_sub_u32", sK, sK, sA)
    I("s_bitcmp1_b32", sTG, 0)
    I("s_cselect_b32", sA, hx(16 * TB if for_a else 7 * 128 * 896), 0)
    I("s_add_u32", sA, sA, sPAGE if for_a else sJ128)
    for i in range(7):
        r = GT_[i] if for_a else "s%d" % (36 + i)
        I("s_mul_i32", r, sK, hx(2048 if for_a else 128 * 896))
        I("s_add_u32", r, r, sA)
        if i < 6:
            I("s_add_u32", sK, sK, 1)
            I("s_cmp_eq_u32", sK, 7)
            I("s_cmov_b32", sK, 0)

PK4 = 128
def w4_park(c):
    res = []
    for i in range(7):
        def th(i=i):
            I("s_add_u32", sH_, "s%d" % (36 + i), hx(32 * CL[c] * 896))
            W4ID[c] = I("buffer_load_dwordx4", vr(PK4 + 28 * (3 - c) + 4 * i, 4), vD4, SRD_W4, sH_, mods="offen")
        res.append(th)
    return res

def w4_unpark(c):
    I("v_add_u32", v(39), hx(slot(W4SL[c]) - slot(3)), v(vUP))
    A.wait(vm=W4ID[c])
    for i in range(7):
        I("ds_write_b128", v(39), vr(PK4 + 28 * (3 - c) + 4 * i, 4), mods="offset:%d" % (4096 * i))

def w4_thunks(c):
    res = []
    for i in range(7):
        def th(i=i):
            I("s_add_u32", "m0", sF, hx(slot(W4SL[c]) + 4096 * i))
            I("s_add_u32", sH_, "s%d" % (36 + i), hx(32 * CL[c] * 896))
            W4ID[c] = I("buffer_load_dwordx4", vD4, SRD_W4, sH_, mods="offen lds")
        res.append(th)
    return res
W4ID = {}

def peek(which, areg=None):
    return I("ds_read_b32", v(CNR[2]), v(areg or CNR[0]), mods="offset:%d" % (4 * which))

def verify(ld, which, target, areg=None):
    ok, lp = A.newlabel("Lvk"), A.newlabel("Lvl")
    A.wait(lg=ld)
    I("v_cmp_gt_u32", "vcc", target, v(CNR[2]))
    I("s_cbranch_vccz", ok)
    sv = (A.lg, A.lg_done)
    I("s_mov_b32", sCNT, hx(400000))
    A.label(lp)
    peek(which, areg)
    I("s_sub_u32", sCNT, sCNT, 1)
    I("s_waitcnt", "lgkmcnt(0)")
    I("v_cmp_gt_u32", "vcc", target, v(CNR[2]))
    I("s_cbranch_vccz", ok)
    I("s_cmp_lg_u32", sCNT, 0)
    I("s_cbranch_scc1", lp)
    A.lg, A.lg_done = sv
    A.label(ok)

class Inject:
    def __init__(self, thunks, first, every=None):
        self.th, self.nx, self.every, self.c = list(thunks), first, every or first, 0
    def __enter__(self):
        global I
        self.old = I
        def J(*a, **k):
            global I
            r = self.old(*a, **k)
            self.c += 1
            if self.c >= self.nx and self.th:
                self.nx += self.every
                cur = I
                I = self.old
                self.th.pop(0)()
                I = cur
            return r
        I = J
        return self
    def __exit__(self, *a):
        global I
        I = self.old
        for t in self.th:
            t()

T32 = [7, 8]
C32 = [[11, 12], [13, 14]]
def tr32_lane(dst=T32):
    t0, t1, t2 = TMP + 12, TMP + 13, TMP + 14 - 3
    I("v_bfe_u32", v(t0), vLANE, 2, 2)
    I("v_lshrrev_b32", v(t1), 5, vLANE)
    I("v_lshl_add_u32", v(t1), v(t1), 2, v(t0))
    I("v_lshlrev_b32", v(t1), 7, v(t1))
    I("v_and_b32", v(t0), 2, v(t0))
    I("v_lshl_or_b32", v(t1), v(t0), 5, v(t1))
    I("v_and_b32", v(t0), 16, vLANE)
    I("v_lshl_or_b32", v(t1), v(t0), 1, v(t1))
    I("v_and_b32", v(t0), 1, vLANE)
    I("v_lshl_or_b32", v(t1), v(t0), 4, v(t1))
    I("v_and_b32", v(t0), 2, vLANE)
    I("v_lshl_or_b32", v(dst[0]), v(t0), 2, v(t1))
    I("v_xor_b32", v(dst[1]), 64, v(dst[0]))

def bf_lane(dst):
    I("v_and_b32", v(dst), 1, vQ4)
    I("v_mul_u32_u24", v(dst), hx(TB), v(dst))
    I("v_lshl_add_u32", v(dst), vTOK, 4, v(dst))
    I("v_lshrrev_b32", v(TMP + 12), 5, vLANE)
    I("v_lshl_add_u32", v(dst), v(TMP + 12), 8, v(dst))

def set32(base, k):
    if isinstance(base, int):
        I("s_mov_b32", sA, hx(base))
        base = sA
    for b in range(2):
        I("v_add_u32", v(C32[k][b]), base, v(T32[b]))

def rec(fn):
    global I
    old = I
    groups = []
    def J(*a, **k):
        if a[0].startswith(("s_cselect", "s_cmov", "v_cndmask")):
            groups[-1].append((a, k))
        else:
            groups.append([(a, k)])
    I = J
    fn()
    I = old
    return [lambda g=g: [old(*a, **k) for a, k in g] for g in groups]

def m32(acc, areg, breg, zero):
    I("v_mfma_f32_32x32x16_bf16", vr(acc, 16), vr(areg, 4), vr(breg, 4), "0" if zero else vr(acc, 16))

def colsum32(sg):
    t0 = TMP
    I("s_mov_b32", sA, hx(slot(W3S[sg][0])))
    I("s_bitcmp1_b32", sLW, 1)
    I("s_cmov_b32", sA, hx(slot(W3S[sg][1])))
    I("s_and_b32", sB, sLW, 1)
    I("s_lshl_b32", sB, sB, 6)
    I("v_xor_b32", v(t0), sB, v(T32[0]))
    I("v_add_u32", v(t0), sA, v(t0))
    rd = []
    for k in range(14):
        I("ds_read_b64_tr_b16", vr(AREG + 4 * k, 2), v(t0), mods="offset:%d" % (2048 * k))
        rd.append(I("ds_read_b64_tr_b16", vr(AREG + 4 * k + 2, 2), v(t0), mods="offset:%d" % (2048 * k + 1024)))
    I("s_lshl_b32", sB, sB, 1)
    I("s_add_u32", sA, sB, hx(L_CS3 + 256 * sg))
    I("v_lshrrev_b32", v(t0 + 1), 5, vLANE)
    I("v_lshl_add_u32", v(t0 + 1), v(t0 + 1), 6, sA)
    A.wait_lg_all()
    for k in range(14):
        m32(ACC, AREG + 4 * k, ONES, k == 0)
    I("s_mov_b32", "exec_lo", 1)
    I("s_mov_b32", "exec_hi", 1)
    for q in range(16):
        I("ds_add_f32", v(t0 + 1), v(ACC + q), mods="offset:%d" % (4 * q))
    I("s_mov_b64", "exec", -1)

def gemm32(nk, breg, areg, rd, bl=None, bissue=None, zero=None, hook=None):
    for k in range(nk):
        if hook:
            hook(k)
        if k % 2 == 0:
            A.wait(vm=bl(k + 1) if bl else None, lg=rd[k + 1])
        for b in range(2):
            m32((ACC, ACC2)[b], areg + 8 * (k % 6) + 4 * b, breg(k), zero(k) if zero else False)
            if bissue:
                bissue(k, b)
            if k + 4 < nk:
                r = a32(areg, k + 4, b)
        if k + 4 < nk:
            rd.append(r)

def a32(areg, k, b):
    d = areg + 8 * (k % 6) + 4 * b
    ad = v(C32[(k // 14) & 1][b])
    I("ds_read_b64_tr_b16", vr(d, 2), ad, mods="offset:%d" % (2048 * (k % 14)))
    return I("ds_read_b64_tr_b16", vr(d + 2, 2), ad, mods="offset:%d" % (2048 * (k % 14) + 1024))

vRW = [120, 121, 122, 123]
vRR = [124, 125, 126, 127]
vBF, vXP = 9, 10
def e_lane_a():
    t0, t1 = TMP + 8, TMP + 9
    tr32_lane()
    bf_lane(vBF)
    I("v_min_u32", v(vXP), 6, vTOK)
    I("v_lshlrev_b32", v(vXP), 8, v(vXP))
    I("v_and_b32", v(t0), 1, vQ4)
    I("v_lshl_add_u32", v(vXP), v(t0), 11, v(vXP))
    tile_off(sA, R_SX + 4, 2048, tl=sTE)
    I("v_add_u32", v(vXP), sA, v(vXP))

def cls_check(ld, t, voff, c, name=None, sleep=0, off=0):
    ok, lp = A.newlabel("Lrk"), A.newlabel("Lrl")
    I("s_add_u32", sA, sTAG, c)
    A.wait(vm=ld)
    I("s_mov_b32", sCNT, hx(40000))
    A.label(lp)
    I("v_subrev_u32", v(t), sA, v(t))
    I("v_cmp_le_u32", "vcc", 4, v(t))
    I("s_cbranch_vccz", ok)
    I("s_sub_u32", sCNT, sCNT, 1)
    I("s_cmp_eq_u32", sCNT, 0)
    I("s_cbranch_scc1", ok)
    sv = (A.vm, A.vm_done)
    if sleep:
        I("s_sleep", sleep)
    I("buffer_load_dword", v(t), v(voff), SRD_WS, 0, mods="offen" + (" offset:%d" % off if off else "") + " sc1")
    I("s_waitcnt", "vmcnt(0)")
    A.vm, A.vm_done = sv
    I("s_branch", lp)
    A.label(ok)
    if name:
        stamp(name)

ACC2 = 224
def e_compute(st_prev):
    A.cmt("---- E (A: matrix part)")
    ZB, AR, NR = 64, 176, 12
    vS = [TMP + 4, TMP + 5]
    vG = [20, 21]
    vGP, PT = 22, 23
    vFR = [24, 25, 26, 27]
    vCW = 19
    vRP = 13
    CA = [11, 12]
    ACH = (ACC, ACC2)
    HB = [slot(W3S[0][0]), slot(W3S[0][1]), slot(W3S[1][0]), slot(W3S[1][1])] + [slot(W4SL[c]) for c in range(4)]
    tile_off(sC2, R_X1, TB, tl=sTE)
    for q in range(4):
        I("s_add_u32", "s%d" % (50 + q), sC2, hx(4096 * q))
    A.wait(vm=st_prev)
    moded(granule_store)
    stamp("x1_flag")
    cnt_setup([16, 17, 18])
    pk_ = peek(bAB)
    unpack(RES, HP, 16)
    for i in range(0, 16, 2):
        I("v_pk_add_f32", vr(RES + i, 2), vr(RES + i, 2), vr(ACC + i, 2))
    verify(pk_, bAB, 4)
    S = OPT.get("skew", 5)
    seq = []
    n0 = n1 = 0
    for end in (28, 56, 112):
        for _ in range(S if end < 112 else 1):
            seq.append((0, n0)); n0 += 1
        while n0 < end:
            seq.append((1, n1)); n1 += 1
            seq.append((0, n0)); n0 += 1
        while n1 < end:
            seq.append((1, n1)); n1 += 1
    pos = {op: i for i, op in enumerate(seq)}
    PD = OPT.get("pd", 7)
    rd = {}
    def ard(i):
        b, n = seq[i]
        if n % 14 == 0:
            I("v_add_u32", v(CA[b]), hx(HB[n // 14]), v(T32[b]))
        d = AR + 4 * (i % NR)
        I("ds_read_b64_tr_b16", vr(d, 2), v(CA[b]), mods="offset:%d" % (2048 * (n % 14)))
        rd[i] = I("ds_read_b64_tr_b16", vr(d + 2, 2), v(CA[b]), mods="offset:%d" % (2048 * (n % 14) + 1024))
    for i in range(PD):
        ard(i)
    poll(v(vXP), sleep=0)
    stamp("e1_ready")
    bl = {}
    def zload(n):
        o = (512 * n) & 4095
        bl[n] = I("buffer_load_dwordx4", vr(ZB + 4 * n, 4), v(vBF), SRD_WS, "s%d" % (50 + n // 8),
                  mods="offen" + (" offset:%d" % o if o else "") + " sc1")
    NP = OPT.get("npz", 6)
    for n in range(NP):
        zload(n)
    I("s_lshl_b32", sA, sLW, 12)
    I("s_add_u32", sB, sA, hx(L_STG))
    I("v_add_u32", v(vS[0]), sB, vL16)
    I("s_add_u32", sB, sA, hx(slot(4)))
    I("v_add_u32", v(vS[1]), sB, vL16)
    I("s_mul_i32", sA, sTE, hx(TB))
    I("v_add_u32", v(vG[1]), sA, v(vBF))
    I("v_add_u32", v(vG[0]), hx(R_G[0]), v(vG[1]))
    if R_G[1]:
        I("v_add_u32", v(vG[1]), hx(R_G[1]), v(vG[1]))
    I("s_lshl_b32", sA, sLW, 2)
    I("v_add_u32", v(vCW), sA, v(CNR[0]))
    I("s_lshl_b32", sF, sLW, 10)
    late = []
    def setup2():
        I("s_and_b32", sE, sTG, 1)
        I("s_mul_i32", sE, sE, 28)
        I("s_lshr_b32", sB, sTE, 1)
        tile_off(sG, R_FG, 128, tl=sB)
        I("s_add_u32", sA, sG, sE)
        I("v_min_u32", v(vGP), 6, vLANE)
        I("v_lshl_add_u32", v(vGP), v(vGP), 2, sA)
        I("s_lshl_b32", sD, sJP, 2)
        I("s_add_u32", sD, sD, sG)
        I("s_add_u32", sD, sD, 64)
        I("s_and_b32", sB, sB, 4)
        I("s_and_b32", sA, sLW, 1)
        I("s_lshl_b32", sA, sA, 1)
        I("s_add_u32", sB, sB, sA)
        I("s_lshl_b32", sB, sB, 1)
        I("s_lshl_b32", sA, sJ, 11)
        tile_off(sC, R_G[1], TB, tl=sB, extra=sA)
        I("s_bitcmp1_b32", sTG, 0)
        I("s_cselect_b32", sA, hx(16 * TB), 0)
        I("s_cselect_b32", sB, 0, hx(16 * TB))
        I("s_add_u32", sC2, sC, sB)
        I("s_add_u32", sC, sC, sA)
        I("s_lshl_b32", sE, sJ, 11)
        I("s_add_u32", sE, sE, sA)
        I("s_add_u32", sE, sE, sPAGE)
    def setup3():
        I("v_lshrrev_b32", v(TMP + 6), 5, vLANE)
        I("v_lshlrev_b32", v(TMP + 6), 6, v(TMP + 6))
        I("v_add_u32", v(TMP + 6), hx(L_CS3 + 256), v(TMP + 6))
        I("s_add_u32", sG, sF, hx(slot(4) + 16384))
        I("v_add_u32", v(TMP + 3), sG, vL16)
        I("v_and_b32", v(TMP), 1, vQ4)
        I("v_lshl_or_b32", v(TMP), vQ4, 1, v(TMP))
        I("v_xor_b32", v(TMP), v(TMP), vTOK)
        I("v_lshlrev_b32", v(TMP), 4, v(TMP))
        I("v_lshl_add_u32", v(TMP), vTOK, 8, v(TMP))
        I("s_lshl_b32", sG, sLW, 12)
        I("s_add_u32", sG, sG, hx(L_STG))
        I("v_add_u32", v(vFR[0]), sG, v(TMP))
        I("v_xor_b32", v(vFR[1]), 16, v(vFR[0]))
        I("v_xor_b32", v(vFR[2]), hx(128), v(vFR[0]))
        I("v_xor_b32", v(vFR[3]), hx(144), v(vFR[0]))
        I("v_lshrrev_b32", v(TMP), 5, vLANE)
        I("v_lshlrev_b32", v(TMP), 1, v(TMP))
        I("v_xor_b32", v(TMP), v(TMP), vTOK)
        I("v_lshlrev_b32", v(TMP), 4, v(TMP))
        I("v_and_b32", v(TMP + 1), 31, vLANE)
        I("v_lshl_add_u32", v(TMP), v(TMP + 1), 8, v(TMP))
        I("s_and_b32", sG, sLW, 1)
        I("s_lshl_b32", sG, sG, 13)
        I("s_add_u32", sG, sG, hx(L_STG))
        I("v_add_u32", v(TMP + 2), sG, v(TMP))
        I("s_lshr_b32", sG, sLW, 1)
        I("s_xor_b32", sG, sG, sTG)
        I("s_and_b32", sG, sG, 1)
    nxt, lim, cur = [0], [0], [0]
    pl = {}
    RW = [(0, 0), (64, 1), (64, 2), (0, 1)]
    def pissue(r):
        o = RW[r][0]
        pl[r] = I("buffer_load_dword", v(PT), v(vGP), SRD_WS, 0, mods="offen" + (" offset:%d" % o if o else "") + " sc1")
    def chk(r):
        cls_check(pl[r], PT, vGP, RW[r][1], "e2_ready%d" % r, off=RW[r][0])
        lim[0] += 14
    def gload():
        n = nxt[0]
        nxt[0] += 1
        assert pos[(1, n + 28)] < cur[0] and n < lim[0]
        r, k = divmod(n, 14)
        c = CL[r]
        o = 1024 * (c & 1) + 512 * (k & 1)
        bl[56 + n] = I("buffer_load_dwordx4", vr(ZB + 4 * (n % 28), 4), v(vG[c >> 1]), SRD_WS, GT_[k // 2],
                       mods="offen" + (" offset:%d" % o if o else "") + " sc1")
    ev = {}
    def at(i, fn):
        ev.setdefault(i, []).append(fn)
    wq = []
    wid = {}
    pk = {}
    used = set()
    def check_at(i, which, target, areg=None, then=None, move=1):
        while any(k in used for k in range(i - 3, i + 1)):
            i += move
        used.update(range(i - 3, i + 1))
        at(i - 3, lambda: pk.__setitem__(i, peek(which, areg)))
        def f():
            verify(pk[i], which, target, areg)
            if then:
                then()
        at(i, f)
    def wr(b, q):
        wid[b] = I("ds_write_b128", v(vS[b]), vr(ACH[b] + 4 * q, 4), mods="offset:%d" % (1024 * q))
    for b in range(2):
        i0 = pos[(b, 27)] + 2
        for q in range(4):
            at(i0 + q, lambda b=b, q=q: wr(b, q))
        at(i0 + 3, lambda: arrive(aH, vCW))
        at(i0 + 3, lambda b=b: stamp("e1_h%d" % b))
        at(pos[(b, 28)], lambda b=b: A.wait(lg=wid[b]))
    for h, cn in ((1, aF1), (3, aF3)):
        at(pos[(1, 14 * h + 13)] - PD + 1, lambda cn=cn: arrive(cn))
    at(pos[(0, OPT.get("zk", 10))], lambda: arrive(aH, vCW))
    IE2 = pos[(0, 56)]
    if not OPT.get("d_early", 0):
        at(pos[(0, OPT.get("zd", 18))], lambda: arrive(aZ))
        check_at(pos[(0, 42)] - PD, aXF, 4, move=-1)
    check_at(pos[(0, 20)], bW3, 4)
    def more():
        lim[0] += 14
    def prog(val, st=None):
        I("v_add_u32", v(TMP + 7), val, vTAG)
        A.wait(vm=st)
        def f(m):
            I("s_mov_b64", "exec", 1)
            I("buffer_store_dword", v(TMP + 7), "off", SRD_WS, sD, mods=m)
            I("s_mov_b64", "exec", -1)
        moded(f)
    for q, th in enumerate(rec(setup2) + rec(setup3)):
        at(pos[(0, 31)] + q // 2, th)
        assert pos[(0, 31)] + q // 2 < pos[(0, 50)]
    check_at(pos[(0, 51)], bR, 1, vCW)
    gst = {}
    KC = TMP + 8
    T, CV = 160, 120
    at(pos[(0, 52)], lambda: I("ds_read_b128", vr(KC, 4), v(TMP + 3)))
    for q in range(4):
        at(pos[(0, 53)] + q, lambda q=q: I("ds_write_b128", v(vFR[q]), vr(RES + 4 * q, 4)))
    at(pos[(0, 53)] + 3, lambda: arrive(aFIN))
    cr = {}
    assert pos[(1, 28 + 21)] < pos[(0, 55)] + 2
    for n in range(8):
        at(pos[(0, 55)] + 2 + n // 2, lambda n=n: cr.__setitem__(n, I("ds_read_b128", vr(CV + 4 * n, 4), v(TMP + 6),
                                                                     mods="offset:%d" % (128 * (n // 4) + 16 * (n % 4)))))
    units = [8 * b + 4 * (g >> 1) + (g & 1) for b in range(2) for g in range(4)]
    def init(b):
        l1, l2 = A.newlabel("Lin"), A.newlabel("Lin")
        I("s_cmp_eq_u32", sG, 0)
        I("s_cbranch_scc1", l1)
        for q in range(0, 16, 2):
            I("v_pk_mov_b32", vr(ACH[b] + q, 2), 0, 0) if False else I("v_mov_b64", vr(ACH[b] + q, 2), 0)
        I("s_branch", l2)
        A.label(l1)
        for n in range(4 * b, 4 * b + 4):
            I("v_xor_b32", v(RES + n), hx(16 * units[n]), v(TMP + 2))
            I("ds_read_b128", vr(ACH[b] + 4 * (n % 4), 4), v(RES + n))
        A.lg -= 4
        A.label(l2)
    def mid():
        stamp("e1_pass1")
        NMU, K0, K1, RI = KC, TMP + 12, KC + 2, 14
        I("v_mov_b32", v(K0), v(KC + 1))
        I("v_mov_b32", v(RI), v(KC + 3))
        p = {}
        for b in range(2):
            A.wait(lg=cr[4 * b + 3])
            for q in range(0, 16, 2):
                I("v_pk_fma_f32", vr(ACH[b] + q, 2), vr(CV + 16 * b + q, 2), vr(NMU, 2), vr(ACH[b] + q, 2), mods="op_sel_hi:[1,0,1]")
            if b == 0:
                inj = Inject([lambda: pissue(0), lambda: p.__setitem__(0, peek(bR, vCW))], 40, 20)
            else:
                def late():
                    verify(p[1], aFIN, 8)
                    init(0)
                    for i in range(IE2, IE2 + PD):
                        ard(i)
                ng = OPT.get("g0n", 6) - nxt[0]
                inj = Inject([gload] * ng + [lambda: prog(1, gst[0]), lambda: p.__setitem__(1, peek(aFIN)), late], 46 if ng == 0 else 8, 10 if ng == 0 else 60 // (ng + 2))
            with inj:
                gelu(ACH[b], 16, T, K0, K1, RI, CV + 16 * b, True)
            if b == 0:
                verify(p[0], bR, 2, vCW)
            def f(m, b=b):
                r = None
                for u in range(2):
                    o = 1024 * b + 512 * u
                    r = I("buffer_store_dwordx4", vr(CV + 16 * b + 4 * u, 4), v(vG[1]), SRD_WS, sE,
                          mods="offen" + (" offset:%d" % o if o else "") + (" " + m if m else ""))
                return r
            if b == 1:
                init(1)
            gst[b] = moded(f)
            stamp("a_g%d" % (2 + b))
            if b == 0:
                chk(0)
                for _ in range(OPT.get("b0", 6)):
                    gload()
    at(IE2, mid)
    at(IE2 + 1, lambda: A.wait_lg_all(force=True) if False else I("s_waitcnt", "lgkmcnt(2)"))
    at(IE2 + OPT.get("f3", 14), lambda: prog(2, gst[1]))
    for r, dl in ((1, OPT.get("dl1", 6)), (2, OPT.get("dl2", 2)), (3, OPT.get("dl3", 4))):
        i = pos[(0, 56 + 14 * (r - 1) + dl)]
        at(max(i - OPT.get("pg", 14), IE2 + 1), lambda r=r: pissue(r))
        at(i, lambda r=r: chk(r))
    if OPT.get("u3", 0):
        check_at(pos[(0, 84)] - PD, aL2, 4, move=-1)
        check_at(pos[(0, 98)] - PD, aL3, 4, move=-1)
    else:
        check_at(pos[(0, 84)] - PD, aL3, 4, move=-1)
    at(pos[(0, 56 + 42)], lambda: arrive(aH, vCW))
    SND, RCV, W, o0 = 64, 120, 96, 104
    t0, t1 = TMP + 8, TMP + 9
    rp = {}
    def fin_setup():
        for q in range(16):
            I("v_mov_b32", v(SND + 2 * q + 1), vTAG)
        I("v_lshrrev_b32", v(t0), 1, vTOK)
        I("v_lshrrev_b32", v(t1), 5, vLANE)
        I("v_xor_b32", v(t0), v(t0), v(t1))
        I("v_lshlrev_b32", v(t0), 4, v(t0))
        I("v_and_b32", v(t1), 31, vLANE)
        I("v_lshl_add_u32", v(t0), v(t1), 7, v(t0))
        I("s_lshl_b32", sE, sLW, 12)
        I("s_add_u32", sE, sE, hx(slot(4)))
        I("v_add_u32", v(W), sE, v(t0))
        for n in range(1, 4):
            I("v_xor_b32", v(W + n), hx(32 * n), v(W))
        I("v_lshrrev_b32", v(o0), 3, vLANE)
        I("v_and_b32", v(t1), 7, vLANE)
        I("v_xor_b32", v(t1), v(t1), vQ4)
        I("v_mul_u32_u24", v(o0), hx(896), v(o0))
        I("v_lshl_add_u32", v(o0), v(t1), 4, v(o0))
        I("v_xor_b32", v(t1), 4, v(t1))
        I("v_lshrrev_b32", v(o0 + 1), 3, vLANE)
        I("v_mul_u32_u24", v(o0 + 1), hx(896), v(o0 + 1))
        I("v_lshl_add_u32", v(o0 + 1), v(t1), 4, v(o0 + 1))
        I("s_lshl_b32", sE, sX, 4)
        I("s_add_u32", sE, sE, sTE)
        I("s_mul_i32", sB, sE, hx(16 * 896))
        I("s_add_u32", sB, sB, sJ128)
        for n in range(4):
            I("s_add_u32", "s%d" % (4 + n), sC, hx(TB * n))
            I("s_add_u32", "s%d" % (8 + n), sC2, hx(TB * n))
            I("s_add_u32", "s%d" % (12 + n), sB, hx(8 * 896 * n))
    fs = rec(fin_setup)
    i1 = pos[(1, 56 + 42)] + 1
    for q, th in enumerate(fs):
        at(i1 + q // 3, th)
    assert i1 + len(fs) // 3 < pos[(0, 111)]
    check_at(pos[(0, 111)], bR, 3, vCW, move=-1)
    def finish():
        lown, lend = A.newlabel("Lown"), A.newlabel("Lend")
        sv = (A.vm, A.vm_done, A.lg, A.lg_done)
        I("s_cmp_eq_u32", sG, 0)
        I("s_cbranch_scc1", lown)
        def snd(m):
            for n in range(8):
                for e in range(2):
                    q = 2 * n + e
                    I("v_cvt_pk_bf16_f32", v(SND + 2 * q), v(ACH[q // 8] + 2 * (q % 8)), v(ACH[q // 8] + 2 * (q % 8) + 1))
                I("buffer_store_dwordx4", vr(SND + 4 * n, 4), vL16, SRD_WS, "s%d" % (4 + n // 2),
                  mods="offen" + (" offset:1024" if n & 1 else "") + (" " + m if m else ""))
        moded(snd)
        stamp("x_sent")
        I("s_branch", lend)
        A.label(lown)
        l0, d0 = A.newlabel("Lpoll"), A.newlabel("Lpd")
        I("s_mov_b32", sCNT, hx(40000))
        I("s_mov_b64", "exec", 1)
        A.label(l0)
        I("buffer_load_dword", v(t0), "off", SRD_WS, "s%d" % (8 + OPT.get("wp", 2) // 2), mods="offset:%d sc1" % (4 + 1024 * (OPT.get("wp", 2) & 1)))
        I("s_sub_u32", sCNT, sCNT, 1)
        I("s_waitcnt", "vmcnt(0)")
        I("v_cmp_ne_u32", "vcc", sTAG, v(t0))
        I("s_cbranch_vccz", d0)
        I("s_cmp_lg_u32", sCNT, 0)
        I("s_cbranch_scc1", l0)
        A.label(d0)
        I("s_mov_b64", "exec", -1)
        lp, dn = A.newlabel("Lpoll"), A.newlabel("Lpd")
        A.label(lp)
        for n in range(8):
            I("buffer_load_dwordx4", vr(RCV + 4 * n, 4), vL16, SRD_WS, "s%d" % (8 + n // 2),
              mods="offen" + (" offset:1024" if n & 1 else "") + " sc1")
        I("v_mov_b32", v(t0), vTAG)
        I("v_mov_b32", v(t1), vTAG)
        I("s_sub_u32", sCNT, sCNT, 1)
        for k, n in enumerate(range(8)):
            I("s_waitcnt", "vmcnt(%d)" % (7 - k))
            I("v_min3_u32", v(t0), v(t0), v(RCV + 4 * n + 1), v(RCV + 4 * n + 3))
            I("v_max3_u32", v(t1), v(t1), v(RCV + 4 * n + 1), v(RCV + 4 * n + 3))
            for e in range(2):
                q = 2 * n + e
                I("v_and_b32", v(RCV + 2 * q + 1), hx(0xffff0000), v(RCV + 2 * q))
                I("v_lshlrev_b32", v(RCV + 2 * q), 16, v(RCV + 2 * q))
        I("v_cmp_ne_u32", "vcc", v(t0), v(t1))
        I("s_cbranch_vccz", dn)
        I("s_cmp_gt_i32", sCNT, 0)
        I("s_cbranch_scc1", lp)
        A.label(dn)
        stamp("x_recv")
        for n in range(4):
            ac = ACH[n // 2] + 8 * (n % 2)
            for e in range(0, 8, 2):
                I("v_pk_add_f32", vr(ac + e, 2), vr(ac + e, 2), vr(RCV + 8 * n + e, 2))
            pack(SND + 4 * n, ac, 8)
            I("ds_write_b128", v(W + n), vr(SND + 4 * n, 4))
        rr = [I("ds_read_b128", vr(ACC + 4 * n, 4), v(vS[1]), mods="offset:%d" % (1024 * n)) for n in range(4)]
        for n in range(4):
            A.wait(lg=rr[n])
            I("buffer_store_dwordx4", vr(ACC + 4 * n, 4), v(o0 + (n & 1)), SRD_OUT, "s%d" % (12 + n), mods="offen" + (" sc1" if OPT.get("outsc1") else "") + (" nt" if OPT.get("outnt") else ""))
        A.label(lend)
        A.vm, A.vm_done, A.lg, A.lg_done = sv
    zn = [NP]
    for i, (b, n) in enumerate(seq):
        if OPT.get("fine") and i % 8 == 0:
            fstamp("op%03d" % i)
        for fn in ev.get(i, ()):
            fn()
        key = n if n < 28 else (n if n >= 56 else None)
        A.wait(vm=bl[key] if (b == 0 and key is not None) else None, lg=rd[(i | 1) if (i | 1) in rd else i])
        m32(ACH[b], AR + 4 * (i % NR), ZB + 4 * (n % 28), n in (0, 28))
        cur[0] = i + 1
        done1 = max([m for (bb, m) in seq[:i + 1] if bb == 1], default=-1)
        if zn[0] < 28:
            if b == 0:
                zload(zn[0]); zn[0] += 1
        elif nxt[0] < lim[0] and nxt[0] + 28 <= done1:
            gload()
        elif wq:
            wq.pop(0)()
        if i + PD < len(seq) and not (i < IE2 <= i + PD):
            ard(i + PD)
    assert not wq and nxt[0] == 56
    stamp("e2_mfma")
    finish()
    stamp("end")

def e_helper_setup():
    vS0, vS1, vRC, RT, vFL, vSO, vSO3, vW3 = 28, 29, 30, 31, 32, 33, 34, 35
    I("v_lshrrev_b32", v(vCS), 5, vLANE)
    I("v_lshlrev_b32", v(vCS), 6, v(vCS))
    I("v_add_u32", v(vCS), hx(131072), v(vCS))
    bf_lane(vBF)
    I("s_lshl_b32", sA, sLW, 12)
    I("s_add_u32", sB, sA, hx(L_STG))
    I("v_add_u32", v(vS0), sB, vL16)
    I("s_add_u32", sB, sA, hx(slot(4)))
    I("v_add_u32", v(vS1), sB, vL16)
    I("s_lshl_b32", sA, sJP, 11)
    I("s_cmp_ge_u32", sJP, 7)
    I("s_cselect_b32", sB, hx(15 * TB), 0)
    I("s_add_u32", sA, sA, sB)
    tile_off(sC, R_G[0], TB, tl=sTE, extra=sA)
    I("s_lshr_b32", sB, sTE, 1)
    tile_off(sG, R_FG, 128, tl=sB)
    I("s_lshl_b32", sA, sJP, 2)
    I("s_add_u32", sD, sG, sA)
    vGP, vRP = 37, 38
    I("s_and_b32", sE, sTG, 1)
    I("s_mul_i32", sE, sE, 28)
    I("s_add_u32", sA, sG, sE)
    I("v_min_u32", v(TMP), 6, vLANE)
    I("v_lshl_add_u32", v(vGP), v(TMP), 2, sA)
    I("s_and_b32", sB, sB, 4)
    tile_off(sA, R_FG + 64, 128, tl=sB, extra=sE)
    I("v_min_u32", v(vRP), 6, vTOK)
    I("v_lshl_add_u32", v(vRP), v(vRP), 2, sA)
    I("v_lshl_add_u32", v(vRP), vQ4, 7, v(vRP))
    I("v_min_u32", v(TMP), 13, vTOK)
    I("s_add_u32", sA, sG, 64)
    I("v_lshl_add_u32", v(vRC), v(TMP), 2, sA)
    I("v_lshrrev_b32", v(TMP), 5, vLANE)
    I("v_mul_u32_u24", v(TMP), 3, v(TMP))
    I("s_sub_u32", sA, sTE, 1)
    I("v_add_u32", v(TMP), sA, v(TMP))
    I("v_max_i32", v(TMP), 0, v(TMP))
    I("v_min_i32", v(TMP), 15, v(TMP))
    I("v_min_u32", v(TMP + 1), 6, vTOK)
    I("v_lshlrev_b32", v(TMP + 1), 8, v(TMP + 1))
    I("v_lshl_add_u32", v(TMP), v(TMP), 11, v(TMP + 1))
    I("s_add_u32", sA, sPAGE, hx(R_SX + 4))
    I("v_add_u32", v(TMP), sA, v(TMP))
    I("v_cmp_ne_u32", "vcc", 0, vQ4)
    I("v_cndmask_b32", v(vRC), v(vRC), v(TMP), "vcc")
    I("s_lshl_b32", sF, sLW, 10)
    tile_off(sSP, R_SX, 2048, tl=sTE)
    I("v_and_b32", v(vSO3), 1, vQ4)
    I("v_lshlrev_b32", v(vSO3), 11, v(vSO3))
    I("v_lshl_add_u32", v(vSO3), vTOK, 4, v(vSO3))
    I("v_lshrrev_b32", v(TMP), 5, vLANE)
    I("v_lshl_add_u32", v(vSO), v(TMP), 8, v(vSO3))
    I("v_cvt_f32_u32", v(vW3), v(TMP))
    I("v_sub_f32", v(vW3), 1.0, v(vW3))

def e_helper():
    A.cmt("---- E (B: activation)")
    X, CS, GT = 64, 96, 48
    NMU, K0, K1, RI = 20, 21, 22, 23
    vS0, vS1, vRC, RT, vFL, vSO, vSO3, vW3 = 28, 29, 30, 31, 32, 33, 34, 35
    I("v_mov_b32", v(40), vD3584)
    I("s_add_u32", "s43", sE, hx(224 * 3584 + 128))
    e_helper_setup()
    cnt_setup([16, 17, 18])
    spin(bAB, 4, 1)
    for n in range(8):
        I("ds_read_b128", vr(CS + 4 * n, 4), v(vCS), mods="offset:%d" % (L_CS3 - 131072 + 128 * (n // 4) + 16 * (n % 4)))
    vCW = 19
    I("s_lshl_b32", sA, sLW, 2)
    I("v_add_u32", v(vCW), sA, v(CNR[0]))
    spin(aDP, 4, 1)
    A.wait_vm_all()
    arrive(bW3)
    stamp("b_r5")
    spin(aH, 1, 2, vCW)
    stamp("b_r6")
    lp, dn = A.newlabel("Lpoll"), A.newlabel("Lpd")
    G = X
    I("s_mov_b32", sCNT, hx(40000))
    A.label(lp)
    for q in range(3):
        I("buffer_load_dwordx4", vr(G + 4 * q, 4), v(vSO), SRD_WS, sSP, mods="offen offset:%d sc1" % (512 * q))
    I("buffer_load_dwordx4", vr(G + 12, 4), v(vSO3), SRD_WS, sSP, mods="offen offset:1536 sc1")
    I("s_sub_u32", sCNT, sCNT, 1)
    A.wait_vm_all(force=True)
    I("v_mov_b32", v(TMP), vTAG)
    I("v_mov_b32", v(TMP + 1), vTAG)
    for q in range(4):
        I("v_min3_u32", v(TMP), v(TMP), v(G + 4 * q + 1), v(G + 4 * q + 3))
        I("v_max3_u32", v(TMP + 1), v(TMP + 1), v(G + 4 * q + 1), v(G + 4 * q + 3))
    I("v_cmp_ne_u32", "vcc", v(TMP), v(TMP + 1))
    I("s_cbranch_vccz", dn)
    I("s_cmp_lg_u32", sCNT, 0)
    I("s_cbranch_scc1", lp)
    A.label(dn)
    for o in (0, 2):
        I("v_add_f32", v(G + o), v(G + o), v(G + 4 + o))
        I("v_add_f32", v(G + o), v(G + o), v(G + 8 + o))
        I("v_fmac_f32", v(G + o), v(G + 12 + o), v(vW3))
        I("v_mov_b32", v(G + o + 1), v(G + o))
        I("v_permlane32_swap_b32", v(G + o), v(G + o + 1))
        I("v_add_f32", v(G + o), v(G + o), v(G + o + 1))
    mean_var(G, G + 2, NMU, TMP + 7)
    rstd(TMP + 8, TMP + 7)
    I("v_sub_f32", v(NMU), 0, v(NMU))
    gelu_prep(TMP + 8, K0, K1, RI)
    stamp("b_ready")
    if not OPT.get("d_early", 0):
        spin(aZ, OPT.get("trg", 2), 1)
        for k in range(7):
            I("s_add_u32", "m0", sF, hx(slot(W3S[1][1]) + 4096 * k))
            I("s_add_u32", sH_, "s43", hx(32 * 3584 * k))
            dd = I("buffer_load_dwordx4", v(40), SRD_W3, sH_, mods="offen lds")
        A.wait(vm=dd)
        arrive(aXF)
    def fetch(c):
        spin(aH, c + 2, 1, vCW)
        stamp("b_h%d" % c)
        for q in range(4):
            I("ds_read_b128", vr(X + 16 * (c & 1) + 4 * q, 4), v((vS0, vS1)[c & 1]), mods="offset:%d" % (1024 * q))
        A.wait_lg_all()
    def act(c):
        b = c & 1
        x = X + 16 * b
        for i in range(16):
            I("v_fmac_f32", v(x + i), v(CS + 16 * c + i), v(NMU))
        gelu(x, 16, GT, K0, K1, RI, TMP, False)
    def put(c):
        def f(m):
            r = None
            for u in range(2):
                o = 1024 * (c & 1) + 512 * u
                r = I("buffer_store_dwordx4", vr(TMP + 4 * u, 4), v(vBF), SRD_WS, sC,
                      mods="offen" + (" offset:%d" % o if o else "") + (" " + m if m else ""))
            return r
        r = moded(f)
        stamp("b_g%d" % c)
        return r
    def flag(c, st, off=0):
        I("v_add_u32", v(vFL), c, vTAG)
        A.wait(vm=st)
        def f(m):
            I("s_mov_b64", "exec", 1)
            I("buffer_store_dword", v(vFL), "off", SRD_WS, sD, mods=("offset:%d " % off if off else "") + m)
            I("s_mov_b64", "exec", -1)
        moded(f)
    FD = OPT.get("fd", 50)
    fetch(0)
    I("s_add_u32", sA, sF, hx(slot(4) + 16384))
    I("v_add_u32", v(TMP), sA, vL16)
    I("ds_write_b128", v(TMP), vr(NMU, 4))
    arrive(bR, vCW)
    vGP, vRP = 37, 38
    pl = {}
    def pissue(k, voff, off=0):
        pl[k] = I("buffer_load_dword", v(RT), v(voff), SRD_WS, 0, mods="offen" + (" offset:%d" % off if off else "") + " sc1")
    def level(k, voff, val, off=0, name=None):
        cls_check(pl[k], RT, voff, val, name, sleep=1, off=off)
    flag(0, None, 64)
    o4 = [1, 2, 3] if OPT.get("pk0", 0) else [0, 1, 2, 3]
    with Inject(w4_park(o4[0]) + w4_park(o4[1]) + [lambda: pissue(0, vRC)], 2, OPT.get("iv", 6)):
        act(0)
    st0 = put(0)
    for th in w4_park(o4[2]):
        th()
    level(0, vRC, 0)
    arrive(bR, vCW)
    flag(0, st0)
    for c in o4[3:]:
        for th in w4_park(c):
            th()
    stamp("b_f0")
    spin(aF1, 4, 1)
    w4_unpark(0)
    w4_unpark(1)
    arrive(aFIN)
    stamp("b_l3")
    spin(aF3, 4, 1)
    w4_unpark(2)
    if OPT.get("u3", 0):
        arrive(aL2)
        fetch(1)
        act(1)
        st1 = put(1)
        w4_unpark(3)
        arrive(aL3)
    else:
        w4_unpark(3)
        arrive(aL3)
        fetch(1)
        act(1)
        st1 = put(1)
    flag(1, st1)
    stamp("b_f1")
    spin(aH, 4, 1, vCW)
    flag(3, None, 64)
    pissue(5, vRP)
    level(5, vRP, 3)
    arrive(bR, vCW)
    A.wait_lg_all()

def dump_stamps():
    if not OPT["stamp"]:
        return
    A.wait_vm_all(force=True)
    stamp("drained")
    I("s_memrealtime", sST)
    A.wait_lg_all(force=True)
    I("v_writelane_b32", vSTAMP, "s98", 1)
    I("s_lshl_b32", sA, "s2", 3)
    I("s_add_u32", sA, sA, sW)
    I("s_lshl_b32", sA, sA, 8)
    I("s_add_u32", sA, sA, hx(OFF_STAMP))
    I("v_lshlrev_b32", v(TMP), 2, vLANE)
    I("buffer_store_dword", vSTAMP, v(TMP), SRD_WS, sA, mods="offen")

def epoch_update():
    l = A.newlabel("Lep")
    I("s_cmp_lg_u32", "s2", hx(255))
    I("s_cbranch_scc1", l)
    I("s_cmp_lg_u32", sW, 0)
    I("s_cbranch_scc1", l)
    lp, dn = A.newlabel("Lpoll"), A.newlabel("Lpd")
    I("v_lshrrev_b32", v(TMP), 3, vLANE)
    I("v_lshlrev_b32", v(TMP), PSH, v(TMP))
    I("v_and_b32", v(TMP + 1), 7, vLANE)
    I("v_lshl_add_u32", v(TMP), v(TMP + 1), 7, v(TMP))
    I("s_mov_b32", sA, hx(R_XCC))
    I("s_mov_b32", sCNT, hx(40000))
    A.label(lp)
    for i in range(4):
        I("buffer_load_dword", v(TMP + 4 + i), v(TMP), SRD_WS, sA, mods="offen offset:%d sc1" % (1024 * i))
    A.wait_vm_all(force=True)
    for i in range(4):
        I("v_subrev_u32", v(TMP + 4 + i), sTAG, v(TMP + 4 + i))
    I("v_max_u32", v(TMP + 4), v(TMP + 4), v(TMP + 5))
    I("v_max3_u32", v(TMP + 4), v(TMP + 4), v(TMP + 6), v(TMP + 7))
    I("v_cmp_le_u32", "vcc", 16, v(TMP + 4))
    I("s_cbranch_vccz", dn)
    I("s_sleep", 2)
    I("s_sub_u32", sCNT, sCNT, 1)
    I("s_cmp_lg_u32", sCNT, 0)
    I("s_cbranch_scc1", lp)
    A.label(dn)
    I("s_mov_b32", sA, hx(OFF_EPOCH))
    flag_store(sA)
    A.label(l)

def touch(srd, base, nbytes, mods=""):
    n = -(-nbytes // (32 * 8192))
    if isinstance(base, int):
        I("s_mov_b32", sA, hx(base))
    else:
        I("s_mov_b32", sA, base)
    lim = None
    for i in range(n):
        rem = nbytes - i * 32 * 8192
        if rem < 32 * 8192:
            I("v_cmp_gt_u32", "vcc", hx(rem), v(TMP + 8))
            I("v_cndmask_b32", v(TMP + 10), v(TMP + 9), v(TMP + 8), "vcc")
            va = v(TMP + 10)
        else:
            va = v(TMP + 8)
        I("buffer_load_dword", v(TMP + 11), va, srd, sA, mods="offen" + (" " + mods if mods else ""))
        if i + 1 < n:
            I("s_add_u32", sA, sA, hx(32 * 8192))

def touch_setup():
    I("s_sub_u32", sA, sLI, 28)
    I("s_lshl_b32", sB, sW, 2)
    I("s_add_u32", sA, sA, sB)
    I("s_lshl_b32", sA, sA, 13)
    I("v_lshl_add_u32", v(TMP + 8), vLANE, 7, sA)
    I("v_mov_b32", v(TMP + 9), hx(OOB))

def spare_pre():
    A.cmt("---- spare CU: prefetch")
    I("v_mov_b32", v(TMP + 4), 0)
    I("v_and_b32", vTOK, 15, vLANE)
    touch_setup()
    I("s_getpc_b64", "s[64:65]")
    A.label("L_pc")
    I("s_sub_u32", "s64", "s64", "L_pc-%s_kernel" % NAME)
    I("s_subb_u32", "s65", "s65", 0)
    I("s_and_b32", "s65", "s65", hx(0xffff))
    I("s_mov_b32", "s66", "L_codeend-%s_kernel" % NAME)
    I("s_mov_b32", "s67", hx(0x20000))
    I("s_sub_u32", sA, sLI, 28)
    I("s_lshl_b32", sB, sW, 2)
    I("s_add_u32", sA, sA, sB)
    I("s_lshl_b32", sD, sA, 11)
    I("v_lshlrev_b32", v(TMP + 12), 7, vTOK)
    touch1(SRD_BG, v(TMP + 12), sD)
    A.wait_lg_all(force=True)
    epoch_load()
    srds([60, 8, 4, 12, 16, 20, 24, 28, 32])
    I("v_lshlrev_b32", v(TMP + 11), 7, vLANE)
    def mall(items, off):
        for srd, n in items:
            l = A.newlabel("Lml")
            I("s_sub_u32", sA, sE, hx(off))
            I("s_and_b32", sA, sA, hx(255))
            I("s_cmp_ge_u32", sA, hx(n))
            I("s_cbranch_scc1", l)
            I("s_lshl_b32", sA, sA, 13)
            touch1(srd, v(TMP + 11), sA)
            A.label(l)
            off += n
        return off
    I("s_sub_u32", sA, 31, sLI)
    I("s_lshl_b32", sA, sA, 3)
    I("s_add_u32", sA, sA, sX)
    I("s_lshl_b32", sB, sW, 5)
    I("s_add_u32", sE, sA, sB)
    off = mall(([(SRD_WQKV, 147)] if OPT.get("mq", 1) else []) + [(SRD_WO, 49), (SRD_W1, 49)], 0)
    I("s_lshl_b32", sG, sD, 2)
    I("s_add_u32", sG, sG, sPAGE)
    I("s_mov_b32", sA, sG)
    I("s_cmp_ge_u32", sD, hx(28 << 11))
    I("s_cmov_b32", sA, hx(OOB))
    I("s_add_u32", sB, sPAGE, hx(R_LOC))
    I("s_cmp_eq_u32", sD, hx(31 << 11))
    I("s_cmov_b32", sA, sB)
    touch1(SRD_WS, v(TMP + 11), sA)
    tag_publish()
    late_consts()
    dma_lane_consts()
    barrier()
    tag_read_finish(tag_read_issue())
    off = mall([(SRD_W2, 49)], off)
    if not OPT.get("r2late", 0):
        r2_touch()
    if not OPT["alias"]:
        I("s_add_u32", sB, sPAGE, hx(1 << 21))
        touch(SRD_WS, sB, 112 * TB)
    if OPT["mall"] > 1:
        off = mall([(SRD_W3, 196)], off)
    mode_issue()
    A.wait_vm_all(force=True)
    stamp("sp_mall")
    att_ids()

def r2_touch():
    I("s_sub_u32", sA, sLI, 28)
    I("s_lshl_b32", sB, sW, 2)
    I("s_add_u32", sA, sA, sB)
    I("s_lshl_b32", sD, sA, 11)
    I("s_lshl_b32", sG, sD, 2)
    I("s_add_u32", sG, sG, sPAGE)
    I("v_lshlrev_b32", v(TMP + 11), 7, vLANE)
    I("s_add_u32", sA, sG, hx(R_2))
    I("s_add_u32", sB, sG, hx(R_SH - 28 * 8192))
    I("s_cmp_ge_u32", sD, hx(28 << 11))
    I("s_cmov_b32", sA, sB)
    touch1(SRD_WS, v(TMP + 11), sA)
    I("s_add_u32", sA, sB, hx(32768))
    I("s_cmp_lt_u32", sD, hx(28 << 11))
    I("s_cmov_b32", sA, hx(OOB))
    touch1(SRD_WS, v(TMP + 11), sA)

def spare_att(n0, n1):
    I("s_sub_u32", sE, sLI, 28)
    I("s_lshl_b32", sE, sE, 3)
    I("s_add_u32", sE, sE, sX)
    I("s_lshl_b32", sE, sE, 7)
    l = A.newlabel("Lsa")
    I("s_cmp_ge_u32", sE, hx(28 * 128))
    I("s_cbranch_scc1", l)
    I("s_mov_b32", sK, n0)
    dma_seq(SRD_W3, 3584, slot(3), (sE, 0), n1 - n0, start="cont")
    A.label(l)

def spare_colsum():
    l = A.newlabel("Lsc")
    I("s_cmp_ge_u32", sE, hx(28 * 128))
    I("s_cbranch_scc1", l)
    cl_lane()
    t0 = TMP
    I("v_add_u32", v(t0), hx(slot(3)), v(vCL))
    for s_ in range(14):
        I("ds_read_b64_tr_b16", vr(AREG + 4 * s_, 2), v(t0), mods="offset:%d" % (4096 * s_))
        I("ds_read_b64_tr_b16", vr(AREG + 4 * s_ + 2, 2), v(t0), mods="offset:%d" % (4096 * s_ + 1024))
    I("v_lshlrev_b32", v(TMP + 1), 5, vQ4)
    I("v_lshl_add_u32", v(TMP + 1), vTOK, 4, v(TMP + 1))
    I("s_lshl_b32", sA, sE, 2)
    I("s_lshl_b32", sB, sLW, 7)
    I("s_add_u32", sA, sA, sB)
    I("s_add_u32", sA, sA, hx(OFF_CSG))
    I("v_mov_b32", v(TMP + 5), vTAG)
    I("v_mov_b32", v(TMP + 7), vTAG)
    I("v_cmp_eq_u32", "vcc", 0, vTOK)
    A.wait_lg_all()
    for s_ in range(14):
        m16(ACC, AREG + 4 * s_, ONES, s_ == 0)
    I("v_cndmask_b32", v(TMP + 4), v(ACC + 2), v(ACC), "vcc")
    I("v_cndmask_b32", v(TMP + 6), v(ACC + 3), v(ACC + 1), "vcc")
    I("s_mov_b32", "exec_lo", hx(0x30003))
    I("s_mov_b32", "exec_hi", hx(0x30003))
    I("buffer_store_dwordx4", vr(TMP + 4, 4), v(TMP + 1), SRD_WS, sA, mods="offen sc1")
    I("s_mov_b64", "exec", -1)
    A.label(l)

def cl_lane():
    t0, t1, t2 = TMP, TMP + 1, TMP + 2
    I("v_bfe_u32", v(t0), vLANE, 2, 2)
    I("v_and_b32", v(t1), 1, vQ4)
    I("v_lshl_add_u32", v(t1), v(t1), 2, v(t0))
    I("v_lshrrev_b32", v(t2), 1, vQ4)
    I("v_lshl_add_u32", v(t1), v(t2), 4, v(t1))
    I("v_and_b32", v(t0), 2, v(t0))
    I("v_lshlrev_b32", v(t0), 5, v(t0))
    I("s_lshl_b32", sA, sLW, 5)
    I("v_xor_b32", v(t0), sA, v(t0))
    I("v_lshl_add_u32", v(t0), v(t1), 7, v(t0))
    I("v_and_b32", v(t1), 3, vLANE)
    I("v_lshl_add_u32", v(vCL), v(t1), 3, v(t0))

def spare_post():
    if OPT.get("r2late", 0):
        r2_touch()
    if OPT["warm"]:
        touch_setup()
        I("v_lshlrev_b32", v(TMP + 10), 1, v(TMP + 8))
        I("v_cmp_gt_u32", "vcc", hx(17 * 16384), v(TMP + 10))
        I("v_cndmask_b32", v(TMP + 12), v(TMP + 9), v(TMP + 10), "vcc")
        def w4mall():
            I("s_sub_u32", sA, sLI, 28)
            I("s_lshl_b32", sA, sA, 3)
            I("s_add_u32", sA, sA, sX)
            I("s_lshl_b32", sB, sW, 5)
            I("s_add_u32", sA, sA, sB)
            I("s_lshl_b32", sA, sA, 13)
            I("v_lshlrev_b32", v(TMP + 13), 7, vLANE)
            touch1(SRD_W4, v(TMP + 13), sA)
        for qn, (sg, hi) in enumerate(((0, 0), (0, 1), (1, 0), (1, 1))[:OPT.get("nq", 4)]):
            if qn == OPT.get("w4m", 0):
                w4mall()
            I("s_mov_b32", sA, hx(128 * sg + hi * 224 * 3584))
            touch1(SRD_W3, v(TMP + 10), sA)
            I("s_add_u32", sA, sA, hx(32 * 16384))
            touch1(SRD_W3, v(TMP + 12), sA)
            barrier()
        if OPT.get("w4m", 0) == OPT.get("nq", 4):
            w4mall()
            I("s_waitcnt", "vmcnt(0)")
            barrier()
        stamp("sp_w3")
        I("s_sub_u32", sB, sLI, 28)
        I("s_lshl_b32", sB, sB, 3)
        I("s_add_u32", sB, sB, sW)
        I("v_lshlrev_b32", v(TMP + 10), 7, vLANE)
        def kvr():
            I("s_add_u32", sA, sPAGE, hx(R_K))
            touch1(SRD_WS, v(TMP + 8), sA)
            I("s_add_u32", sA, sA, hx(32 * TB - 32 * 8192))
            touch1(SRD_WS, v(TMP + 8), sA)
        for sg in range(2):
            if OPT.get("kvr", 0) >> sg & 1:
                kvr()
            for i in range(4):
                I("s_add_u32", sC, sB, 32 * i)
                I("s_mul_i32", sD, sC, hx(147))
                I("s_lshr_b32", sD, sD, 10)
                I("s_mul_i32", sA, sD, hx(128 * 896 - 7 * 8192))
                I("s_lshl_b32", sC, sC, 13)
                I("s_add_u32", sA, sA, sC)
                if sg:
                    I("s_add_u32", sA, sA, hx(64 * 896))
                touch1(SRD_W4, v(TMP + 10), sA)
                if i & 1:
                    barrier()
        if OPT.get("kvr", 0) & 4:
            kvr()
        A.wait_vm_all(force=True)
        stamp("sp_w4")

def reset():
    A.vm = A.vm_done = A.lg = A.lg_done = 0

prologue()
I("s_cmp_ge_u32", sLI, 28)
I("s_cbranch_scc1", "L_spare")
I("s_cmp_ge_u32", sW, 4)
I("s_cbranch_scc1", "L_aload")
phase_a_compute()
A.label("L_att")
reset()
att_a()
I("s_cmp_ge_u32", sLI, 28)
I("s_cbranch_scc1", "L_spare2a")
st = c_compute()
e_compute(st)
dump_stamps()
I("s_endpgm")
for f_ in TAILS:
    f_()
A.label("L_spare")
reset()
spare_pre()
I("s_cmp_ge_u32", sW, 4)
I("s_cbranch_scc1", "L_sp4")
att_consts()
I("s_branch", "L_att")
A.label("L_sp4")
mode_check()
att_consts_b()
kv_poll_off(TMP + 4, 0)
I("s_branch", "L_attpre")
A.label("L_aload")
ROLE[0] = "B"
reset()
phase_a_loader()
A.label("L_attpre")
att_loader_pre()
att_b()
A.label("L_cload")
c_loader()
e_helper()
dump_stamps()
I("s_endpgm")
A.label("L_spare2a")
ROLE[0] = "A"
reset()
o_flag()
epoch_update()
I("s_waitcnt", "vmcnt(0)")
barrier()
A.label("L_spare2")
spare_post()
dump_stamps()
A.label("L_end")
I("s_endpgm")
A.label("L_codeend")

body = A.finalize()
hdr = open("cdna_kernels/%s.s.ref" % NAME).read().split("; Override launch")[0]
out = hdr + "; @launch grid=(256,1,1) block=(512,1,1) lds=%d\n" % LDS_SIZE
out += """.amdgcn_target "amdgcn-amd-amdhsa--gfx950"
.text
.globl %s_kernel
.p2align 8
.type %s_kernel,@function
%s_kernel:
""" % (NAME, NAME, NAME)
out += body
out += """.section .rodata,"a"
.p2align 6
.amdhsa_kernel %s_kernel
  .amdhsa_next_free_vgpr 256
  .amdhsa_next_free_sgpr 102
  .amdhsa_accum_offset 256
  .amdhsa_group_segment_fixed_size 0
  .amdhsa_kernarg_size 88
  .amdhsa_user_sgpr_count 2
  .amdhsa_user_sgpr_kernarg_segment_ptr 1
  .amdhsa_system_sgpr_workgroup_id_x 1
.end_amdhsa_kernel
""" % NAME
open(sys.argv[1], "w").write(out)
json.dump(dict(stamps=stamp_names, stamps_b=stamp_names_b, PSH=PSH, v5=1, OFF=dict(Q=R_Q, K=R_K, V=R_V, O=R_O, H=R_H, HH=R_HH, X1=R_X1, G=R_G[0], G1=R_G[1],
               STAMP=OFF_STAMP, WS=WS_SIZE)), open(sys.argv[1] + ".json", "w"))
```

```python
import sys, struct, json
from asmlib import Asm

NAME = "sequential_preLN__sliding_block__mixer_s_mlp__prompt"
OPT = dict(stamp=0, alias=1, local=1, warm=1, clean=0, npre=5, fk=9, wolo=3, kvt=0, mall=1, lag=4, w4m=1, u3=1, wp=5, d_early=1, na=4)
KEEP = []
for a in sys.argv[2:]:
    k, v_ = a.split("=")
    if k == "keep":
        KEEP = v_.split(",")
        continue
    OPT[k] = int(v_)

def f2u(x): return struct.unpack("<I", struct.pack("<f", x))[0]
def hx(x): return "0x%x" % (x & 0xffffffff)
def fl(x): return hx(f2u(x))

TB = 14336
PSH = 21 if OPT["alias"] else 22
R_Q, R_2, R_K, R_V = 0, 16 * TB, 32 * TB, 48 * TB
R_HALO = 64 * TB
R_LOC = R_HALO + 2 * TB
R_FO = R_LOC
R_FHH = R_FO + 2048
R_FQ = R_FHH + 2048
R_FG = R_FQ + 2048
R_SH = R_FG + 2048
R_SX = R_SH + 32768
R_FQKV = R_SX + 32768
R_FHALO = R_FQKV + 16384
R_XCC = R_FHALO + 2048
R_END = R_XCC + 4096
assert R_END <= (1 << 21)
if OPT["alias"]:
    R_O, R_HH, R_H, R_X1 = R_Q, R_Q, R_2, R_2
    R_G = (R_K, R_Q)
else:
    R_H = R_2
    R_O = 1 << 21
    R_X1 = R_O + 16 * TB
    R_HH = R_X1 + 16 * TB
    R_G = (R_HH + 48 * TB, R_HH + 16 * TB)
OFF_EPOCH = 8 << PSH
OFF_CSG = OFF_EPOCH + 4096
OFF_STAMP = OFF_CSG + 16384
WS_SIZE = OFF_STAMP + 256 * 8 * 256
OOB = 0x40000000

SLOT = 28672
def slot(i): return SLOT * i
L_XIMG = 3 * SLOT
L_QIMG = 5 * SLOT
L_STG = L_QIMG
L_CS1 = L_QIMG + 16384
L_CS3 = L_CS1 + 256
L_MODE = L_CS3 + 1024
L_TAG = L_MODE + 4
L_CNT = L_MODE + 16
L_CSA = L_CNT + 256
aO, aOF, aC1P, aC1Q, aC2P, aC2Q, aHF, aDP, aXF, bWO, bW1, bCS1, bW2, bAB, bW3 = range(4, 19)
aZ, aF0, aF1, aF2, aF3, aL01, aL2, aL3, aFIN = range(19, 28)
bQ, aV = 28, 29
aH, bR = 32, 36
L_CST = L_CSA
L_STA = L_CSA + 768
assert L_STA + 1024 <= 163840
LDS_SIZE = 163840

SRD_X, SRD_WQKV, SRD_WO, SRD_W1, SRD_W2, SRD_W3, SRD_W4, SRD_OUT = ["s[%d:%d]" % (4 * i, 4 * i + 3) for i in range(1, 9)]
SRD_WS, SRD_BG = "s[60:63]", "s[64:67]"
sX, sLI, sTG, sJ, sW, sLW, sPAGE, sTAG, sTL = ["s%d" % i for i in range(68, 77)]
sMODE, sJ128, sK, sROT, sXCC = "s77", "s78", "s79", "s80", "s81"
sODD = "s[82:83]"
sA, sB, sC, sD, sE, sF, sG, sH_ = ["s%d" % i for i in range(84, 92)]
sHEAD, sTQ0, sC0, sJP, sT1 = "s92", "s93", "s94", "s95", "s96"
sCNT = "s97"
sST = "s[98:99]"
sD2, sC2 = "s100", "s101"

vLANE, vTOK, vQ4, vL16 = "v0", "v1", "v2", "v3"
vD896, vD2688, vD3584, vD4 = "v4", "v5", "v6", "v44"
TRL = [[7, 8], [9, 10]]
TRC = [[11, 12], [13, 14]]
vTAG = "v15"
ONES = 16
HP = 20
HHP = 80
X1P = 36
vMU, vRH, vSTAMP = 44, 45, "v47"
vSPO, vSPW = 5, 46
ACC = 48
BREG = 64
AREG = 128
TMP = 240

def v(i): return "v%d" % i
def vr(i, n): return "v[%d:%d]" % (i, i + n - 1)

A = Asm()
I = A.I
stamp_names = []
stamp_names_b = ["start", "drained"] + ["sp_mall", "sp_w3", "sp_w4"]
stamp_names += stamp_names_b
ROLE = ["A"]

def stamp(name):
    if not OPT["stamp"]:
        return
    if OPT["stamp"] == 2 and name not in ("start", "drained") and name not in KEEP:
        return
    lst = stamp_names_b if ROLE[0] == "B" else stamp_names
    if name not in lst:
        lst.append(name)
    idx = lst.index(name) + 2
    assert idx < 64
    I("s_memrealtime" if OPT.get("rt") else "s_memtime", sST)
    A.wait_lg_all(force=True)
    I("v_writelane_b32", vSTAMP, "s98", idx)

FS = []
def fstamp(name):
    k = len(FS)
    FS.append(name)
    I("s_getreg_b32", "s98", "hwreg(HW_REG_SHADER_CYCLES)") if False else None
    KEEP.append(name)
    stamp(name)

def barrier():
    I("s_barrier")

def sync_counts():
    A.vm_done = A.vm
    A.lg_done = A.lg

def poll(vOff, sleep=1):
    sleep = max(sleep, OPT.get("psl", 0))
    lp, dn = A.newlabel("Lpoll"), A.newlabel("Lpd")
    t = v(TMP + 15)
    I("s_mov_b32", sCNT, hx(40000))
    A.label(lp)
    I("buffer_load_dword", t, vOff, SRD_WS, 0, mods="offen sc1")
    A.wait_vm_all(force=True)
    I("v_cmp_ne_u32", "vcc", sTAG, t)
    I("s_cbranch_vccz", dn)
    if sleep:
        I("s_sleep", sleep)
    I("s_sub_u32", sCNT, sCNT, 1)
    I("s_cmp_lg_u32", sCNT, 0)
    I("s_cbranch_scc1", lp)
    A.label(dn)

def poll_a(vOff, t):
    I("buffer_load_dword", v(t), vOff, SRD_WS, 0, mods="offen sc1")

def poll_b(vOff, t):
    lp, dn = A.newlabel("Lpoll"), A.newlabel("Lpd")
    I("s_mov_b32", sCNT, hx(40000))
    A.label(lp)
    A.wait_vm_all(force=True)
    I("v_cmp_ne_u32", "vcc", sTAG, v(t))
    I("s_cbranch_vccz", dn)
    I("s_sub_u32", sCNT, sCNT, 1)
    I("s_cmp_eq_u32", sCNT, 0)
    I("s_cbranch_scc1", dn)
    poll_a(vOff, t)
    A.vm -= 1
    I("s_branch", lp)
    A.label(dn)

def moded(fn):
    if not OPT["local"]:
        return fn("sc1")
    l1, l2 = A.newlabel("Lsl"), A.newlabel("Lse")
    I("s_cmp_eq_u32", sMODE, 1)
    I("s_cbranch_scc0", l1)
    vm0 = A.vm
    fn("")
    I("s_branch", l2)
    A.label(l1)
    A.vm = vm0
    r = fn("sc1")
    A.label(l2)
    return r

def flag_store(soff, mods="sc1"):
    I("s_mov_b64", "exec", 1)
    r = I("buffer_store_dword", vTAG, "off", SRD_WS, soff, mods=mods)
    I("s_mov_b64", "exec", -1)
    return r

def frag_store(preg, soff, off=0, mods="sc1"):
    m = "offen" + (" offset:%d" % off if off else "") + (" " + mods if mods else "")
    return I("buffer_store_dwordx4", vr(preg, 4), vL16, SRD_WS, soff, mods=m)

def dma_seq(srd, pitch, lds_base, glob, n, mod=None, start=None, w4=None):
    vofs = {896: vD896, 2688: vD2688, 3584: vD3584}[pitch]
    if start is None:
        I("s_mov_b32", sK, 0)
    elif start != "cont":
        I("s_mov_b32", sK, start)
    I("s_lshl_b32", sF, sLW, 10)
    I("s_add_u32", sF, sF, hx(lds_base) if isinstance(lds_base, int) else lds_base)
    if glob[1]:
        I("s_add_u32", sG, glob[0], hx(glob[1]))
    else:
        I("s_mov_b32", sG, glob[0])
    I("s_mov_b32", sCNT, n)
    lp = A.newlabel("Ldma")
    A.label(lp)
    if w4 is None:
        I("s_lshl_b32", sH_, sK, 12)
        I("s_add_u32", "m0", sH_, sF)
        I("s_mul_i32", sH_, sK, hx(32 * pitch))
    else:
        I("s_mov_b32", "m0", sF)
        I("s_add_u32", sF, sF, hx(4096))
        I("s_and_b32", sH_, sK, hx(0xfffe))
        I("s_add_u32", sH_, sH_, sK)
        I("s_mul_i32", sH_, sH_, hx(32 * pitch))
    I("s_add_u32", sH_, sH_, sG)
    I("buffer_load_dwordx4", vofs, srd, sH_, mods="offen lds")
    I("s_add_u32", sK, sK, 1)
    if mod:
        I("s_cmp_eq_u32", sK, mod)
        I("s_cmov_b32", sK, 0)
    I("s_sub_u32", sCNT, sCNT, 1)
    I("s_cmp_lg_u32", sCNT, 0)
    I("s_cbranch_scc1", lp)
    A.vm += n - 1
    return A.vm

def set_tr(base, dst=None, src=None):
    dst = dst or TRC
    src = src or TRL
    if isinstance(base, int):
        I("s_mov_b32", sA, hx(base))
        base = sA
    for b in range(2):
        for a in range(2):
            I("v_add_u32", v(dst[b][a]), base, v(src[b][a]))

def a_frag(dst, f, off, trc=None):
    trc = trc or TRC
    b, a = divmod(f, 2)
    I("ds_read_b64_tr_b16", vr(dst + 4 * f, 2), v(trc[b][a]), mods="offset:%d" % off)
    return I("ds_read_b64_tr_b16", vr(dst + 4 * f + 2, 2), v(trc[b][a]), mods="offset:%d" % (off + 1024))

def a_read(dst, off, trc=None):
    return [a_frag(dst, f, off, trc) for f in range(4)]

def m16(acc, areg, breg, zero):
    I("v_mfma_f32_16x16x32_bf16", vr(acc, 4), vr(areg, 4), vr(breg, 4), "0" if zero else vr(acc, 4))

def gemm(nk, nbuf, npre, aoff, breg, bl=None, bissue=None, zero=True, acc=ACC, areg=AREG, rd=None, fill=None, hook=None):
    if rd is None:
        rd = [a_read(areg + 16 * s, *aoff(s)) for s in range(npre)]
    for s in range(nk):
        if hook:
            hook(s)
        nxt = s + npre
        new = []
        A.wait(vm=bl[s] if bl is not None else None, lg=rd[s][3])
        for f in range(4):
            m16(acc + 4 * f, areg + 16 * (s % nbuf) + 4 * f, breg(s), zero and s == 0)
            if f == 0 and bissue:
                bissue(s)
            if nxt < nk:
                new.append(a_frag(areg + 16 * (nxt % nbuf), f, *aoff(nxt)))
            if fill:
                fill(s, f)
        if nxt < nk:
            rd.append(new)

def stats_reduce(a, b):
    I("v_permlane32_swap_b32", v(a), v(b))
    I("v_add_f32", v(a), v(a), v(b))
    I("v_mov_b32", v(b), v(a))
    I("v_permlane16_swap_b32", v(a), v(b))
    I("v_add_f32", v(a), v(a), v(b))
    I("v_mov_b32", v(b), v(a))
    I("v_permlane32_swap_b32", v(a), v(b))

def mean_var(s_sum, s_sq, mu, var):
    I("v_mul_f32", v(mu), fl(1.0 / 448), v(s_sum))
    I("v_mul_f32", v(var), fl(1.0 / 448), v(s_sq))
    I("v_fma_f32", v(var), "-" + v(mu), v(mu), v(var))
    I("v_max_f32", v(var), 0, v(var))

def rstd(dst, var):
    I("v_add_f32", v(dst), fl(1e-5), v(var))
    I("v_rsq_f32", v(dst), v(dst))

def unswap(p, nfr):
    I("s_mov_b64", "exec", sODD)
    for k in range(nfr):
        I("v_swap_b32", v(p + 4 * k), v(p + 4 * k + 2))
        I("v_swap_b32", v(p + 4 * k + 1), v(p + 4 * k + 3))
    I("s_mov_b64", "exec", -1)

def pack(dst, src, n):
    for i in range(n // 2):
        I("v_cvt_pk_bf16_f32", v(dst + i), v(src + 2 * i), v(src + 2 * i + 1))

def unpack(dst, src, n):
    for i in range(n // 2):
        I("v_lshlrev_b32", v(dst + 2 * i), 16, v(src + i))
        I("v_and_b32", v(dst + 2 * i + 1), hx(0xffff0000), v(src + i))

BC = "op_sel_hi:[1,0]"
def pk_mul_b(d, a, s):
    I("v_pk_mul_f32", vr(d, 2), vr(a, 2), vr(s, 2), mods="op_sel_hi:[1,0]")

GC0 = -2.0 * 0.7978845608028654 * 1.4426950408889634
GC1 = GC0 * 0.044715
def gelu_prep(r, k0, k1, ri):
    I("v_rcp_f32", v(ri), v(r))
    I("v_mul_f32", v(k1), v(r), v(r))
    I("v_mul_f32", v(k0), fl(GC0), v(r))
    I("v_mul_f32", v(k1), v(k1), v(r))
    I("v_mul_f32", v(k1), fl(GC1), v(k1))

def gelu(x, n, t, k0, k1, ri, dst, packed):
    if packed:
        P = range(0, n, 2)
        for i in P: I("v_pk_mul_f32", vr(t + i, 2), vr(x + i, 2), vr(x + i, 2))
        for i in P: I("v_pk_fma_f32", vr(t + i, 2), vr(t + i, 2), vr(k1, 2), vr(k0, 2), mods="op_sel_hi:[1,0,0]")
        for i in P: I("v_pk_mul_f32", vr(t + i, 2), vr(t + i, 2), vr(x + i, 2))
        for i in range(n): I("v_exp_f32", v(t + i), v(t + i))
        for i in P: I("v_pk_fma_f32", vr(t + i, 2), vr(t + i, 2), vr(ri, 2), vr(ri, 2), mods="op_sel_hi:[1,0,0]")
        for i in range(n): I("v_rcp_f32", v(t + i), v(t + i))
        for i in P: I("v_pk_mul_f32", vr(x + i, 2), vr(x + i, 2), vr(t + i, 2))
    else:
        for i in range(n): I("v_mul_f32", v(t + i), v(x + i), v(x + i))
        for i in range(n): I("v_fma_f32", v(t + i), v(t + i), v(k1), v(k0))
        for i in range(n): I("v_mul_f32", v(t + i), v(t + i), v(x + i))
        for i in range(n): I("v_exp_f32", v(t + i), v(t + i))
        for i in range(n): I("v_fma_f32", v(t + i), v(t + i), v(ri), v(ri))
        for i in range(n): I("v_rcp_f32", v(t + i), v(t + i))
        for i in range(n): I("v_mul_f32", v(x + i), v(x + i), v(t + i))
    pack(dst, x, n)

def stat_granule(p):
    a, b = TMP + 8, TMP + 10
    I("v_mov_b32", v(a), 0)
    I("v_mov_b32", v(b), 0)
    for i in range(8):
        I("v_dot2c_f32_bf16", v(a), v(p + i), v(ONES))
        I("v_dot2c_f32_bf16", v(b), v(p + i), v(p + i))
    I("v_mov_b32", v(TMP + 9), vTAG)
    I("v_mov_b32", v(TMP + 11), vTAG)
    stats_reduce(a, b)

def granule_store(m):
    I("s_mov_b64", "exec", hx(0xffff))
    r = I("buffer_store_dwordx4", vr(TMP + 8, 4), vL16, SRD_WS, sD, mods="offen" + (" " + m if m else ""))
    I("s_mov_b64", "exec", -1)
    return r

def stat_aux():
    I("v_cmp_gt_u32", "vcc", 3, vQ4)
    I("v_subrev_u32", v(vSPO), hx(256), vL16)
    I("v_cndmask_b32", v(vSPO), v(vSPO), vL16, "vcc")
    I("v_mov_b32", v(vSPW), 1.0)
    I("v_cndmask_b32", v(vSPW), 0, v(vSPW), "vcc")

def stat_poll_a(soff):
    I("buffer_load_dwordx4", vr(TMP + 4, 4), vL16, SRD_WS, soff, mods="offen sc1")
    I("buffer_load_dwordx4", vr(TMP + 8, 4), v(vSPO), SRD_WS, soff, mods="offen offset:1024 sc1")

def stat_poll(soff):
    lp, dn = A.newlabel("Lpoll"), A.newlabel("Lpd")
    I("s_mov_b32", sCNT, hx(40000))
    A.label(lp)
    A.wait_vm_all(force=True)
    I("v_min3_u32", v(TMP + 12), v(TMP + 5), v(TMP + 7), v(TMP + 9))
    I("v_max3_u32", v(TMP + 13), v(TMP + 5), v(TMP + 7), v(TMP + 9))
    I("v_min3_u32", v(TMP + 12), v(TMP + 12), v(TMP + 11), vTAG)
    I("v_max3_u32", v(TMP + 13), v(TMP + 13), v(TMP + 11), vTAG)
    I("v_cmp_ne_u32", "vcc", v(TMP + 12), v(TMP + 13))
    I("s_cbranch_vccz", dn)
    I("s_sub_u32", sCNT, sCNT, 1)
    I("s_cmp_eq_u32", sCNT, 0)
    I("s_cbranch_scc1", dn)
    stat_poll_a(soff)
    A.vm -= 2
    I("s_branch", lp)
    A.label(dn)

def stat_finish():
    I("v_fmac_f32", v(TMP + 4), v(TMP + 8), v(vSPW))
    I("v_fmac_f32", v(TMP + 6), v(TMP + 10), v(vSPW))
    stats_reduce(TMP + 4, TMP + 6)

def tile_off(dst, reg, stride, tl=sTL, extra=None):
    I("s_mul_i32", dst, tl, hx(stride))
    I("s_add_u32", dst, dst, sPAGE)
    if reg:
        I("s_add_u32", dst, dst, hx(reg))
    if extra:
        I("s_add_u32", dst, dst, extra)

def out_offs(reg, stride, freg, fstride, fsh):
    I("s_lshl_b32", sA, sJ, 11)
    tile_off(sC, reg, stride, extra=sA)
    I("s_lshl_b32", sA, sJ, fsh)
    tile_off(sD, freg, fstride, extra=sA)

def flag_poll_off(dst, n, freg, fstride, shift, tl=sTL):
    I("v_min_u32", v(dst), n - 1, vLANE)
    tile_off(sA, freg, fstride, tl)
    I("v_lshl_add_u32", v(dst), v(dst), shift, sA)

class BLoads:
    def __init__(self, n, soff, vaddr=None, breg=BREG):
        self.n, self.vaddr, self.breg, self.ids = n, vaddr, breg, {}
        for q in range(4):
            I("s_add_u32", "s%d" % (50 + q), soff, hx(4096 * q))
    def issue(self, i):
        if i >= self.n:
            return
        va = self.vaddr(i) if self.vaddr else vL16
        o = (1024 * i) & 4095
        self.ids[i] = I("buffer_load_dwordx4", vr(self.breg + 4 * i, 4), va, SRD_WS, "s%d" % (50 + i // 4),
                        mods="offen" + (" offset:%d" % o if o else "") + " sc1")
    def first(self):
        for i in range(OPT["npre"]):
            self.issue(i)
    def more(self, s):
        self.issue(s + OPT["npre"])
    def last_step(self):
        return self.n - OPT["npre"]

def only(grp, fn):
    l = A.newlabel("Lo")
    I("s_cmp_lt_u32" if grp == "B" else "s_cmp_ge_u32", sW, 4)
    I("s_cbranch_scc1", l)
    sv = (A.vm, A.vm_done, A.lg, A.lg_done)
    fn()
    A.vm, A.vm_done, A.lg, A.lg_done = sv
    A.label(l)

def main_only(fn):
    l = A.newlabel("Lm")
    I("s_cmp_ge_u32", sLI, 28)
    I("s_cbranch_scc1", l)
    sv = (A.vm, A.vm_done, A.lg, A.lg_done)
    fn()
    A.vm, A.vm_done, A.lg, A.lg_done = sv
    A.label(l)

vJUNK = v(254)
def touch1(srd, vofs, soff, mods=""):
    return I("buffer_load_dword", vJUNK, vofs, srd, soff, mods="offen" + (" " + mods if mods else ""))

def grp_touch(srd, base, stride_sh, count):
    I("s_lshl_b32", sA, sLW, 5)
    I("s_add_u32", sA, sA, sLI)
    I("s_lshl_b32", sA, sA, 6 + stride_sh)
    I("v_lshlrev_b32", v(TMP + 12), stride_sh, vLANE)
    if base:
        I("s_add_u32", sA, sA, hx(base))
    for i in range(count):
        touch1(srd, v(TMP + 12), sA)
        if i + 1 < count:
            I("s_add_u32", sA, sA, hx(128 * 64 << stride_sh))

def tr_lane(dst, qadd):
    t0, t1, t2, t3 = TMP, TMP + 1, TMP + 2, TMP + 3
    if qadd:
        I("v_add_u32", v(t3), qadd, vQ4)
        q = v(t3)
    else:
        q = vQ4
    I("v_bfe_u32", v(t0), vLANE, 2, 2)
    I("v_and_b32", v(t1), 1, q)
    I("v_lshl_add_u32", v(t2), v(t1), 2, v(t0))
    I("v_lshrrev_b32", v(t3), 1, q)
    I("v_lshl_add_u32", v(t2), v(t3), 4, v(t2))
    I("v_lshrrev_b32", v(t0), 1, v(t0))
    I("v_lshl_or_b32", v(t0), v(t1), 2, v(t0))
    I("v_and_b32", v(t1), 3, vLANE)
    I("v_xor_b32", v(t0), v(t0), v(t1))
    I("v_lshlrev_b32", v(t0), 4, v(t0))
    I("v_lshl_add_u32", v(t0), v(t2), 7, v(t0))
    I("v_and_b32", v(t1), 1, v(t1))
    I("v_lshl_or_b32", v(dst[0][0]), v(t1), 3, v(t0))
    I("v_xor_b32", v(dst[0][1]), 8, v(dst[0][0]))
    I("v_xor_b32", v(dst[1][0]), 64, v(dst[0][0]))
    I("v_xor_b32", v(dst[1][1]), 64, v(dst[0][1]))

SRDS = {4: (36, 1835008), 8: (38, 448 * 1344 * 2), 60: (56, WS_SIZE), 12: (40, 448 * 448 * 2), 16: (44, 448 * 448 * 2),
        20: (46, 448 * 448 * 2), 24: (48, 448 * 1792 * 2), 28: (50, 448 * 1792 * 2), 32: (52, 1835008)}
def srds(which):
    for d in which:
        src, n = SRDS[d]
        I("s_mov_b32", "s%d" % d, "s%d" % src)
        I("s_and_b32", "s%d" % (d + 1), "s%d" % (src + 1), hx(0xffff))
        I("s_mov_b32", "s%d" % (d + 2), hx(n))
        I("s_mov_b32", "s%d" % (d + 3), hx(0x20000))

def prologue():
    I("s_cmp_ge_u32", "s2", hx(256))
    I("s_cbranch_scc1", "L_end")
    if OPT["stamp"]:
        I("v_mov_b32", vSTAMP, 0)
        I("s_memrealtime", sST)
        A.wait_lg_all(force=True)
        I("v_writelane_b32", vSTAMP, "s98", 0)
        stamp("start")
    I("s_load_dwordx16", "s[36:51]", "s[0:1]", 0)
    I("s_load_dwordx4", "s[52:55]", "s[0:1]", 64)
    I("s_load_dwordx2", "s[56:57]", "s[0:1]", 80)
    I("v_lshrrev_b32", v(TMP), 6, "v0")
    I("v_and_b32", vLANE, 63, "v0")
    I("v_readfirstlane_b32", sW, v(TMP))
    I("s_and_b32", sX, "s2", 7)
    I("s_lshr_b32", sLI, "s2", 3)
    I("s_mul_i32", sTG, sLI, 37)
    I("s_lshr_b32", sTG, sTG, 8)
    I("s_mul_i32", sROT, sTG, 7)
    I("s_sub_u32", sJ, sLI, sROT)
    I("s_lshr_b32", sROT, sROT, 1)
    I("s_lshl_b32", sJ128, sJ, 7)
    I("s_and_b32", sLW, sW, 3)
    I("s_lshl_b32", sTL, sTG, 2)
    I("s_add_u32", sTL, sTL, sLW)
    I("s_lshl_b32", sPAGE, sX, PSH)
    I("v_lshrrev_b32", vQ4, 4, vLANE)

def dma_lane_consts(for_a=False):
    t0, t1, t2 = TMP, TMP + 1, TMP + 2
    I("v_bfe_u32", v(t0), vLANE, 3, 2)
    I("v_lshrrev_b32", v(t1), 5, vLANE)
    I("v_lshl_add_u32", v(t2), v(t1), 3, v(t0))
    I("s_and_b32", sA, sLW, 1)
    I("s_lshl_b32", sA, sA, 2)
    I("s_and_b32", sB, sLW, 2)
    I("s_lshl_b32", sB, sB, 3)
    I("s_add_u32", sA, sA, sB)
    I("v_add_u32", v(t2), sA, v(t2))
    I("v_lshrrev_b32", v(t0), 1, v(t0))
    I("v_lshl_or_b32", v(t0), v(t1), 2, v(t0))
    I("v_and_b32", v(t1), 7, vLANE)
    I("v_xor_b32", v(t0), v(t0), v(t1))
    I("v_lshlrev_b32", v(t0), 4, v(t0))
    for reg, pitch in ((vD896, 896),) + (((vD2688, 2688),) if (PA == 1 and not for_a) else ()):
        I("v_mul_u32_u24", reg, hx(pitch), v(t2))
        I("v_add_u32", reg, reg, v(t0))
    I("v_and_b32", v(t0), 16, vLANE)
    I("v_lshrrev_b32", v(t0), 2, v(t0))
    I("v_xor_b32", v(t0), v(t0), v(t1))
    I("v_lshlrev_b32", v(t0), 4, v(t0))
    for reg, pitch in ((vD4, 896),) + (() if for_a else ((vD3584, 3584),) if PA == 1 else ((vD2688, 2688), (vD3584, 3584))):
        I("v_mul_u32_u24", reg, hx(pitch), v(t2))
        I("v_add_u32", reg, reg, v(t0))

def late_consts1():
    I("v_and_b32", vTOK, 15, vLANE)
    I("v_lshlrev_b32", vL16, 4, vLANE)
    I("s_mov_b32", "s82", hx(0xffff0000))
    I("s_mov_b32", "s83", hx(0xffff0000))
    I("s_mov_b32", sMODE, 0)
    for i in range(4):
        I("v_mov_b32", v(ONES + i), hx(0x3f803f80))

def late_consts2():
    I("s_lshr_b32", sA, sTG, 1)
    I("s_mul_i32", sJP, sA, 14)
    I("s_sub_u32", sJP, sLI, sJP)
    tr_lane(TRL, 0)

def late_consts():
    late_consts1()
    late_consts2()
    for i in range(36, 44):
        I("v_mov_b32", v(i), 0)

def epoch_load():
    l = A.newlabel("Lel")
    I("s_add_u32", "s58", "s56", hx(OFF_EPOCH))
    I("s_addc_u32", "s59", "s57", 0)
    I("s_cmp_lg_u32", sW, 4)
    I("s_cbranch_scc1", l)
    I("s_load_dword", sTAG, "s[58:59]", 0)
    A.label(l)

def tag_publish():
    l = A.newlabel("Lpx")
    I("s_getreg_b32", sXCC, "hwreg(HW_REG_XCC_ID)")
    I("s_and_b32", sXCC, sXCC, 15)
    I("s_cmp_lg_u32", sW, 4)
    I("s_cbranch_scc1", l)
    I("s_lshl_b32", sC, sLI, 7)
    I("s_add_u32", sC, sC, sPAGE)
    I("s_add_u32", sC, sC, hx(R_XCC))
    I("v_mov_b32", v(TMP + 12), hx(L_TAG))
    I("s_waitcnt", "lgkmcnt(0)")
    I("s_mul_i32", sTAG, sTAG, hx(1664525))
    I("s_add_u32", sTAG, sTAG, hx(1013904223))
    I("v_mov_b32", vTAG, sTAG)
    I("s_add_u32", sA, sTAG, sXCC)
    I("v_mov_b32", v(TMP + 13), sA)
    I("ds_write_b32", v(TMP + 12), vTAG)
    A.lg -= 1
    I("s_mov_b64", "exec", 1)
    I("buffer_store_dword", v(TMP + 13), "off", SRD_WS, sC, mods="sc1")
    A.vm -= 1
    I("s_mov_b64", "exec", -1)
    I("s_waitcnt", "lgkmcnt(0)")
    A.label(l)

def tag_read_issue():
    I("v_mov_b32", vTAG, hx(L_TAG))
    return I("ds_read_b32", vTAG, vTAG)

def tag_read_finish(r):
    A.wait(lg=r)
    I("v_readfirstlane_b32", sTAG, vTAG)

def phase_a_compute():
    A.cmt("---- phase A compute")
    t0, t1, t2, t3 = TMP + 4, TMP + 5, TMP + 6, TMP + 7
    I("v_lshrrev_b32", v(t0), 3, vLANE)
    I("v_and_b32", v(t2), 7, vLANE)
    I("v_xor_b32", v(t1), vQ4, v(t2))
    I("v_mul_u32_u24", v(t0), hx(896), v(t0))
    I("v_lshl_add_u32", v(t2), v(t1), 4, v(t0))
    I("v_xor_b32", v(t1), 4, v(t1))
    I("v_lshl_add_u32", v(t3), v(t1), 4, v(t0))
    I("s_lshl_b32", sA, sX, 4)
    I("s_add_u32", sA, sA, sTL)
    I("s_mul_i32", sB, sA, hx(16 * 896))
    I("s_mul_i32", sF, sLW, hx(TB))
    I("s_add_u32", sF, sF, hx(L_XIMG))
    I("s_mov_b32", sK, sJ)
    I("s_mov_b32", sCNT, 7)
    A.wait_lg_all(force=True)
    stamp("kernarg")
    srds([4])
    A.label("L_xdma")
    I("s_lshl_b32", sA, sK, 11)
    I("s_add_u32", "m0", sA, sF)
    I("s_lshl_b32", sA, sK, 7)
    I("s_add_u32", sA, sA, sB)
    I("s_add_u32", sE, sA, hx(8 * 896 - 1024))
    I("buffer_load_dwordx4", v(t2), SRD_X, sA, mods="offen lds")
    I("buffer_load_dwordx4", v(t3), SRD_X, sE, mods="offen offset:1024 lds")
    I("s_add_u32", sK, sK, 1)
    I("s_cmp_eq_u32", sK, 7)
    I("s_cmov_b32", sK, 0)
    I("s_sub_u32", sCNT, sCNT, 1)
    I("s_cmp_lg_u32", sCNT, 0)
    I("s_cbranch_scc1", "L_xdma")
    I("v_mov_b32", v(ACC), 0)
    I("v_lshlrev_b32", v(ACC + 1), 2, vLANE)
    I("ds_write_b32", v(ACC + 1), v(ACC), mods="offset:%d" % 0) if False else None
    I("v_add_u32", v(ACC + 1), hx(L_CNT), v(ACC + 1))
    I("ds_write_b32", v(ACC + 1), v(ACC))
    I("v_add_u32", v(ACC + 1), hx(L_CS3 - L_CNT), v(ACC + 1))
    I("ds_write_b32", v(ACC + 1), v(ACC))
    I("ds_write_b32", v(ACC + 1), v(ACC), mods="offset:256")
    A.wait_lg_all()
    barrier()
    srds([60])
    late_consts1()
    XB, AR, CS = 64, 176, 208
    vB, vT = 35, 43
    xa = [208, 209, 210, 211]
    I("v_lshrrev_b32", v(t0), 1, vTOK)
    I("v_xor_b32", v(t1), v(t0), vQ4)
    I("v_lshlrev_b32", v(t1), 4, v(t1))
    I("v_lshl_add_u32", v(t1), vTOK, 7, v(t1))
    I("s_lshl_b32", sA, sJ, 11)
    I("s_add_u32", sA, sA, sF)
    I("v_add_u32", v(212), sA, v(t1))
    I("v_xor_b32", v(213), 64, v(212))
    I("v_lshrrev_b32", v(t1), 5, vLANE)
    I("v_xor_b32", v(t1), v(t1), v(t0))
    I("v_lshlrev_b32", v(t1), 4, v(t1))
    I("v_lshl_add_u32", v(t1), vTOK, 7, v(t1))
    I("v_and_b32", v(t2), 1, vQ4)
    I("v_mul_u32_u24", v(t2), hx(TB), v(t2))
    I("s_and_b32", sA, sLW, 2)
    I("s_mul_i32", sA, sA, hx(TB))
    I("s_add_u32", sA, sA, hx(L_XIMG))
    I("v_add3_u32", v(xa[0]), v(t1), v(t2), sA)
    for q in range(1, 4):
        I("v_xor_b32", v(xa[q]), hx(32 * q), v(xa[0]))
    tr32_lane([vT, t3])
    I("s_and_b32", sA, sLW, 1)
    I("s_lshl_b32", sA, sA, 6)
    I("v_xor_b32", v(vT), sA, v(vT))
    bf_lane(vB)
    cnt_setup([TMP + 13, TMP + 12, TMP + 11])
    vCA, vSW_, vSR_ = 13, 14, TMP + 10
    I("v_lshrrev_b32", v(vCA), 5, vLANE)
    I("s_lshl_b32", sA, sA, 1)
    I("s_add_u32", sA, sA, hx(L_CSA))
    I("v_lshl_add_u32", v(vCA), v(vCA), 5, sA)
    I("s_lshl_b32", sA, sLW, 8)
    I("s_add_u32", sA, sA, hx(L_STA))
    I("v_lshl_add_u32", v(vSW_), vLANE, 2, sA)
    I("s_and_b32", sA, sLW, 2)
    I("s_lshl_b32", sA, sA, 8)
    I("s_add_u32", sA, sA, hx(L_STA))
    I("v_and_b32", v(vSR_), 31, vLANE)
    I("v_lshl_add_u32", v(vSR_), v(vSR_), 2, sA)
    I("s_lshl_b32", sB, sJ, 1)
    I("s_and_b32", sA, sLW, 1)
    I("s_add_u32", sB, sB, sA)
    I("s_and_b32", sE, sTL, hx(0xfe))
    I("s_lshl_b32", sA, sB, 10)
    tile_off(sC, 0, TB, tl=sE, extra=sA)
    I("s_lshl_b32", sA, sB, 7)
    tile_off(sD, R_FQKV, 1024, tl=sE, extra=sA)
    I("s_lshl_b32", sA, sB, 2)
    tile_off(sD2, R_FQ, 64, tl=sE, extra=sA)
    HB = [slot(0), slot(1), slot(2), slot(3), slot(4), slot(0)]
    TA = [11, 12]
    for h in range(2):
        I("v_add_u32", v(TA[h]), hx(HB[h]), v(vT))
    stamp("setup_done")
    A.wait_vm_all()
    arrive(2)
    I("ds_read_b128", vr(HP, 4), v(212))
    I("ds_read_b128", vr(HP + 4, 4), v(213))
    spin(2, 4)
    stamp("x_dma")
    s_sum, s_sq = TMP + 2, TMP + 3
    I("v_mov_b32", v(s_sum), 0)
    I("v_mov_b32", v(s_sq), 0)
    unswap(HP, 2)
    def xpath(order):
        xl = {}
        def rdx(k):
            xl[k] = I("ds_read_b128", vr(XB + 4 * k, 4), v(xa[k & 3]), mods="offset:%d" % (2048 * (k >> 2)))
        for k in order[:14]:
            rdx(k)
        for n, k in enumerate(order[:14]):
            A.wait(lg=xl[k])
            rdx(order[14 + n])
            for i in range(4):
                I("v_dot2c_f32_bf16", v(s_sum), v(XB + 4 * k + i), v(ONES))
                I("v_dot2c_f32_bf16", v(s_sq), v(XB + 4 * k + i), v(XB + 4 * k + i))
    l1, l2 = A.newlabel("Lxs"), A.newlabel("Lxs")
    I("s_bitcmp1_b32", sW, 0)
    I("s_cbranch_scc1", l1)
    sv = (A.lg, A.lg_done)
    xpath(list(range(28)))
    I("s_branch", l2)
    A.label(l1)
    A.lg, A.lg_done = sv
    xpath(list(range(14, 28)) + list(range(14)))
    A.label(l2)
    I("v_permlane32_swap_b32", v(s_sum), v(s_sq))
    I("v_add_f32", v(s_sum), v(s_sum), v(s_sq))
    I("ds_write_b32", v(vSW_), v(s_sum))
    A.wait_lg_all()
    stamp("stats_done")
    barrier()
    stamp("strip0_landed")
    D, NR = 6, 8
    rd = {}
    def ard(n):
        d = AR + 4 * (n % NR)
        ad = v(TA[(n // 14) & 1])
        I("ds_read_b64_tr_b16", vr(d, 2), ad, mods="offset:%d" % (2048 * (n % 14)))
        rd[n] = I("ds_read_b64_tr_b16", vr(d + 2, 2), ad, mods="offset:%d" % (2048 * (n % 14) + 1024))
    I("ds_read2_b32", vr(TMP + 4, 2), v(vSR_), mods="offset0:0 offset1:32")
    I("ds_read2_b32", vr(TMP + 6, 2), v(vSR_), mods="offset0:64 offset1:96")
    tg_ = tag_read_issue()
    for n in range(D):
        ard(n)
    side = []
    def rec(fn):
        global I
        old = I
        out = []
        def J(*a, **k):
            out.append(lambda a=a, k=k: old(*a, **k))
        I = J
        fn()
        I = old
        return out
    def lnfin():
        I("v_readfirstlane_b32", sTAG, vTAG)
        I("v_add_f32", v(TMP + 4), v(TMP + 4), v(TMP + 6))
        I("v_add_f32", v(TMP + 5), v(TMP + 5), v(TMP + 7))
        mean_var(TMP + 4, TMP + 5, vMU, TMP + 6)
        rstd(vRH, TMP + 6)
        I("v_sub_f32", v(vMU), 0, v(vMU))
        I("v_mul_f32", v(TMP + 8), fl(1.4426950408889634 / 28 ** 0.5), v(vRH))
    st = {}
    def cs_read(i):
        r = None
        for g in range(4):
            r = I("ds_read_b128", vr(CS + 4 * g, 4), v(vCA), mods="offset:%d" % (256 * i + 64 * (g >> 1) + 16 * (g & 1)))
        return r
    def epi_pre():
        for q in range(16):
            I("v_mul_f32", v(CS + q), v(CS + q), v(vMU))
    def epi_add(ac):
        for q in range(16):
            I("v_add_f32", v(CS + q), v(CS + q), v(ac + q))
    def epi_valu(i):
        for q in range(16):
            I("v_mul_f32", v(CS + q), v(CS + q), v(vRH if i < 2 else TMP + 8))
        pack(TMP, CS, 16)
    def epi_store(i, m="sc1"):
        I("s_add_u32", sA, sC, hx((R_K, R_V, R_Q)[i]))
        for u in range(2):
            st[i] = I("buffer_store_dwordx4", vr(TMP + 4 * u, 4), v(vB), SRD_WS, sA,
                      mods="offen" + (" offset:512" if u else "") + (" " + m if m else ""))
        return st[i]
    FK = OPT.get("fk2", 62)
    for n in range(84):
        i, k = divmod(n, 28)
        if k == 28 - D and i < 2:
            A.wait_lg_all()
            barrier()
            stamp("strip%d_landed" % (i + 1))
            csr = cs_read(i)
        if n % 14 == 14 - D and n // 14 + 2 < 6:
            I("v_add_u32", v(TA[(n // 14) & 1]), hx(HB[n // 14 + 2]), v(vT))
        if n == 1:
            side += rec(lnfin)
        if k == 24 and i < 2:
            A.wait(lg=csr)
            side += rec(epi_pre)
        if k < 2 and i > 0:
            assert not side
            epi_add((ACC, ACC2)[k])
        if k == 2 and i > 0:
            side += rec(lambda: epi_valu(i - 1)) + [lambda i=i: (epi_store(i - 1), stamp("stored%d" % (i - 1)))]
        if n == FK:
            A.wait(vm=st[0])
            flag_store(sD)
            stamp("flag0")
        if n == 78:
            spin(3, 4)
            I("v_mov_b32", v(TMP + 9), hx(L_MODE))
            I("ds_read_b32", v(TMP + 9), v(TMP + 9))
            csr = cs_read(2)
        if n == 80:
            A.wait(lg=csr)
            side += rec(epi_pre)
        if n % 2 == 0:
            A.wait(lg=rd[n + 1])
        m32((ACC, ACC2)[n & 1], AR + 4 * (n % NR), XB + 4 * k, k < 2)
        if n + D < 84:
            ard(n + D)
        for _ in range(4):
            if side:
                side.pop(0)()
    assert not side
    if OPT["local"]:
        I("v_readfirstlane_b32", sMODE, v(TMP + 9))
    I("s_add_u32", sD, sD, 4)
    epi_add(ACC)
    epi_add(ACC2)
    epi_valu(2)
    moded(lambda m: epi_store(2, m))
    stamp("q_stored")
    A.wait(vm=st[1])
    flag_store(sD)
    stamp("flag1")
    A.wait(vm=st[2])
    moded(lambda m: flag_store(sD2, m))
    stamp("q_flag")
    srds([24, 28, 32])
    late_consts2()
    att_ids()
    att_consts()
    c_setup()
    e_table(True)
    stamp("setup2")

def phase_a_compute1():
    A.cmt("---- phase A compute")
    t0, t1, t2, t3 = TMP + 4, TMP + 5, TMP + 6, TMP + 7
    I("v_lshrrev_b32", v(t0), 3, vLANE)
    I("v_and_b32", v(t2), 7, vLANE)
    I("v_xor_b32", v(t1), vQ4, v(t2))
    I("v_mul_u32_u24", v(t0), hx(896), v(t0))
    I("v_lshl_add_u32", v(t2), v(t1), 4, v(t0))
    I("v_xor_b32", v(t1), 4, v(t1))
    I("v_lshl_add_u32", v(t3), v(t1), 4, v(t0))
    I("s_lshl_b32", sA, sX, 4)
    I("s_add_u32", sA, sA, sTL)
    I("s_mul_i32", sB, sA, hx(16 * 896))
    I("s_mul_i32", sF, sLW, hx(TB))
    I("s_add_u32", sF, sF, hx(L_XIMG))
    I("s_mov_b32", sK, sJ)
    I("s_mov_b32", sCNT, 7)
    A.wait_lg_all(force=True)
    stamp("kernarg")
    srds([4])
    A.label("L_xdma")
    I("s_lshl_b32", sA, sK, 11)
    I("s_add_u32", "m0", sA, sF)
    I("s_lshl_b32", sA, sK, 7)
    I("s_add_u32", sA, sA, sB)
    I("s_add_u32", sE, sA, hx(8 * 896 - 1024))
    I("buffer_load_dwordx4", v(t2), SRD_X, sA, mods="offen lds")
    I("buffer_load_dwordx4", v(t3), SRD_X, sE, mods="offen offset:1024 lds")
    I("s_add_u32", sK, sK, 1)
    I("s_cmp_eq_u32", sK, 7)
    I("s_cmov_b32", sK, 0)
    I("s_sub_u32", sCNT, sCNT, 1)
    I("s_cmp_lg_u32", sCNT, 0)
    I("s_cbranch_scc1", "L_xdma")
    I("v_mov_b32", v(ACC), 0)
    I("v_lshlrev_b32", v(ACC + 1), 2, vLANE)
    I("ds_write_b32", v(ACC + 1), v(ACC), mods="offset:%d" % 0) if False else None
    I("v_add_u32", v(ACC + 1), hx(L_CNT), v(ACC + 1))
    I("ds_write_b32", v(ACC + 1), v(ACC))
    I("v_add_u32", v(ACC + 1), hx(L_CS3 - L_CNT), v(ACC + 1))
    I("ds_write_b32", v(ACC + 1), v(ACC))
    I("ds_write_b32", v(ACC + 1), v(ACC), mods="offset:256")
    barrier()
    srds([60, 24, 28, 32])
    late_consts1()
    late_consts2()
    I("v_lshrrev_b32", v(t0), 1, vTOK)
    I("v_xor_b32", v(t0), v(t0), vQ4)
    I("v_lshlrev_b32", v(t0), 4, v(t0))
    I("v_lshl_add_u32", v(t0), vTOK, 7, v(t0))
    I("v_add_u32", v(t0), sF, v(t0))
    I("v_xor_b32", v(t1), 64, v(t0))
    I("s_lshl_b32", sA, sJ, 11)
    I("v_add_u32", v(t2), sA, v(t0))
    I("v_add_u32", v(t3), sA, v(t1))
    c_setup()
    stamp("setup_done")
    A.wait_vm_all()
    stamp("x_dma")
    xl = [I("ds_read_b128", vr(BREG + 4 * s, 4), v(t1 if s & 1 else t0), mods="offset:%d" % (2048 * (s >> 1))) for s in range(14)]
    I("ds_read_b128", vr(HP, 4), v(t2))
    xr = I("ds_read_b128", vr(HP + 4, 4), v(t3))
    s_sum, s_sq = TMP + 4, TMP + 5
    s_sum, s_sq = TMP + 2, TMP + 3
    I("v_mov_b32", v(s_sum), 0)
    I("v_mov_b32", v(s_sq), 0)
    for s in range(14):
        A.wait(lg=xl[s])
        for i in range(4):
            I("v_dot2c_f32_bf16", v(s_sum), v(BREG + 4 * s + i), v(ONES))
            I("v_dot2c_f32_bf16", v(s_sq), v(BREG + 4 * s + i), v(BREG + 4 * s + i))
    stamp("x_landed")
    stats_reduce(s_sum, s_sq)
    mu, var, r = TMP + 6, TMP + 7, TMP + 8
    mean_var(s_sum, s_sq, mu, var)
    rstd(r, var)
    I("v_mul_f32", v(mu), "-" + v(mu), v(r), mods="") if False else I("v_mul_f32", v(mu), v(mu), v(r))
    I("v_sub_f32", v(mu), 0, v(mu))
    for i in range(56):
        lo = TMP + 10 + 2 * (i & 1)
        I("v_lshlrev_b32", v(lo), 16, v(BREG + i))
        I("v_and_b32", v(lo + 1), hx(0xffff0000), v(BREG + i))
        I("v_pk_fma_f32", vr(lo, 2), vr(lo, 2), vr(r, 2), vr(mu, 2), mods="op_sel_hi:[1,0,0]")
        if i:
            p = TMP + 10 + 2 * ((i - 1) & 1)
            I("v_cvt_pk_bf16_f32", v(BREG + i - 1), v(p), v(p + 1))
    I("v_cvt_pk_bf16_f32", v(BREG + 55), v(TMP + 12), v(TMP + 13))
    A.wait(lg=xr)
    unswap(HP, 2)
    stamp("ln_done")
    TR2 = [[120, 121], [122, 123]]
    pend = [None]
    pq = [None]
    cnt_setup([124, 125, 126])

    def strip(i):
        if i == 0:
            set_tr(slot(0))
            aoff = lambda s: (4096 * s, TRC)
        else:
            s1, s2 = ((2, 3), (4, 0))[i - 1]
            I("s_mov_b32", sB, hx(slot(s1)))
            I("s_mov_b32", sE, hx(slot(s2)))
            I("s_bitcmp1_b32", sTG, 0)
            I("s_cselect_b32", sF, sE, sB)
            I("s_cselect_b32", sE, sB, sE)
            set_tr(sF)
            set_tr(sE, dst=TR2)
            aoff = lambda s: (4096 * (s % 7), TRC if s < 7 else TR2)
        if i == 2 and OPT["local"]:
            I("v_mov_b32", v(TMP + 9), hx(L_MODE))
        if i < 2:
            barrier()
        else:
            verify(pq[0], bQ, 4)
        stamp("strip%d_landed" % i)
        if i == 0:
            tg_ = tag_read_issue()
        if i == 2 and OPT["local"]:
            I("ds_read_b32", v(TMP + 9), v(TMP + 9))
        def hook(s):
            if s == OPT["fk"] and pend[0] is not None:
                A.wait(vm=pend[0])
                flag_store(sD)
                stamp("flag%d" % (i - 1))
        gemm(14, 4, 2, aoff, lambda s: BREG + 4 * s, hook=hook)
        if i == 1:
            arrive(aV)
            pq[0] = peek(bQ)
        if i == 0:
            tag_read_finish(tg_)
        if i < 2:
            out_offs((R_K, R_V)[i], TB, R_FQKV + 4 * i, 1024, 7)
        else:
            out_offs(R_Q, TB, R_FQ, 128, 2)
            if OPT["local"]:
                I("v_readfirstlane_b32", sMODE, v(TMP + 9))
            I("v_mov_b32", v(TMP + 8), fl(1.4426950408889634 / 28 ** 0.5))
            for k in range(0, 16, 2):
                pk_mul_b(ACC + k, ACC + k, TMP + 8)
        pack(TMP, ACC, 16)
        unswap(TMP, 2)
        if i < 2:
            frag_store(TMP, sC)
            pend[0] = frag_store(TMP + 4, sC, 1024)
        else:
            pend[0] = store_out(TMP)
    for i in range(3):
        strip(i)
    stamp("q_stored")
    att_ids()
    e_table(True)
    ack_flag(pend[0], "q_flag")
    att_consts()
    stamp("setup2")

def half_bases(col):
    I("s_bitcmp1_b32", sTG, 0)
    I("s_cselect_b32", sB, hx(224 * 2688), 0)
    I("s_cselect_b32", sE, 0, hx(224 * 2688))
    I("s_add_u32", sB, sB, sJ128)
    I("s_add_u32", sE, sE, sJ128)

def phase_a_loader1():
    A.cmt("---- phase A loader")
    dma_lane_consts()
    half_bases(0)
    A.wait_lg_all(force=True)
    epoch_load()
    srds([8, 60, 4, 12, 16, 20, 24, 28, 32])
    late_consts()
    barrier()
    dma_seq(SRD_WQKV, 2688, slot(0), (sJ128, 896), 4, mod=14, start=sROT)
    tag_publish()
    TP = OPT.get("tvq", 0)
    def lead():
        I("s_mul_i32", sA, sTG, hx(112))
        I("s_and_b32", sC, sLW, 1)
        I("s_mul_i32", sC, sC, 56)
        I("s_add_u32", sA, sA, sC)
        I("v_min_u32", v(TMP + 9), 55, vLANE)
        I("v_add_u32", v(TMP + 9), sA, v(TMP + 9))
        I("v_mul_u32_u24", v(TMP + 9), hx(2688), v(TMP + 9))
        I("s_cmp_lt_u32", sLW, 2)
        I("s_cselect_b32", sA, hx(1792), 0)
        I("s_add_u32", sA, sA, sJ128)
        touch1(SRD_WQKV, v(TMP + 9), sA)
    if TP and TP < 10:
        dma_seq(SRD_WQKV, 2688, slot(0), (sJ128, 896), TP, mod=14, start="cont")
        lead()
        d0 = dma_seq(SRD_WQKV, 2688, slot(0), (sJ128, 896), 10 - TP, mod=14, start="cont")
    else:
        d0 = dma_seq(SRD_WQKV, 2688, slot(0), (sJ128, 896), 10, mod=14, start="cont")
        if TP:
            lead()
    dma_seq(SRD_WQKV, 2688, slot(2), (sB, 1792), OPT.get("v1n", 7))
    A.wait(vm=d0)
    barrier()
    if not OPT.get("ml", 1):
        tag_read_finish(tag_read_issue())
        mode_issue()
    if OPT.get("v1n", 7) < 7:
        dma_seq(SRD_WQKV, 2688, slot(2), (sB, 1792), 7 - OPT["v1n"], start="cont")
    d1 = dma_seq(SRD_WQKV, 2688, slot(3), (sE, 1792), 7)
    dma_seq(SRD_WQKV, 2688, slot(4), (sB, 0), 7)
    if OPT.get("ml", 1):
        tag_read_finish(tag_read_issue())
        mode_issue(True)
    A.wait(vm=d1)
    barrier()
    d2 = dma_seq(SRD_WQKV, 2688, slot(0), (sE, 0), 7)
    att_ids()
    att_consts_b()
    kv_poll_off(TMP + 4, 0)
    cnt_setup([23, 24, 25])
    A.wait(vm=d2)
    mode_check()
    arrive(bQ)
    stamp("b_q")
    WL = OPT.get("wolo", 1)
    if WL == 1:
        spin(aV, 4, 1)
        dma_seq(SRD_WO, 896, slot(3), (sJ128, 0), 7)
    if WL == 3:
        I("s_mov_b32", sA, sJ128)
        for k in range(7):
            I("buffer_load_dwordx4", vr(PARK + 4 * k, 4), vD896, SRD_W2, sA, mods="offen")
            I("s_add_u32", sA, sA, hx(32 * 896))

def colsum_a(i, bases):
    if OPT.get("nocs"):
        return
    t0, t1 = TMP, TMP + 1
    I("v_add_u32", v(t0), hx(bases[0]), v(vCL))
    I("v_add_u32", v(t1), hx(bases[1]), v(vCL))
    rd = []
    for s_ in range(14):
        ad = v(t0 if s_ < 7 else t1)
        I("ds_read_b64_tr_b16", vr(AREG + 4 * s_, 2), ad, mods="offset:%d" % (4096 * (s_ % 7)))
        rd.append(I("ds_read_b64_tr_b16", vr(AREG + 4 * s_ + 2, 2), ad, mods="offset:%d" % (4096 * (s_ % 7) + 1024)))
    A.wait_lg_all()
    for s_ in range(14):
        m16(ACC, AREG + 4 * s_, ONES, s_ == 0)
    I("s_mov_b32", "exec_lo", hx(0x10001))
    I("s_mov_b32", "exec_hi", hx(0x10001))
    I("ds_write_b128", v(vCW), vr(ACC, 4), mods="offset:%d" % (256 * i))
    I("s_mov_b64", "exec", -1)
    A.wait_lg_all()

vCL, vCW = 20, 21
def phase_a_loader():
    A.cmt("---- phase A loader")
    dma_lane_consts()
    A.wait_lg_all(force=True)
    epoch_load()
    srds([8, 60])
    barrier()
    dma_seq(SRD_WQKV, 2688, slot(0), (sJ128, 896), 4, mod=14, start=sROT)
    tag_publish()
    d0 = dma_seq(SRD_WQKV, 2688, slot(0), (sJ128, 896), 10, mod=14, start="cont")
    dma_seq(SRD_WQKV, 2688, slot(2), (sJ128, 1792), 7)
    late_consts1()
    t0, t1, t2 = TMP, TMP + 1, TMP + 2
    I("v_bfe_u32", v(t0), vLANE, 2, 2)
    I("v_and_b32", v(t1), 1, vQ4)
    I("v_lshl_add_u32", v(t1), v(t1), 2, v(t0))
    I("v_lshrrev_b32", v(t2), 1, vQ4)
    I("v_lshl_add_u32", v(t1), v(t2), 4, v(t1))
    I("v_and_b32", v(t0), 2, v(t0))
    I("v_lshlrev_b32", v(t0), 5, v(t0))
    I("s_lshl_b32", sA, sLW, 5)
    I("v_xor_b32", v(t0), sA, v(t0))
    I("v_lshl_add_u32", v(t0), v(t1), 7, v(t0))
    I("v_and_b32", v(t1), 3, vLANE)
    I("v_lshl_add_u32", v(vCL), v(t1), 3, v(t0))
    I("s_lshl_b32", sA, sLW, 6)
    I("s_add_u32", sA, sA, hx(L_CSA))
    I("v_lshl_add_u32", v(vCW), vQ4, 4, sA)
    cnt_setup([23, 24, 25])
    A.wait(vm=d0)
    stamp("b_k")
    barrier()
    d1 = dma_seq(SRD_WQKV, 2688, slot(3), (sJ128, 1792 + 224 * 2688), 7)
    dma_seq(SRD_WQKV, 2688, slot(4), (sJ128, 0), 7)
    tag_read_finish(tag_read_issue())
    I("s_setprio", 2)
    colsum_a(0, (slot(0), slot(1)))
    A.wait(vm=d1)
    stamp("b_v")
    barrier()
    d2 = dma_seq(SRD_WQKV, 2688, slot(0), (sJ128, 224 * 2688), 7)
    mode_issue()
    colsum_a(1, (slot(2), slot(3)))
    I("s_waitcnt", "vmcnt(1)")
    l_ = A.newlabel("Lw4")
    I("s_cmp_eq_u32", sW, 4)
    I("s_cbranch_scc1", l_)
    I("s_waitcnt", "vmcnt(0)")
    A.label(l_)
    stamp("b_q")
    barrier()
    colsum_a(2, (slot(4), slot(0)))
    A.wait_vm_all(force=True)
    mode_check()
    arrive(3)
    I("s_setprio", 0)
    srds([12, 16, 20, 24, 28, 32])
    I("s_mov_b32", sA, sJ128)
    for k in range(7):
        I("buffer_load_dwordx4", vr(PARK + 4 * k, 4), vD896, SRD_W2, sA, mods="offen")
        I("s_add_u32", sA, sA, hx(32 * 896))
    late_consts2()
    I("v_mov_b32", v(43), 0)
    att_ids()
    att_consts_b()
    kv_poll_off(TMP + 4, 0)

L_KIMG, L_VIMG = slot(1), slot(2)
def att_ids():
    I("s_and_b32", sHEAD, sLI, 15)
    I("s_lshr_b32", sA, sLI, 4)
    I("s_lshl_b32", sA, sA, 3)
    I("s_lshl_b32", sTQ0, sX, 4)
    I("s_add_u32", sTQ0, sTQ0, sA)
    I("s_mul_i32", sC0, sHEAD, 7)
    I("s_lshr_b32", sC0, sC0, 1)
    I("s_lshl_b32", sA, sLW, 1)
    I("s_add_u32", sT1, sTQ0, sA)

def kv_poll_off(dst, e):
    t0, t2, t3 = TMP, TMP + 2, TMP + 3
    I("s_lshr_b32", sA, sC0, 2)
    I("s_add_u32", sB, sC0, 3)
    I("s_lshr_b32", sB, sB, 2)
    I("s_sub_u32", sB, sB, sA)
    I("v_and_b32", v(t0), sB, vLANE)
    I("v_add_u32", v(t0), sA, v(t0))
    if e is None:
        I("s_and_b32", sA, sT1, 15)
        I("s_lshl_b32", sA, sA, 6)
        I("s_add_u32", sA, sA, sPAGE)
        I("s_add_u32", sA, sA, hx(R_FQ))
        I("v_lshl_add_u32", v(dst), v(t0), 2, sA)
        return
    I("v_lshlrev_b32", v(t0), 7, v(t0))
    I("s_mul_i32", sA, sLW, 6)
    I("s_add_u32", sA, sA, sTQ0)
    I("s_sub_u32", sA, sA, 16)
    I("v_and_b32", v(t2), hx(0xfe), vLANE)
    I("v_min_u32", v(t2), 4, v(t2))
    I("v_add_u32", v(t3), sA, v(t2))
    I("v_max_i32", v(t3), 0, v(t3))
    I("v_lshrrev_b32", v(dst), 4, v(t3))
    I("v_lshlrev_b32", v(dst), PSH, v(dst))
    I("v_add_u32", v(dst), v(dst), v(t0))
    I("v_and_b32", v(t0), 15, v(t3))
    I("v_lshl_add_u32", v(dst), v(t0), 10, v(dst))
    I("v_add_u32", v(dst), hx(R_FQKV + 4 * e), v(dst))

def kv_poll_off1(dst, e):
    t0, t2, t3 = TMP, TMP + 2, TMP + 3
    I("s_lshr_b32", sA, sC0, 3)
    I("s_add_u32", sB, sC0, 3)
    I("s_lshr_b32", sB, sB, 3)
    I("s_sub_u32", sB, sB, sA)
    I("v_and_b32", v(t0), sB, vLANE)
    I("v_add_u32", v(t0), sA, v(t0))
    I("v_lshrrev_b32", v(t2), 1, vLANE)
    if e is None:
        I("s_and_b32", sA, sTQ0, 15)
        I("s_lshl_b32", sB, sLW, 1)
        I("s_add_u32", sA, sA, sB)
        I("v_and_b32", v(t2), 1, v(t2))
        I("v_add_u32", v(t2), sA, v(t2))
        I("v_lshlrev_b32", v(t0), 2, v(t0))
        I("v_lshl_add_u32", v(t0), v(t2), 7, v(t0))
        I("s_add_u32", sA, sPAGE, hx(R_FQ))
        I("v_add_u32", v(dst), sA, v(t0))
        return
    I("v_lshlrev_b32", v(t0), 7, v(t0))
    I("s_mul_i32", sA, sLW, 6)
    I("s_add_u32", sA, sA, sTQ0)
    I("s_sub_u32", sA, sA, 16)
    I("v_min_u32", v(t2), 5, v(t2))
    I("v_add_u32", v(t3), sA, v(t2))
    I("v_max_i32", v(t3), 0, v(t3))
    I("v_lshrrev_b32", v(dst), 4, v(t3))
    I("v_lshlrev_b32", v(dst), PSH, v(dst))
    I("v_add_u32", v(dst), v(dst), v(t0))
    I("v_and_b32", v(t0), 15, v(t3))
    I("v_lshl_add_u32", v(dst), v(t0), 10, v(dst))
    I("v_add_u32", v(dst), hx(R_FQKV + 4 * e), v(dst))

PA = OPT.get('pa', 1)
if PA == 1:
    kv_poll_off = kv_poll_off1
    phase_a_compute = phase_a_compute1
    phase_a_loader = phase_a_loader1

def kv_dma(reg, img, vsrc):
    last = None
    I("s_mul_i32", sC, sLW, 6)
    I("s_lshl_b32", sF, sC, 10)
    I("s_add_u32", sF, sF, hx(img))
    I("s_add_u32", sC, sC, sTQ0)
    I("s_sub_u32", sC, sC, 16)
    I("s_lshl_b32", sE, sC0, 8)
    I("s_add_u32", sE, sE, hx(reg))
    for i in range(6):
        I("s_add_u32", "m0", sF, hx(1024 * i))
        I("s_add_u32", sA, sC, i)
        I("s_lshr_b32", sB, sA, 4)
        I("s_lshl_b32", sB, sB, PSH)
        I("s_and_b32", sG, sA, 15)
        I("s_mul_i32", sG, sG, hx(TB))
        I("s_add_u32", sB, sB, sG)
        I("s_add_u32", sB, sB, sE)
        I("s_cmp_lt_i32", sA, 0)
        I("s_cmov_b32", sB, hx(OOB))
        last = I("buffer_load_dwordx4", vsrc, SRD_WS, sB, mods="offen sc1 lds")
    return last

def w1_touches():
    I("s_cmp_lt_u32", sLW, 2)
    I("s_cselect_b32", "s64", "s12", "s16")
    I("s_cselect_b32", "s65", "s13", "s17")
    I("s_mov_b32", "s66", hx(448 * 448 * 2))
    I("s_mov_b32", "s67", hx(0x20000))
    I("s_and_b32", sA, sLW, 1)
    I("s_mul_i32", sA, sA, 28)
    I("s_add_u32", sA, sA, sLI)
    I("s_lshl_b32", sA, sA, 13)
    I("v_lshlrev_b32", v(TMP + 12), 7, vLANE)
    touch1(SRD_BG, v(TMP + 12), sA)
    I("s_lshl_b32", sA, sJ, 11)
    tile_off(sC, R_2, TB, extra=sA)
    I("v_lshlrev_b32", v(TMP + 12), 7, vTOK)
    touch1(SRD_WS, v(TMP + 12), sC)
    if not OPT["alias"]:
        for reg in (R_X1, R_HH, R_O, R_G[0], R_G[0] + 16 * TB, R_G[1], R_G[1] + 16 * TB):
            tile_off(sC, reg, TB, extra=sA)
            touch1(SRD_WS, v(TMP + 12), sC)
    I("s_lshl_b32", sA, sJ, 8)
    tile_off(sC, R_SH, 2048, extra=sA)
    I("v_and_b32", v(TMP + 12), 1, vLANE)
    I("v_lshlrev_b32", v(TMP + 12), 7, v(TMP + 12))
    I("v_and_b32", v(TMP + 13), 2, vLANE)
    I("v_lshl_add_u32", v(TMP + 12), v(TMP + 13), 14, v(TMP + 12))
    touch1(SRD_WS, v(TMP + 12), sC)

def w2_touches():
    I("s_lshl_b32", sA, sLW, 5)
    I("s_add_u32", sA, sA, sLI)
    I("s_sub_u32", sB, hx(127), sA)
    I("s_lshl_b32", sA, sA, 14)
    I("s_lshl_b32", sB, sB, 13)
    I("v_lshlrev_b32", v(TMP + 12), 7, vLANE)
    I("v_lshlrev_b32", v(TMP + 13), 8, vLANE)
    touch1(SRD_W2, v(TMP + 12), sB)
    touch1(SRD_W3, v(TMP + 13), sA)
    if OPT["ta"] > 1:
        I("s_add_u32", sA, sA, hx(128))
        touch1(SRD_W3, v(TMP + 13), sA)

def mode_issue(count=False):
    if not OPT["local"]:
        return
    I("v_and_b32", v(TMP + 6), 31, vLANE)
    I("s_add_u32", sA, sPAGE, hx(R_XCC))
    I("v_lshl_add_u32", v(TMP + 6), v(TMP + 6), 7, sA)
    l = A.newlabel("Lmi")
    I("s_cmp_lg_u32", sW, 4)
    I("s_cbranch_scc1", l)
    I("buffer_load_dword", v(TMP + 7), v(TMP + 6), SRD_WS, 0, mods="offen sc1")
    A.vm -= 1
    A.label(l)

def mode_check():
    if not OPT["local"]:
        return
    l = A.newlabel("Lmc")
    I("s_cmp_lg_u32", sW, 4)
    I("s_cbranch_scc1", l)
    sv = (A.vm, A.vm_done, A.lg, A.lg_done)
    lp, dn = A.newlabel("Lpoll"), A.newlabel("Lpd")
    I("s_mov_b32", sCNT, hx(40000))
    A.label(lp)
    I("v_subrev_u32", v(TMP + 7), sTAG, v(TMP + 7))
    I("v_cmp_le_u32", "vcc", 16, v(TMP + 7))
    I("s_cbranch_vccz", dn)
    I("s_sub_u32", sCNT, sCNT, 1)
    I("s_cmp_eq_u32", sCNT, 0)
    I("s_cbranch_scc1", dn)
    I("s_sleep", 4)
    I("buffer_load_dword", v(TMP + 7), v(TMP + 6), SRD_WS, 0, mods="offen sc1")
    A.wait_vm_all(force=True)
    I("s_branch", lp)
    A.label(dn)
    I("v_cmp_ne_u32", "vcc", sXCC, v(TMP + 7))
    I("s_cmp_eq_u64", "vcc", 0)
    I("s_cselect_b32", sA, 1, 0)
    I("v_mov_b32", v(TMP), sA)
    I("v_mov_b32", v(TMP + 1), hx(L_MODE))
    I("ds_write_b32", v(TMP + 1), v(TMP))
    A.wait_lg_all(force=True)
    A.vm, A.vm_done, A.lg, A.lg_done = sv
    A.label(l)

def att_loader_pre():
    poll(v(TMP + 4), sleep=2)
    stamp("k_ready")
    kv_dma(R_K, L_KIMG, vL16)
    if OPT.get("wolo", 1) == 2:
        def m():
            spin(aV, 4, 1)
            dma_seq(SRD_WO, 896, slot(3), (sJ128, 0), 7)
        main_only(m)
    kv_poll_off(TMP + 5, None)
    I("v_add_u32", v(TMP + 4), 4, v(TMP + 4))
    I("s_and_b32", sA, sTQ0, 15)
    I("s_lshl_b32", sB, sLW, 1)
    I("s_add_u32", sA, sA, sB)
    I("s_lshl_b32", sE, sC0, 8)
    tile_off(sC, R_Q, TB, tl=sA, extra=sE)
    I("s_lshl_b32", sB, sB, 10)
    I("s_add_u32", "m0", sB, hx(L_QIMG))
    I("s_add_u32", sE, sC, hx(TB - 1024))
    poll(v(TMP + 5), sleep=0)
    stamp("q_ready")
    I("buffer_load_dwordx4", vL16, SRD_WS, sC, mods="offen sc1 lds")
    dq = I("buffer_load_dwordx4", vL16, SRD_WS, sE, mods="offen offset:1024 sc1 lds")
    A.wait(vm=dq)
VP = [None]

mLo, mHi, vQR, vMD, vKR, vVR0, vVR1 = 28, 29, 30, 31, 32, 33, 34
vVS = 96
def att_consts_b():
    I("v_and_b32", v(vVS), 32, vLANE)
    I("v_lshlrev_b32", v(vVS), 2, v(vVS))
    I("v_xor_b32", v(vVS), v(vVS), vL16)

def att_consts():
    t0, t1, t2 = TMP + 8, TMP + 9, TMP + 10
    I("s_and_b32", sA, sHEAD, 1)
    I("s_cmp_eq_u32", sA, 1)
    I("s_cselect_b32", sB, 0, 9)
    I("s_cselect_b32", sE, 9, 3)
    I("v_mov_b32", v(t0), -1)
    I("v_cmp_ne_u32", "vcc", sB, vQ4)
    I("v_cndmask_b32", v(mLo), 0, v(t0), "vcc")
    I("v_cmp_ne_u32", "vcc", sE, vQ4)
    I("v_cndmask_b32", v(mHi), 0, v(t0), "vcc")
    I("s_lshl_b32", sA, sLW, 11)
    I("s_add_u32", sB, sA, hx(L_KIMG))
    I("v_add_u32", v(vKR), sB, vL16)
    I("v_and_b32", v(t0), 3, vLANE)
    I("v_lshrrev_b32", v(t1), 2, vLANE)
    I("v_and_b32", v(t2), 2, v(t0))
    I("v_lshlrev_b32", v(t2), 2, v(t2))
    I("v_xor_b32", v(t1), v(t1), v(t2))
    I("v_lshlrev_b32", v(t1), 4, v(t1))
    I("v_lshl_add_u32", v(t1), v(t0), 8, v(t1))
    I("v_and_b32", v(t0), 1, v(t0))
    I("v_lshl_or_b32", v(t1), v(t0), 3, v(t1))
    I("s_add_u32", sB, sA, hx(L_VIMG))
    I("v_add_u32", v(vVR0), sB, v(t1))
    I("v_xor_b32", v(vVR1), 8, v(vVR0))
    I("s_add_u32", sB, sA, hx(L_QIMG))
    I("v_add_u32", v(vQR), sB, vL16)
    I("v_mov_b32", v(vMD), hx(L_MODE))
    I("v_lshlrev_b32", v(t0), 2, vQ4)
    for i, sm in enumerate(MSK):
        I("v_add_u32", v(t1), i, v(t0))
        I("v_cmp_gt_u32", sm, v(t1), vTOK)
    I("s_and_b32", sB, sT1, 15)
    I("s_lshl_b32", sA, sC0, 8)
    tile_off("s44", R_O, TB, tl=sB, extra=sA)
    I("s_lshl_b32", sA, sHEAD, 2)
    tile_off("s59", R_FO, 128, tl=sB, extra=sA)
    I("s_bitcmp1_b32", sHEAD, 0)
    I("s_cselect_b32", "s42", hx(0xffff), 0)
    I("s_cselect_b32", "s43", 0, hx(0xffff0000))
    I("s_cselect_b32", "s46", 8, 0)
    I("s_mov_b32", "s48", hx(0xffff))
    I("s_mov_b32", "s49", 0)
    I("s_not_b64", "s[40:41]", "s[42:43]")
    I("s_add_u32", "s46", "s46", "s44")
    I("s_add_u32", "s45", "s44", hx(TB))
    I("s_add_u32", "s47", "s46", hx(TB))
TAILS = []
MSK = ["s[36:37]", "s[38:39]", "s[50:51]", "s[52:53]"]

def att_a():
    A.cmt("---- attention (A waves)")
    OA, QF, KF, VF, SA, SB = 48, 72, 80, 72, 104, 172
    S = lambda q, t: (SA + 4 * t) if q == 0 else (SB + 4 * (t - 1))
    NEG = TMP + 5
    M = [[TMP + 6, TMP + 8], [TMP + 10, TMP + 12]]
    I("v_mov_b32", v(NEG), hx(0xff800000))
    for qq in range(2):
        for k in range(2):
            I("v_mov_b32", v(M[qq][k]), v(NEG))
    lpf = A.newlabel("Lpf")
    I("s_cmp_ge_u32", sT1, 16)
    I("s_cbranch_scc1", lpf)
    I("v_mov_b32", v(NEG - 1), v(NEG))
    for r in list(range(SA, SA + 64, 2)) + list(range(SB, SB + 60, 2)):
        I("v_mov_b64", vr(r, 2), vr(NEG - 1, 2))
    A.label(lpf)
    barrier()
    stamp("kq_landed")
    I("ds_read_b128", vr(QF, 4), v(vQR))
    q = I("ds_read_b128", vr(QF + 4, 4), v(vQR), mods="offset:1024")
    if OPT["local"]:
        q = I("ds_read_b32", v(vMD), v(vMD))
    def kread(t):
        return I("ds_read_b128", vr(KF + 4 * (t % 4), 4), v(vKR), mods="offset:%d" % (1024 * t))
    def qprep(n):
        I("s_waitcnt", "lgkmcnt(%d)" % n)
        if OPT["local"]:
            I("v_readfirstlane_b32", sMODE, v(vMD))
        for i in range(8):
            I("v_and_b32", v(QF + i), v((mLo, mLo, mHi, mHi)[i & 3]), v(QF + i))

    def post(t):
        for qq in range(2):
            if not (qq <= t <= 16 + qq):
                continue
            r = S(qq, t)
            if t == qq:
                for i in range(4):
                    I("v_cndmask_b32", v(r + i), v(NEG), v(r + i), MSK[i])
            if t == 16 + qq:
                for i in range(4):
                    I("v_cndmask_b32", v(r + i), v(r + i), v(NEG), MSK[i])
            I("v_max3_f32", v(M[qq][0]), v(M[qq][0]), v(r), v(r + 1))
            I("v_max3_f32", v(M[qq][1]), v(M[qq][1]), v(r + 2), v(r + 3))

    lx0 = A.newlabel("Lx0")
    ent = {t: A.newlabel("Lst") for t in range(2, 18, 2)}
    I("s_cmp_lt_u32", sT1, 16)
    I("s_cbranch_scc1", lx0)
    rd = [kread(t) for t in range(4)]
    qprep(4)
    for t in range(18):
        if t in ent:
            A.label(ent[t])
        I("s_waitcnt", "lgkmcnt(%d)" % min(3, 17 - t))
        for qq in range(2):
            if qq <= t <= 16 + qq:
                I("v_mfma_f32_16x16x32_bf16", vr(S(qq, t), 4), vr(KF + 4 * (t % 4), 4), vr(QF + 4 * qq, 4), "0")
        if t + 4 < 18:
            kread(t + 4)
        if t >= 2:
            post(t - 2)
    post(16)
    post(17)
    A.lg_done = A.lg
    def stubs():
        A.label(lx0)
        qprep(0)
        for t0 in range(2, 18, 2):
            nx = A.newlabel("Lnx")
            if t0 < 16:
                I("s_cmp_lg_u32", sT1, 16 - t0)
                I("s_cbranch_scc1", nx)
            for t in range(t0, min(t0 + 4, 18)):
                kread(t)
            I("s_branch", ent[t0])
            A.label(nx)
    TAILS.append(stubs)
    stamp("s_done")
    for op in ("max", "mov", "p32", "max", "mov", "p16", "max", "neg"):
        for qq in range(2):
            a, b = M[qq]
            if op == "max": I("v_max_f32", v(a), v(a), v(b))
            if op == "mov": I("v_mov_b32", v(b), v(a))
            if op == "p32": I("v_permlane32_swap_b32", v(a), v(b))
            if op == "p16": I("v_permlane16_swap_b32", v(a), v(b))
            if op == "neg": I("v_sub_f32", v(a), 0, v(a))
    for qq in range(2):
        for g in range(0, 68, 2):
            r = (SA, SB)[qq] + g
            I("v_pk_add_f32", vr(r, 2), vr(r, 2), vr(M[qq][0], 2), mods="op_sel_hi:[1,0]")

    def tiles(qq, p):
        return [t for t in (2 * p, 2 * p + 1) if qq <= t <= 16 + qq]
    def exp_ops(p):
        ops = []
        for qq in range(2):
            ts = tiles(qq, p)
            r = S(qq, ts[0])
            n = 4 * len(ts)
            ops += [lambda r=r, i=i: I("v_exp_f32", v(r + i), v(r + i)) for i in range(n)]
        return ops
    def cvt_ops(p):
        ops = []
        for qq in range(2):
            ts = tiles(qq, p)
            r = S(qq, ts[0])
            ops += [lambda r=r, i=i: I("v_cvt_pk_bf16_f32", v(r + i), v(r + 2 * i), v(r + 2 * i + 1)) for i in range(2 * len(ts))]
        return ops
    vrd = {}
    def vread_ops(p):
        d = VF + 8 * (p % 3)
        ops = []
        for a, vr_ in enumerate((vVR0, vVR1)):
            for h in range(2):
                def f(a=a, vr_=vr_, h=h):
                    vrd[p] = I("ds_read_b64_tr_b16", vr(d + 4 * a + 2 * h, 2), v(vr_), mods="offset:%d" % (2048 * p + 1024 * h))
                ops.append(f)
        return ops
    def pv_ops(p):
        d = VF + 8 * (p % 3)
        ops = [lambda: A.wait(lg=vrd[p])]
        for qq in range(2):
            ts = tiles(qq, p)
            r = S(qq, ts[0])
            o = OA + 12 * qq
            for acc, areg in ((o + 8, None), (o, d), (o + 4, d + 4)):
                if len(ts) == 2:
                    ops.append(lambda acc=acc, areg=areg, r=r: m16(acc, ONES if areg is None else areg, r, p == 0))
                else:
                    ar = ONES if areg is None else areg + (2 if qq == 1 else 0)
                    ops.append(lambda acc=acc, ar=ar, r=r: I("v_mfma_f32_16x16x16_bf16", vr(acc, 4), vr(ar, 2), vr(r, 2),
                                                            "0" if p == 0 else vr(acc, 4)))
        return ops
    LAG = OPT.get("lag", 4)
    side = []
    issued_v = 0
    done_pv = 0
    for p in range(9):
        main = exp_ops(p) + (cvt_ops(p - 1) if p else [])
        if p == LAG - 1:
            barrier()
            stamp("v_landed")
            side += vread_ops(0) + vread_ops(1)
            issued_v = 2
        if p >= LAG:
            for _ in range(2):
                if done_pv <= p - 2:
                    if issued_v < 9:
                        side += vread_ops(issued_v)
                        issued_v += 1
                    side += pv_ops(done_pv)
                    done_pv += 1
        for k, op in enumerate(main):
            op()
            if side:
                side.pop(0)()
        while side:
            side.pop(0)()
    for op in cvt_ops(8):
        op()
    stamp("softmax_done")
    while done_pv < 9:
        if issued_v < 9:
            for op in vread_ops(issued_v):
                op()
            issued_v += 1
        for op in pv_ops(done_pv):
            op()
        done_pv += 1
    for qq in range(2):
        I("v_rcp_f32", v(TMP + 12 + qq), v(OA + 12 * qq + 8))
    for qq in range(2):
        for i in range(8):
            I("v_mul_f32", v(OA + 12 * qq + i), v(OA + 12 * qq + i), v(TMP + 12 + qq))
    pack(TMP, OA, 8)
    pack(TMP + 4, OA + 12, 8)
    unswap(TMP, 2)
    for qq in range(2):
        I("v_cndmask_b32", v(TMP + 8 + 2 * qq), v(TMP + 4 * qq), v(TMP + 4 * qq + 2), "s[48:49]")
        I("v_cndmask_b32", v(TMP + 9 + 2 * qq), v(TMP + 4 * qq + 1), v(TMP + 4 * qq + 3), "s[48:49]")
    def ost(m):
        mm = "offen" + (" " + m if m else "")
        I("s_mov_b64", "exec", "s[40:41]")
        I("buffer_store_dwordx4", vr(TMP, 4), vL16, SRD_WS, "s44", mods=mm)
        I("buffer_store_dwordx4", vr(TMP + 4, 4), vL16, SRD_WS, "s45", mods=mm)
        I("s_mov_b64", "exec", "s[42:43]")
        I("buffer_store_dwordx2", vr(TMP + 8, 2), vL16, SRD_WS, "s46", mods=mm)
        I("buffer_store_dwordx2", vr(TMP + 10, 2), vL16, SRD_WS, "s47", mods=mm)
        I("s_mov_b64", "exec", -1)
    moded(ost)
    stamp("o_stored")

def att_b():
    A.cmt("---- attention (B waves)")
    barrier()
    if OPT["local"]:
        I("v_mov_b32", v(TMP + 6), hx(L_MODE))
        I("ds_read_b32", v(TMP + 6), v(TMP + 6))
    poll(v(TMP + 4))
    stamp("v_ready")
    kv_dma(R_V, L_VIMG, v(vVS))
    if OPT["local"]:
        A.wait_lg_all()
        I("v_readfirstlane_b32", sMODE, v(TMP + 6))
    lsp, lj = A.newlabel("Lbs"), A.newlabel("Lbj")
    I("s_cmp_ge_u32", sLI, 28)
    I("s_cbranch_scc1", lsp)
    sv = (A.vm, A.vm_done)
    dv = A.vm
    dma_seq(SRD_WO, 896, slot(4), (sJ128, 224 * 896), 7)
    if OPT.get("wolo", 1) in (1, 2):
        dma_seq(SRD_W1, 896, slot(0), (sJ128, 0), 7)
    else:
        dma_seq(SRD_WO, 896, slot(3), (sJ128, 0), 7)
    A.wait(vm=dv)
    stamp("b_vland")
    barrier()
    stamp("b_b6")
    kvdone()
    if OPT.get("wolo", 1) not in (1, 2):
        dma_seq(SRD_W1, 896, slot(0), (sJ128, 0), 7)
    dw1 = dma_seq(SRD_W1, 896, slot(1), (sJ128, 224 * 896), 7)
    k0 = 7 if OPT.get("wolo", 1) == 3 else 0
    I("s_add_u32", sA, sJ128, hx(32 * 896 * k0))
    for k in range(k0, 14):
        I("buffer_load_dwordx4", vr(PARK + 4 * k, 4), vD896, SRD_W2, sA, mods="offen")
        I("s_add_u32", sA, sA, hx(32 * 896))
    stamp("b_w2iss")
    cnt_setup([23, 24, 25])
    A.wait(vm=dw1)
    arrive(bWO)
    if OPT.get("kvt", 1):
        kvdone_try()
    A.wait_vm_all(force=True)
    stamp("bg_done")
    I("s_branch", "L_cload")
    A.label(lsp)
    A.vm, A.vm_done = sv
    SE = OPT.get("se", 5)
    I("s_waitcnt", "vmcnt(0)")
    if SE:
        spare_att(0, SE)
    barrier()
    kvdone()
    spare_att(SE, 14)
    A.wait_vm_all(force=True)
    stamp("bg_done")
    barrier()
    spare_colsum()
    I("s_branch", "L_spare2")

PARK = 184
def kvdone():
    l = A.newlabel("Lkd")
    I("s_cmp_lg_u32", sW, 4)
    I("s_cbranch_scc1", l)
    I("s_lshl_b32", sA, sLI, 7)
    I("s_add_u32", sA, sA, sPAGE)
    I("s_add_u32", sA, sA, hx(R_XCC + 4))
    flag_store(sA)
    A.vm -= 1
    A.label(l)

vKVO = 43
def kvdone_try():
    I("v_lshrrev_b32", v(vKVO), 5, vLANE)
    I("v_add_u32", v(vKVO), sX, v(vKVO))
    I("v_min_u32", v(vKVO), 7, v(vKVO))
    I("v_lshlrev_b32", v(vKVO), PSH, v(vKVO))
    I("v_and_b32", v(TMP + 1), 31, vLANE)
    I("v_lshl_add_u32", v(vKVO), v(TMP + 1), 7, v(vKVO))
    I("v_add_u32", v(vKVO), hx(R_XCC + 4), v(vKVO))
    I("s_mov_b32", sXCC, 1)
    l = A.newlabel("Lkt")
    I("s_cmp_lg_u32", sW, 4)
    I("s_cbranch_scc1", l)
    I("buffer_load_dword", v(TMP + 1), v(vKVO), SRD_WS, 0, mods="offen sc1")
    A.vm -= 1
    I("s_waitcnt", "vmcnt(0)")
    I("v_cmp_ne_u32", "vcc", sTAG, v(TMP + 1))
    I("s_cmp_eq_u64", "vcc", 0)
    I("s_cselect_b32", sXCC, 1, 0)
    A.label(l)

def kvdone_check():
    l = A.newlabel("Lkc")
    I("s_cmp_eq_u32", sXCC, 1)
    I("s_cbranch_scc1", l)
    sv = (A.vm, A.vm_done)
    poll(v(vKVO), sleep=2)
    A.vm, A.vm_done = sv
    A.label(l)

def o_flag():
    A.wait_vm_all(force=True)
    def f(m):
        I("s_mov_b64", "exec", 1)
        I("buffer_store_dword", vTAG, "off", SRD_WS, "s59", mods=m)
        I("buffer_store_dword", vTAG, "off", SRD_WS, "s59", mods="offset:128" + (" " + m if m else ""))
        I("s_mov_b64", "exec", -1)
    moded(f)
    stamp("o_flag")

def ack_flag(st, name):
    A.wait(vm=st)
    moded(lambda m: flag_store(sD, m))
    stamp(name)

def store_out(preg, q_barrier=True):
    def f(m):
        frag_store(preg, sC, mods=m)
        return frag_store(preg + 4, sC, 1024, mods=m)
    return moded(f)

aM1, aP1, aX1, aM2, aP2, aX2, vDP = 36, 37, 38, 39, 40, 41, 42
vCS = 6
sR1, sR2, sGH, sFHH, sSP = "s54", "s55", "s56", "s57", "s58"
def c_setup():
    t0, t1, t2, t3 = TMP + 8, TMP + 9, TMP + 10, TMP + 11
    stat_aux()
    I("v_lshlrev_b32", v(vCS), 4, vQ4)
    I("v_add_u32", v(vCS), hx(131072), v(vCS))
    I("s_lshl_b32", sB, sX, 8)
    I("s_lshl_b32", sA, sTL, 4)
    I("s_add_u32", sB, sB, sA)
    I("v_mov_b32", v(t3), hx(OOB))
    for reg, d in ((aM1, -1), (aP1, 1), (aM2, -2), (aP2, 2)):
        I("s_add_u32", sA, sB, d)
        I("v_add_u32", v(t0), sA, vTOK)
        I("v_lshrrev_b32", v(t1), 8, v(t0))
        I("v_bfe_u32", v(t2), v(t0), 4, 4)
        I("v_mul_u32_u24", v(reg), hx(TB), v(t2))
        I("v_add_u32", v(reg), hx(R_HH), v(reg))
        I("v_and_b32", v(t2), 1, v(t2))
        I("v_mul_u32_u24", v(t2), hx(TB), v(t2))
        I("v_add_u32", v(t2), hx(R_HALO), v(t2))
        I("v_cmp_ne_u32", "vcc", sX, v(t1))
        I("v_cndmask_b32", v(reg), v(reg), v(t2), "vcc")
        I("v_lshl_add_u32", v(reg), v(t1), PSH, v(reg))
        I("v_and_b32", v(t1), 15, v(t0))
        I("v_lshl_add_u32", v(reg), v(t1), 4, v(reg))
        I("v_lshl_add_u32", v(reg), vQ4, 8, v(reg))
        I("v_cmp_gt_u32", "vcc", hx(2048), v(t0))
        if OPT.get("nohalo"):
            I("v_lshrrev_b32", v(t1), 8, v(t0))
            I("v_cmp_eq_u32", "vcc", sX, v(t1))
        I("v_cndmask_b32", v(reg), v(t3), v(reg), "vcc")
    I("v_cmp_gt_u32", "vcc", 2, vQ4)
    I("v_cndmask_b32", v(aX1), v(aP1), v(aM1), "vcc")
    I("v_cndmask_b32", v(aX2), v(aP2), v(aM2), "vcc")
    I("s_lshr_b32", sB, sB, 4)
    I("s_sub_u32", sA, sB, 1)
    I("v_min_u32", v(t0), 2, vQ4)
    I("v_add_u32", v(t0), sA, v(t0))
    I("v_max_i32", v(t0), 0, v(t0))
    I("v_min_i32", v(t0), hx(127), v(t0))
    if OPT.get("nohalo"):
        I("s_lshl_b32", sA, sX, 4)
        I("v_max_i32", v(t0), sA, v(t0))
        I("s_add_u32", sA, sA, 15)
        I("v_min_i32", v(t0), sA, v(t0))
    I("v_lshrrev_b32", v(t1), 4, v(t0))
    I("v_and_b32", v(t0), 15, v(t0))
    I("v_min_u32", v(t2), 6, vTOK)
    I("v_lshlrev_b32", v(t3), 2, v(t2))
    I("v_lshl_add_u32", v(t3), v(t0), 7, v(t3))
    I("v_lshl_add_u32", v(t3), v(t1), PSH, v(t3))
    I("v_add_u32", v(vDP), hx(R_FHH), v(t3))
    I("v_and_b32", v(t0), 1, v(t0))
    I("v_lshlrev_b32", v(t2), 7, v(t2))
    I("v_lshl_add_u32", v(t2), v(t0), 10, v(t2))
    I("v_lshl_add_u32", v(t2), v(t1), PSH, v(t2))
    I("v_add_u32", v(t2), hx(R_FHALO), v(t2))
    I("v_cmp_ne_u32", "vcc", sX, v(t1))
    I("v_cndmask_b32", v(vDP), v(vDP), v(t2), "vcc")
    tile_off(sR1, 0, TB)
    I("s_lshl_b32", sA, sJ, 11)
    I("s_add_u32", sR2, sR1, sA)
    tile_off(sSP, R_SH, 2048)
    I("s_lshl_b32", sA, sJ, 8)
    I("s_add_u32", sGH, sSP, sA)
    I("s_lshl_b32", sA, sJ, 2)
    tile_off(sFHH, R_FHH, 128, extra=sA)

def c_compute():
    aoff = lambda s: (4096 * s, TRC)
    N1, N2, N3 = OPT.get("n1", 1), OPT.get("n2", 1), OPT.get("n3", 1)
    NA = OPT.get("na", 3)
    cnt_setup([35, 43, TMP + 15])
    pk = peek(bWO)
    set_tr(slot(3))
    unpack(ACC, HP, 16)
    verify(pk, bWO, 4)
    rd = [a_read(AREG + 16 * s, *aoff(s)) for s in range(N1)]
    flag_poll_off(34, 16, R_FO, 128, 2)
    I("s_add_u32", sC2, sR1, hx(R_O))
    bl = BLoads(14, sC2)
    o_flag()
    rd += [a_read(AREG + 16 * s, *aoff(s)) for s in range(N1, N1 + NA)]
    poll_a(v(34), TMP + 13)
    rd += [a_read(AREG + 16 * s, *aoff(s)) for s in range(N1 + NA, 7)]
    arrive(aOF)
    I("s_add_u32", sC, sR2, hx(R_H))
    I("s_mov_b32", sD, sGH)
    poll_b(v(34), TMP + 13)
    A.wait_lg_all()
    stamp("c1_ready")
    bl.first()
    gemm(14, 7, 7, aoff, lambda s: BREG + 4 * s, bl=bl.ids, bissue=bl.more, zero=False, rd=rd,
         hook=lambda s: arrive(aC1P) if s == OPT.get("p1", 8) else None)
    stamp("c1_mfma")
    pack(HP, ACC, 16)
    unswap(HP, 2)
    st = store_out(HP)
    pk = peek(bCS1)
    stat_granule(HP)
    set_tr(slot(0))
    verify(pk, bCS1, 4)
    rd = [a_read(AREG + 16 * s, *aoff(s)) for s in range(N2)]
    A.wait(vm=st)
    moded(granule_store)
    stamp("h_flag")
    rd += [a_read(AREG + 16 * s, *aoff(s)) for s in range(N2, N2 + NA)]
    stat_poll_a(sSP)
    rd += [a_read(AREG + 16 * s, *aoff(s)) for s in range(N2 + NA, 7)]
    for f in range(4):
        I("ds_read_b128", vr(ACC + 4 * f, 4), v(vCS), mods="offset:%d" % (L_CS1 - 131072 + 64 * f))
    arrive(aC1Q)
    I("s_add_u32", sC2, sR1, hx(R_H))
    bl = BLoads(14, sC2)
    stat_poll(sSP)
    stamp("c2_ready")
    bl.first()
    stat_finish()
    var, nmu, ry = TMP + 7, TMP + 8, TMP + 10
    K0, K1, RI = TMP, TMP + 2, TMP + 12
    I("v_mul_f32", v(nmu), fl(-1.0 / 448), v(TMP + 4))
    A.wait_lg_all()
    for i in range(0, 16, 2):
        pk_mul_b(ACC + i, ACC + i, nmu)
    def c2late():
        mean_var(TMP + 4, TMP + 6, vMU, var)
        rstd(vRH, var)
        I("s_add_u32", sC, sR2, hx(R_HH))
        I("v_mul_f32", v(var), v(var), v(vRH))
        I("v_mul_f32", v(var), v(var), v(vRH))
        rstd(ry, var)
        I("s_add_u32", sA, sTL, 1)
        I("v_mul_f32", v(ry), v(ry), v(vRH))
        gelu_prep(ry, K0, K1, RI)
        I("s_and_b32", sD2, sA, 15)
        I("v_mov_b32", v(TMP + 4), v(vRH))
        I("v_mul_f32", v(TMP + 6), v(nmu), v(vRH))
    side = rec(c2late)
    def cfill(s, f):
        if s >= 7 and side:
            side.pop(0)()
    gemm(14, 7, 7, aoff, lambda s: BREG + 4 * s, bl=bl.ids, bissue=bl.more, zero=False, rd=rd, fill=cfill,
         hook=lambda s: arrive(aC2P) if s == OPT.get("p2", 8) else None)
    assert not side
    stamp("c2_mfma")
    gelu(ACC, 16, BREG, K0, K1, RI, HHP, True)
    unswap(HHP, 2)
    st = store_out(HHP)
    lh = A.newlabel("Lhalo")
    if OPT.get("nohalo"):
        I("s_mov_b32", sD2, 5)
    I("s_cmp_gt_u32", sD2, 1)
    I("s_cbranch_scc1", lh)
    I("s_and_b32", sB, sTL, 1)
    I("s_lshl_b32", sA, sJ, 11)
    tile_off(sC, R_HALO, TB, tl=sB, extra=sA)
    frag_store(HHP, sC)
    frag_store(HHP + 4, sC, 1024)
    A.vm -= 2
    A.label(lh)
    stamp("hh_stored")
    pk = peek(bW2)
    set_tr(slot(3))
    unswap(HP, 2)
    unpack(ACC, HP, 16)
    for i in range(0, 16, 2):
        I("v_pk_fma_f32", vr(ACC + i, 2), vr(ACC + i, 2), vr(TMP + 4, 2), vr(TMP + 6, 2), mods="op_sel_hi:[1,0,0]")
    verify(pk, bW2, 4)
    rd = [a_read(AREG + 16 * s, *aoff(s)) for s in range(N3)]
    lh, lh2 = A.newlabel("Lhalo"), A.newlabel("Lhalo")
    I("s_cmp_gt_u32", sD2, 1)
    I("s_cbranch_scc1", lh)
    I("s_waitcnt", "vmcnt(2)")
    I("s_branch", lh2)
    A.label(lh)
    A.wait(vm=st)
    A.label(lh2)
    moded(lambda m: flag_store(sFHH, m))
    stamp("hh_flag")
    rd += [a_read(AREG + 16 * s, *aoff(s)) for s in range(N3, N3 + NA)]
    poll_a(v(vDP), TMP + 13)
    rd += [a_read(AREG + 16 * s, *aoff(s)) for s in range(N3 + NA, 7)]
    arrive(aHF)
    I("s_mov_b32", sC2, 0)
    amap = [aM1] * 3 + [aX1] + [aP1] * 3 + [aM2] * 3 + [aX2] + [aP2] * 3
    bl = BLoads(14, sC2, vaddr=lambda i: v(amap[i]))
    lh = A.newlabel("Lhalo")
    I("s_cmp_gt_u32", sD2, 1)
    I("s_cbranch_scc1", lh)
    I("s_and_b32", sB, sTL, 1)
    tile_off(sC, R_FHALO, 1024, tl=sB, extra=sJ128)
    I("s_waitcnt", "vmcnt(2)")
    flag_store(sC)
    A.vm -= 1
    A.label(lh)
    poll_b(v(vDP), TMP + 13)
    A.wait_lg_all()
    stamp("d_ready")
    bl.first()
    I("s_add_u32", sC, sR2, hx(R_X1))
    I("s_add_u32", sD, sGH, hx(R_SX - R_SH))
    e_lane_a()
    gemm(14, 7, 7, aoff, lambda s: BREG + 4 * s, bl=bl.ids, bissue=bl.more, zero=False, rd=rd,
         hook=lambda s: arrive(aDP) if s == OPT.get("p3", 8) else None)
    stamp("d_mfma")
    pack(TMP, ACC, 16)
    unswap(TMP, 2)
    st = store_out(TMP)
    stat_granule(TMP)
    return st

RES = 28
def colsum(bases, ldst):
    t0, t1 = TMP, TMP + 1
    I("s_and_b32", sA, sLW, 2)
    I("s_lshl_b32", sA, sA, 5)
    I("s_and_b32", sB, sLW, 1)
    I("s_lshl_b32", sB, sB, 3)
    I("s_or_b32", sA, sA, sB)
    I("v_xor_b32", v(t0), sA, v(TRL[0][0]))
    I("v_add_u32", v(t1), hx(bases[1]), v(t0))
    I("v_add_u32", v(t0), hx(bases[0]), v(t0))
    rd = []
    for s in range(14):
        ad = v(t0 if s < 7 else t1)
        I("ds_read_b64_tr_b16", vr(AREG + 4 * s, 2), ad, mods="offset:%d" % (4096 * (s % 7)))
        rd.append(I("ds_read_b64_tr_b16", vr(AREG + 4 * s + 2, 2), ad, mods="offset:%d" % (4096 * (s % 7) + 1024)))
    A.wait_lg_all()
    for s in range(14):
        m16(ACC, AREG + 4 * s, ONES, s == 0)
    I("s_lshl_b32", sA, sLW, 6)
    I("s_add_u32", sA, sA, hx(ldst))
    I("v_lshl_add_u32", v(t0), vQ4, 4, sA)
    I("s_mov_b32", "exec_lo", hx(0x10001))
    I("s_mov_b32", "exec_hi", hx(0x10001))
    I("ds_write_b128", v(t0), vr(ACC, 4))
    I("s_mov_b64", "exec", -1)

W3S = [[2, 0], [1, 3]]
vUP = 36
def c_loader():
    A.cmt("---- C/D loader")
    CNR[:] = [23, 24, 25]
    if OPT.get("bprio", 0):
        I("s_setprio", OPT["bprio"])
    I("s_lshl_b32", sE, sJP, 8)
    e_table(False)
    I("s_lshl_b32", sA, sLW, 10)
    I("s_add_u32", sA, sA, hx(slot(3)))
    I("v_add_u32", v(vUP), sA, vL16)
    spin(aOF, 4, 1)
    colsum((slot(0), slot(1)), L_CS1)
    arrive(bCS1)
    TRG = OPT.get("trg", 2)
    spin(aC1P, TRG, 1)
    dma_seq(SRD_W3, 3584, slot(W3S[0][0]), (sE, 0), 7)
    spin(aC1P, 4, 1)
    for k in range(14):
        I("ds_write_b128", v(vUP), vr(PARK + 4 * k, 4), mods="offset:%d" % (4096 * k))
    arrive(bW2)
    I("v_and_b32", v(TMP), 3, vLANE)
    I("v_and_b32", v(TMP + 1), 48, vLANE)
    I("v_or_b32", v(TMP), v(TMP), v(TMP + 1))
    I("v_lshlrev_b32", v(TMP), 3, v(TMP))
    I("v_and_b32", v(TMP + 1), 4, vLANE)
    I("v_lshl_add_u32", v(TMP), v(TMP + 1), 4, v(TMP))
    I("v_and_b32", v(TMP + 1), 8, vLANE)
    I("v_lshl_add_u32", v(TMP), v(TMP + 1), 2, v(TMP))
    I("v_add_u32", v(TMP), hx(L_CS3), v(TMP))
    I("s_lshl_b32", sC, sE, 2)
    I("s_add_u32", sC, sC, hx(OFF_CSG))
    spin(aC1Q, 4, 1)
    spin(aC2P, TRG, 1)
    stamp("b_c2p")
    dma_seq(SRD_W3, 3584, slot(W3S[0][1]), (sE, 224 * 3584), 7)
    lcs = A.newlabel("Lcs")
    I("s_cmp_lg_u32", sW, 5)
    I("s_cbranch_scc1", lcs)
    lp, dn = A.newlabel("Lpoll"), A.newlabel("Lpd")
    I("s_mov_b32", sCNT, hx(40000))
    A.label(lp)
    I("buffer_load_dwordx4", vr(TMP + 4, 4), vL16, SRD_WS, sC, mods="offen sc1")
    I("s_sub_u32", sCNT, sCNT, 1)
    I("s_waitcnt", "vmcnt(0)")
    I("v_xor_b32", v(TMP + 5), vTAG, v(TMP + 5))
    I("v_xor_b32", v(TMP + 7), vTAG, v(TMP + 7))
    I("v_or_b32", v(TMP + 5), v(TMP + 5), v(TMP + 7))
    I("v_cmp_ne_u32", "vcc", 0, v(TMP + 5))
    I("s_cbranch_vccz", dn)
    I("s_sleep", 4)
    I("s_cmp_lg_u32", sCNT, 0)
    I("s_cbranch_scc1", lp)
    A.label(dn)
    I("ds_write2_b32", v(TMP), v(TMP + 4), v(TMP + 6), mods="offset0:0 offset1:1")
    A.label(lcs)
    if not OPT.get("kvt", 1):
        kvdone_try()
    A.wait_vm_all(force=True)
    stamp("b_w3ab")
    kvdone_check()
    arrive(bAB)
    spin(aC2P, 4, 1)
    spin(aDP, TRG, 1)
    dma_seq(SRD_W3, 3584, slot(W3S[1][0]), (sE, 128), 7)
    if OPT.get("d_early", 0):
        spin(aHF, 4, 1)
        dma_seq(SRD_W3, 3584, slot(W3S[1][1]), (sE, 224 * 3584 + 128), 7)

W4SL = [2, 0, 1, 3]
CL = [0, 2, 3, 1]
CNR = [16, 17, 18]
def cnt_setup(regs):
    CNR[:] = regs
    I("v_mov_b32", v(CNR[0]), hx(L_CNT))
    I("v_mov_b32", v(CNR[1]), 1)

def arrive(which, areg=None):
    I("s_mov_b64", "exec", 1)
    I("ds_add_u32", v(areg or CNR[0]), v(CNR[1]), mods="offset:%d" % (4 * which))
    I("s_mov_b64", "exec", -1)

def spin(which, target, sleep=0, areg=None):
    lp, dn = A.newlabel("Lsp"), A.newlabel("Lsd")
    if sleep:
        sleep = OPT.get("bsl", sleep)
    I("s_mov_b32", sCNT, hx(400000))
    if OPT.get("ex1", 1):
        I("s_mov_b64", "exec", 1)
    A.label(lp)
    I("ds_read_b32", v(CNR[2]), v(areg or CNR[0]), mods="offset:%d" % (4 * which))
    I("s_sub_u32", sCNT, sCNT, 1)
    A.wait_lg_all(force=True)
    I("v_cmp_gt_u32", "vcc", target, v(CNR[2]))
    I("s_cbranch_vccz", dn)
    if sleep:
        I("s_sleep", sleep)
    I("s_cmp_lg_u32", sCNT, 0)
    I("s_cbranch_scc1", lp)
    A.label(dn)
    if OPT.get("ex1", 1):
        I("s_mov_b64", "exec", -1)

GT_ = ["s18", "s19", "s20", "s21", "s22", "s23", "s3"]
sTE = "s0"
def e_table(for_a):
    I("s_lshr_b32", sA, sTG, 1)
    I("s_mul_i32", sK, sA, 3)
    I("s_lshl_b32", sA, sA, 3)
    I("s_lshl_b32", sB, sLW, 1)
    I("s_add_u32", sTE, sA, sB)
    I("s_add_u32", sK, sK, sJ)
    I("s_cmp_ge_u32", sK, 7)
    I("s_cselect_b32", sA, 7, 0)
    I("s_sub_u32", sK, sK, sA)
    I("s_bitcmp1_b32", sTG, 0)
    I("s_cselect_b32", sA, hx(16 * TB if for_a else 7 * 128 * 896), 0)
    I("s_add_u32", sA, sA, sPAGE if for_a else sJ128)
    for i in range(7):
        r = GT_[i] if for_a else "s%d" % (36 + i)
        I("s_mul_i32", r, sK, hx(2048 if for_a else 128 * 896))
        I("s_add_u32", r, r, sA)
        if i < 6:
            I("s_add_u32", sK, sK, 1)
            I("s_cmp_eq_u32", sK, 7)
            I("s_cmov_b32", sK, 0)

PK4 = 128
def w4_park(c):
    res = []
    for i in range(7):
        def th(i=i):
            I("s_add_u32", sH_, "s%d" % (36 + i), hx(32 * CL[c] * 896))
            W4ID[c] = I("buffer_load_dwordx4", vr(PK4 + 28 * (3 - c) + 4 * i, 4), vD4, SRD_W4, sH_, mods="offen")
        res.append(th)
    return res

def w4_unpark(c):
    I("v_add_u32", v(39), hx(slot(W4SL[c]) - slot(3)), v(vUP))
    A.wait(vm=W4ID[c])
    for i in range(7):
        I("ds_write_b128", v(39), vr(PK4 + 28 * (3 - c) + 4 * i, 4), mods="offset:%d" % (4096 * i))

def w4_thunks(c):
    res = []
    for i in range(7):
        def th(i=i):
            I("s_add_u32", "m0", sF, hx(slot(W4SL[c]) + 4096 * i))
            I("s_add_u32", sH_, "s%d" % (36 + i), hx(32 * CL[c] * 896))
            W4ID[c] = I("buffer_load_dwordx4", vD4, SRD_W4, sH_, mods="offen lds")
        res.append(th)
    return res
W4ID = {}

def peek(which, areg=None):
    return I("ds_read_b32", v(CNR[2]), v(areg or CNR[0]), mods="offset:%d" % (4 * which))

def verify(ld, which, target, areg=None):
    ok, lp = A.newlabel("Lvk"), A.newlabel("Lvl")
    A.wait(lg=ld)
    I("v_cmp_gt_u32", "vcc", target, v(CNR[2]))
    I("s_cbranch_vccz", ok)
    sv = (A.lg, A.lg_done)
    I("s_mov_b32", sCNT, hx(400000))
    A.label(lp)
    peek(which, areg)
    I("s_sub_u32", sCNT, sCNT, 1)
    I("s_waitcnt", "lgkmcnt(0)")
    I("v_cmp_gt_u32", "vcc", target, v(CNR[2]))
    I("s_cbranch_vccz", ok)
    I("s_cmp_lg_u32", sCNT, 0)
    I("s_cbranch_scc1", lp)
    A.lg, A.lg_done = sv
    A.label(ok)

class Inject:
    def __init__(self, thunks, first, every=None):
        self.th, self.nx, self.every, self.c = list(thunks), first, every or first, 0
    def __enter__(self):
        global I
        self.old = I
        def J(*a, **k):
            global I
            r = self.old(*a, **k)
            self.c += 1
            if self.c >= self.nx and self.th:
                self.nx += self.every
                cur = I
                I = self.old
                self.th.pop(0)()
                I = cur
            return r
        I = J
        return self
    def __exit__(self, *a):
        global I
        I = self.old
        for t in self.th:
            t()

T32 = [7, 8]
C32 = [[11, 12], [13, 14]]
def tr32_lane(dst=T32):
    t0, t1, t2 = TMP + 12, TMP + 13, TMP + 14 - 3
    I("v_bfe_u32", v(t0), vLANE, 2, 2)
    I("v_lshrrev_b32", v(t1), 5, vLANE)
    I("v_lshl_add_u32", v(t1), v(t1), 2, v(t0))
    I("v_lshlrev_b32", v(t1), 7, v(t1))
    I("v_and_b32", v(t0), 2, v(t0))
    I("v_lshl_or_b32", v(t1), v(t0), 5, v(t1))
    I("v_and_b32", v(t0), 16, vLANE)
    I("v_lshl_or_b32", v(t1), v(t0), 1, v(t1))
    I("v_and_b32", v(t0), 1, vLANE)
    I("v_lshl_or_b32", v(t1), v(t0), 4, v(t1))
    I("v_and_b32", v(t0), 2, vLANE)
    I("v_lshl_or_b32", v(dst[0]), v(t0), 2, v(t1))
    I("v_xor_b32", v(dst[1]), 64, v(dst[0]))

def bf_lane(dst):
    I("v_and_b32", v(dst), 1, vQ4)
    I("v_mul_u32_u24", v(dst), hx(TB), v(dst))
    I("v_lshl_add_u32", v(dst), vTOK, 4, v(dst))
    I("v_lshrrev_b32", v(TMP + 12), 5, vLANE)
    I("v_lshl_add_u32", v(dst), v(TMP + 12), 8, v(dst))

def set32(base, k):
    if isinstance(base, int):
        I("s_mov_b32", sA, hx(base))
        base = sA
    for b in range(2):
        I("v_add_u32", v(C32[k][b]), base, v(T32[b]))

def rec(fn):
    global I
    old = I
    groups = []
    def J(*a, **k):
        if a[0].startswith(("s_cselect", "s_cmov", "v_cndmask")):
            groups[-1].append((a, k))
        else:
            groups.append([(a, k)])
    I = J
    fn()
    I = old
    return [lambda g=g: [old(*a, **k) for a, k in g] for g in groups]

def m32(acc, areg, breg, zero):
    I("v_mfma_f32_32x32x16_bf16", vr(acc, 16), vr(areg, 4), vr(breg, 4), "0" if zero else vr(acc, 16))

def colsum32(sg):
    t0 = TMP
    I("s_mov_b32", sA, hx(slot(W3S[sg][0])))
    I("s_bitcmp1_b32", sLW, 1)
    I("s_cmov_b32", sA, hx(slot(W3S[sg][1])))
    I("s_and_b32", sB, sLW, 1)
    I("s_lshl_b32", sB, sB, 6)
    I("v_xor_b32", v(t0), sB, v(T32[0]))
    I("v_add_u32", v(t0), sA, v(t0))
    rd = []
    for k in range(14):
        I("ds_read_b64_tr_b16", vr(AREG + 4 * k, 2), v(t0), mods="offset:%d" % (2048 * k))
        rd.append(I("ds_read_b64_tr_b16", vr(AREG + 4 * k + 2, 2), v(t0), mods="offset:%d" % (2048 * k + 1024)))
    I("s_lshl_b32", sB, sB, 1)
    I("s_add_u32", sA, sB, hx(L_CS3 + 256 * sg))
    I("v_lshrrev_b32", v(t0 + 1), 5, vLANE)
    I("v_lshl_add_u32", v(t0 + 1), v(t0 + 1), 6, sA)
    A.wait_lg_all()
    for k in range(14):
        m32(ACC, AREG + 4 * k, ONES, k == 0)
    I("s_mov_b32", "exec_lo", 1)
    I("s_mov_b32", "exec_hi", 1)
    for q in range(16):
        I("ds_add_f32", v(t0 + 1), v(ACC + q), mods="offset:%d" % (4 * q))
    I("s_mov_b64", "exec", -1)

def gemm32(nk, breg, areg, rd, bl=None, bissue=None, zero=None, hook=None):
    for k in range(nk):
        if hook:
            hook(k)
        if k % 2 == 0:
            A.wait(vm=bl(k + 1) if bl else None, lg=rd[k + 1])
        for b in range(2):
            m32((ACC, ACC2)[b], areg + 8 * (k % 6) + 4 * b, breg(k), zero(k) if zero else False)
            if bissue:
                bissue(k, b)
            if k + 4 < nk:
                r = a32(areg, k + 4, b)
        if k + 4 < nk:
            rd.append(r)

def a32(areg, k, b):
    d = areg + 8 * (k % 6) + 4 * b
    ad = v(C32[(k // 14) & 1][b])
    I("ds_read_b64_tr_b16", vr(d, 2), ad, mods="offset:%d" % (2048 * (k % 14)))
    return I("ds_read_b64_tr_b16", vr(d + 2, 2), ad, mods="offset:%d" % (2048 * (k % 14) + 1024))

vRW = [120, 121, 122, 123]
vRR = [124, 125, 126, 127]
vBF, vXP = 9, 10
def e_lane_a():
    t0, t1 = TMP + 8, TMP + 9
    tr32_lane()
    bf_lane(vBF)
    I("v_min_u32", v(vXP), 6, vTOK)
    I("v_lshlrev_b32", v(vXP), 8, v(vXP))
    I("v_and_b32", v(t0), 1, vQ4)
    I("v_lshl_add_u32", v(vXP), v(t0), 11, v(vXP))
    tile_off(sA, R_SX + 4, 2048, tl=sTE)
    I("v_add_u32", v(vXP), sA, v(vXP))

def cls_check(ld, t, voff, c, name=None, sleep=0, off=0):
    ok, lp = A.newlabel("Lrk"), A.newlabel("Lrl")
    I("s_add_u32", sA, sTAG, c)
    A.wait(vm=ld)
    I("s_mov_b32", sCNT, hx(40000))
    A.label(lp)
    I("v_subrev_u32", v(t), sA, v(t))
    I("v_cmp_le_u32", "vcc", 4, v(t))
    I("s_cbranch_vccz", ok)
    I("s_sub_u32", sCNT, sCNT, 1)
    I("s_cmp_eq_u32", sCNT, 0)
    I("s_cbranch_scc1", ok)
    sv = (A.vm, A.vm_done)
    if sleep:
        I("s_sleep", sleep)
    I("buffer_load_dword", v(t), v(voff), SRD_WS, 0, mods="offen" + (" offset:%d" % off if off else "") + " sc1")
    I("s_waitcnt", "vmcnt(0)")
    A.vm, A.vm_done = sv
    I("s_branch", lp)
    A.label(ok)
    if name:
        stamp(name)

ACC2 = 224
def e_compute(st_prev):
    A.cmt("---- E (A: matrix part)")
    ZB, AR, NR = 64, 176, 12
    vS = [TMP + 4, TMP + 5]
    vG = [20, 21]
    vGP, PT = 22, 23
    vFR = [24, 25, 26, 27]
    vCW = 19
    vRP = 13
    CA = [11, 12]
    ACH = (ACC, ACC2)
    HB = [slot(W3S[0][0]), slot(W3S[0][1]), slot(W3S[1][0]), slot(W3S[1][1])] + [slot(W4SL[c]) for c in range(4)]
    tile_off(sC2, R_X1, TB, tl=sTE)
    for q in range(4):
        I("s_add_u32", "s%d" % (50 + q), sC2, hx(4096 * q))
    A.wait(vm=st_prev)
    moded(granule_store)
    stamp("x1_flag")
    cnt_setup([16, 17, 18])
    pk_ = peek(bAB)
    unpack(RES, HP, 16)
    for i in range(0, 16, 2):
        I("v_pk_add_f32", vr(RES + i, 2), vr(RES + i, 2), vr(ACC + i, 2))
    verify(pk_, bAB, 4)
    S = OPT.get("skew", 5)
    seq = []
    n0 = n1 = 0
    for end in (28, 56, 112):
        for _ in range(S if end < 112 else 1):
            seq.append((0, n0)); n0 += 1
        while n0 < end:
            seq.append((1, n1)); n1 += 1
            seq.append((0, n0)); n0 += 1
        while n1 < end:
            seq.append((1, n1)); n1 += 1
    pos = {op: i for i, op in enumerate(seq)}
    PD = OPT.get("pd", 7)
    rd = {}
    def ard(i):
        b, n = seq[i]
        if n % 14 == 0:
            I("v_add_u32", v(CA[b]), hx(HB[n // 14]), v(T32[b]))
        d = AR + 4 * (i % NR)
        I("ds_read_b64_tr_b16", vr(d, 2), v(CA[b]), mods="offset:%d" % (2048 * (n % 14)))
        rd[i] = I("ds_read_b64_tr_b16", vr(d + 2, 2), v(CA[b]), mods="offset:%d" % (2048 * (n % 14) + 1024))
    for i in range(PD):
        ard(i)
    poll(v(vXP), sleep=0)
    stamp("e1_ready")
    bl = {}
    def zload(n):
        o = (512 * n) & 4095
        bl[n] = I("buffer_load_dwordx4", vr(ZB + 4 * n, 4), v(vBF), SRD_WS, "s%d" % (50 + n // 8),
                  mods="offen" + (" offset:%d" % o if o else "") + " sc1")
    NP = OPT.get("npz", 6)
    for n in range(NP):
        zload(n)
    I("s_lshl_b32", sA, sLW, 12)
    I("s_add_u32", sB, sA, hx(L_STG))
    I("v_add_u32", v(vS[0]), sB, vL16)
    I("s_add_u32", sB, sA, hx(slot(4)))
    I("v_add_u32", v(vS[1]), sB, vL16)
    I("s_mul_i32", sA, sTE, hx(TB))
    I("v_add_u32", v(vG[1]), sA, v(vBF))
    I("v_add_u32", v(vG[0]), hx(R_G[0]), v(vG[1]))
    if R_G[1]:
        I("v_add_u32", v(vG[1]), hx(R_G[1]), v(vG[1]))
    I("s_lshl_b32", sA, sLW, 2)
    I("v_add_u32", v(vCW), sA, v(CNR[0]))
    I("s_lshl_b32", sF, sLW, 10)
    late = []
    def setup2():
        I("s_and_b32", sE, sTG, 1)
        I("s_mul_i32", sE, sE, 28)
        I("s_lshr_b32", sB, sTE, 1)
        tile_off(sG, R_FG, 128, tl=sB)
        I("s_add_u32", sA, sG, sE)
        I("v_min_u32", v(vGP), 6, vLANE)
        I("v_lshl_add_u32", v(vGP), v(vGP), 2, sA)
        I("s_lshl_b32", sD, sJP, 2)
        I("s_add_u32", sD, sD, sG)
        I("s_add_u32", sD, sD, 64)
        I("s_and_b32", sB, sB, 4)
        I("s_and_b32", sA, sLW, 1)
        I("s_lshl_b32", sA, sA, 1)
        I("s_add_u32", sB, sB, sA)
        I("s_lshl_b32", sB, sB, 1)
        I("s_lshl_b32", sA, sJ, 11)
        tile_off(sC, R_G[1], TB, tl=sB, extra=sA)
        I("s_bitcmp1_b32", sTG, 0)
        I("s_cselect_b32", sA, hx(16 * TB), 0)
        I("s_cselect_b32", sB, 0, hx(16 * TB))
        I("s_add_u32", sC2, sC, sB)
        I("s_add_u32", sC, sC, sA)
        I("s_lshl_b32", sE, sJ, 11)
        I("s_add_u32", sE, sE, sA)
        I("s_add_u32", sE, sE, sPAGE)
    def setup3():
        I("v_lshrrev_b32", v(TMP + 6), 5, vLANE)
        I("v_lshlrev_b32", v(TMP + 6), 6, v(TMP + 6))
        I("v_add_u32", v(TMP + 6), hx(L_CS3 + 256), v(TMP + 6))
        I("s_add_u32", sG, sF, hx(slot(4) + 16384))
        I("v_add_u32", v(TMP + 3), sG, vL16)
        I("v_and_b32", v(TMP), 1, vQ4)
        I("v_lshl_or_b32", v(TMP), vQ4, 1, v(TMP))
        I("v_xor_b32", v(TMP), v(TMP), vTOK)
        I("v_lshlrev_b32", v(TMP), 4, v(TMP))
        I("v_lshl_add_u32", v(TMP), vTOK, 8, v(TMP))
        I("s_lshl_b32", sG, sLW, 12)
        I("s_add_u32", sG, sG, hx(L_STG))
        I("v_add_u32", v(vFR[0]), sG, v(TMP))
        I("v_xor_b32", v(vFR[1]), 16, v(vFR[0]))
        I("v_xor_b32", v(vFR[2]), hx(128), v(vFR[0]))
        I("v_xor_b32", v(vFR[3]), hx(144), v(vFR[0]))
        I("v_lshrrev_b32", v(TMP), 5, vLANE)
        I("v_lshlrev_b32", v(TMP), 1, v(TMP))
        I("v_xor_b32", v(TMP), v(TMP), vTOK)
        I("v_lshlrev_b32", v(TMP), 4, v(TMP))
        I("v_and_b32", v(TMP + 1), 31, vLANE)
        I("v_lshl_add_u32", v(TMP), v(TMP + 1), 8, v(TMP))
        I("s_and_b32", sG, sLW, 1)
        I("s_lshl_b32", sG, sG, 13)
        I("s_add_u32", sG, sG, hx(L_STG))
        I("v_add_u32", v(TMP + 2), sG, v(TMP))
        I("s_lshr_b32", sG, sLW, 1)
        I("s_xor_b32", sG, sG, sTG)
        I("s_and_b32", sG, sG, 1)
    nxt, lim, cur = [0], [0], [0]
    pl = {}
    RW = [(0, 0), (64, 1), (64, 2), (0, 1)]
    def pissue(r):
        o = RW[r][0]
        pl[r] = I("buffer_load_dword", v(PT), v(vGP), SRD_WS, 0, mods="offen" + (" offset:%d" % o if o else "") + " sc1")
    def chk(r):
        cls_check(pl[r], PT, vGP, RW[r][1], "e2_ready%d" % r, off=RW[r][0])
        lim[0] += 14
    def gload():
        n = nxt[0]
        nxt[0] += 1
        assert pos[(1, n + 28)] < cur[0] and n < lim[0]
        r, k = divmod(n, 14)
        c = CL[r]
        o = 1024 * (c & 1) + 512 * (k & 1)
        bl[56 + n] = I("buffer_load_dwordx4", vr(ZB + 4 * (n % 28), 4), v(vG[c >> 1]), SRD_WS, GT_[k // 2],
                       mods="offen" + (" offset:%d" % o if o else "") + " sc1")
    ev = {}
    def at(i, fn):
        ev.setdefault(i, []).append(fn)
    wq = []
    wid = {}
    pk = {}
    used = set()
    def check_at(i, which, target, areg=None, then=None, move=1):
        while any(k in used for k in range(i - 3, i + 1)):
            i += move
        used.update(range(i - 3, i + 1))
        at(i - 3, lambda: pk.__setitem__(i, peek(which, areg)))
        def f():
            verify(pk[i], which, target, areg)
            if then:
                then()
        at(i, f)
    def wr(b, q):
        wid[b] = I("ds_write_b128", v(vS[b]), vr(ACH[b] + 4 * q, 4), mods="offset:%d" % (1024 * q))
    for b in range(2):
        i0 = pos[(b, 27)] + 2
        for q in range(4):
            at(i0 + q, lambda b=b, q=q: wr(b, q))
        at(i0 + 3, lambda: arrive(aH, vCW))
        at(i0 + 3, lambda b=b: stamp("e1_h%d" % b))
        at(pos[(b, 28)], lambda b=b: A.wait(lg=wid[b]))
    for h, cn in ((1, aF1), (3, aF3)):
        at(pos[(1, 14 * h + 13)] - PD + 1, lambda cn=cn: arrive(cn))
    at(pos[(0, OPT.get("zk", 10))], lambda: arrive(aH, vCW))
    IE2 = pos[(0, 56)]
    if not OPT.get("d_early", 0):
        at(pos[(0, OPT.get("zd", 18))], lambda: arrive(aZ))
        check_at(pos[(0, 42)] - PD, aXF, 4, move=-1)
    check_at(pos[(0, 20)], bW3, 4)
    def more():
        lim[0] += 14
    def prog(val, st=None):
        I("v_add_u32", v(TMP + 7), val, vTAG)
        A.wait(vm=st)
        def f(m):
            I("s_mov_b64", "exec", 1)
            I("buffer_store_dword", v(TMP + 7), "off", SRD_WS, sD, mods=m)
            I("s_mov_b64", "exec", -1)
        moded(f)
    for q, th in enumerate(rec(setup2) + rec(setup3)):
        at(pos[(0, 31)] + q // 2, th)
        assert pos[(0, 31)] + q // 2 < pos[(0, 50)]
    check_at(pos[(0, 51)], bR, 1, vCW)
    gst = {}
    KC = TMP + 8
    T, CV = 160, 120
    at(pos[(0, 52)], lambda: I("ds_read_b128", vr(KC, 4), v(TMP + 3)))
    for q in range(4):
        at(pos[(0, 53)] + q, lambda q=q: I("ds_write_b128", v(vFR[q]), vr(RES + 4 * q, 4)))
    at(pos[(0, 53)] + 3, lambda: arrive(aFIN))
    cr = {}
    assert pos[(1, 28 + 21)] < pos[(0, 55)] + 2
    for n in range(8):
        at(pos[(0, 55)] + 2 + n // 2, lambda n=n: cr.__setitem__(n, I("ds_read_b128", vr(CV + 4 * n, 4), v(TMP + 6),
                                                                     mods="offset:%d" % (128 * (n // 4) + 16 * (n % 4)))))
    units = [8 * b + 4 * (g >> 1) + (g & 1) for b in range(2) for g in range(4)]
    def init(b):
        l1, l2 = A.newlabel("Lin"), A.newlabel("Lin")
        I("s_cmp_eq_u32", sG, 0)
        I("s_cbranch_scc1", l1)
        for q in range(0, 16, 2):
            I("v_pk_mov_b32", vr(ACH[b] + q, 2), 0, 0) if False else I("v_mov_b64", vr(ACH[b] + q, 2), 0)
        I("s_branch", l2)
        A.label(l1)
        for n in range(4 * b, 4 * b + 4):
            I("v_xor_b32", v(RES + n), hx(16 * units[n]), v(TMP + 2))
            I("ds_read_b128", vr(ACH[b] + 4 * (n % 4), 4), v(RES + n))
        A.lg -= 4
        A.label(l2)
    def mid():
        stamp("e1_pass1")
        NMU, K0, K1, RI = KC, TMP + 12, KC + 2, 14
        I("v_mov_b32", v(K0), v(KC + 1))
        I("v_mov_b32", v(RI), v(KC + 3))
        p = {}
        for b in range(2):
            A.wait(lg=cr[4 * b + 3])
            for q in range(0, 16, 2):
                I("v_pk_fma_f32", vr(ACH[b] + q, 2), vr(CV + 16 * b + q, 2), vr(NMU, 2), vr(ACH[b] + q, 2), mods="op_sel_hi:[1,0,1]")
            if b == 0:
                inj = Inject([lambda: pissue(0), lambda: p.__setitem__(0, peek(bR, vCW))], 40, 20)
            else:
                def late():
                    verify(p[1], aFIN, 8)
                    init(0)
                    for i in range(IE2, IE2 + PD):
                        ard(i)
                ng = OPT.get("g0n", 6) - nxt[0]
                inj = Inject([gload] * ng + [lambda: prog(1, gst[0]), lambda: p.__setitem__(1, peek(aFIN)), late], 46 if ng == 0 else 8, 10 if ng == 0 else 60 // (ng + 2))
            with inj:
                gelu(ACH[b], 16, T, K0, K1, RI, CV + 16 * b, True)
            if b == 0:
                verify(p[0], bR, 2, vCW)
            def f(m, b=b):
                r = None
                for u in range(2):
                    o = 1024 * b + 512 * u
                    r = I("buffer_store_dwordx4", vr(CV + 16 * b + 4 * u, 4), v(vG[1]), SRD_WS, sE,
                          mods="offen" + (" offset:%d" % o if o else "") + (" " + m if m else ""))
                return r
            if b == 1:
                init(1)
            gst[b] = moded(f)
            stamp("a_g%d" % (2 + b))
            if b == 0:
                chk(0)
                for _ in range(OPT.get("b0", 6)):
                    gload()
    at(IE2, mid)
    at(IE2 + 1, lambda: A.wait_lg_all(force=True) if False else I("s_waitcnt", "lgkmcnt(2)"))
    at(IE2 + OPT.get("f3", 14), lambda: prog(2, gst[1]))
    for r, dl in ((1, OPT.get("dl1", 6)), (2, OPT.get("dl2", 2)), (3, OPT.get("dl3", 4))):
        i = pos[(0, 56 + 14 * (r - 1) + dl)]
        at(max(i - OPT.get("pg", 14), IE2 + 1), lambda r=r: pissue(r))
        at(i, lambda r=r: chk(r))
    if OPT.get("u3", 0):
        check_at(pos[(0, 84)] - PD, aL2, 4, move=-1)
        check_at(pos[(0, 98)] - PD, aL3, 4, move=-1)
    else:
        check_at(pos[(0, 84)] - PD, aL3, 4, move=-1)
    at(pos[(0, 56 + 42)], lambda: arrive(aH, vCW))
    SND, RCV, W, o0 = 64, 120, 96, 104
    t0, t1 = TMP + 8, TMP + 9
    rp = {}
    def fin_setup():
        for q in range(16):
            I("v_mov_b32", v(SND + 2 * q + 1), vTAG)
        I("v_lshrrev_b32", v(t0), 1, vTOK)
        I("v_lshrrev_b32", v(t1), 5, vLANE)
        I("v_xor_b32", v(t0), v(t0), v(t1))
        I("v_lshlrev_b32", v(t0), 4, v(t0))
        I("v_and_b32", v(t1), 31, vLANE)
        I("v_lshl_add_u32", v(t0), v(t1), 7, v(t0))
        I("s_lshl_b32", sE, sLW, 12)
        I("s_add_u32", sE, sE, hx(slot(4)))
        I("v_add_u32", v(W), sE, v(t0))
        for n in range(1, 4):
            I("v_xor_b32", v(W + n), hx(32 * n), v(W))
        I("v_lshrrev_b32", v(o0), 3, vLANE)
        I("v_and_b32", v(t1), 7, vLANE)
        I("v_xor_b32", v(t1), v(t1), vQ4)
        I("v_mul_u32_u24", v(o0), hx(896), v(o0))
        I("v_lshl_add_u32", v(o0), v(t1), 4, v(o0))
        I("v_xor_b32", v(t1), 4, v(t1))
        I("v_lshrrev_b32", v(o0 + 1), 3, vLANE)
        I("v_mul_u32_u24", v(o0 + 1), hx(896), v(o0 + 1))
        I("v_lshl_add_u32", v(o0 + 1), v(t1), 4, v(o0 + 1))
        I("s_lshl_b32", sE, sX, 4)
        I("s_add_u32", sE, sE, sTE)
        I("s_mul_i32", sB, sE, hx(16 * 896))
        I("s_add_u32", sB, sB, sJ128)
        for n in range(4):
            I("s_add_u32", "s%d" % (4 + n), sC, hx(TB * n))
            I("s_add_u32", "s%d" % (8 + n), sC2, hx(TB * n))
            I("s_add_u32", "s%d" % (12 + n), sB, hx(8 * 896 * n))
    fs = rec(fin_setup)
    i1 = pos[(1, 56 + 42)] + 1
    for q, th in enumerate(fs):
        at(i1 + q // 3, th)
    assert i1 + len(fs) // 3 < pos[(0, 111)]
    check_at(pos[(0, 111)], bR, 3, vCW, move=-1)
    def finish():
        lown, lend = A.newlabel("Lown"), A.newlabel("Lend")
        sv = (A.vm, A.vm_done, A.lg, A.lg_done)
        I("s_cmp_eq_u32", sG, 0)
        I("s_cbranch_scc1", lown)
        def snd(m):
            for n in range(8):
                for e in range(2):
                    q = 2 * n + e
                    I("v_cvt_pk_bf16_f32", v(SND + 2 * q), v(ACH[q // 8] + 2 * (q % 8)), v(ACH[q // 8] + 2 * (q % 8) + 1))
                I("buffer_store_dwordx4", vr(SND + 4 * n, 4), vL16, SRD_WS, "s%d" % (4 + n // 2),
                  mods="offen" + (" offset:1024" if n & 1 else "") + (" " + m if m else ""))
        moded(snd)
        stamp("x_sent")
        I("s_branch", lend)
        A.label(lown)
        l0, d0 = A.newlabel("Lpoll"), A.newlabel("Lpd")
        I("s_mov_b32", sCNT, hx(40000))
        I("s_mov_b64", "exec", 1)
        A.label(l0)
        I("buffer_load_dword", v(t0), "off", SRD_WS, "s%d" % (8 + OPT.get("wp", 2) // 2), mods="offset:%d sc1" % (4 + 1024 * (OPT.get("wp", 2) & 1)))
        I("s_sub_u32", sCNT, sCNT, 1)
        I("s_waitcnt", "vmcnt(0)")
        I("v_cmp_ne_u32", "vcc", sTAG, v(t0))
        I("s_cbranch_vccz", d0)
        I("s_cmp_lg_u32", sCNT, 0)
        I("s_cbranch_scc1", l0)
        A.label(d0)
        I("s_mov_b64", "exec", -1)
        lp, dn = A.newlabel("Lpoll"), A.newlabel("Lpd")
        A.label(lp)
        for n in range(8):
            I("buffer_load_dwordx4", vr(RCV + 4 * n, 4), vL16, SRD_WS, "s%d" % (8 + n // 2),
              mods="offen" + (" offset:1024" if n & 1 else "") + " sc1")
        I("v_mov_b32", v(t0), vTAG)
        I("v_mov_b32", v(t1), vTAG)
        I("s_sub_u32", sCNT, sCNT, 1)
        for k, n in enumerate(range(8)):
            I("s_waitcnt", "vmcnt(%d)" % (7 - k))
            I("v_min3_u32", v(t0), v(t0), v(RCV + 4 * n + 1), v(RCV + 4 * n + 3))
            I("v_max3_u32", v(t1), v(t1), v(RCV + 4 * n + 1), v(RCV + 4 * n + 3))
            for e in range(2):
                q = 2 * n + e
                I("v_and_b32", v(RCV + 2 * q + 1), hx(0xffff0000), v(RCV + 2 * q))
                I("v_lshlrev_b32", v(RCV + 2 * q), 16, v(RCV + 2 * q))
        I("v_cmp_ne_u32", "vcc", v(t0), v(t1))
        I("s_cbranch_vccz", dn)
        I("s_cmp_gt_i32", sCNT, 0)
        I("s_cbranch_scc1", lp)
        A.label(dn)
        stamp("x_recv")
        for n in range(4):
            ac = ACH[n // 2] + 8 * (n % 2)
            for e in range(0, 8, 2):
                I("v_pk_add_f32", vr(ac + e, 2), vr(ac + e, 2), vr(RCV + 8 * n + e, 2))
            pack(SND + 4 * n, ac, 8)
            I("ds_write_b128", v(W + n), vr(SND + 4 * n, 4))
        rr = [I("ds_read_b128", vr(ACC + 4 * n, 4), v(vS[1]), mods="offset:%d" % (1024 * n)) for n in range(4)]
        for n in range(4):
            A.wait(lg=rr[n])
            I("buffer_store_dwordx4", vr(ACC + 4 * n, 4), v(o0 + (n & 1)), SRD_OUT, "s%d" % (12 + n), mods="offen" + (" sc1" if OPT.get("outsc1") else "") + (" nt" if OPT.get("outnt") else ""))
        A.label(lend)
        A.vm, A.vm_done, A.lg, A.lg_done = sv
    zn = [NP]
    for i, (b, n) in enumerate(seq):
        if OPT.get("fine") and i % 8 == 0:
            fstamp("op%03d" % i)
        for fn in ev.get(i, ()):
            fn()
        key = n if n < 28 else (n if n >= 56 else None)
        A.wait(vm=bl[key] if (b == 0 and key is not None) else None, lg=rd[(i | 1) if (i | 1) in rd else i])
        m32(ACH[b], AR + 4 * (i % NR), ZB + 4 * (n % 28), n in (0, 28))
        cur[0] = i + 1
        done1 = max([m for (bb, m) in seq[:i + 1] if bb == 1], default=-1)
        if zn[0] < 28:
            if b == 0:
                zload(zn[0]); zn[0] += 1
        elif nxt[0] < lim[0] and nxt[0] + 28 <= done1:
            gload()
        elif wq:
            wq.pop(0)()
        if i + PD < len(seq) and not (i < IE2 <= i + PD):
            ard(i + PD)
    assert not wq and nxt[0] == 56
    stamp("e2_mfma")
    finish()
    stamp("end")

def e_helper_setup():
    vS0, vS1, vRC, RT, vFL, vSO, vSO3, vW3 = 28, 29, 30, 31, 32, 33, 34, 35
    I("v_lshrrev_b32", v(vCS), 5, vLANE)
    I("v_lshlrev_b32", v(vCS), 6, v(vCS))
    I("v_add_u32", v(vCS), hx(131072), v(vCS))
    bf_lane(vBF)
    I("s_lshl_b32", sA, sLW, 12)
    I("s_add_u32", sB, sA, hx(L_STG))
    I("v_add_u32", v(vS0), sB, vL16)
    I("s_add_u32", sB, sA, hx(slot(4)))
    I("v_add_u32", v(vS1), sB, vL16)
    I("s_lshl_b32", sA, sJP, 11)
    I("s_cmp_ge_u32", sJP, 7)
    I("s_cselect_b32", sB, hx(15 * TB), 0)
    I("s_add_u32", sA, sA, sB)
    tile_off(sC, R_G[0], TB, tl=sTE, extra=sA)
    I("s_lshr_b32", sB, sTE, 1)
    tile_off(sG, R_FG, 128, tl=sB)
    I("s_lshl_b32", sA, sJP, 2)
    I("s_add_u32", sD, sG, sA)
    vGP, vRP = 37, 38
    I("s_and_b32", sE, sTG, 1)
    I("s_mul_i32", sE, sE, 28)
    I("s_add_u32", sA, sG, sE)
    I("v_min_u32", v(TMP), 6, vLANE)
    I("v_lshl_add_u32", v(vGP), v(TMP), 2, sA)
    I("s_and_b32", sB, sB, 4)
    tile_off(sA, R_FG + 64, 128, tl=sB, extra=sE)
    I("v_min_u32", v(vRP), 6, vTOK)
    I("v_lshl_add_u32", v(vRP), v(vRP), 2, sA)
    I("v_lshl_add_u32", v(vRP), vQ4, 7, v(vRP))
    I("v_min_u32", v(TMP), 13, vTOK)
    I("s_add_u32", sA, sG, 64)
    I("v_lshl_add_u32", v(vRC), v(TMP), 2, sA)
    I("v_lshrrev_b32", v(TMP), 5, vLANE)
    I("v_mul_u32_u24", v(TMP), 3, v(TMP))
    I("s_sub_u32", sA, sTE, 1)
    I("v_add_u32", v(TMP), sA, v(TMP))
    I("v_max_i32", v(TMP), 0, v(TMP))
    I("v_min_i32", v(TMP), 15, v(TMP))
    I("v_min_u32", v(TMP + 1), 6, vTOK)
    I("v_lshlrev_b32", v(TMP + 1), 8, v(TMP + 1))
    I("v_lshl_add_u32", v(TMP), v(TMP), 11, v(TMP + 1))
    I("s_add_u32", sA, sPAGE, hx(R_SX + 4))
    I("v_add_u32", v(TMP), sA, v(TMP))
    I("v_cmp_ne_u32", "vcc", 0, vQ4)
    I("v_cndmask_b32", v(vRC), v(vRC), v(TMP), "vcc")
    I("s_lshl_b32", sF, sLW, 10)
    tile_off(sSP, R_SX, 2048, tl=sTE)
    I("v_and_b32", v(vSO3), 1, vQ4)
    I("v_lshlrev_b32", v(vSO3), 11, v(vSO3))
    I("v_lshl_add_u32", v(vSO3), vTOK, 4, v(vSO3))
    I("v_lshrrev_b32", v(TMP), 5, vLANE)
    I("v_lshl_add_u32", v(vSO), v(TMP), 8, v(vSO3))
    I("v_cvt_f32_u32", v(vW3), v(TMP))
    I("v_sub_f32", v(vW3), 1.0, v(vW3))

def e_helper():
    A.cmt("---- E (B: activation)")
    X, CS, GT = 64, 96, 48
    NMU, K0, K1, RI = 20, 21, 22, 23
    vS0, vS1, vRC, RT, vFL, vSO, vSO3, vW3 = 28, 29, 30, 31, 32, 33, 34, 35
    I("v_mov_b32", v(40), vD3584)
    I("s_add_u32", "s43", sE, hx(224 * 3584 + 128))
    e_helper_setup()
    cnt_setup([16, 17, 18])
    spin(bAB, 4, 1)
    for n in range(8):
        I("ds_read_b128", vr(CS + 4 * n, 4), v(vCS), mods="offset:%d" % (L_CS3 - 131072 + 128 * (n // 4) + 16 * (n % 4)))
    vCW = 19
    I("s_lshl_b32", sA, sLW, 2)
    I("v_add_u32", v(vCW), sA, v(CNR[0]))
    spin(aDP, 4, 1)
    A.wait_vm_all()
    arrive(bW3)
    stamp("b_r5")
    spin(aH, 1, 2, vCW)
    stamp("b_r6")
    lp, dn = A.newlabel("Lpoll"), A.newlabel("Lpd")
    G = X
    I("s_mov_b32", sCNT, hx(40000))
    A.label(lp)
    for q in range(3):
        I("buffer_load_dwordx4", vr(G + 4 * q, 4), v(vSO), SRD_WS, sSP, mods="offen offset:%d sc1" % (512 * q))
    I("buffer_load_dwordx4", vr(G + 12, 4), v(vSO3), SRD_WS, sSP, mods="offen offset:1536 sc1")
    I("s_sub_u32", sCNT, sCNT, 1)
    A.wait_vm_all(force=True)
    I("v_mov_b32", v(TMP), vTAG)
    I("v_mov_b32", v(TMP + 1), vTAG)
    for q in range(4):
        I("v_min3_u32", v(TMP), v(TMP), v(G + 4 * q + 1), v(G + 4 * q + 3))
        I("v_max3_u32", v(TMP + 1), v(TMP + 1), v(G + 4 * q + 1), v(G + 4 * q + 3))
    I("v_cmp_ne_u32", "vcc", v(TMP), v(TMP + 1))
    I("s_cbranch_vccz", dn)
    I("s_cmp_lg_u32", sCNT, 0)
    I("s_cbranch_scc1", lp)
    A.label(dn)
    for o in (0, 2):
        I("v_add_f32", v(G + o), v(G + o), v(G + 4 + o))
        I("v_add_f32", v(G + o), v(G + o), v(G + 8 + o))
        I("v_fmac_f32", v(G + o), v(G + 12 + o), v(vW3))
        I("v_mov_b32", v(G + o + 1), v(G + o))
        I("v_permlane32_swap_b32", v(G + o), v(G + o + 1))
        I("v_add_f32", v(G + o), v(G + o), v(G + o + 1))
    mean_var(G, G + 2, NMU, TMP + 7)
    rstd(TMP + 8, TMP + 7)
    I("v_sub_f32", v(NMU), 0, v(NMU))
    gelu_prep(TMP + 8, K0, K1, RI)
    stamp("b_ready")
    if not OPT.get("d_early", 0):
        spin(aZ, OPT.get("trg", 2), 1)
        for k in range(7):
            I("s_add_u32", "m0", sF, hx(slot(W3S[1][1]) + 4096 * k))
            I("s_add_u32", sH_, "s43", hx(32 * 3584 * k))
            dd = I("buffer_load_dwordx4", v(40), SRD_W3, sH_, mods="offen lds")
        A.wait(vm=dd)
        arrive(aXF)
    def fetch(c):
        spin(aH, c + 2, 1, vCW)
        stamp("b_h%d" % c)
        for q in range(4):
            I("ds_read_b128", vr(X + 16 * (c & 1) + 4 * q, 4), v((vS0, vS1)[c & 1]), mods="offset:%d" % (1024 * q))
        A.wait_lg_all()
    def act(c):
        b = c & 1
        x = X + 16 * b
        for i in range(16):
            I("v_fmac_f32", v(x + i), v(CS + 16 * c + i), v(NMU))
        gelu(x, 16, GT, K0, K1, RI, TMP, False)
    def put(c):
        def f(m):
            r = None
            for u in range(2):
                o = 1024 * (c & 1) + 512 * u
                r = I("buffer_store_dwordx4", vr(TMP + 4 * u, 4), v(vBF), SRD_WS, sC,
                      mods="offen" + (" offset:%d" % o if o else "") + (" " + m if m else ""))
            return r
        r = f("sc1") if (c == 1 and OPT.get("c1s", 0)) else moded(f)
        stamp("b_g%d" % c)
        return r
    def flag(c, st, off=0):
        I("v_add_u32", v(vFL), c, vTAG)
        A.wait(vm=st)
        def f(m):
            I("s_mov_b64", "exec", 1)
            I("buffer_store_dword", v(vFL), "off", SRD_WS, sD, mods=("offset:%d " % off if off else "") + m)
            I("s_mov_b64", "exec", -1)
        moded(f)
    FD = OPT.get("fd", 50)
    fetch(0)
    I("s_add_u32", sA, sF, hx(slot(4) + 16384))
    I("v_add_u32", v(TMP), sA, vL16)
    I("ds_write_b128", v(TMP), vr(NMU, 4))
    arrive(bR, vCW)
    vGP, vRP = 37, 38
    pl = {}
    def pissue(k, voff, off=0):
        pl[k] = I("buffer_load_dword", v(RT), v(voff), SRD_WS, 0, mods="offen" + (" offset:%d" % off if off else "") + " sc1")
    def level(k, voff, val, off=0, name=None):
        cls_check(pl[k], RT, voff, val, name, sleep=1, off=off)
    flag(0, None, 64)
    o4 = [1, 2, 3] if OPT.get("pk0", 0) else [0, 1, 2, 3]
    with Inject(w4_park(o4[0]) + w4_park(o4[1]) + [lambda: pissue(0, vRC)], 2, OPT.get("iv", 6)):
        act(0)
    st0 = put(0)
    for th in w4_park(o4[2]):
        th()
    level(0, vRC, 0)
    arrive(bR, vCW)
    flag(0, st0)
    for c in o4[3:]:
        for th in w4_park(c):
            th()
    stamp("b_f0")
    spin(aF1, 4, 1)
    w4_unpark(0)
    w4_unpark(1)
    arrive(aFIN)
    stamp("b_l3")
    spin(aF3, 4, 1)
    w4_unpark(2)
    if OPT.get("u3", 0):
        arrive(aL2)
        fetch(1)
        act(1)
        st1 = put(1)
        w4_unpark(3)
        arrive(aL3)
    else:
        w4_unpark(3)
        arrive(aL3)
        fetch(1)
        act(1)
        st1 = put(1)
    flag(1, st1)
    stamp("b_f1")
    spin(aH, 4, 1, vCW)
    flag(3, None, 64)
    pissue(5, vRP)
    level(5, vRP, 3)
    arrive(bR, vCW)
    if OPT.get("cl0", 0):
        for u in range(2):
            I("buffer_store_dwordx4", vr(TMP + 4 * u, 4), v(vBF), SRD_WS, sC, mods="offen" + (" offset:512" if u else "") + " sc1")
    A.wait_lg_all()

def dump_stamps():
    if not OPT["stamp"]:
        return
    A.wait_vm_all(force=True)
    stamp("drained")
    I("s_memrealtime", sST)
    A.wait_lg_all(force=True)
    I("v_writelane_b32", vSTAMP, "s98", 1)
    I("s_lshl_b32", sA, "s2", 3)
    I("s_add_u32", sA, sA, sW)
    I("s_lshl_b32", sA, sA, 8)
    I("s_add_u32", sA, sA, hx(OFF_STAMP))
    I("v_lshlrev_b32", v(TMP), 2, vLANE)
    I("buffer_store_dword", vSTAMP, v(TMP), SRD_WS, sA, mods="offen")

def epoch_update():
    l = A.newlabel("Lep")
    I("s_cmp_lg_u32", "s2", hx(255))
    I("s_cbranch_scc1", l)
    I("s_cmp_lg_u32", sW, 0)
    I("s_cbranch_scc1", l)
    lp, dn = A.newlabel("Lpoll"), A.newlabel("Lpd")
    I("v_lshrrev_b32", v(TMP), 3, vLANE)
    I("v_lshlrev_b32", v(TMP), PSH, v(TMP))
    I("v_and_b32", v(TMP + 1), 7, vLANE)
    I("v_lshl_add_u32", v(TMP), v(TMP + 1), 7, v(TMP))
    I("s_mov_b32", sA, hx(R_XCC))
    I("s_mov_b32", sCNT, hx(40000))
    A.label(lp)
    for i in range(4):
        I("buffer_load_dword", v(TMP + 4 + i), v(TMP), SRD_WS, sA, mods="offen offset:%d sc1" % (1024 * i))
    A.wait_vm_all(force=True)
    for i in range(4):
        I("v_subrev_u32", v(TMP + 4 + i), sTAG, v(TMP + 4 + i))
    I("v_max_u32", v(TMP + 4), v(TMP + 4), v(TMP + 5))
    I("v_max3_u32", v(TMP + 4), v(TMP + 4), v(TMP + 6), v(TMP + 7))
    I("v_cmp_le_u32", "vcc", 16, v(TMP + 4))
    I("s_cbranch_vccz", dn)
    I("s_sleep", 2)
    I("s_sub_u32", sCNT, sCNT, 1)
    I("s_cmp_lg_u32", sCNT, 0)
    I("s_cbranch_scc1", lp)
    A.label(dn)
    I("s_mov_b32", sA, hx(OFF_EPOCH))
    flag_store(sA)
    A.label(l)

def touch(srd, base, nbytes, mods=""):
    n = -(-nbytes // (32 * 8192))
    if isinstance(base, int):
        I("s_mov_b32", sA, hx(base))
    else:
        I("s_mov_b32", sA, base)
    lim = None
    for i in range(n):
        rem = nbytes - i * 32 * 8192
        if rem < 32 * 8192:
            I("v_cmp_gt_u32", "vcc", hx(rem), v(TMP + 8))
            I("v_cndmask_b32", v(TMP + 10), v(TMP + 9), v(TMP + 8), "vcc")
            va = v(TMP + 10)
        else:
            va = v(TMP + 8)
        I("buffer_load_dword", v(TMP + 11), va, srd, sA, mods="offen" + (" " + mods if mods else ""))
        if i + 1 < n:
            I("s_add_u32", sA, sA, hx(32 * 8192))

def touch_setup():
    I("s_sub_u32", sA, sLI, 28)
    I("s_lshl_b32", sB, sW, 2)
    I("s_add_u32", sA, sA, sB)
    I("s_lshl_b32", sA, sA, 13)
    I("v_lshl_add_u32", v(TMP + 8), vLANE, 7, sA)
    I("v_mov_b32", v(TMP + 9), hx(OOB))

def spare_pre():
    A.cmt("---- spare CU: prefetch")
    I("v_mov_b32", v(TMP + 4), 0)
    I("v_and_b32", vTOK, 15, vLANE)
    touch_setup()
    I("s_getpc_b64", "s[64:65]")
    A.label("L_pc")
    I("s_sub_u32", "s64", "s64", "L_pc-%s_kernel" % NAME)
    I("s_subb_u32", "s65", "s65", 0)
    I("s_and_b32", "s65", "s65", hx(0xffff))
    I("s_mov_b32", "s66", "L_codeend-%s_kernel" % NAME)
    I("s_mov_b32", "s67", hx(0x20000))
    I("s_sub_u32", sA, sLI, 28)
    I("s_lshl_b32", sB, sW, 2)
    I("s_add_u32", sA, sA, sB)
    I("s_lshl_b32", sD, sA, 11)
    I("v_lshlrev_b32", v(TMP + 12), 7, vTOK)
    touch1(SRD_BG, v(TMP + 12), sD)
    A.wait_lg_all(force=True)
    epoch_load()
    srds([60, 8, 4, 12, 16, 20, 24, 28, 32])
    I("v_lshlrev_b32", v(TMP + 11), 7, vLANE)
    def mall(items, off):
        for srd, n in items:
            l = A.newlabel("Lml")
            I("s_sub_u32", sA, sE, hx(off))
            I("s_and_b32", sA, sA, hx(255))
            I("s_cmp_ge_u32", sA, hx(n))
            I("s_cbranch_scc1", l)
            I("s_lshl_b32", sA, sA, 13)
            touch1(srd, v(TMP + 11), sA)
            A.label(l)
            off += n
        return off
    I("s_sub_u32", sA, 31, sLI)
    I("s_lshl_b32", sA, sA, 3)
    I("s_add_u32", sA, sA, sX)
    I("s_lshl_b32", sB, sW, 5)
    I("s_add_u32", sE, sA, sB)
    off = mall(([(SRD_WQKV, 147)] if OPT.get("mq", 1) else []) + [(SRD_WO, 49), (SRD_W1, 49)], 0)
    I("s_lshl_b32", sG, sD, 2)
    I("s_add_u32", sG, sG, sPAGE)
    I("s_mov_b32", sA, sG)
    I("s_cmp_ge_u32", sD, hx(28 << 11))
    I("s_cmov_b32", sA, hx(OOB))
    I("s_add_u32", sB, sPAGE, hx(R_LOC))
    I("s_cmp_eq_u32", sD, hx(31 << 11))
    I("s_cmov_b32", sA, sB)
    touch1(SRD_WS, v(TMP + 11), sA)
    tag_publish()
    late_consts()
    dma_lane_consts()
    barrier()
    tag_read_finish(tag_read_issue())
    off = mall([(SRD_W2, 49)], off)
    if not OPT.get("r2late", 0):
        r2_touch()
    if not OPT["alias"]:
        I("s_add_u32", sB, sPAGE, hx(1 << 21))
        touch(SRD_WS, sB, 112 * TB)
    if OPT["mall"] > 1:
        off = mall([(SRD_W3, 196)], off)
    mode_issue()
    A.wait_vm_all(force=True)
    stamp("sp_mall")
    att_ids()

def r2_touch():
    I("s_sub_u32", sA, sLI, 28)
    I("s_lshl_b32", sB, sW, 2)
    I("s_add_u32", sA, sA, sB)
    I("s_lshl_b32", sD, sA, 11)
    I("s_lshl_b32", sG, sD, 2)
    I("s_add_u32", sG, sG, sPAGE)
    I("v_lshlrev_b32", v(TMP + 11), 7, vLANE)
    I("s_add_u32", sA, sG, hx(R_2))
    I("s_add_u32", sB, sG, hx(R_SH - 28 * 8192))
    I("s_cmp_ge_u32", sD, hx(28 << 11))
    I("s_cmov_b32", sA, sB)
    touch1(SRD_WS, v(TMP + 11), sA)
    I("s_add_u32", sA, sB, hx(32768))
    I("s_cmp_lt_u32", sD, hx(28 << 11))
    I("s_cmov_b32", sA, hx(OOB))
    touch1(SRD_WS, v(TMP + 11), sA)

def spare_att(n0, n1):
    I("s_sub_u32", sE, sLI, 28)
    I("s_lshl_b32", sE, sE, 3)
    I("s_add_u32", sE, sE, sX)
    I("s_lshl_b32", sE, sE, 7)
    l = A.newlabel("Lsa")
    I("s_cmp_ge_u32", sE, hx(28 * 128))
    I("s_cbranch_scc1", l)
    I("s_mov_b32", sK, n0)
    dma_seq(SRD_W3, 3584, slot(3), (sE, 0), n1 - n0, start="cont")
    A.label(l)

def spare_colsum():
    l = A.newlabel("Lsc")
    I("s_cmp_ge_u32", sE, hx(28 * 128))
    I("s_cbranch_scc1", l)
    cl_lane()
    t0 = TMP
    I("v_add_u32", v(t0), hx(slot(3)), v(vCL))
    for s_ in range(14):
        I("ds_read_b64_tr_b16", vr(AREG + 4 * s_, 2), v(t0), mods="offset:%d" % (4096 * s_))
        I("ds_read_b64_tr_b16", vr(AREG + 4 * s_ + 2, 2), v(t0), mods="offset:%d" % (4096 * s_ + 1024))
    I("v_lshlrev_b32", v(TMP + 1), 5, vQ4)
    I("v_lshl_add_u32", v(TMP + 1), vTOK, 4, v(TMP + 1))
    I("s_lshl_b32", sA, sE, 2)
    I("s_lshl_b32", sB, sLW, 7)
    I("s_add_u32", sA, sA, sB)
    I("s_add_u32", sA, sA, hx(OFF_CSG))
    I("v_mov_b32", v(TMP + 5), vTAG)
    I("v_mov_b32", v(TMP + 7), vTAG)
    I("v_cmp_eq_u32", "vcc", 0, vTOK)
    A.wait_lg_all()
    for s_ in range(14):
        m16(ACC, AREG + 4 * s_, ONES, s_ == 0)
    I("v_cndmask_b32", v(TMP + 4), v(ACC + 2), v(ACC), "vcc")
    I("v_cndmask_b32", v(TMP + 6), v(ACC + 3), v(ACC + 1), "vcc")
    I("s_mov_b32", "exec_lo", hx(0x30003))
    I("s_mov_b32", "exec_hi", hx(0x30003))
    I("buffer_store_dwordx4", vr(TMP + 4, 4), v(TMP + 1), SRD_WS, sA, mods="offen sc1")
    I("s_mov_b64", "exec", -1)
    A.label(l)

def cl_lane():
    t0, t1, t2 = TMP, TMP + 1, TMP + 2
    I("v_bfe_u32", v(t0), vLANE, 2, 2)
    I("v_and_b32", v(t1), 1, vQ4)
    I("v_lshl_add_u32", v(t1), v(t1), 2, v(t0))
    I("v_lshrrev_b32", v(t2), 1, vQ4)
    I("v_lshl_add_u32", v(t1), v(t2), 4, v(t1))
    I("v_and_b32", v(t0), 2, v(t0))
    I("v_lshlrev_b32", v(t0), 5, v(t0))
    I("s_lshl_b32", sA, sLW, 5)
    I("v_xor_b32", v(t0), sA, v(t0))
    I("v_lshl_add_u32", v(t0), v(t1), 7, v(t0))
    I("v_and_b32", v(t1), 3, vLANE)
    I("v_lshl_add_u32", v(vCL), v(t1), 3, v(t0))

def spare_post():
    if OPT.get("r2late", 0):
        r2_touch()
    if OPT["warm"]:
        touch_setup()
        I("v_lshlrev_b32", v(TMP + 10), 1, v(TMP + 8))
        I("v_cmp_gt_u32", "vcc", hx(17 * 16384), v(TMP + 10))
        I("v_cndmask_b32", v(TMP + 12), v(TMP + 9), v(TMP + 10), "vcc")
        def w4mall():
            I("s_sub_u32", sA, sLI, 28)
            I("s_lshl_b32", sA, sA, 3)
            I("s_add_u32", sA, sA, sX)
            I("s_lshl_b32", sB, sW, 5)
            I("s_add_u32", sA, sA, sB)
            I("s_lshl_b32", sA, sA, 13)
            I("v_lshlrev_b32", v(TMP + 13), 7, vLANE)
            touch1(SRD_W4, v(TMP + 13), sA)
        for qn, (sg, hi) in enumerate(((0, 0), (0, 1), (1, 0), (1, 1))[:OPT.get("nq", 4)]):
            if OPT.get("rel", 6) >> qn & 1:
                l = A.newlabel("Lrl")
                I("s_cmp_lg_u32", sLI, 31)
                I("s_cbranch_scc1", l)
                I("s_and_b32", sA, sW, 1)
                I("s_lshl_b32", sB, sA, 13)
                I("s_add_u32", sB, sB, hx(OFF_CSG))
                I("s_add_u32", sA, sA, sX)
                I("s_min_u32", sA, sA, 7)
                I("s_lshl_b32", sA, sA, PSH)
                I("s_add_u32", sA, sA, hx(R_XCC - 4096))
                I("s_bitcmp1_b32", sW, 1)
                I("s_cselect_b32", sA, sA, sB)
                I("s_cmp_lt_u32", sW, 4)
                I("s_cmov_b32", sA, hx(OOB))
                I("v_lshlrev_b32", v(TMP + 13), 7, vLANE)
                touch1(SRD_WS, v(TMP + 13), sA, "sc1")
                A.label(l)
            if qn == OPT.get("w4m", 0):
                w4mall()
            I("s_mov_b32", sA, hx(128 * sg + hi * 224 * 3584))
            touch1(SRD_W3, v(TMP + 10), sA)
            I("s_add_u32", sA, sA, hx(32 * 16384))
            touch1(SRD_W3, v(TMP + 12), sA)
            barrier()
        if OPT.get("w4m", 0) == OPT.get("nq", 4):
            w4mall()
            I("s_waitcnt", "vmcnt(0)")
            barrier()
        stamp("sp_w3")
        I("s_sub_u32", sB, sLI, 28)
        I("s_lshl_b32", sB, sB, 3)
        I("s_add_u32", sB, sB, sW)
        I("v_lshlrev_b32", v(TMP + 10), 7, vLANE)
        def kvr():
            I("s_add_u32", sA, sPAGE, hx(R_K))
            touch1(SRD_WS, v(TMP + 8), sA)
            I("s_add_u32", sA, sA, hx(32 * TB - 32 * 8192))
            touch1(SRD_WS, v(TMP + 8), sA)
        for sg in range(2):
            if OPT.get("kvr", 0) >> sg & 1:
                kvr()
            for i in range(4):
                I("s_add_u32", sC, sB, 32 * i)
                I("s_mul_i32", sD, sC, hx(147))
                I("s_lshr_b32", sD, sD, 10)
                I("s_mul_i32", sA, sD, hx(128 * 896 - 7 * 8192))
                I("s_lshl_b32", sC, sC, 13)
                I("s_add_u32", sA, sA, sC)
                if sg:
                    I("s_add_u32", sA, sA, hx(64 * 896))
                touch1(SRD_W4, v(TMP + 10), sA)
                if i & 1:
                    barrier()
        if OPT.get("kvr", 0) & 4:
            kvr()
        A.wait_vm_all(force=True)
        stamp("sp_w4")

def reset():
    A.vm = A.vm_done = A.lg = A.lg_done = 0

prologue()
I("s_cmp_ge_u32", sLI, 28)
I("s_cbranch_scc1", "L_spare")
I("s_cmp_ge_u32", sW, 4)
I("s_cbranch_scc1", "L_aload")
phase_a_compute()
A.label("L_att")
reset()
att_a()
I("s_cmp_ge_u32", sLI, 28)
I("s_cbranch_scc1", "L_spare2a")
st = c_compute()
e_compute(st)
dump_stamps()
I("s_endpgm")
for f_ in TAILS:
    f_()
A.label("L_spare")
reset()
spare_pre()
I("s_cmp_ge_u32", sW, 4)
I("s_cbranch_scc1", "L_sp4")
att_consts()
I("s_branch", "L_att")
A.label("L_sp4")
mode_check()
att_consts_b()
kv_poll_off(TMP + 4, 0)
I("s_branch", "L_attpre")
A.label("L_aload")
ROLE[0] = "B"
reset()
phase_a_loader()
A.label("L_attpre")
att_loader_pre()
att_b()
A.label("L_cload")
c_loader()
e_helper()
dump_stamps()
I("s_endpgm")
A.label("L_spare2a")
ROLE[0] = "A"
reset()
o_flag()
epoch_update()
I("s_waitcnt", "vmcnt(0)")
barrier()
A.label("L_spare2")
spare_post()
dump_stamps()
A.label("L_end")
I("s_endpgm")
A.label("L_codeend")

body = A.finalize()
hdr = open("cdna_kernels/%s.s.ref" % NAME).read().split("; Override launch")[0]
out = hdr + "; @launch grid=(256,1,1) block=(512,1,1) lds=%d\n" % LDS_SIZE
out += """.amdgcn_target "amdgcn-amd-amdhsa--gfx950"
.text
.globl %s_kernel
.p2align 8
.type %s_kernel,@function
%s_kernel:
""" % (NAME, NAME, NAME)
out += body
out += """.section .rodata,"a"
.p2align 6
.amdhsa_kernel %s_kernel
  .amdhsa_next_free_vgpr 256
  .amdhsa_next_free_sgpr 102
  .amdhsa_accum_offset 256
  .amdhsa_group_segment_fixed_size 0
  .amdhsa_kernarg_size 88
  .amdhsa_user_sgpr_count 2
  .amdhsa_user_sgpr_kernarg_segment_ptr 1
  .amdhsa_system_sgpr_workgroup_id_x 1
.end_amdhsa_kernel
""" % NAME
open(sys.argv[1], "w").write(out)
json.dump(dict(stamps=stamp_names, stamps_b=stamp_names_b, PSH=PSH, v5=1, OFF=dict(Q=R_Q, K=R_K, V=R_V, O=R_O, H=R_H, HH=R_HH, X1=R_X1, G=R_G[0], G1=R_G[1],
               STAMP=OFF_STAMP, WS=WS_SIZE)), open(sys.argv[1] + ".json", "w"))
```

```python
import sys, struct, json
from asmlib import Asm

NAME = "sequential_preLN__sliding_block__mixer_s_mlp__prompt"
OPT = dict(stamp=0, alias=1, local=1, warm=1, clean=0, npre=8, fk=9, wolo=3, kvt=0, mall=1, mq=2, lag=4, w4m=1, u3=1, wp=1, f3=7, dl2=4, dl1=7, d_early=1, sb=0, own=1, uf=0, us=0, f2=6, f0=9, k0=49, ld=88, ah=16, u0=1, u2=1, k1=60, pg1=6, k2=72, k3=88, na=4)
KEEP = []
for a in sys.argv[2:]:
    k, v_ = a.split("=")
    if k == "keep":
        KEEP = v_.split(",")
        continue
    OPT[k] = int(v_)

def f2u(x): return struct.unpack("<I", struct.pack("<f", x))[0]
def hx(x): return "0x%x" % (x & 0xffffffff)
def fl(x): return hx(f2u(x))

TB = 14336
PSH = 21 if OPT["alias"] else 22
R_Q, R_2, R_K, R_V = 0, 16 * TB, 32 * TB, 48 * TB
R_HALO = 64 * TB
R_LOC = R_HALO + 2 * TB
R_FO = R_LOC
R_FHH = R_FO + 2048
R_FQ = R_FHH + 2048
R_FG = R_FQ + 2048
R_SH = R_FG + 2048
R_SX = R_SH + 32768
R_FQKV = R_SX + 32768
R_FHALO = R_FQKV + 16384
R_XCC = R_FHALO + 2048
R_G0 = R_XCC + 4096
R_END = R_G0 + 32 * TB
assert R_END <= (1 << 21)
if OPT["alias"]:
    R_O, R_HH, R_H, R_X1 = R_Q, R_Q, R_2, R_2
    R_XA = R_Q
else:
    R_H = R_2
    R_O = 1 << 21
    R_X1 = R_O + 16 * TB
    R_HH = R_X1 + 16 * TB
    R_XA = R_HH + 16 * TB
R_G = (R_XA, R_G0, R_XA + 16 * TB, R_G0 + 16 * TB)
OFF_EPOCH = 8 << PSH
OFF_CSG = OFF_EPOCH + 4096
OFF_STAMP = OFF_CSG + 16384
WS_SIZE = OFF_STAMP + 256 * 8 * 256
OOB = 0x40000000

SLOT = 28672
def slot(i): return SLOT * i
L_XIMG = 3 * SLOT
L_QIMG = 5 * SLOT
L_STG = L_QIMG
L_CS1 = L_QIMG + 16384
L_CS3 = L_CS1 + 256
L_MODE = L_CS3 + 1024
L_TAG = L_MODE + 4
L_CNT = L_MODE + 16
L_CSA = L_CNT + 256
aO, aOF, aC1P, aC1Q, aC2P, aC2Q, aHF, aDP, aXF, bWO, bW1, bCS1, bW2, bAB, bW3 = range(4, 19)
aZ, aF0, aF1, aF2, aF3, aL01, aL2, aL3, aFIN = range(19, 28)
bQ, aV, bM = 28, 29, 30
aH, bR = 32, 36
L_CST = L_CSA
L_STA = L_CSA + 768
assert L_STA + 1024 <= 163840
LDS_SIZE = 163840

SRD_X, SRD_WQKV, SRD_WO, SRD_W1, SRD_W2, SRD_W3, SRD_W4, SRD_OUT = ["s[%d:%d]" % (4 * i, 4 * i + 3) for i in range(1, 9)]
SRD_WS, SRD_BG = "s[60:63]", "s[64:67]"
sX, sLI, sTG, sJ, sW, sLW, sPAGE, sTAG, sTL = ["s%d" % i for i in range(68, 77)]
sMODE, sJ128, sK, sROT, sXCC = "s77", "s78", "s79", "s80", "s81"
sODD = "s[82:83]"
sA, sB, sC, sD, sE, sF, sG, sH_ = ["s%d" % i for i in range(84, 92)]
sHEAD, sTQ0, sC0, sJP, sT1 = "s92", "s93", "s94", "s95", "s96"
sCNT = "s97"
sST = "s[98:99]"
sD2, sC2 = "s100", "s101"

vLANE, vTOK, vQ4, vL16 = "v0", "v1", "v2", "v3"
vD896, vD2688, vD3584, vD4 = "v4", "v5", "v6", "v44"
TRL = [[7, 8], [9, 10]]
TRC = [[11, 12], [13, 14]]
vTAG = "v15"
ONES = 16
HP = 20
HHP = 80
X1P = 36
vMU, vRH, vSTAMP = 44, 45, "v47"
vSPO, vSPW = 5, 46
ACC = 48
BREG = 64
AREG = 128
TMP = 240

def v(i): return "v%d" % i
def vr(i, n): return "v[%d:%d]" % (i, i + n - 1)

A = Asm()
I = A.I
stamp_names = []
stamp_names_b = ["start", "drained"] + ["sp_mall", "sp_w3", "sp_w4"]
stamp_names += stamp_names_b
ROLE = ["A"]

def stamp(name):
    if not OPT["stamp"]:
        return
    if OPT["stamp"] == 2 and name not in ("start", "drained") and name not in KEEP:
        return
    lst = stamp_names_b if ROLE[0] == "B" else stamp_names
    if name not in lst:
        lst.append(name)
    idx = lst.index(name) + 2
    assert idx < 64
    I("s_memrealtime" if OPT.get("rt") else "s_memtime", sST)
    A.wait_lg_all(force=True)
    I("v_writelane_b32", vSTAMP, "s98", idx)

FS = []
def fstamp(name):
    k = len(FS)
    FS.append(name)
    I("s_getreg_b32", "s98", "hwreg(HW_REG_SHADER_CYCLES)") if False else None
    KEEP.append(name)
    stamp(name)

def barrier():
    I("s_barrier")

def sync_counts():
    A.vm_done = A.vm
    A.lg_done = A.lg

def poll(vOff, sleep=1):
    sleep = max(sleep, OPT.get("psl", 0))
    lp, dn = A.newlabel("Lpoll"), A.newlabel("Lpd")
    t = v(TMP + 15)
    I("s_mov_b32", sCNT, hx(40000))
    A.label(lp)
    I("buffer_load_dword", t, vOff, SRD_WS, 0, mods="offen sc1")
    A.wait_vm_all(force=True)
    I("v_cmp_ne_u32", "vcc", sTAG, t)
    I("s_cbranch_vccz", dn)
    if sleep:
        I("s_sleep", sleep)
    I("s_sub_u32", sCNT, sCNT, 1)
    I("s_cmp_lg_u32", sCNT, 0)
    I("s_cbranch_scc1", lp)
    A.label(dn)

def poll_a(vOff, t):
    I("buffer_load_dword", v(t), vOff, SRD_WS, 0, mods="offen sc1")

def poll_b(vOff, t):
    lp, dn = A.newlabel("Lpoll"), A.newlabel("Lpd")
    I("s_mov_b32", sCNT, hx(40000))
    A.label(lp)
    A.wait_vm_all(force=True)
    I("v_cmp_ne_u32", "vcc", sTAG, v(t))
    I("s_cbranch_vccz", dn)
    I("s_sub_u32", sCNT, sCNT, 1)
    I("s_cmp_eq_u32", sCNT, 0)
    I("s_cbranch_scc1", dn)
    poll_a(vOff, t)
    A.vm -= 1
    I("s_branch", lp)
    A.label(dn)

def moded(fn):
    if not OPT["local"]:
        return fn("sc1")
    l1, l2 = A.newlabel("Lsl"), A.newlabel("Lse")
    I("s_cmp_eq_u32", sMODE, 1)
    I("s_cbranch_scc0", l1)
    vm0 = A.vm
    fn("")
    I("s_branch", l2)
    A.label(l1)
    A.vm = vm0
    r = fn("sc1")
    A.label(l2)
    return r

def flag_store(soff, mods="sc1"):
    I("s_mov_b64", "exec", 1)
    r = I("buffer_store_dword", vTAG, "off", SRD_WS, soff, mods=mods)
    I("s_mov_b64", "exec", -1)
    return r

def frag_store(preg, soff, off=0, mods="sc1"):
    m = "offen" + (" offset:%d" % off if off else "") + (" " + mods if mods else "")
    return I("buffer_store_dwordx4", vr(preg, 4), vL16, SRD_WS, soff, mods=m)

def dma_seq(srd, pitch, lds_base, glob, n, mod=None, start=None, w4=None):
    vofs = {896: vD896, 2688: vD2688, 3584: vD3584}[pitch]
    if start is None:
        I("s_mov_b32", sK, 0)
    elif start != "cont":
        I("s_mov_b32", sK, start)
    I("s_lshl_b32", sF, sLW, 10)
    I("s_add_u32", sF, sF, hx(lds_base) if isinstance(lds_base, int) else lds_base)
    if glob[1]:
        I("s_add_u32", sG, glob[0], hx(glob[1]))
    else:
        I("s_mov_b32", sG, glob[0])
    I("s_mov_b32", sCNT, n)
    lp = A.newlabel("Ldma")
    A.label(lp)
    if w4 is None:
        I("s_lshl_b32", sH_, sK, 12)
        I("s_add_u32", "m0", sH_, sF)
        I("s_mul_i32", sH_, sK, hx(32 * pitch))
    else:
        I("s_mov_b32", "m0", sF)
        I("s_add_u32", sF, sF, hx(4096))
        I("s_and_b32", sH_, sK, hx(0xfffe))
        I("s_add_u32", sH_, sH_, sK)
        I("s_mul_i32", sH_, sH_, hx(32 * pitch))
    I("s_add_u32", sH_, sH_, sG)
    I("buffer_load_dwordx4", vofs, srd, sH_, mods="offen lds")
    I("s_add_u32", sK, sK, 1)
    if mod:
        I("s_cmp_eq_u32", sK, mod)
        I("s_cmov_b32", sK, 0)
    I("s_sub_u32", sCNT, sCNT, 1)
    I("s_cmp_lg_u32", sCNT, 0)
    I("s_cbranch_scc1", lp)
    A.vm += n - 1
    return A.vm

def set_tr(base, dst=None, src=None):
    dst = dst or TRC
    src = src or TRL
    if isinstance(base, int):
        I("s_mov_b32", sA, hx(base))
        base = sA
    for b in range(2):
        for a in range(2):
            I("v_add_u32", v(dst[b][a]), base, v(src[b][a]))

def a_frag(dst, f, off, trc=None):
    trc = trc or TRC
    b, a = divmod(f, 2)
    I("ds_read_b64_tr_b16", vr(dst + 4 * f, 2), v(trc[b][a]), mods="offset:%d" % off)
    return I("ds_read_b64_tr_b16", vr(dst + 4 * f + 2, 2), v(trc[b][a]), mods="offset:%d" % (off + 1024))

def a_read(dst, off, trc=None):
    return [a_frag(dst, f, off, trc) for f in range(4)]

def m16(acc, areg, breg, zero):
    I("v_mfma_f32_16x16x32_bf16", vr(acc, 4), vr(areg, 4), vr(breg, 4), "0" if zero else vr(acc, 4))

def gemm(nk, nbuf, npre, aoff, breg, bl=None, bissue=None, zero=True, acc=ACC, areg=AREG, rd=None, fill=None, hook=None):
    if rd is None:
        rd = [a_read(areg + 16 * s, *aoff(s)) for s in range(npre)]
    for s in range(nk):
        if hook:
            hook(s)
        nxt = s + npre
        new = []
        A.wait(vm=bl[s] if bl is not None else None, lg=rd[s][3])
        for f in range(4):
            m16((acc(s) if callable(acc) else acc) + 4 * f, areg + 16 * (s % nbuf) + 4 * f, breg(s),
                zero(s) if callable(zero) else (zero and s == 0))
            if f == 0 and bissue:
                bissue(s)
            if nxt < nk:
                new.append(a_frag(areg + 16 * (nxt % nbuf), f, *aoff(nxt)))
            if fill:
                fill(s, f)
        if nxt < nk:
            rd.append(new)

def stats_reduce(a, b):
    I("v_permlane32_swap_b32", v(a), v(b))
    I("v_add_f32", v(a), v(a), v(b))
    I("v_mov_b32", v(b), v(a))
    I("v_permlane16_swap_b32", v(a), v(b))
    I("v_add_f32", v(a), v(a), v(b))
    I("v_mov_b32", v(b), v(a))
    I("v_permlane32_swap_b32", v(a), v(b))

def mean_var(s_sum, s_sq, mu, var):
    I("v_mul_f32", v(mu), fl(1.0 / 448), v(s_sum))
    I("v_mul_f32", v(var), fl(1.0 / 448), v(s_sq))
    I("v_fma_f32", v(var), "-" + v(mu), v(mu), v(var))
    I("v_max_f32", v(var), 0, v(var))

def rstd(dst, var):
    I("v_add_f32", v(dst), fl(1e-5), v(var))
    I("v_rsq_f32", v(dst), v(dst))

def unswap(p, nfr):
    I("s_mov_b64", "exec", sODD)
    for k in range(nfr):
        I("v_swap_b32", v(p + 4 * k), v(p + 4 * k + 2))
        I("v_swap_b32", v(p + 4 * k + 1), v(p + 4 * k + 3))
    I("s_mov_b64", "exec", -1)

def pack(dst, src, n):
    for i in range(n // 2):
        I("v_cvt_pk_bf16_f32", v(dst + i), v(src + 2 * i), v(src + 2 * i + 1))

def unpack(dst, src, n):
    for i in range(n // 2):
        I("v_lshlrev_b32", v(dst + 2 * i), 16, v(src + i))
        I("v_and_b32", v(dst + 2 * i + 1), hx(0xffff0000), v(src + i))

BC = "op_sel_hi:[1,0]"
def pk_mul_b(d, a, s):
    I("v_pk_mul_f32", vr(d, 2), vr(a, 2), vr(s, 2), mods="op_sel_hi:[1,0]")

GC0 = -2.0 * 0.7978845608028654 * 1.4426950408889634
GC1 = GC0 * 0.044715
def gelu_prep(r, k0, k1, ri):
    I("v_rcp_f32", v(ri), v(r))
    I("v_mul_f32", v(k1), v(r), v(r))
    I("v_mul_f32", v(k0), fl(GC0), v(r))
    I("v_mul_f32", v(k1), v(k1), v(r))
    I("v_mul_f32", v(k1), fl(GC1), v(k1))

def gelu(x, n, t, k0, k1, ri, dst, packed):
    if packed:
        P = range(0, n, 2)
        for i in P: I("v_pk_mul_f32", vr(t + i, 2), vr(x + i, 2), vr(x + i, 2))
        for i in P: I("v_pk_fma_f32", vr(t + i, 2), vr(t + i, 2), vr(k1, 2), vr(k0, 2), mods="op_sel_hi:[1,0,0]")
        for i in P: I("v_pk_mul_f32", vr(t + i, 2), vr(t + i, 2), vr(x + i, 2))
        for i in range(n): I("v_exp_f32", v(t + i), v(t + i))
        for i in P: I("v_pk_fma_f32", vr(t + i, 2), vr(t + i, 2), vr(ri, 2), vr(ri, 2), mods="op_sel_hi:[1,0,0]")
        for i in range(n): I("v_rcp_f32", v(t + i), v(t + i))
        for i in P: I("v_pk_mul_f32", vr(x + i, 2), vr(x + i, 2), vr(t + i, 2))
    else:
        for i in range(n): I("v_mul_f32", v(t + i), v(x + i), v(x + i))
        for i in range(n): I("v_fma_f32", v(t + i), v(t + i), v(k1), v(k0))
        for i in range(n): I("v_mul_f32", v(t + i), v(t + i), v(x + i))
        for i in range(n): I("v_exp_f32", v(t + i), v(t + i))
        for i in range(n): I("v_fma_f32", v(t + i), v(t + i), v(ri), v(ri))
        for i in range(n): I("v_rcp_f32", v(t + i), v(t + i))
        for i in range(n): I("v_mul_f32", v(x + i), v(x + i), v(t + i))
    pack(dst, x, n)

def stat_granule(p):
    a, b = TMP + 8, TMP + 10
    I("v_mov_b32", v(a), 0)
    I("v_mov_b32", v(b), 0)
    for i in range(8):
        I("v_dot2c_f32_bf16", v(a), v(p + i), v(ONES))
        I("v_dot2c_f32_bf16", v(b), v(p + i), v(p + i))
    I("v_mov_b32", v(TMP + 9), vTAG)
    I("v_mov_b32", v(TMP + 11), vTAG)
    stats_reduce(a, b)

def granule_store(m):
    I("s_mov_b64", "exec", hx(0xffff))
    r = I("buffer_store_dwordx4", vr(TMP + 8, 4), vL16, SRD_WS, sD, mods="offen" + (" " + m if m else ""))
    I("s_mov_b64", "exec", -1)
    return r

def stat_aux():
    I("v_cmp_gt_u32", "vcc", 3, vQ4)
    I("v_subrev_u32", v(vSPO), hx(256), vL16)
    I("v_cndmask_b32", v(vSPO), v(vSPO), vL16, "vcc")
    I("v_mov_b32", v(vSPW), 1.0)
    I("v_cndmask_b32", v(vSPW), 0, v(vSPW), "vcc")

def stat_poll_a(soff):
    I("buffer_load_dwordx4", vr(TMP + 4, 4), vL16, SRD_WS, soff, mods="offen sc1")
    I("buffer_load_dwordx4", vr(TMP + 8, 4), v(vSPO), SRD_WS, soff, mods="offen offset:1024 sc1")

def stat_poll(soff):
    lp, dn = A.newlabel("Lpoll"), A.newlabel("Lpd")
    I("s_mov_b32", sCNT, hx(40000))
    A.label(lp)
    A.wait_vm_all(force=True)
    I("v_min3_u32", v(TMP + 12), v(TMP + 5), v(TMP + 7), v(TMP + 9))
    I("v_max3_u32", v(TMP + 13), v(TMP + 5), v(TMP + 7), v(TMP + 9))
    I("v_min3_u32", v(TMP + 12), v(TMP + 12), v(TMP + 11), vTAG)
    I("v_max3_u32", v(TMP + 13), v(TMP + 13), v(TMP + 11), vTAG)
    I("v_cmp_ne_u32", "vcc", v(TMP + 12), v(TMP + 13))
    I("s_cbranch_vccz", dn)
    I("s_sub_u32", sCNT, sCNT, 1)
    I("s_cmp_eq_u32", sCNT, 0)
    I("s_cbranch_scc1", dn)
    stat_poll_a(soff)
    A.vm -= 2
    I("s_branch", lp)
    A.label(dn)

def stat_finish():
    I("v_fmac_f32", v(TMP + 4), v(TMP + 8), v(vSPW))
    I("v_fmac_f32", v(TMP + 6), v(TMP + 10), v(vSPW))
    stats_reduce(TMP + 4, TMP + 6)

def tile_off(dst, reg, stride, tl=sTL, extra=None):
    I("s_mul_i32", dst, tl, hx(stride))
    I("s_add_u32", dst, dst, sPAGE)
    if reg:
        I("s_add_u32", dst, dst, hx(reg))
    if extra:
        I("s_add_u32", dst, dst, extra)

def out_offs(reg, stride, freg, fstride, fsh):
    I("s_lshl_b32", sA, sJ, 11)
    tile_off(sC, reg, stride, extra=sA)
    I("s_lshl_b32", sA, sJ, fsh)
    tile_off(sD, freg, fstride, extra=sA)

def flag_poll_off(dst, n, freg, fstride, shift, tl=sTL):
    I("v_min_u32", v(dst), n - 1, vLANE)
    tile_off(sA, freg, fstride, tl)
    I("v_lshl_add_u32", v(dst), v(dst), shift, sA)

class BLoads:
    def __init__(self, n, soff, vaddr=None, breg=BREG):
        self.n, self.vaddr, self.breg, self.ids = n, vaddr, breg, {}
        for q in range(4):
            I("s_add_u32", "s%d" % (50 + q), soff, hx(4096 * q))
    def issue(self, i):
        if i >= self.n:
            return
        va = self.vaddr(i) if self.vaddr else vL16
        o = (1024 * i) & 4095
        self.ids[i] = I("buffer_load_dwordx4", vr(self.breg + 4 * i, 4), va, SRD_WS, "s%d" % (50 + i // 4),
                        mods="offen" + (" offset:%d" % o if o else "") + " sc1")
    def first(self):
        for i in range(OPT["npre"]):
            self.issue(i)
    def more(self, s):
        self.issue(s + OPT["npre"])
    def last_step(self):
        return self.n - OPT["npre"]

def only(grp, fn):
    l = A.newlabel("Lo")
    I("s_cmp_lt_u32" if grp == "B" else "s_cmp_ge_u32", sW, 4)
    I("s_cbranch_scc1", l)
    sv = (A.vm, A.vm_done, A.lg, A.lg_done)
    fn()
    A.vm, A.vm_done, A.lg, A.lg_done = sv
    A.label(l)

def main_only(fn):
    l = A.newlabel("Lm")
    I("s_cmp_ge_u32", sLI, 28)
    I("s_cbranch_scc1", l)
    sv = (A.vm, A.vm_done, A.lg, A.lg_done)
    fn()
    A.vm, A.vm_done, A.lg, A.lg_done = sv
    A.label(l)

vJUNK = v(254)
def touch1(srd, vofs, soff, mods=""):
    return I("buffer_load_dword", vJUNK, vofs, srd, soff, mods="offen" + (" " + mods if mods else ""))

def grp_touch(srd, base, stride_sh, count):
    I("s_lshl_b32", sA, sLW, 5)
    I("s_add_u32", sA, sA, sLI)
    I("s_lshl_b32", sA, sA, 6 + stride_sh)
    I("v_lshlrev_b32", v(TMP + 12), stride_sh, vLANE)
    if base:
        I("s_add_u32", sA, sA, hx(base))
    for i in range(count):
        touch1(srd, v(TMP + 12), sA)
        if i + 1 < count:
            I("s_add_u32", sA, sA, hx(128 * 64 << stride_sh))

def tr_lane(dst, qadd):
    t0, t1, t2, t3 = TMP, TMP + 1, TMP + 2, TMP + 3
    if qadd:
        I("v_add_u32", v(t3), qadd, vQ4)
        q = v(t3)
    else:
        q = vQ4
    I("v_bfe_u32", v(t0), vLANE, 2, 2)
    I("v_and_b32", v(t1), 1, q)
    I("v_lshl_add_u32", v(t2), v(t1), 2, v(t0))
    I("v_lshrrev_b32", v(t3), 1, q)
    I("v_lshl_add_u32", v(t2), v(t3), 4, v(t2))
    I("v_lshrrev_b32", v(t0), 1, v(t0))
    I("v_lshl_or_b32", v(t0), v(t1), 2, v(t0))
    I("v_and_b32", v(t1), 3, vLANE)
    I("v_xor_b32", v(t0), v(t0), v(t1))
    I("v_lshlrev_b32", v(t0), 4, v(t0))
    I("v_lshl_add_u32", v(t0), v(t2), 7, v(t0))
    I("v_and_b32", v(t1), 1, v(t1))
    I("v_lshl_or_b32", v(dst[0][0]), v(t1), 3, v(t0))
    I("v_xor_b32", v(dst[0][1]), 8, v(dst[0][0]))
    I("v_xor_b32", v(dst[1][0]), 64, v(dst[0][0]))
    I("v_xor_b32", v(dst[1][1]), 64, v(dst[0][1]))

SRDS = {4: (36, 1835008), 8: (38, 448 * 1344 * 2), 60: (56, WS_SIZE), 12: (40, 448 * 448 * 2), 16: (44, 448 * 448 * 2),
        20: (46, 448 * 448 * 2), 24: (48, 448 * 1792 * 2), 28: (50, 448 * 1792 * 2), 32: (52, 1835008)}
def srds(which):
    for d in which:
        src, n = SRDS[d]
        I("s_mov_b32", "s%d" % d, "s%d" % src)
        I("s_and_b32", "s%d" % (d + 1), "s%d" % (src + 1), hx(0xffff))
        I("s_mov_b32", "s%d" % (d + 2), hx(n))
        I("s_mov_b32", "s%d" % (d + 3), hx(0x20000))

def prologue():
    I("s_cmp_ge_u32", "s2", hx(256))
    I("s_cbranch_scc1", "L_end")
    if OPT["stamp"]:
        I("v_mov_b32", vSTAMP, 0)
        I("s_memrealtime", sST)
        A.wait_lg_all(force=True)
        I("v_writelane_b32", vSTAMP, "s98", 0)
        stamp("start")
    I("s_load_dwordx16", "s[36:51]", "s[0:1]", 0)
    I("s_load_dwordx4", "s[52:55]", "s[0:1]", 64)
    I("s_load_dwordx2", "s[56:57]", "s[0:1]", 80)
    I("v_lshrrev_b32", v(TMP), 6, "v0")
    I("v_and_b32", vLANE, 63, "v0")
    I("v_readfirstlane_b32", sW, v(TMP))
    I("s_and_b32", sX, "s2", 7)
    I("s_lshr_b32", sLI, "s2", 3)
    I("s_mul_i32", sTG, sLI, 37)
    I("s_lshr_b32", sTG, sTG, 8)
    I("s_mul_i32", sROT, sTG, 7)
    I("s_sub_u32", sJ, sLI, sROT)
    I("s_lshr_b32", sROT, sROT, 1)
    I("s_lshl_b32", sJ128, sJ, 7)
    I("s_and_b32", sLW, sW, 3)
    I("s_lshl_b32", sTL, sTG, 2)
    I("s_add_u32", sTL, sTL, sLW)
    I("s_lshl_b32", sPAGE, sX, PSH)
    I("v_lshrrev_b32", vQ4, 4, vLANE)

def dma_lane_consts(for_a=False):
    t0, t1, t2 = TMP, TMP + 1, TMP + 2
    I("v_bfe_u32", v(t0), vLANE, 3, 2)
    I("v_lshrrev_b32", v(t1), 5, vLANE)
    I("v_lshl_add_u32", v(t2), v(t1), 3, v(t0))
    I("s_and_b32", sA, sLW, 1)
    I("s_lshl_b32", sA, sA, 2)
    I("s_and_b32", sB, sLW, 2)
    I("s_lshl_b32", sB, sB, 3)
    I("s_add_u32", sA, sA, sB)
    I("v_add_u32", v(t2), sA, v(t2))
    I("v_lshrrev_b32", v(t0), 1, v(t0))
    I("v_lshl_or_b32", v(t0), v(t1), 2, v(t0))
    I("v_and_b32", v(t1), 7, vLANE)
    I("v_xor_b32", v(t0), v(t0), v(t1))
    I("v_lshlrev_b32", v(t0), 4, v(t0))
    for reg, pitch in ((vD896, 896),) + (((vD2688, 2688),) if (PA == 1 and not for_a) else ()):
        I("v_mul_u32_u24", reg, hx(pitch), v(t2))
        I("v_add_u32", reg, reg, v(t0))
    I("v_and_b32", v(t0), 16, vLANE)
    I("v_lshrrev_b32", v(t0), 2, v(t0))
    I("v_xor_b32", v(t0), v(t0), v(t1))
    I("v_lshlrev_b32", v(t0), 4, v(t0))
    for reg, pitch in ((vD4, 896),) + (() if for_a else ((vD3584, 3584),) if PA == 1 else ((vD2688, 2688), (vD3584, 3584))):
        I("v_mul_u32_u24", reg, hx(pitch), v(t2))
        I("v_add_u32", reg, reg, v(t0))

def late_consts1():
    I("v_and_b32", vTOK, 15, vLANE)
    I("v_lshlrev_b32", vL16, 4, vLANE)
    I("s_mov_b32", "s82", hx(0xffff0000))
    I("s_mov_b32", "s83", hx(0xffff0000))
    I("s_mov_b32", sMODE, 0)
    for i in range(4):
        I("v_mov_b32", v(ONES + i), hx(0x3f803f80))

def late_consts2():
    I("s_lshr_b32", sA, sTG, 1)
    I("s_mul_i32", sJP, sA, 14)
    I("s_sub_u32", sJP, sLI, sJP)
    tr_lane(TRL, 0)

def late_consts():
    late_consts1()
    late_consts2()
    for i in range(36, 44):
        I("v_mov_b32", v(i), 0)

def epoch_load():
    l = A.newlabel("Lel")
    I("s_add_u32", "s58", "s56", hx(OFF_EPOCH))
    I("s_addc_u32", "s59", "s57", 0)
    I("s_cmp_lg_u32", sW, 4)
    I("s_cbranch_scc1", l)
    I("s_load_dword", sTAG, "s[58:59]", 0)
    A.label(l)

def tag_publish():
    l = A.newlabel("Lpx")
    I("s_getreg_b32", sXCC, "hwreg(HW_REG_XCC_ID)")
    I("s_and_b32", sXCC, sXCC, 15)
    I("s_cmp_lg_u32", sW, 4)
    I("s_cbranch_scc1", l)
    I("s_lshl_b32", sC, sLI, 7)
    I("s_add_u32", sC, sC, sPAGE)
    I("s_add_u32", sC, sC, hx(R_XCC))
    I("v_mov_b32", v(TMP + 12), hx(L_TAG))
    I("s_waitcnt", "lgkmcnt(0)")
    I("s_mul_i32", sTAG, sTAG, hx(1664525))
    I("s_add_u32", sTAG, sTAG, hx(1013904223))
    I("v_mov_b32", vTAG, sTAG)
    I("s_add_u32", sA, sTAG, sXCC)
    I("v_mov_b32", v(TMP + 13), sA)
    I("ds_write_b32", v(TMP + 12), vTAG)
    A.lg -= 1
    I("s_mov_b64", "exec", 1)
    I("buffer_store_dword", v(TMP + 13), "off", SRD_WS, sC, mods="sc1")
    A.vm -= 1
    I("s_mov_b64", "exec", -1)
    I("s_waitcnt", "lgkmcnt(0)")
    A.label(l)

def tag_read_issue():
    I("v_mov_b32", vTAG, hx(L_TAG))
    return I("ds_read_b32", vTAG, vTAG)

def tag_read_finish(r):
    A.wait(lg=r)
    I("v_readfirstlane_b32", sTAG, vTAG)

def phase_a_compute():
    A.cmt("---- phase A compute")
    t0, t1, t2, t3 = TMP + 4, TMP + 5, TMP + 6, TMP + 7
    I("v_lshrrev_b32", v(t0), 3, vLANE)
    I("v_and_b32", v(t2), 7, vLANE)
    I("v_xor_b32", v(t1), vQ4, v(t2))
    I("v_mul_u32_u24", v(t0), hx(896), v(t0))
    I("v_lshl_add_u32", v(t2), v(t1), 4, v(t0))
    I("v_xor_b32", v(t1), 4, v(t1))
    I("v_lshl_add_u32", v(t3), v(t1), 4, v(t0))
    I("s_lshl_b32", sA, sX, 4)
    I("s_add_u32", sA, sA, sTL)
    I("s_mul_i32", sB, sA, hx(16 * 896))
    I("s_mul_i32", sF, sLW, hx(TB))
    I("s_add_u32", sF, sF, hx(L_XIMG))
    I("s_mov_b32", sK, sJ)
    I("s_mov_b32", sCNT, 7)
    A.wait_lg_all(force=True)
    stamp("kernarg")
    srds([4])
    A.label("L_xdma")
    I("s_lshl_b32", sA, sK, 11)
    I("s_add_u32", "m0", sA, sF)
    I("s_lshl_b32", sA, sK, 7)
    I("s_add_u32", sA, sA, sB)
    I("s_add_u32", sE, sA, hx(8 * 896 - 1024))
    I("buffer_load_dwordx4", v(t2), SRD_X, sA, mods="offen lds")
    I("buffer_load_dwordx4", v(t3), SRD_X, sE, mods="offen offset:1024 lds")
    I("s_add_u32", sK, sK, 1)
    I("s_cmp_eq_u32", sK, 7)
    I("s_cmov_b32", sK, 0)
    I("s_sub_u32", sCNT, sCNT, 1)
    I("s_cmp_lg_u32", sCNT, 0)
    I("s_cbranch_scc1", "L_xdma")
    I("v_mov_b32", v(ACC), 0)
    I("v_lshlrev_b32", v(ACC + 1), 2, vLANE)
    I("ds_write_b32", v(ACC + 1), v(ACC), mods="offset:%d" % 0) if False else None
    I("v_add_u32", v(ACC + 1), hx(L_CNT), v(ACC + 1))
    I("ds_write_b32", v(ACC + 1), v(ACC))
    I("v_add_u32", v(ACC + 1), hx(L_CS3 - L_CNT), v(ACC + 1))
    I("ds_write_b32", v(ACC + 1), v(ACC))
    I("ds_write_b32", v(ACC + 1), v(ACC), mods="offset:256")
    A.wait_lg_all()
    barrier()
    srds([60])
    late_consts1()
    XB, AR, CS = 64, 176, 208
    vB, vT = 35, 43
    xa = [208, 209, 210, 211]
    I("v_lshrrev_b32", v(t0), 1, vTOK)
    I("v_xor_b32", v(t1), v(t0), vQ4)
    I("v_lshlrev_b32", v(t1), 4, v(t1))
    I("v_lshl_add_u32", v(t1), vTOK, 7, v(t1))
    I("s_lshl_b32", sA, sJ, 11)
    I("s_add_u32", sA, sA, sF)
    I("v_add_u32", v(212), sA, v(t1))
    I("v_xor_b32", v(213), 64, v(212))
    I("v_lshrrev_b32", v(t1), 5, vLANE)
    I("v_xor_b32", v(t1), v(t1), v(t0))
    I("v_lshlrev_b32", v(t1), 4, v(t1))
    I("v_lshl_add_u32", v(t1), vTOK, 7, v(t1))
    I("v_and_b32", v(t2), 1, vQ4)
    I("v_mul_u32_u24", v(t2), hx(TB), v(t2))
    I("s_and_b32", sA, sLW, 2)
    I("s_mul_i32", sA, sA, hx(TB))
    I("s_add_u32", sA, sA, hx(L_XIMG))
    I("v_add3_u32", v(xa[0]), v(t1), v(t2), sA)
    for q in range(1, 4):
        I("v_xor_b32", v(xa[q]), hx(32 * q), v(xa[0]))
    tr32_lane([vT, t3])
    I("s_and_b32", sA, sLW, 1)
    I("s_lshl_b32", sA, sA, 6)
    I("v_xor_b32", v(vT), sA, v(vT))
    bf_lane(vB)
    cnt_setup([TMP + 13, TMP + 12, TMP + 11])
    vCA, vSW_, vSR_ = 13, 14, TMP + 10
    I("v_lshrrev_b32", v(vCA), 5, vLANE)
    I("s_lshl_b32", sA, sA, 1)
    I("s_add_u32", sA, sA, hx(L_CSA))
    I("v_lshl_add_u32", v(vCA), v(vCA), 5, sA)
    I("s_lshl_b32", sA, sLW, 8)
    I("s_add_u32", sA, sA, hx(L_STA))
    I("v_lshl_add_u32", v(vSW_), vLANE, 2, sA)
    I("s_and_b32", sA, sLW, 2)
    I("s_lshl_b32", sA, sA, 8)
    I("s_add_u32", sA, sA, hx(L_STA))
    I("v_and_b32", v(vSR_), 31, vLANE)
    I("v_lshl_add_u32", v(vSR_), v(vSR_), 2, sA)
    I("s_lshl_b32", sB, sJ, 1)
    I("s_and_b32", sA, sLW, 1)
    I("s_add_u32", sB, sB, sA)
    I("s_and_b32", sE, sTL, hx(0xfe))
    I("s_lshl_b32", sA, sB, 10)
    tile_off(sC, 0, TB, tl=sE, extra=sA)
    I("s_lshl_b32", sA, sB, 7)
    tile_off(sD, R_FQKV, 1024, tl=sE, extra=sA)
    I("s_lshl_b32", sA, sB, 2)
    tile_off(sD2, R_FQ, 64, tl=sE, extra=sA)
    HB = [slot(0), slot(1), slot(2), slot(3), slot(4), slot(0)]
    TA = [11, 12]
    for h in range(2):
        I("v_add_u32", v(TA[h]), hx(HB[h]), v(vT))
    stamp("setup_done")
    A.wait_vm_all()
    arrive(2)
    I("ds_read_b128", vr(HP, 4), v(212))
    I("ds_read_b128", vr(HP + 4, 4), v(213))
    spin(2, 4)
    stamp("x_dma")
    s_sum, s_sq = TMP + 2, TMP + 3
    I("v_mov_b32", v(s_sum), 0)
    I("v_mov_b32", v(s_sq), 0)
    unswap(HP, 2)
    def xpath(order):
        xl = {}
        def rdx(k):
            xl[k] = I("ds_read_b128", vr(XB + 4 * k, 4), v(xa[k & 3]), mods="offset:%d" % (2048 * (k >> 2)))
        for k in order[:14]:
            rdx(k)
        for n, k in enumerate(order[:14]):
            A.wait(lg=xl[k])
            rdx(order[14 + n])
            for i in range(4):
                I("v_dot2c_f32_bf16", v(s_sum), v(XB + 4 * k + i), v(ONES))
                I("v_dot2c_f32_bf16", v(s_sq), v(XB + 4 * k + i), v(XB + 4 * k + i))
    l1, l2 = A.newlabel("Lxs"), A.newlabel("Lxs")
    I("s_bitcmp1_b32", sW, 0)
    I("s_cbranch_scc1", l1)
    sv = (A.lg, A.lg_done)
    xpath(list(range(28)))
    I("s_branch", l2)
    A.label(l1)
    A.lg, A.lg_done = sv
    xpath(list(range(14, 28)) + list(range(14)))
    A.label(l2)
    I("v_permlane32_swap_b32", v(s_sum), v(s_sq))
    I("v_add_f32", v(s_sum), v(s_sum), v(s_sq))
    I("ds_write_b32", v(vSW_), v(s_sum))
    A.wait_lg_all()
    stamp("stats_done")
    barrier()
    stamp("strip0_landed")
    D, NR = 6, 8
    rd = {}
    def ard(n):
        d = AR + 4 * (n % NR)
        ad = v(TA[(n // 14) & 1])
        I("ds_read_b64_tr_b16", vr(d, 2), ad, mods="offset:%d" % (2048 * (n % 14)))
        rd[n] = I("ds_read_b64_tr_b16", vr(d + 2, 2), ad, mods="offset:%d" % (2048 * (n % 14) + 1024))
    I("ds_read2_b32", vr(TMP + 4, 2), v(vSR_), mods="offset0:0 offset1:32")
    I("ds_read2_b32", vr(TMP + 6, 2), v(vSR_), mods="offset0:64 offset1:96")
    tg_ = tag_read_issue()
    for n in range(D):
        ard(n)
    side = []
    def rec(fn):
        global I
        old = I
        out = []
        def J(*a, **k):
            out.append(lambda a=a, k=k: old(*a, **k))
        I = J
        fn()
        I = old
        return out
    def lnfin():
        I("v_readfirstlane_b32", sTAG, vTAG)
        I("v_add_f32", v(TMP + 4), v(TMP + 4), v(TMP + 6))
        I("v_add_f32", v(TMP + 5), v(TMP + 5), v(TMP + 7))
        mean_var(TMP + 4, TMP + 5, vMU, TMP + 6)
        rstd(vRH, TMP + 6)
        I("v_sub_f32", v(vMU), 0, v(vMU))
        I("v_mul_f32", v(TMP + 8), fl(1.4426950408889634 / 28 ** 0.5), v(vRH))
    st = {}
    def cs_read(i):
        r = None
        for g in range(4):
            r = I("ds_read_b128", vr(CS + 4 * g, 4), v(vCA), mods="offset:%d" % (256 * i + 64 * (g >> 1) + 16 * (g & 1)))
        return r
    def epi_pre():
        for q in range(16):
            I("v_mul_f32", v(CS + q), v(CS + q), v(vMU))
    def epi_add(ac):
        for q in range(16):
            I("v_add_f32", v(CS + q), v(CS + q), v(ac + q))
    def epi_valu(i):
        for q in range(16):
            I("v_mul_f32", v(CS + q), v(CS + q), v(vRH if i < 2 else TMP + 8))
        pack(TMP, CS, 16)
    def epi_store(i, m="sc1"):
        I("s_add_u32", sA, sC, hx((R_K, R_V, R_Q)[i]))
        for u in range(2):
            st[i] = I("buffer_store_dwordx4", vr(TMP + 4 * u, 4), v(vB), SRD_WS, sA,
                      mods="offen" + (" offset:512" if u else "") + (" " + m if m else ""))
        return st[i]
    FK = OPT.get("fk2", 62)
    for n in range(84):
        i, k = divmod(n, 28)
        if k == 28 - D and i < 2:
            A.wait_lg_all()
            barrier()
            stamp("strip%d_landed" % (i + 1))
            csr = cs_read(i)
        if n % 14 == 14 - D and n // 14 + 2 < 6:
            I("v_add_u32", v(TA[(n // 14) & 1]), hx(HB[n // 14 + 2]), v(vT))
        if n == 1:
            side += rec(lnfin)
        if k == 24 and i < 2:
            A.wait(lg=csr)
            side += rec(epi_pre)
        if k < 2 and i > 0:
            assert not side
            epi_add((ACC, ACC2)[k])
        if k == 2 and i > 0:
            side += rec(lambda: epi_valu(i - 1)) + [lambda i=i: (epi_store(i - 1), stamp("stored%d" % (i - 1)))]
        if n == FK:
            A.wait(vm=st[0])
            flag_store(sD)
            stamp("flag0")
        if n == 78:
            spin(3, 4)
            I("v_mov_b32", v(TMP + 9), hx(L_MODE))
            I("ds_read_b32", v(TMP + 9), v(TMP + 9))
            csr = cs_read(2)
        if n == 80:
            A.wait(lg=csr)
            side += rec(epi_pre)
        if n % 2 == 0:
            A.wait(lg=rd[n + 1])
        m32((ACC, ACC2)[n & 1], AR + 4 * (n % NR), XB + 4 * k, k < 2)
        if n + D < 84:
            ard(n + D)
        for _ in range(4):
            if side:
                side.pop(0)()
    assert not side
    if OPT["local"]:
        I("v_readfirstlane_b32", sMODE, v(TMP + 9))
    I("s_add_u32", sD, sD, 4)
    epi_add(ACC)
    epi_add(ACC2)
    epi_valu(2)
    moded(lambda m: epi_store(2, m))
    stamp("q_stored")
    A.wait(vm=st[1])
    flag_store(sD)
    stamp("flag1")
    A.wait(vm=st[2])
    moded(lambda m: flag_store(sD2, m))
    stamp("q_flag")
    srds([24, 28, 32])
    late_consts2()
    att_ids()
    att_consts()
    c_setup()
    c_setup_s()
    e_table(True)
    stamp("setup2")

def phase_a_compute1():
    A.cmt("---- phase A compute")
    t0, t1, t2, t3 = TMP + 4, TMP + 5, TMP + 6, TMP + 7
    I("v_lshrrev_b32", v(t0), 3, vLANE)
    I("v_and_b32", v(t2), 7, vLANE)
    I("v_xor_b32", v(t1), vQ4, v(t2))
    I("v_mul_u32_u24", v(t0), hx(896), v(t0))
    I("v_lshl_add_u32", v(t2), v(t1), 4, v(t0))
    I("v_xor_b32", v(t1), 4, v(t1))
    I("v_lshl_add_u32", v(t3), v(t1), 4, v(t0))
    I("s_lshl_b32", sA, sX, 4)
    I("s_add_u32", sA, sA, sTL)
    I("s_mul_i32", sB, sA, hx(16 * 896))
    I("s_mul_i32", sF, sLW, hx(TB))
    I("s_add_u32", sF, sF, hx(L_XIMG))
    I("s_mov_b32", sK, sJ)
    I("s_mov_b32", sCNT, 7)
    A.wait_lg_all(force=True)
    stamp("kernarg")
    srds([4])
    A.label("L_xdma")
    I("s_lshl_b32", sA, sK, 11)
    I("s_add_u32", "m0", sA, sF)
    I("s_lshl_b32", sA, sK, 7)
    I("s_add_u32", sA, sA, sB)
    I("s_add_u32", sE, sA, hx(8 * 896 - 1024))
    I("buffer_load_dwordx4", v(t2), SRD_X, sA, mods="offen lds")
    I("buffer_load_dwordx4", v(t3), SRD_X, sE, mods="offen offset:1024 lds")
    I("s_add_u32", sK, sK, 1)
    I("s_cmp_eq_u32", sK, 7)
    I("s_cmov_b32", sK, 0)
    I("s_sub_u32", sCNT, sCNT, 1)
    I("s_cmp_lg_u32", sCNT, 0)
    I("s_cbranch_scc1", "L_xdma")
    I("v_mov_b32", v(ACC), 0)
    I("v_lshlrev_b32", v(ACC + 1), 2, vLANE)
    I("ds_write_b32", v(ACC + 1), v(ACC), mods="offset:%d" % 0) if False else None
    I("v_add_u32", v(ACC + 1), hx(L_CNT), v(ACC + 1))
    I("ds_write_b32", v(ACC + 1), v(ACC))
    I("v_add_u32", v(ACC + 1), hx(L_CS3 - L_CNT), v(ACC + 1))
    I("ds_write_b32", v(ACC + 1), v(ACC))
    I("ds_write_b32", v(ACC + 1), v(ACC), mods="offset:256")
    barrier()
    srds([60, 24, 28, 32])
    late_consts1()
    late_consts2()
    I("v_lshrrev_b32", v(t0), 1, vTOK)
    I("v_xor_b32", v(t0), v(t0), vQ4)
    I("v_lshlrev_b32", v(t0), 4, v(t0))
    I("v_lshl_add_u32", v(t0), vTOK, 7, v(t0))
    I("v_add_u32", v(t0), sF, v(t0))
    I("v_xor_b32", v(t1), 64, v(t0))
    I("s_lshl_b32", sA, sJ, 11)
    I("v_add_u32", v(t2), sA, v(t0))
    I("v_add_u32", v(t3), sA, v(t1))
    c_setup_s()
    if OPT.get("cse", 0):
        c_setup()
    else:
        att_ids()
        att_consts()
    stamp("setup_done")
    A.wait_vm_all()
    stamp("x_dma")
    xl = [I("ds_read_b128", vr(BREG + 4 * s, 4), v(t1 if s & 1 else t0), mods="offset:%d" % (2048 * (s >> 1))) for s in range(14)]
    I("ds_read_b128", vr(HP, 4), v(t2))
    xr = I("ds_read_b128", vr(HP + 4, 4), v(t3))
    s_sum, s_sq = TMP + 4, TMP + 5
    s_sum, s_sq = TMP + 2, TMP + 3
    I("v_mov_b32", v(s_sum), 0)
    I("v_mov_b32", v(s_sq), 0)
    for s in range(14):
        A.wait(lg=xl[s])
        for i in range(4):
            I("v_dot2c_f32_bf16", v(s_sum), v(BREG + 4 * s + i), v(ONES))
            I("v_dot2c_f32_bf16", v(s_sq), v(BREG + 4 * s + i), v(BREG + 4 * s + i))
    stamp("x_landed")
    stats_reduce(s_sum, s_sq)
    mu, var, r = TMP + 6, TMP + 7, TMP + 8
    mean_var(s_sum, s_sq, mu, var)
    rstd(r, var)
    I("v_mul_f32", v(mu), "-" + v(mu), v(r), mods="") if False else I("v_mul_f32", v(mu), v(mu), v(r))
    I("v_sub_f32", v(mu), 0, v(mu))
    for i in range(56):
        lo = TMP + 10 + 2 * (i & 1)
        I("v_lshlrev_b32", v(lo), 16, v(BREG + i))
        I("v_and_b32", v(lo + 1), hx(0xffff0000), v(BREG + i))
        I("v_pk_fma_f32", vr(lo, 2), vr(lo, 2), vr(r, 2), vr(mu, 2), mods="op_sel_hi:[1,0,0]")
        if i:
            p = TMP + 10 + 2 * ((i - 1) & 1)
            I("v_cvt_pk_bf16_f32", v(BREG + i - 1), v(p), v(p + 1))
    I("v_cvt_pk_bf16_f32", v(BREG + 55), v(TMP + 12), v(TMP + 13))
    A.wait(lg=xr)
    unswap(HP, 2)
    stamp("ln_done")
    TR2 = [[120, 121], [122, 123]]
    pend = [None]
    pq = [None]
    cnt_setup([124, 125, 126])

    I("s_bitcmp1_b32", sTG, 0)
    I("s_cselect_b32", "s4", hx(SLOT), 0)
    I("s_cselect_b32", "s6", 0, hx(slot(4)))
    I("s_cselect_b32", "s7", hx(slot(4)), 0)
    I("s_sub_u32", "s5", hx(slot(3)), "s4")
    I("s_add_u32", "s4", "s4", hx(slot(2)))
    set_tr(slot(0))
    set_tr(slot(1), dst=TR2)
    I("s_add_u32", "s8", sR2, hx(R_K))
    I("s_add_u32", "s9", sR2, hx(R_V))
    I("s_add_u32", sC, sR2, hx(R_Q))
    tile_off("s10", R_FQKV, 1024, extra=sJ128)
    I("s_add_u32", "s11", "s10", 4)
    I("s_lshl_b32", sA, sJ, 2)
    tile_off(sD, R_FQ, 128, extra=sA)
    I("v_mov_b32", v(TMP + 9), hx(L_MODE))
    I("v_mov_b32", v(TMP + 8), fl(1.4426950408889634 / 28 ** 0.5))
    barrier()
    stamp("strip0_landed")
    tg_ = tag_read_issue()
    KS = OPT.get("ks", 1)
    AC = lambda n: (ACC, ACC2)[(n // 14) & 1]
    st = {}
    side = []
    def put(i):
        unswap(TMP, 2)
        frag_store(TMP, "s%d" % (8 + i))
        st[i] = frag_store(TMP + 4, "s%d" % (8 + i), 1024)
    def hook(n):
        i, k = divmod(n, 14)
        if n == 2:
            tag_read_finish(tg_)
        if n == 12 and not KS:
            A.wait_lg_all()
            barrier()
            stamp("strip1_landed")
        if n == 24:
            pq[0] = peek(bQ)
        if n == 26:
            verify(pq[0], bQ, 4)
            stamp("strip2_landed")
        if n == 38:
            pq[0] = peek(bM)
        if n == 40:
            verify(pq[0], bM, 4)
            if OPT["local"]:
                pq[0] = I("ds_read_b32", v(TMP + 9), v(TMP + 9))
        if n % 7 == 5 and n // 7 + 2 < 6:
            set_tr("s%d" % (4 + n // 7), dst=TR2 if (n // 7) & 1 else TRC)
        if k == 1 and i > KS:
            side.extend(rec(lambda: pack(TMP, AC(n - 14), 16)) + [lambda: put(i - 1)])
        if k == OPT["fk"] + (0 if (KS and i == 1) else 2) and (i == 1 or (i == 2 and not OPT.get("vl", 1))):
            if not OPT.get("noack"):
                A.wait(vm=st[i - 1])
            flag_store("s%d" % (9 + i))
            stamp("flag%d" % (i - 1))
    def fill(n, f):
        for _ in range(3):
            if side:
                side.pop(0)()
    aof = lambda n: (4096 * (n % 7), TR2 if (n // 7) & 1 else TRC)
    if KS:
        gemm(14, 4, 2, aof, lambda n: BREG + 4 * n, hook=hook)
        pack(TMP, ACC, 16)
        put(0)
        barrier()
        stamp("strip1_landed")
        gemm(28, 4, 2, aof, lambda n: BREG + 4 * (n % 14), zero=lambda n: n % 14 == 0, acc=lambda n: AC(n + 14),
             fill=fill, hook=lambda n: hook(n + 14))
    else:
        gemm(42, 4, 2, aof, lambda n: BREG + 4 * (n % 14), zero=lambda n: n % 14 == 0, acc=AC, fill=fill, hook=hook)
    if OPT["local"]:
        A.wait(lg=pq[0])
        I("v_readfirstlane_b32", sMODE, v(TMP + 9))
    for k_ in range(0, 16, 2):
        pk_mul_b(ACC + k_, ACC + k_, TMP + 8)
    pack(TMP, ACC, 16)
    unswap(TMP, 2)
    pend[0] = store_out(TMP)
    if OPT.get("vl", 1):
        A.wait(vm=st[1])
        flag_store("s11")
    stamp("q_stored")
    e_table(True)
    ack_flag(pend[0], "q_flag")
    if OPT.get("cse", 0):
        att_ids()
        att_consts()
    else:
        c_setup()
    stamp("setup2")

def half_bases(col):
    I("s_bitcmp1_b32", sTG, 0)
    I("s_cselect_b32", sB, hx(224 * 2688), 0)
    I("s_cselect_b32", sE, 0, hx(224 * 2688))
    I("s_add_u32", sB, sB, sJ128)
    I("s_add_u32", sE, sE, sJ128)

def phase_a_loader1():
    A.cmt("---- phase A loader")
    dma_lane_consts()
    half_bases(0)
    A.wait_lg_all(force=True)
    epoch_load()
    srds([8, 60, 4, 12, 16, 20, 24, 28, 32])
    late_consts()
    barrier()
    dma_seq(SRD_WQKV, 2688, slot(0), (sJ128, 896), 4, mod=14, start=sROT)
    tag_publish()
    TP = OPT.get("tvq", 0)
    def lead():
        I("s_mul_i32", sA, sTG, hx(112))
        I("s_and_b32", sC, sLW, 1)
        I("s_mul_i32", sC, sC, 56)
        I("s_add_u32", sA, sA, sC)
        I("v_min_u32", v(TMP + 9), 55, vLANE)
        I("v_add_u32", v(TMP + 9), sA, v(TMP + 9))
        I("v_mul_u32_u24", v(TMP + 9), hx(2688), v(TMP + 9))
        I("s_cmp_lt_u32", sLW, 2)
        I("s_cselect_b32", sA, hx(1792), 0)
        I("s_add_u32", sA, sA, sJ128)
        touch1(SRD_WQKV, v(TMP + 9), sA)
    if TP and TP < 10:
        dma_seq(SRD_WQKV, 2688, slot(0), (sJ128, 896), TP, mod=14, start="cont")
        lead()
        d0 = dma_seq(SRD_WQKV, 2688, slot(0), (sJ128, 896), 10 - TP, mod=14, start="cont")
    else:
        d0 = dma_seq(SRD_WQKV, 2688, slot(0), (sJ128, 896), 10, mod=14, start="cont")
        if TP:
            lead()
    dma_seq(SRD_WQKV, 2688, slot(2), (sB, 1792), OPT.get("v1n", 7))
    A.wait(vm=d0)
    barrier()
    if not OPT.get("ml", 1):
        tag_read_finish(tag_read_issue())
        mode_issue()
    if OPT.get("v1n", 7) < 7:
        dma_seq(SRD_WQKV, 2688, slot(2), (sB, 1792), 7 - OPT["v1n"], start="cont")
    d1 = dma_seq(SRD_WQKV, 2688, slot(3), (sE, 1792), 7)
    dma_seq(SRD_WQKV, 2688, slot(4), (sB, 0), 7)
    if OPT.get("ml", 1):
        tag_read_finish(tag_read_issue())
    A.wait(vm=d1)
    barrier()
    d2 = dma_seq(SRD_WQKV, 2688, slot(0), (sE, 0), 7)
    att_ids()
    att_consts_b()
    kv_poll_off(TMP + 4, 0)
    cnt_setup([23, 24, 25])
    A.wait(vm=d2)
    arrive(bQ)
    stamp("b_q")
    mode_issue()
    A.wait_vm_all(force=True)
    mode_check()
    arrive(bM)
    if OPT.get("r2m", 0):
        I("s_lshl_b32", sA, sJ, 11)
        tile_off(sC, R_2, TB, extra=sA)
        I("v_lshlrev_b32", v(TMP + 12), 7, vTOK)
        touch1(SRD_WS, v(TMP + 12), sC)
    I("s_mov_b32", sA, sJ128)
    for k in range(OPT.get("w2e", 7)):
        I("buffer_load_dwordx4", vr(PARK + 4 * k, 4), vD896, SRD_W2, sA, mods="offen")
        I("s_add_u32", sA, sA, hx(32 * 896))

def colsum_a(i, bases):
    if OPT.get("nocs"):
        return
    t0, t1 = TMP, TMP + 1
    I("v_add_u32", v(t0), hx(bases[0]), v(vCL))
    I("v_add_u32", v(t1), hx(bases[1]), v(vCL))
    rd = []
    for s_ in range(14):
        ad = v(t0 if s_ < 7 else t1)
        I("ds_read_b64_tr_b16", vr(AREG + 4 * s_, 2), ad, mods="offset:%d" % (4096 * (s_ % 7)))
        rd.append(I("ds_read_b64_tr_b16", vr(AREG + 4 * s_ + 2, 2), ad, mods="offset:%d" % (4096 * (s_ % 7) + 1024)))
    A.wait_lg_all()
    for s_ in range(14):
        m16(ACC, AREG + 4 * s_, ONES, s_ == 0)
    I("s_mov_b32", "exec_lo", hx(0x10001))
    I("s_mov_b32", "exec_hi", hx(0x10001))
    I("ds_write_b128", v(vCW), vr(ACC, 4), mods="offset:%d" % (256 * i))
    I("s_mov_b64", "exec", -1)
    A.wait_lg_all()

vCL, vCW = 20, 21
def phase_a_loader():
    A.cmt("---- phase A loader")
    dma_lane_consts()
    A.wait_lg_all(force=True)
    epoch_load()
    srds([8, 60])
    barrier()
    dma_seq(SRD_WQKV, 2688, slot(0), (sJ128, 896), 4, mod=14, start=sROT)
    tag_publish()
    d0 = dma_seq(SRD_WQKV, 2688, slot(0), (sJ128, 896), 10, mod=14, start="cont")
    dma_seq(SRD_WQKV, 2688, slot(2), (sJ128, 1792), 7)
    late_consts1()
    t0, t1, t2 = TMP, TMP + 1, TMP + 2
    I("v_bfe_u32", v(t0), vLANE, 2, 2)
    I("v_and_b32", v(t1), 1, vQ4)
    I("v_lshl_add_u32", v(t1), v(t1), 2, v(t0))
    I("v_lshrrev_b32", v(t2), 1, vQ4)
    I("v_lshl_add_u32", v(t1), v(t2), 4, v(t1))
    I("v_and_b32", v(t0), 2, v(t0))
    I("v_lshlrev_b32", v(t0), 5, v(t0))
    I("s_lshl_b32", sA, sLW, 5)
    I("v_xor_b32", v(t0), sA, v(t0))
    I("v_lshl_add_u32", v(t0), v(t1), 7, v(t0))
    I("v_and_b32", v(t1), 3, vLANE)
    I("v_lshl_add_u32", v(vCL), v(t1), 3, v(t0))
    I("s_lshl_b32", sA, sLW, 6)
    I("s_add_u32", sA, sA, hx(L_CSA))
    I("v_lshl_add_u32", v(vCW), vQ4, 4, sA)
    cnt_setup([23, 24, 25])
    A.wait(vm=d0)
    stamp("b_k")
    barrier()
    d1 = dma_seq(SRD_WQKV, 2688, slot(3), (sJ128, 1792 + 224 * 2688), 7)
    dma_seq(SRD_WQKV, 2688, slot(4), (sJ128, 0), 7)
    tag_read_finish(tag_read_issue())
    I("s_setprio", 2)
    colsum_a(0, (slot(0), slot(1)))
    A.wait(vm=d1)
    stamp("b_v")
    barrier()
    d2 = dma_seq(SRD_WQKV, 2688, slot(0), (sJ128, 224 * 2688), 7)
    mode_issue()
    colsum_a(1, (slot(2), slot(3)))
    I("s_waitcnt", "vmcnt(1)")
    l_ = A.newlabel("Lw4")
    I("s_cmp_eq_u32", sW, 4)
    I("s_cbranch_scc1", l_)
    I("s_waitcnt", "vmcnt(0)")
    A.label(l_)
    stamp("b_q")
    barrier()
    colsum_a(2, (slot(4), slot(0)))
    A.wait_vm_all(force=True)
    mode_check()
    arrive(3)
    I("s_setprio", 0)
    srds([12, 16, 20, 24, 28, 32])
    I("s_mov_b32", sA, sJ128)
    for k in range(7):
        I("buffer_load_dwordx4", vr(PARK + 4 * k, 4), vD896, SRD_W2, sA, mods="offen")
        I("s_add_u32", sA, sA, hx(32 * 896))
    late_consts2()
    I("v_mov_b32", v(43), 0)
    att_ids()
    att_consts_b()
    kv_poll_off(TMP + 4, 0)

L_KIMG, L_VIMG = slot(1), slot(2)
def att_ids():
    I("s_and_b32", sHEAD, sLI, 15)
    I("s_lshr_b32", sA, sLI, 4)
    I("s_lshl_b32", sA, sA, 3)
    I("s_lshl_b32", sTQ0, sX, 4)
    I("s_add_u32", sTQ0, sTQ0, sA)
    I("s_mul_i32", sC0, sHEAD, 7)
    I("s_lshr_b32", sC0, sC0, 1)
    I("s_lshl_b32", sA, sLW, 1)
    I("s_add_u32", sT1, sTQ0, sA)

def kv_poll_off(dst, e):
    t0, t2, t3 = TMP, TMP + 2, TMP + 3
    I("s_lshr_b32", sA, sC0, 2)
    I("s_add_u32", sB, sC0, 3)
    I("s_lshr_b32", sB, sB, 2)
    I("s_sub_u32", sB, sB, sA)
    I("v_and_b32", v(t0), sB, vLANE)
    I("v_add_u32", v(t0), sA, v(t0))
    if e is None:
        I("s_and_b32", sA, sT1, 15)
        I("s_lshl_b32", sA, sA, 6)
        I("s_add_u32", sA, sA, sPAGE)
        I("s_add_u32", sA, sA, hx(R_FQ))
        I("v_lshl_add_u32", v(dst), v(t0), 2, sA)
        return
    I("v_lshlrev_b32", v(t0), 7, v(t0))
    I("s_mul_i32", sA, sLW, 6)
    I("s_add_u32", sA, sA, sTQ0)
    I("s_sub_u32", sA, sA, 16)
    I("v_and_b32", v(t2), hx(0xfe), vLANE)
    I("v_min_u32", v(t2), 4, v(t2))
    I("v_add_u32", v(t3), sA, v(t2))
    I("v_max_i32", v(t3), 0, v(t3))
    I("v_lshrrev_b32", v(dst), 4, v(t3))
    I("v_lshlrev_b32", v(dst), PSH, v(dst))
    I("v_add_u32", v(dst), v(dst), v(t0))
    I("v_and_b32", v(t0), 15, v(t3))
    I("v_lshl_add_u32", v(dst), v(t0), 10, v(dst))
    I("v_add_u32", v(dst), hx(R_FQKV + 4 * e), v(dst))

def kv_poll_off1(dst, e):
    t0, t2, t3 = TMP, TMP + 2, TMP + 3
    I("s_lshr_b32", sA, sC0, 3)
    I("s_add_u32", sB, sC0, 3)
    I("s_lshr_b32", sB, sB, 3)
    I("s_sub_u32", sB, sB, sA)
    I("v_and_b32", v(t0), sB, vLANE)
    I("v_add_u32", v(t0), sA, v(t0))
    I("v_lshrrev_b32", v(t2), 1, vLANE)
    if e is None:
        I("s_and_b32", sA, sTQ0, 15)
        I("s_lshl_b32", sB, sLW, 1)
        I("s_add_u32", sA, sA, sB)
        I("v_and_b32", v(t2), 1, v(t2))
        I("v_add_u32", v(t2), sA, v(t2))
        I("v_lshlrev_b32", v(t0), 2, v(t0))
        I("v_lshl_add_u32", v(t0), v(t2), 7, v(t0))
        I("s_add_u32", sA, sPAGE, hx(R_FQ))
        I("v_add_u32", v(dst), sA, v(t0))
        return
    I("v_lshlrev_b32", v(t0), 7, v(t0))
    I("s_mul_i32", sA, sLW, 6)
    I("s_add_u32", sA, sA, sTQ0)
    I("s_sub_u32", sA, sA, 16)
    I("v_min_u32", v(t2), 5, v(t2))
    I("v_add_u32", v(t3), sA, v(t2))
    I("v_max_i32", v(t3), 0, v(t3))
    I("v_lshrrev_b32", v(dst), 4, v(t3))
    I("v_lshlrev_b32", v(dst), PSH, v(dst))
    I("v_add_u32", v(dst), v(dst), v(t0))
    I("v_and_b32", v(t0), 15, v(t3))
    I("v_lshl_add_u32", v(dst), v(t0), 10, v(dst))
    I("v_add_u32", v(dst), hx(R_FQKV + 4 * e), v(dst))

PA = OPT.get('pa', 1)
if PA == 1:
    kv_poll_off = kv_poll_off1
    phase_a_compute = phase_a_compute1
    phase_a_loader = phase_a_loader1

def kv_dma(reg, img, vsrc):
    last = None
    I("s_mul_i32", sC, sLW, 6)
    I("s_lshl_b32", sF, sC, 10)
    I("s_add_u32", sF, sF, hx(img))
    I("s_add_u32", sC, sC, sTQ0)
    I("s_sub_u32", sC, sC, 16)
    I("s_lshl_b32", sE, sC0, 8)
    I("s_add_u32", sE, sE, hx(reg))
    for i in range(6):
        I("s_add_u32", "m0", sF, hx(1024 * i))
        I("s_add_u32", sA, sC, i)
        I("s_lshr_b32", sB, sA, 4)
        I("s_lshl_b32", sB, sB, PSH)
        I("s_and_b32", sG, sA, 15)
        I("s_mul_i32", sG, sG, hx(TB))
        I("s_add_u32", sB, sB, sG)
        I("s_add_u32", sB, sB, sE)
        I("s_cmp_lt_i32", sA, 0)
        I("s_cmov_b32", sB, hx(OOB))
        last = I("buffer_load_dwordx4", vsrc, SRD_WS, sB, mods="offen sc1 lds")
    return last

def w1_touches():
    I("s_cmp_lt_u32", sLW, 2)
    I("s_cselect_b32", "s64", "s12", "s16")
    I("s_cselect_b32", "s65", "s13", "s17")
    I("s_mov_b32", "s66", hx(448 * 448 * 2))
    I("s_mov_b32", "s67", hx(0x20000))
    I("s_and_b32", sA, sLW, 1)
    I("s_mul_i32", sA, sA, 28)
    I("s_add_u32", sA, sA, sLI)
    I("s_lshl_b32", sA, sA, 13)
    I("v_lshlrev_b32", v(TMP + 12), 7, vLANE)
    touch1(SRD_BG, v(TMP + 12), sA)
    I("s_lshl_b32", sA, sJ, 11)
    tile_off(sC, R_2, TB, extra=sA)
    I("v_lshlrev_b32", v(TMP + 12), 7, vTOK)
    touch1(SRD_WS, v(TMP + 12), sC)
    if not OPT["alias"]:
        for reg in ():
            tile_off(sC, reg, TB, extra=sA)
            touch1(SRD_WS, v(TMP + 12), sC)
    I("s_lshl_b32", sA, sJ, 8)
    tile_off(sC, R_SH, 2048, extra=sA)
    I("v_and_b32", v(TMP + 12), 1, vLANE)
    I("v_lshlrev_b32", v(TMP + 12), 7, v(TMP + 12))
    I("v_and_b32", v(TMP + 13), 2, vLANE)
    I("v_lshl_add_u32", v(TMP + 12), v(TMP + 13), 14, v(TMP + 12))
    touch1(SRD_WS, v(TMP + 12), sC)

def w2_touches():
    I("s_lshl_b32", sA, sLW, 5)
    I("s_add_u32", sA, sA, sLI)
    I("s_sub_u32", sB, hx(127), sA)
    I("s_lshl_b32", sA, sA, 14)
    I("s_lshl_b32", sB, sB, 13)
    I("v_lshlrev_b32", v(TMP + 12), 7, vLANE)
    I("v_lshlrev_b32", v(TMP + 13), 8, vLANE)
    touch1(SRD_W2, v(TMP + 12), sB)
    touch1(SRD_W3, v(TMP + 13), sA)
    if OPT["ta"] > 1:
        I("s_add_u32", sA, sA, hx(128))
        touch1(SRD_W3, v(TMP + 13), sA)

def mode_issue(count=False):
    if not OPT["local"]:
        return
    I("v_and_b32", v(TMP + 6), 31, vLANE)
    I("s_add_u32", sA, sPAGE, hx(R_XCC))
    I("v_lshl_add_u32", v(TMP + 6), v(TMP + 6), 7, sA)
    l = A.newlabel("Lmi")
    I("s_cmp_lg_u32", sW, 4)
    I("s_cbranch_scc1", l)
    I("buffer_load_dword", v(TMP + 7), v(TMP + 6), SRD_WS, 0, mods="offen sc1")
    A.vm -= 1
    A.label(l)

def mode_check():
    if not OPT["local"]:
        return
    l = A.newlabel("Lmc")
    I("s_cmp_lg_u32", sW, 4)
    I("s_cbranch_scc1", l)
    sv = (A.vm, A.vm_done, A.lg, A.lg_done)
    lp, dn = A.newlabel("Lpoll"), A.newlabel("Lpd")
    I("s_mov_b32", sCNT, hx(40000))
    A.label(lp)
    I("v_subrev_u32", v(TMP + 7), sTAG, v(TMP + 7))
    I("v_cmp_le_u32", "vcc", 16, v(TMP + 7))
    I("s_cbranch_vccz", dn)
    I("s_sub_u32", sCNT, sCNT, 1)
    I("s_cmp_eq_u32", sCNT, 0)
    I("s_cbranch_scc1", dn)
    I("s_sleep", 4)
    I("buffer_load_dword", v(TMP + 7), v(TMP + 6), SRD_WS, 0, mods="offen sc1")
    A.wait_vm_all(force=True)
    I("s_branch", lp)
    A.label(dn)
    I("v_cmp_ne_u32", "vcc", sXCC, v(TMP + 7))
    I("s_cmp_eq_u64", "vcc", 0)
    I("s_cselect_b32", sA, 1, 0)
    I("v_mov_b32", v(TMP), sA)
    I("v_mov_b32", v(TMP + 1), hx(L_MODE))
    I("ds_write_b32", v(TMP + 1), v(TMP))
    A.wait_lg_all(force=True)
    A.vm, A.vm_done, A.lg, A.lg_done = sv
    A.label(l)

def att_loader_pre():
    poll(v(TMP + 4), sleep=2)
    stamp("k_ready")
    kv_dma(R_K, L_KIMG, vL16)
    kv_poll_off(TMP + 5, None)
    I("v_add_u32", v(TMP + 4), 4, v(TMP + 4))
    I("s_and_b32", sA, sTQ0, 15)
    I("s_lshl_b32", sB, sLW, 1)
    I("s_add_u32", sA, sA, sB)
    I("s_lshl_b32", sE, sC0, 8)
    tile_off(sC, R_Q, TB, tl=sA, extra=sE)
    I("s_lshl_b32", sB, sB, 10)
    I("s_add_u32", "m0", sB, hx(L_QIMG))
    I("s_add_u32", sE, sC, hx(TB - 1024))
    poll(v(TMP + 5), sleep=0)
    stamp("q_ready")
    I("buffer_load_dwordx4", vL16, SRD_WS, sC, mods="offen sc1 lds")
    dq = I("buffer_load_dwordx4", vL16, SRD_WS, sE, mods="offen offset:1024 sc1 lds")
    A.wait(vm=dq)
VP = [None]

mLo, mHi, vQR, vMD, vKR, vVR0, vVR1 = 28, 29, 30, 31, 32, 33, 34
vVS = 96
def att_consts_b():
    I("v_and_b32", v(vVS), 32, vLANE)
    I("v_lshlrev_b32", v(vVS), 2, v(vVS))
    I("v_xor_b32", v(vVS), v(vVS), vL16)

def att_consts():
    t0, t1, t2 = TMP + 8, TMP + 9, TMP + 10
    I("s_and_b32", sA, sHEAD, 1)
    I("s_cmp_eq_u32", sA, 1)
    I("s_cselect_b32", sB, 0, 9)
    I("s_cselect_b32", sE, 9, 3)
    I("v_mov_b32", v(t0), -1)
    I("v_cmp_ne_u32", "vcc", sB, vQ4)
    I("v_cndmask_b32", v(mLo), 0, v(t0), "vcc")
    I("v_cmp_ne_u32", "vcc", sE, vQ4)
    I("v_cndmask_b32", v(mHi), 0, v(t0), "vcc")
    I("s_lshl_b32", sA, sLW, 11)
    I("s_add_u32", sB, sA, hx(L_KIMG))
    I("v_add_u32", v(vKR), sB, vL16)
    I("v_and_b32", v(t0), 3, vLANE)
    I("v_lshrrev_b32", v(t1), 2, vLANE)
    I("v_and_b32", v(t2), 2, v(t0))
    I("v_lshlrev_b32", v(t2), 2, v(t2))
    I("v_xor_b32", v(t1), v(t1), v(t2))
    I("v_lshlrev_b32", v(t1), 4, v(t1))
    I("v_lshl_add_u32", v(t1), v(t0), 8, v(t1))
    I("v_and_b32", v(t0), 1, v(t0))
    I("v_lshl_or_b32", v(t1), v(t0), 3, v(t1))
    I("s_add_u32", sB, sA, hx(L_VIMG))
    I("v_add_u32", v(vVR0), sB, v(t1))
    I("v_xor_b32", v(vVR1), 8, v(vVR0))
    I("s_add_u32", sB, sA, hx(L_QIMG))
    I("v_add_u32", v(vQR), sB, vL16)
    I("v_mov_b32", v(vMD), hx(L_MODE))
    I("v_lshlrev_b32", v(t0), 2, vQ4)
    for i, sm in enumerate(MSK):
        I("v_add_u32", v(t1), i, v(t0))
        I("v_cmp_gt_u32", sm, v(t1), vTOK)
    I("s_and_b32", sB, sT1, 15)
    I("s_lshl_b32", sA, sC0, 8)
    tile_off("s44", R_O, TB, tl=sB, extra=sA)
    I("s_lshl_b32", sA, sHEAD, 2)
    tile_off("s59", R_FO, 128, tl=sB, extra=sA)
    I("s_bitcmp1_b32", sHEAD, 0)
    I("s_cselect_b32", "s42", hx(0xffff), 0)
    I("s_cselect_b32", "s43", 0, hx(0xffff0000))
    I("s_cselect_b32", "s46", 8, 0)
    I("s_mov_b32", "s48", hx(0xffff))
    I("s_mov_b32", "s49", 0)
    I("s_not_b64", "s[40:41]", "s[42:43]")
    I("s_add_u32", "s46", "s46", "s44")
    I("s_add_u32", "s45", "s44", hx(TB))
    I("s_add_u32", "s47", "s46", hx(TB))
TAILS = []
MSK = ["s[36:37]", "s[38:39]", "s[50:51]", "s[52:53]"]

def att_a():
    A.cmt("---- attention (A waves)")
    OA, QF, KF, VF, SA, SB = 48, 72, 80, 72, 104, 172
    S = lambda q, t: (SA + 4 * t) if q == 0 else (SB + 4 * (t - 1))
    NEG = TMP + 5
    M = [[TMP + 6, TMP + 8], [TMP + 10, TMP + 12]]
    I("v_mov_b32", v(NEG), hx(0xff800000))
    for qq in range(2):
        for k in range(2):
            I("v_mov_b32", v(M[qq][k]), v(NEG))
    lpf = A.newlabel("Lpf")
    I("s_cmp_ge_u32", sT1, 16)
    I("s_cbranch_scc1", lpf)
    I("v_mov_b32", v(NEG - 1), v(NEG))
    for r in list(range(SA, SA + 64, 2)) + list(range(SB, SB + 60, 2)):
        I("v_mov_b64", vr(r, 2), vr(NEG - 1, 2))
    A.label(lpf)
    barrier()
    stamp("kq_landed")
    I("ds_read_b128", vr(QF, 4), v(vQR))
    q = I("ds_read_b128", vr(QF + 4, 4), v(vQR), mods="offset:1024")
    if OPT["local"]:
        q = I("ds_read_b32", v(vMD), v(vMD))
    def kread(t):
        return I("ds_read_b128", vr(KF + 4 * (t % 4), 4), v(vKR), mods="offset:%d" % (1024 * t))
    def qprep(n):
        I("s_waitcnt", "lgkmcnt(%d)" % n)
        if OPT["local"]:
            I("v_readfirstlane_b32", sMODE, v(vMD))
        for i in range(8):
            I("v_and_b32", v(QF + i), v((mLo, mLo, mHi, mHi)[i & 3]), v(QF + i))

    def post(t):
        for qq in range(2):
            if not (qq <= t <= 16 + qq):
                continue
            r = S(qq, t)
            if t == qq:
                for i in range(4):
                    I("v_cndmask_b32", v(r + i), v(NEG), v(r + i), MSK[i])
            if t == 16 + qq:
                for i in range(4):
                    I("v_cndmask_b32", v(r + i), v(r + i), v(NEG), MSK[i])
            I("v_max3_f32", v(M[qq][0]), v(M[qq][0]), v(r), v(r + 1))
            I("v_max3_f32", v(M[qq][1]), v(M[qq][1]), v(r + 2), v(r + 3))

    lx0 = A.newlabel("Lx0")
    ent = {t: A.newlabel("Lst") for t in range(2, 18, 2)}
    I("s_cmp_lt_u32", sT1, 16)
    I("s_cbranch_scc1", lx0)
    rd = [kread(t) for t in range(4)]
    qprep(4)
    for t in range(18):
        if t in ent:
            A.label(ent[t])
        I("s_waitcnt", "lgkmcnt(%d)" % min(3, 17 - t))
        for qq in range(2):
            if qq <= t <= 16 + qq:
                I("v_mfma_f32_16x16x32_bf16", vr(S(qq, t), 4), vr(KF + 4 * (t % 4), 4), vr(QF + 4 * qq, 4), "0")
        if t + 4 < 18:
            kread(t + 4)
        if t >= 2:
            post(t - 2)
    post(16)
    post(17)
    A.lg_done = A.lg
    def stubs():
        A.label(lx0)
        qprep(0)
        for t0 in range(2, 18, 2):
            nx = A.newlabel("Lnx")
            if t0 < 16:
                I("s_cmp_lg_u32", sT1, 16 - t0)
                I("s_cbranch_scc1", nx)
            for t in range(t0, min(t0 + 4, 18)):
                kread(t)
            I("s_branch", ent[t0])
            A.label(nx)
    TAILS.append(stubs)
    stamp("s_done")
    for op in ("max", "mov", "p32", "max", "mov", "p16", "max", "neg"):
        for qq in range(2):
            a, b = M[qq]
            if op == "max": I("v_max_f32", v(a), v(a), v(b))
            if op == "mov": I("v_mov_b32", v(b), v(a))
            if op == "p32": I("v_permlane32_swap_b32", v(a), v(b))
            if op == "p16": I("v_permlane16_swap_b32", v(a), v(b))
            if op == "neg": I("v_sub_f32", v(a), 0, v(a))
    for qq in range(2):
        for g in range(0, 68, 2):
            r = (SA, SB)[qq] + g
            I("v_pk_add_f32", vr(r, 2), vr(r, 2), vr(M[qq][0], 2), mods="op_sel_hi:[1,0]")

    def tiles(qq, p):
        return [t for t in (2 * p, 2 * p + 1) if qq <= t <= 16 + qq]
    def exp_ops(p):
        ops = []
        for qq in range(2):
            ts = tiles(qq, p)
            r = S(qq, ts[0])
            n = 4 * len(ts)
            ops += [lambda r=r, i=i: I("v_exp_f32", v(r + i), v(r + i)) for i in range(n)]
        return ops
    def cvt_ops(p):
        ops = []
        for qq in range(2):
            ts = tiles(qq, p)
            r = S(qq, ts[0])
            ops += [lambda r=r, i=i: I("v_cvt_pk_bf16_f32", v(r + i), v(r + 2 * i), v(r + 2 * i + 1)) for i in range(2 * len(ts))]
        return ops
    vrd = {}
    def vread_ops(p):
        d = VF + 8 * (p % 3)
        ops = []
        for a, vr_ in enumerate((vVR0, vVR1)):
            for h in range(2):
                def f(a=a, vr_=vr_, h=h):
                    vrd[p] = I("ds_read_b64_tr_b16", vr(d + 4 * a + 2 * h, 2), v(vr_), mods="offset:%d" % (2048 * p + 1024 * h))
                ops.append(f)
        return ops
    def pv_ops(p):
        d = VF + 8 * (p % 3)
        ops = [lambda: A.wait(lg=vrd[p])]
        for qq in range(2):
            ts = tiles(qq, p)
            r = S(qq, ts[0])
            o = OA + 12 * qq
            for acc, areg in ((o + 8, None), (o, d), (o + 4, d + 4)):
                if len(ts) == 2:
                    ops.append(lambda acc=acc, areg=areg, r=r: m16(acc, ONES if areg is None else areg, r, p == 0))
                else:
                    ar = ONES if areg is None else areg + (2 if qq == 1 else 0)
                    ops.append(lambda acc=acc, ar=ar, r=r: I("v_mfma_f32_16x16x16_bf16", vr(acc, 4), vr(ar, 2), vr(r, 2),
                                                            "0" if p == 0 else vr(acc, 4)))
        return ops
    LAG = OPT.get("lag", 4)
    side = []
    issued_v = 0
    done_pv = 0
    for p in range(9):
        main = exp_ops(p) + (cvt_ops(p - 1) if p else [])
        if p == LAG - 1:
            barrier()
            stamp("v_landed")
            side += vread_ops(0) + vread_ops(1)
            issued_v = 2
        if p >= LAG:
            for _ in range(2):
                if done_pv <= p - 2:
                    if issued_v < 9:
                        side += vread_ops(issued_v)
                        issued_v += 1
                    side += pv_ops(done_pv)
                    done_pv += 1
        for k, op in enumerate(main):
            op()
            if side:
                side.pop(0)()
        while side:
            side.pop(0)()
    for op in cvt_ops(8):
        op()
    stamp("softmax_done")
    while done_pv < 9:
        if issued_v < 9:
            for op in vread_ops(issued_v):
                op()
            issued_v += 1
        for op in pv_ops(done_pv):
            op()
        done_pv += 1
    for qq in range(2):
        I("v_rcp_f32", v(TMP + 12 + qq), v(OA + 12 * qq + 8))
    for qq in range(2):
        for i in range(8):
            I("v_mul_f32", v(OA + 12 * qq + i), v(OA + 12 * qq + i), v(TMP + 12 + qq))
    pack(TMP, OA, 8)
    pack(TMP + 4, OA + 12, 8)
    unswap(TMP, 2)
    for qq in range(2):
        I("v_cndmask_b32", v(TMP + 8 + 2 * qq), v(TMP + 4 * qq), v(TMP + 4 * qq + 2), "s[48:49]")
        I("v_cndmask_b32", v(TMP + 9 + 2 * qq), v(TMP + 4 * qq + 1), v(TMP + 4 * qq + 3), "s[48:49]")
    def ost(m):
        mm = "offen" + (" " + m if m else "")
        I("s_mov_b64", "exec", "s[40:41]")
        I("buffer_store_dwordx4", vr(TMP, 4), vL16, SRD_WS, "s44", mods=mm)
        I("buffer_store_dwordx4", vr(TMP + 4, 4), vL16, SRD_WS, "s45", mods=mm)
        I("s_mov_b64", "exec", "s[42:43]")
        I("buffer_store_dwordx2", vr(TMP + 8, 2), vL16, SRD_WS, "s46", mods=mm)
        I("buffer_store_dwordx2", vr(TMP + 10, 2), vL16, SRD_WS, "s47", mods=mm)
        I("s_mov_b64", "exec", -1)
    moded(ost)
    stamp("o_stored")

def att_b():
    A.cmt("---- attention (B waves)")
    barrier()
    if OPT["local"]:
        I("v_mov_b32", v(TMP + 6), hx(L_MODE))
        I("ds_read_b32", v(TMP + 6), v(TMP + 6))
    poll(v(TMP + 4))
    stamp("v_ready")
    kv_dma(R_V, L_VIMG, v(vVS))
    if OPT["local"]:
        A.wait_lg_all()
        I("v_readfirstlane_b32", sMODE, v(TMP + 6))
    lsp, lj = A.newlabel("Lbs"), A.newlabel("Lbj")
    I("s_cmp_ge_u32", sLI, 28)
    I("s_cbranch_scc1", lsp)
    sv = (A.vm, A.vm_done)
    dv = A.vm
    NB6 = OPT.get("nb6", 8)
    dma_seq(SRD_WO, 896, slot(3), (sJ128, 0), NB6)
    A.wait(vm=dv)
    stamp("b_vland")
    barrier()
    stamp("b_b6")
    if NB6 < 14:
        dma_seq(SRD_WO, 896, slot(3), (sJ128, 0), 14 - NB6, start="cont")
    dw1 = dma_seq(SRD_W1, 896, slot(0), (sJ128, 0), 14)
    k0 = OPT.get("w2e", 7)
    I("s_add_u32", sA, sJ128, hx(32 * 896 * k0))
    for k in range(k0, 14):
        I("buffer_load_dwordx4", vr(PARK + 4 * k, 4), vD896, SRD_W2, sA, mods="offen")
        I("s_add_u32", sA, sA, hx(32 * 896))
    stamp("b_w2iss")
    cnt_setup([23, 24, 25])
    A.wait(vm=dw1)
    arrive(bWO)
    A.wait_vm_all(force=True)
    stamp("bg_done")
    I("s_branch", "L_cload")
    A.label(lsp)
    A.vm, A.vm_done = sv
    SE = OPT.get("se", 5)
    I("s_waitcnt", "vmcnt(0)")
    if SE:
        spare_att(0, SE)
    barrier()
    spare_att(SE, 14)
    A.wait_vm_all(force=True)
    stamp("bg_done")
    barrier()
    spare_colsum()
    I("s_branch", "L_spare2")

PARK = 184
def o_flag():
    A.wait_vm_all(force=True)
    def f(m):
        I("s_mov_b64", "exec", 1)
        I("buffer_store_dword", vTAG, "off", SRD_WS, "s59", mods=m)
        I("buffer_store_dword", vTAG, "off", SRD_WS, "s59", mods="offset:128" + (" " + m if m else ""))
        I("s_mov_b64", "exec", -1)
    moded(f)
    stamp("o_flag")

def ack_flag(st, name):
    A.wait(vm=st)
    moded(lambda m: flag_store(sD, m))
    stamp(name)

def store_out(preg, q_barrier=True):
    def f(m):
        frag_store(preg, sC, mods=m)
        return frag_store(preg + 4, sC, 1024, mods=m)
    return moded(f)

aM1, aP1, aX1, aM2, aP2, aX2, vDP = 36, 37, 38, 39, 40, 41, 42
vCS = 6
sR1, sR2, sGH, sFHH, sSP = "s54", "s55", "s56", "s57", "s58"
def c_setup():
    t0, t1, t2, t3 = TMP + 8, TMP + 9, TMP + 10, TMP + 11
    stat_aux()
    I("v_lshlrev_b32", v(vCS), 4, vQ4)
    I("v_add_u32", v(vCS), hx(131072), v(vCS))
    I("s_lshl_b32", sB, sX, 8)
    I("s_lshl_b32", sA, sTL, 4)
    I("s_add_u32", sB, sB, sA)
    I("v_mov_b32", v(t3), hx(OOB))
    for reg, d in ((aM1, -1), (aP1, 1), (aM2, -2), (aP2, 2)):
        I("s_add_u32", sA, sB, d)
        I("v_add_u32", v(t0), sA, vTOK)
        I("v_lshrrev_b32", v(t1), 8, v(t0))
        I("v_bfe_u32", v(t2), v(t0), 4, 4)
        I("v_mul_u32_u24", v(reg), hx(TB), v(t2))
        I("v_add_u32", v(reg), hx(R_HH), v(reg))
        I("v_and_b32", v(t2), 1, v(t2))
        I("v_mul_u32_u24", v(t2), hx(TB), v(t2))
        I("v_add_u32", v(t2), hx(R_HALO), v(t2))
        I("v_cmp_ne_u32", "vcc", sX, v(t1))
        I("v_cndmask_b32", v(reg), v(reg), v(t2), "vcc")
        I("v_lshl_add_u32", v(reg), v(t1), PSH, v(reg))
        I("v_and_b32", v(t1), 15, v(t0))
        I("v_lshl_add_u32", v(reg), v(t1), 4, v(reg))
        I("v_lshl_add_u32", v(reg), vQ4, 8, v(reg))
        I("v_cmp_gt_u32", "vcc", hx(2048), v(t0))
        if OPT.get("nohalo"):
            I("v_lshrrev_b32", v(t1), 8, v(t0))
            I("v_cmp_eq_u32", "vcc", sX, v(t1))
        I("v_cndmask_b32", v(reg), v(t3), v(reg), "vcc")
    I("v_cmp_gt_u32", "vcc", 2, vQ4)
    I("v_cndmask_b32", v(aX1), v(aP1), v(aM1), "vcc")
    I("v_cndmask_b32", v(aX2), v(aP2), v(aM2), "vcc")
    I("s_lshr_b32", sB, sB, 4)
    I("s_sub_u32", sA, sB, 1)
    I("v_min_u32", v(t0), 2, vQ4)
    I("v_add_u32", v(t0), sA, v(t0))
    I("v_max_i32", v(t0), 0, v(t0))
    I("v_min_i32", v(t0), hx(127), v(t0))
    if OPT.get("nohalo"):
        I("s_lshl_b32", sA, sX, 4)
        I("v_max_i32", v(t0), sA, v(t0))
        I("s_add_u32", sA, sA, 15)
        I("v_min_i32", v(t0), sA, v(t0))
    I("v_lshrrev_b32", v(t1), 4, v(t0))
    I("v_and_b32", v(t0), 15, v(t0))
    I("v_min_u32", v(t2), 6, vTOK)
    I("v_lshlrev_b32", v(t3), 2, v(t2))
    I("v_lshl_add_u32", v(t3), v(t0), 7, v(t3))
    I("v_lshl_add_u32", v(t3), v(t1), PSH, v(t3))
    I("v_add_u32", v(vDP), hx(R_FHH), v(t3))
    I("v_and_b32", v(t0), 1, v(t0))
    I("v_lshlrev_b32", v(t2), 7, v(t2))
    I("v_lshl_add_u32", v(t2), v(t0), 10, v(t2))
    I("v_lshl_add_u32", v(t2), v(t1), PSH, v(t2))
    I("v_add_u32", v(t2), hx(R_FHALO), v(t2))
    I("v_cmp_ne_u32", "vcc", sX, v(t1))
    I("v_cndmask_b32", v(vDP), v(vDP), v(t2), "vcc")

def c_setup_s():
    tile_off(sR1, 0, TB)
    I("s_lshl_b32", sA, sJ, 11)
    I("s_add_u32", sR2, sR1, sA)
    tile_off(sSP, R_SH, 2048)
    I("s_lshl_b32", sA, sJ, 8)
    I("s_add_u32", sGH, sSP, sA)
    I("s_lshl_b32", sA, sJ, 2)
    tile_off(sFHH, R_FHH, 128, extra=sA)

def c_compute():
    aoff = lambda s: (4096 * s, TRC)
    N1, N2, N3 = OPT.get("n1", 1), OPT.get("n2", 1), OPT.get("n3", 1)
    NA = OPT.get("na", 3)
    cnt_setup([35, 43, TMP + 15])
    pk = peek(bWO)
    set_tr(slot(3))
    unpack(ACC, HP, 16)
    verify(pk, bWO, 4)
    rd = [a_read(AREG + 16 * s, *aoff(s)) for s in range(N1)]
    flag_poll_off(34, 16, R_FO, 128, 2)
    I("s_add_u32", sC2, sR1, hx(R_O))
    bl = BLoads(14, sC2)
    o_flag()
    rd += [a_read(AREG + 16 * s, *aoff(s)) for s in range(N1, N1 + NA)]
    poll_a(v(34), TMP + 13)
    rd += [a_read(AREG + 16 * s, *aoff(s)) for s in range(N1 + NA, 7)]
    arrive(aOF)
    I("s_add_u32", sC, sR2, hx(R_H))
    I("s_mov_b32", sD, sGH)
    poll_b(v(34), TMP + 13)
    A.wait_lg_all()
    stamp("c1_ready")
    bl.first()
    gemm(14, 7, 7, aoff, lambda s: BREG + 4 * s, bl=bl.ids, bissue=bl.more, zero=False, rd=rd,
         hook=lambda s: arrive(aC1P) if s == OPT.get("p1", 8) else None)
    stamp("c1_mfma")
    pack(HP, ACC, 16)
    unswap(HP, 2)
    st = store_out(HP)
    pk = peek(bCS1)
    stat_granule(HP)
    set_tr(slot(0))
    verify(pk, bCS1, 4)
    rd = [a_read(AREG + 16 * s, *aoff(s)) for s in range(N2)]
    A.wait(vm=st)
    moded(granule_store)
    stamp("h_flag")
    rd += [a_read(AREG + 16 * s, *aoff(s)) for s in range(N2, N2 + NA)]
    stat_poll_a(sSP)
    rd += [a_read(AREG + 16 * s, *aoff(s)) for s in range(N2 + NA, 7)]
    for f in range(4):
        I("ds_read_b128", vr(ACC + 4 * f, 4), v(vCS), mods="offset:%d" % (L_CS1 - 131072 + 64 * f))
    arrive(aC1Q)
    I("s_add_u32", sC2, sR1, hx(R_H))
    bl = BLoads(14, sC2)
    stat_poll(sSP)
    stamp("c2_ready")
    bl.first()
    stat_finish()
    var, nmu, ry = TMP + 7, TMP + 8, TMP + 10
    K0, K1, RI = TMP, TMP + 2, TMP + 12
    I("v_mul_f32", v(nmu), fl(-1.0 / 448), v(TMP + 4))
    A.wait_lg_all()
    for i in range(0, 16, 2):
        pk_mul_b(ACC + i, ACC + i, nmu)
    def c2late():
        mean_var(TMP + 4, TMP + 6, vMU, var)
        rstd(vRH, var)
        I("s_add_u32", sC, sR2, hx(R_HH))
        I("v_mul_f32", v(var), v(var), v(vRH))
        I("v_mul_f32", v(var), v(var), v(vRH))
        rstd(ry, var)
        I("s_add_u32", sA, sTL, 1)
        I("v_mul_f32", v(ry), v(ry), v(vRH))
        gelu_prep(ry, K0, K1, RI)
        I("s_and_b32", sD2, sA, 15)
        I("v_mov_b32", v(TMP + 4), v(vRH))
        I("v_mul_f32", v(TMP + 6), v(nmu), v(vRH))
    side = rec(c2late)
    def cfill(s, f):
        if s >= 7 and side:
            side.pop(0)()
    gemm(14, 7, 7, aoff, lambda s: BREG + 4 * s, bl=bl.ids, bissue=bl.more, zero=False, rd=rd, fill=cfill,
         hook=lambda s: arrive(aC2P) if s == OPT.get("p2", 8) else None)
    assert not side
    stamp("c2_mfma")
    gelu(ACC, 16, BREG, K0, K1, RI, HHP, True)
    unswap(HHP, 2)
    st = store_out(HHP)
    lh = A.newlabel("Lhalo")
    if OPT.get("nohalo"):
        I("s_mov_b32", sD2, 5)
    I("s_cmp_gt_u32", sD2, 1)
    I("s_cbranch_scc1", lh)
    I("s_and_b32", sB, sTL, 1)
    I("s_lshl_b32", sA, sJ, 11)
    tile_off(sC, R_HALO, TB, tl=sB, extra=sA)
    frag_store(HHP, sC)
    frag_store(HHP + 4, sC, 1024)
    A.vm -= 2
    A.label(lh)
    stamp("hh_stored")
    pk = peek(bW2)
    set_tr(slot(3))
    unswap(HP, 2)
    unpack(ACC, HP, 16)
    for i in range(0, 16, 2):
        I("v_pk_fma_f32", vr(ACC + i, 2), vr(ACC + i, 2), vr(TMP + 4, 2), vr(TMP + 6, 2), mods="op_sel_hi:[1,0,0]")
    verify(pk, bW2, 4)
    rd = [a_read(AREG + 16 * s, *aoff(s)) for s in range(N3)]
    lh, lh2 = A.newlabel("Lhalo"), A.newlabel("Lhalo")
    I("s_cmp_gt_u32", sD2, 1)
    I("s_cbranch_scc1", lh)
    I("s_waitcnt", "vmcnt(2)")
    I("s_branch", lh2)
    A.label(lh)
    A.wait(vm=st)
    A.label(lh2)
    moded(lambda m: flag_store(sFHH, m))
    stamp("hh_flag")
    rd += [a_read(AREG + 16 * s, *aoff(s)) for s in range(N3, N3 + NA)]
    poll_a(v(vDP), TMP + 13)
    rd += [a_read(AREG + 16 * s, *aoff(s)) for s in range(N3 + NA, 7)]
    arrive(aHF)
    I("s_mov_b32", sC2, 0)
    amap = [aM1] * 3 + [aX1] + [aP1] * 3 + [aM2] * 3 + [aX2] + [aP2] * 3
    bl = BLoads(14, sC2, vaddr=lambda i: v(amap[i]))
    lh = A.newlabel("Lhalo")
    I("s_cmp_gt_u32", sD2, 1)
    I("s_cbranch_scc1", lh)
    I("s_and_b32", sB, sTL, 1)
    tile_off(sC, R_FHALO, 1024, tl=sB, extra=sJ128)
    I("s_waitcnt", "vmcnt(2)")
    flag_store(sC)
    A.vm -= 1
    A.label(lh)
    poll_b(v(vDP), TMP + 13)
    A.wait_lg_all()
    stamp("d_ready")
    bl.first()
    I("s_add_u32", sC, sR2, hx(R_X1))
    I("s_add_u32", sD, sGH, hx(R_SX - R_SH))
    e_lane_a()
    gemm(14, 7, 7, aoff, lambda s: BREG + 4 * s, bl=bl.ids, bissue=bl.more, zero=False, rd=rd,
         hook=lambda s: arrive(aDP) if s == OPT.get("p3", 8) else None)
    stamp("d_mfma")
    pack(TMP, ACC, 16)
    unswap(TMP, 2)
    st = store_out(TMP)
    stat_granule(TMP)
    return st

RES = 28
def colsum(bases, ldst):
    t0, t1 = TMP, TMP + 1
    I("s_and_b32", sA, sLW, 2)
    I("s_lshl_b32", sA, sA, 5)
    I("s_and_b32", sB, sLW, 1)
    I("s_lshl_b32", sB, sB, 3)
    I("s_or_b32", sA, sA, sB)
    I("v_xor_b32", v(t0), sA, v(TRL[0][0]))
    I("v_add_u32", v(t1), hx(bases[1]), v(t0))
    I("v_add_u32", v(t0), hx(bases[0]), v(t0))
    rd = []
    for s in range(14):
        ad = v(t0 if s < 7 else t1)
        I("ds_read_b64_tr_b16", vr(AREG + 4 * s, 2), ad, mods="offset:%d" % (4096 * (s % 7)))
        rd.append(I("ds_read_b64_tr_b16", vr(AREG + 4 * s + 2, 2), ad, mods="offset:%d" % (4096 * (s % 7) + 1024)))
    A.wait_lg_all()
    for s in range(14):
        m16(ACC, AREG + 4 * s, ONES, s == 0)
    I("s_lshl_b32", sA, sLW, 6)
    I("s_add_u32", sA, sA, hx(ldst))
    I("v_lshl_add_u32", v(t0), vQ4, 4, sA)
    I("s_mov_b32", "exec_lo", hx(0x10001))
    I("s_mov_b32", "exec_hi", hx(0x10001))
    I("ds_write_b128", v(t0), vr(ACC, 4))
    I("s_mov_b64", "exec", -1)

W3S = [[2, 0], [1, 3]]
vUP = 36
def w3dma(*a, **k):
    if OPT.get("nobg"):
        return A.vm
    return dma_seq(*a, **k)

def c_loader():
    A.cmt("---- C/D loader")
    CNR[:] = [23, 24, 25]
    if OPT.get("bprio", 0):
        I("s_setprio", OPT["bprio"])
    I("s_lshl_b32", sE, sJP, 8)
    e_table(False)
    I("s_lshl_b32", sA, sLW, 10)
    I("s_add_u32", sA, sA, hx(slot(3)))
    I("v_add_u32", v(vUP), sA, vL16)
    spin(aOF, 4, 1)
    colsum((slot(0), slot(1)), L_CS1)
    arrive(bCS1)
    TRG = OPT.get("trg", 2)
    spin(aC1P, TRG, 1)
    w3dma(SRD_W3, 3584, slot(W3S[0][0]), (sE, 0), 7)
    spin(aC1P, 4, 1)
    for k in range(14):
        I("ds_write_b128", v(vUP), vr(PARK + 4 * k, 4), mods="offset:%d" % (4096 * k))
    arrive(bW2)
    I("v_and_b32", v(TMP), 3, vLANE)
    I("v_and_b32", v(TMP + 1), 48, vLANE)
    I("v_or_b32", v(TMP), v(TMP), v(TMP + 1))
    I("v_lshlrev_b32", v(TMP), 3, v(TMP))
    I("v_and_b32", v(TMP + 1), 4, vLANE)
    I("v_lshl_add_u32", v(TMP), v(TMP + 1), 4, v(TMP))
    I("v_and_b32", v(TMP + 1), 8, vLANE)
    I("v_lshl_add_u32", v(TMP), v(TMP + 1), 2, v(TMP))
    I("v_add_u32", v(TMP), hx(L_CS3), v(TMP))
    I("s_lshl_b32", sC, sE, 2)
    I("s_add_u32", sC, sC, hx(OFF_CSG))
    spin(aC1Q, 4, 1)
    spin(aC2P, TRG, 1)
    stamp("b_c2p")
    w3dma(SRD_W3, 3584, slot(W3S[0][1]), (sE, 224 * 3584), 7)
    lcs = A.newlabel("Lcs")
    I("s_cmp_lg_u32", sW, 5)
    I("s_cbranch_scc1", lcs)
    lp, dn = A.newlabel("Lpoll"), A.newlabel("Lpd")
    I("s_mov_b32", sCNT, hx(40000))
    A.label(lp)
    I("buffer_load_dwordx4", vr(TMP + 4, 4), vL16, SRD_WS, sC, mods="offen sc1")
    I("s_sub_u32", sCNT, sCNT, 1)
    I("s_waitcnt", "vmcnt(0)")
    I("v_xor_b32", v(TMP + 5), vTAG, v(TMP + 5))
    I("v_xor_b32", v(TMP + 7), vTAG, v(TMP + 7))
    I("v_or_b32", v(TMP + 5), v(TMP + 5), v(TMP + 7))
    I("v_cmp_ne_u32", "vcc", 0, v(TMP + 5))
    I("s_cbranch_vccz", dn)
    I("s_sleep", 4)
    I("s_cmp_lg_u32", sCNT, 0)
    I("s_cbranch_scc1", lp)
    A.label(dn)
    I("ds_write2_b32", v(TMP), v(TMP + 4), v(TMP + 6), mods="offset0:0 offset1:1")
    A.label(lcs)
    A.wait_vm_all(force=True)
    stamp("b_w3ab")
    arrive(bAB)
    spin(aC2P, 4, 1)
    spin(aDP, TRG, 1)
    w3dma(SRD_W3, 3584, slot(W3S[1][0]), (sE, 128), 7)
    if OPT.get("d_early", 0):
        spin(aHF, 4, 1)
        w3dma(SRD_W3, 3584, slot(W3S[1][1]), (sE, 224 * 3584 + 128), 7)

W4SL = [2, 0, 1, 3]
CL = [0, 1, 2, 3]
CNR = [16, 17, 18]
def cnt_setup(regs):
    CNR[:] = regs
    I("v_mov_b32", v(CNR[0]), hx(L_CNT))
    I("v_mov_b32", v(CNR[1]), 1)

def arrive(which, areg=None):
    I("s_mov_b64", "exec", 1)
    I("ds_add_u32", v(areg or CNR[0]), v(CNR[1]), mods="offset:%d" % (4 * which))
    I("s_mov_b64", "exec", -1)

def spin(which, target, sleep=0, areg=None):
    lp, dn = A.newlabel("Lsp"), A.newlabel("Lsd")
    if sleep:
        sleep = OPT.get("bsl", sleep)
    I("s_mov_b32", sCNT, hx(400000))
    if OPT.get("ex1", 1):
        I("s_mov_b64", "exec", 1)
    A.label(lp)
    I("ds_read_b32", v(CNR[2]), v(areg or CNR[0]), mods="offset:%d" % (4 * which))
    I("s_sub_u32", sCNT, sCNT, 1)
    A.wait_lg_all(force=True)
    I("v_cmp_gt_u32", "vcc", target, v(CNR[2]))
    I("s_cbranch_vccz", dn)
    if sleep:
        I("s_sleep", sleep)
    I("s_cmp_lg_u32", sCNT, 0)
    I("s_cbranch_scc1", lp)
    A.label(dn)
    if OPT.get("ex1", 1):
        I("s_mov_b64", "exec", -1)

GT_ = ["s18", "s19", "s20", "s21", "s22", "s23", "s3"]
sTE = "s0"
def e_table(for_a):
    I("s_lshr_b32", sA, sTG, 1)
    I("s_mul_i32", sK, sA, 0 if OPT.get("own", 0) else 3)
    I("s_lshl_b32", sA, sA, 3)
    I("s_lshl_b32", sB, sLW, 1)
    I("s_add_u32", sTE, sA, sB)
    I("s_add_u32", sK, sK, sJ)
    I("s_cmp_ge_u32", sK, 7)
    I("s_cselect_b32", sA, 7, 0)
    I("s_sub_u32", sK, sK, sA)
    I("s_bitcmp1_b32", sTG, 0)
    I("s_cselect_b32", sA, hx(7 * 1024 if for_a else 7 * 128 * 896), 0)
    I("s_add_u32", sA, sA, sPAGE if for_a else sJ128)
    for i in range(7):
        r = GT_[i] if for_a else "s%d" % (36 + i)
        I("s_mul_i32", r, sK, hx(1024 if for_a else 128 * 896))
        I("s_add_u32", r, r, sA)
        if i < 6:
            I("s_add_u32", sK, sK, 1)
            I("s_cmp_eq_u32", sK, 7)
            I("s_cmov_b32", sK, 0)

PK4 = 128
def w4_park(c):
    res = []
    if c < OPT.get("now4", 0):
        W4ID[c] = None
        return []
    for i in range(7):
        def th(i=i):
            I("s_add_u32", sH_, "s%d" % (36 + i), hx(32 * CL[c] * 896))
            W4ID[c] = I("buffer_load_dwordx4", vr(PK4 + 28 * (3 - c) + 4 * i, 4), vD4, SRD_W4, sH_, mods="offen")
        res.append(th)
    return res

def w4_unpark(c):
    I("v_add_u32", v(39), hx(slot(W4SL[c]) - slot(3)), v(vUP))
    A.wait(vm=W4ID[c])
    for i in range(7):
        I("ds_write_b128", v(39), vr(PK4 + 28 * (3 - c) + 4 * i, 4), mods="offset:%d" % (4096 * i))

def w4_thunks(c):
    res = []
    for i in range(7):
        def th(i=i):
            I("s_add_u32", "m0", sF, hx(slot(W4SL[c]) + 4096 * i))
            I("s_add_u32", sH_, "s%d" % (36 + i), hx(32 * CL[c] * 896))
            W4ID[c] = I("buffer_load_dwordx4", vD4, SRD_W4, sH_, mods="offen lds")
        res.append(th)
    return res
W4ID = {}

def peek(which, areg=None):
    return I("ds_read_b32", v(CNR[2]), v(areg or CNR[0]), mods="offset:%d" % (4 * which))

def verify(ld, which, target, areg=None):
    ok, lp = A.newlabel("Lvk"), A.newlabel("Lvl")
    A.wait(lg=ld)
    I("v_cmp_gt_u32", "vcc", target, v(CNR[2]))
    I("s_cbranch_vccz", ok)
    sv = (A.lg, A.lg_done)
    I("s_mov_b32", sCNT, hx(400000))
    A.label(lp)
    peek(which, areg)
    I("s_sub_u32", sCNT, sCNT, 1)
    I("s_waitcnt", "lgkmcnt(0)")
    I("v_cmp_gt_u32", "vcc", target, v(CNR[2]))
    I("s_cbranch_vccz", ok)
    I("s_cmp_lg_u32", sCNT, 0)
    I("s_cbranch_scc1", lp)
    A.lg, A.lg_done = sv
    A.label(ok)

class Inject:
    def __init__(self, thunks, first, every=None):
        self.th, self.nx, self.every, self.c = list(thunks), first, every or first, 0
    def __enter__(self):
        global I
        self.old = I
        def J(*a, **k):
            global I
            r = self.old(*a, **k)
            self.c += 1
            if self.c >= self.nx and self.th:
                self.nx += self.every
                cur = I
                I = self.old
                self.th.pop(0)()
                I = cur
            return r
        I = J
        return self
    def __exit__(self, *a):
        global I
        I = self.old
        for t in self.th:
            t()

T32 = [7, 8]
C32 = [[11, 12], [13, 14]]
def tr32_lane(dst=T32):
    t0, t1, t2 = TMP + 12, TMP + 13, TMP + 14 - 3
    I("v_bfe_u32", v(t0), vLANE, 2, 2)
    I("v_lshrrev_b32", v(t1), 5, vLANE)
    I("v_lshl_add_u32", v(t1), v(t1), 2, v(t0))
    I("v_lshlrev_b32", v(t1), 7, v(t1))
    I("v_and_b32", v(t0), 2, v(t0))
    I("v_lshl_or_b32", v(t1), v(t0), 5, v(t1))
    I("v_and_b32", v(t0), 16, vLANE)
    I("v_lshl_or_b32", v(t1), v(t0), 1, v(t1))
    I("v_and_b32", v(t0), 1, vLANE)
    I("v_lshl_or_b32", v(t1), v(t0), 4, v(t1))
    I("v_and_b32", v(t0), 2, vLANE)
    I("v_lshl_or_b32", v(dst[0]), v(t0), 2, v(t1))
    I("v_xor_b32", v(dst[1]), 64, v(dst[0]))

def bf_lane(dst):
    I("v_and_b32", v(dst), 1, vQ4)
    I("v_mul_u32_u24", v(dst), hx(TB), v(dst))
    I("v_lshl_add_u32", v(dst), vTOK, 4, v(dst))
    I("v_lshrrev_b32", v(TMP + 12), 5, vLANE)
    I("v_lshl_add_u32", v(dst), v(TMP + 12), 8, v(dst))

def set32(base, k):
    if isinstance(base, int):
        I("s_mov_b32", sA, hx(base))
        base = sA
    for b in range(2):
        I("v_add_u32", v(C32[k][b]), base, v(T32[b]))

def rec(fn):
    global I
    old = I
    groups = []
    def J(*a, **k):
        if a[0].startswith(("s_cselect", "s_cmov", "v_cndmask")):
            groups[-1].append((a, k))
        else:
            groups.append([(a, k)])
    I = J
    fn()
    I = old
    return [lambda g=g: [old(*a, **k) for a, k in g] for g in groups]

def m32(acc, areg, breg, zero):
    I("v_mfma_f32_32x32x16_bf16", vr(acc, 16), vr(areg, 4), vr(breg, 4), "0" if zero else vr(acc, 16))

def colsum32(sg):
    t0 = TMP
    I("s_mov_b32", sA, hx(slot(W3S[sg][0])))
    I("s_bitcmp1_b32", sLW, 1)
    I("s_cmov_b32", sA, hx(slot(W3S[sg][1])))
    I("s_and_b32", sB, sLW, 1)
    I("s_lshl_b32", sB, sB, 6)
    I("v_xor_b32", v(t0), sB, v(T32[0]))
    I("v_add_u32", v(t0), sA, v(t0))
    rd = []
    for k in range(14):
        I("ds_read_b64_tr_b16", vr(AREG + 4 * k, 2), v(t0), mods="offset:%d" % (2048 * k))
        rd.append(I("ds_read_b64_tr_b16", vr(AREG + 4 * k + 2, 2), v(t0), mods="offset:%d" % (2048 * k + 1024)))
    I("s_lshl_b32", sB, sB, 1)
    I("s_add_u32", sA, sB, hx(L_CS3 + 256 * sg))
    I("v_lshrrev_b32", v(t0 + 1), 5, vLANE)
    I("v_lshl_add_u32", v(t0 + 1), v(t0 + 1), 6, sA)
    A.wait_lg_all()
    for k in range(14):
        m32(ACC, AREG + 4 * k, ONES, k == 0)
    I("s_mov_b32", "exec_lo", 1)
    I("s_mov_b32", "exec_hi", 1)
    for q in range(16):
        I("ds_add_f32", v(t0 + 1), v(ACC + q), mods="offset:%d" % (4 * q))
    I("s_mov_b64", "exec", -1)

def gemm32(nk, breg, areg, rd, bl=None, bissue=None, zero=None, hook=None):
    for k in range(nk):
        if hook:
            hook(k)
        if k % 2 == 0:
            A.wait(vm=bl(k + 1) if bl else None, lg=rd[k + 1])
        for b in range(2):
            m32((ACC, ACC2)[b], areg + 8 * (k % 6) + 4 * b, breg(k), zero(k) if zero else False)
            if bissue:
                bissue(k, b)
            if k + 4 < nk:
                r = a32(areg, k + 4, b)
        if k + 4 < nk:
            rd.append(r)

def a32(areg, k, b):
    d = areg + 8 * (k % 6) + 4 * b
    ad = v(C32[(k // 14) & 1][b])
    I("ds_read_b64_tr_b16", vr(d, 2), ad, mods="offset:%d" % (2048 * (k % 14)))
    return I("ds_read_b64_tr_b16", vr(d + 2, 2), ad, mods="offset:%d" % (2048 * (k % 14) + 1024))

vRW = [120, 121, 122, 123]
vRR = [124, 125, 126, 127]
vBF, vXP = 9, 10
def e_lane_a():
    t0, t1 = TMP + 8, TMP + 9
    tr32_lane()
    bf_lane(vBF)
    I("v_min_u32", v(vXP), 6, vTOK)
    I("v_lshlrev_b32", v(vXP), 8, v(vXP))
    I("v_and_b32", v(t0), 1, vQ4)
    I("v_lshl_add_u32", v(vXP), v(t0), 11, v(vXP))
    tile_off(sA, R_SX + 4, 2048, tl=sTE)
    I("v_add_u32", v(vXP), sA, v(vXP))
    I("v_lshl_or_b32", v(t0), vQ4, 1, v(t0))
    I("v_xor_b32", v(t0), v(t0), vTOK)
    I("v_lshlrev_b32", v(t0), 4, v(t0))
    I("v_lshl_add_u32", v(t0), vTOK, 8, v(t0))
    I("s_lshl_b32", sA, sLW, 12)
    I("s_add_u32", sA, sA, hx(L_STG))
    I("v_add_u32", v(vRW[0]), sA, v(t0))
    I("v_xor_b32", v(vRW[1]), 16, v(vRW[0]))
    I("v_xor_b32", v(vRW[2]), hx(128), v(vRW[0]))
    I("v_xor_b32", v(vRW[3]), hx(144), v(vRW[0]))

def cls_check(ld, t, voff, c, name=None, sleep=0, off=0):
    ok, lp = A.newlabel("Lrk"), A.newlabel("Lrl")
    I("s_add_u32", sA, sTAG, c)
    A.wait(vm=ld)
    I("s_mov_b32", sCNT, hx(40000))
    A.label(lp)
    I("v_subrev_u32", v(t), sA, v(t))
    I("v_cmp_le_u32", "vcc", 4, v(t))
    I("s_cbranch_vccz", ok)
    I("s_sub_u32", sCNT, sCNT, 1)
    I("s_cmp_eq_u32", sCNT, 0)
    I("s_cbranch_scc1", ok)
    sv = (A.vm, A.vm_done)
    if sleep:
        I("s_sleep", sleep)
    I("buffer_load_dword", v(t), v(voff), SRD_WS, 0, mods="offen" + (" offset:%d" % off if off else "") + " sc1")
    I("s_waitcnt", "vmcnt(0)")
    A.vm, A.vm_done = sv
    I("s_branch", lp)
    A.label(ok)
    if name:
        stamp(name)

ACC2 = 224
def e_compute(st_prev):
    A.cmt("---- E (A: matrix part)")
    ZB, AR, NR = 64, 176, 12
    vS = [TMP + 4, TMP + 5]
    vG = [20, 21, 10, 13]
    vGP, PT, vGA = 22, 23, TMP + 4
    vCW = 19
    vRP = 13
    CA = [11, 12]
    ACH = (ACC, ACC2)
    HB = [slot(W3S[0][0]), slot(W3S[0][1]), slot(W3S[1][0]), slot(W3S[1][1])] + [slot(W4SL[c]) for c in range(4)]
    tile_off(sC2, R_X1, TB, tl=sTE)
    for q in range(4):
        I("s_add_u32", "s%d" % (50 + q), sC2, hx(4096 * q))
    A.wait(vm=st_prev)
    moded(granule_store)
    stamp("x1_flag")
    cnt_setup([16, 17, 18])
    pk_ = peek(bAB)
    unpack(RES, HP, 16)
    for i in range(0, 16, 2):
        I("v_pk_add_f32", vr(RES + i, 2), vr(RES + i, 2), vr(ACC + i, 2))
    verify(pk_, bAB, 4)
    seq = [(b, n) for n in range(112) for b in range(2)]
    pos = {op: i for i, op in enumerate(seq)}
    PD = OPT.get("pd", 7)
    rd = {}
    def ard(i):
        b, n = seq[i]
        if n % 14 == 0:
            I("v_add_u32", v(CA[b]), hx(HB[n // 14]), v(T32[b]))
        d = AR + 4 * (i % NR)
        I("ds_read_b64_tr_b16", vr(d, 2), v(CA[b]), mods="offset:%d" % (2048 * (n % 14)))
        rd[i] = I("ds_read_b64_tr_b16", vr(d + 2, 2), v(CA[b]), mods="offset:%d" % (2048 * (n % 14) + 1024))
    poll_a(v(vXP), TMP + 13)
    for i in range(PD):
        ard(i)
    for q in range(4):
        I("ds_write_b128", v(vRW[q]), vr(RES + 4 * q, 4))
    arrive(aFIN)
    poll_b(v(vXP), TMP + 13)
    stamp("e1_ready")
    bl = {}
    def zload(n):
        o = (512 * n) & 4095
        bl[n] = I("buffer_load_dwordx4", vr(ZB + 4 * n, 4), v(vBF), SRD_WS, "s%d" % (50 + n // 8),
                  mods="offen" + (" offset:%d" % o if o else "") + " sc1")
    NP = OPT.get("npz", 6)
    for n in range(NP):
        zload(n)
    I("s_lshl_b32", sA, sLW, 12)
    I("s_add_u32", sB, sA, hx(slot(4)))
    I("v_add_u32", v(vS[1]), sB, vL16)
    I("s_mul_i32", sA, sTE, hx(TB))
    I("v_add_u32", v(vG[0]), sA, v(vBF))
    for c in (1, 2, 3, 0):
        if R_G[c]:
            I("v_add_u32", v(vG[c]), hx(R_G[c]), v(vG[0]))
    I("s_lshl_b32", sA, sLW, 2)
    I("v_add_u32", v(vCW), sA, v(CNR[0]))
    I("s_lshl_b32", sF, sLW, 10)
    late = []
    def setup2():
        I("s_and_b32", sE, sTG, 1)
        I("s_mul_i32", sE, sE, 28)
        I("s_lshr_b32", sB, sTE, 1)
        tile_off(sG, R_FG, 128, tl=sB)
        I("s_add_u32", sA, sG, sE)
        I("v_min_u32", v(vGP), 6, vLANE)
        I("v_lshl_add_u32", v(vGP), v(vGP), 2, sA)
        I("s_lshl_b32", sD, sJP, 2)
        I("s_add_u32", sD, sD, sG)
        I("s_add_u32", sD, sD, 64)
        I("s_and_b32", sB, sB, 4)
        I("v_min_u32", v(vGA), 13, vLANE)
        I("v_lshl_add_u32", v(vGA), v(vGA), 2, sG)
        I("s_and_b32", sA, sLW, 1)
        I("s_lshl_b32", sA, sA, 1)
        I("s_add_u32", sB, sB, sA)
        I("s_lshl_b32", sB, sB, 1)
        I("s_lshl_b32", sA, sJ, 10)
        tile_off(sC, R_XA, TB, tl=sB, extra=sA)
        I("s_bitcmp1_b32", sTG, 0)
        I("s_cselect_b32", sA, hx(7168), 0)
        I("s_cselect_b32", sB, 0, hx(7168))
        I("s_add_u32", sC2, sC, sB)
        I("s_add_u32", sC, sC, sA)
        I("s_lshl_b32", sE, sJP, 10)
        I("s_add_u32", sE, sE, sPAGE)
    def setup3():
        I("v_lshrrev_b32", v(TMP + 6), 5, vLANE)
        I("v_lshlrev_b32", v(TMP + 6), 6, v(TMP + 6))
        I("v_add_u32", v(TMP + 6), hx(L_CS3), v(TMP + 6))
        I("s_add_u32", sG, sF, hx(slot(4) + 16384))
        I("v_add_u32", v(TMP + 3), sG, vL16)
        I("v_lshrrev_b32", v(TMP), 5, vLANE)
        I("v_lshlrev_b32", v(TMP), 1, v(TMP))
        I("v_xor_b32", v(TMP), v(TMP), vTOK)
        I("v_lshlrev_b32", v(TMP), 4, v(TMP))
        I("v_and_b32", v(TMP + 1), 31, vLANE)
        I("v_lshl_add_u32", v(TMP), v(TMP + 1), 8, v(TMP))
        I("s_and_b32", sG, sLW, 1)
        I("s_lshl_b32", sG, sG, 13)
        I("s_add_u32", sG, sG, hx(L_STG))
        I("v_add_u32", v(TMP + 2), sG, v(TMP))
        I("s_lshr_b32", sG, sLW, 1)
        I("s_xor_b32", sG, sG, sTG)
        I("s_and_b32", sG, sG, 1)
    nxt, lim, cur = [0], [0], [0]
    pl = {}
    RW = [(64, 0), (0, 0), (64, 1), (0, 1)]
    def pissue(r):
        o = RW[r][0]
        pl[r] = I("buffer_load_dword", v(PT), v(vGP if r else vGA), SRD_WS, 0, mods="offen" + (" offset:%d" % o if o else "") + " sc1")
    def chk(r):
        cls_check(pl[r], PT, vGP if r else vGA, RW[r][1], "e2_ready%d" % r, off=RW[r][0])
        lim[0] += 14
    def gload():
        n = nxt[0]
        nxt[0] += 1
        assert pos[(1, n + 28)] < cur[0] and n < lim[0]
        r, k = divmod(n, 14)
        c = CL[r]
        o = 512 * (k & 1)
        if OPT.get("own", 0) and c in (0, 2) and k < 2:
            for e in range(0, 4, 2):
                I("v_mov_b64", vr(ZB + 4 * (n % 28) + e, 2), vr(T + 8 + 4 * k + e, 2))
            bl[56 + n] = None
            return
        bl[56 + n] = I("buffer_load_dwordx4", vr(ZB + 4 * (n % 28), 4), v(vG[c]), SRD_WS, GT_[k // 2],
                       mods="offen" + (" offset:%d" % o if o else "") + " sc1")
    ev = {}
    def at(i, fn):
        ev.setdefault(i, []).append(fn)
    wq = []
    wid = {}
    pk = {}
    used = set()
    def check_at(i, which, target, areg=None, then=None, move=1):
        while any(k in used for k in range(i - 3, i + 1)):
            i += move
        used.update(range(i - 3, i + 1))
        at(i - 3, lambda: pk.__setitem__(i, peek(which, areg)))
        def f():
            verify(pk[i], which, target, areg)
            if then:
                then()
        at(i, f)
    for h, cn in ((1, aF1), (3, aF3)):
        at(pos[(1, 14 * h + 13)] - PD + 1, lambda cn=cn: arrive(cn))
    at(pos[(0, OPT.get("zk", 6))], lambda: arrive(aH, vCW))
    at(pos[(0, OPT.get("zd", 20))], lambda: arrive(aZ))
    check_at(pos[(0, 18)], bW3, 4)
    def prog(val, st=None):
        I("v_add_u32", v(TMP + 7), val, vTAG)
        A.wait(vm=st)
        def f(m):
            I("s_mov_b64", "exec", 1)
            I("buffer_store_dword", v(TMP + 7), "off", SRD_WS, sD, mods=m)
            I("s_mov_b64", "exec", -1)
        moded(f)
    for q, th in enumerate(rec(setup2) + rec(setup3)):
        at(2 + q // 2, th)
        assert 2 + q // 2 < pos[(0, 16)]
    KC, T = TMP + 8, 28
    NMU, K0, K1, RI = 24, 26, 44, 14
    check_at(pos[(0, 24)], bR, 1, vCW, then=lambda: I("ds_read_b128", vr(KC, 4), v(TMP + 3)))
    check_at(pos[(0, 50)], bR, 2, vCW)
    check_at(pos[(0, 84)] - PD, aL3, 4, move=-1)
    for sg in range(2):
        for n in range(4):
            at(pos[(0, 28 * sg + (21 if sg == 0 else 23))] + n, lambda n=n, sg=sg: I("ds_read_b128", vr(T + 4 * n, 4), v(TMP + 6),
                                                               mods="offset:%d" % (256 * sg + 16 * n)))
    units = [8 * b + 4 * (g >> 1) + (g & 1) for b in range(2) for g in range(4)]
    def init(b):
        l1, l2 = A.newlabel("Lin"), A.newlabel("Lin")
        I("s_cmp_eq_u32", sG, 0)
        I("s_cbranch_scc1", l1)
        for q in range(0, 16, 2):
            I("v_mov_b64", vr(ACH[b] + q, 2), 0)
        I("s_branch", l2)
        A.label(l1)
        for n in range(4 * b, 4 * b + 4):
            I("v_xor_b32", v(KC + n % 4), hx(16 * units[n]), v(TMP + 2))
            I("ds_read_b128", vr(ACH[b] + 4 * (n % 4), 4), v(KC + n % 4))
        A.lg -= 4
        A.label(l2)
    assert OPT["k0"] + 2 <= 51
    gst = {}
    IE2 = pos[(0, 56)]
    def landed():
        A.wait(vm=bl[56 + 41])
        arrive(aH, vCW)
    at(pos[(0, OPT.get("ld", 91))], landed)
    def mid(sg):
        stamp("e1_pass%d" % sg)
        if sg == 0:
            for d, o in ((NMU, 0), (K0, 1), (K1, 2), (RI, 3)):
                I("v_mov_b32", v(d), v(KC + o))
        for q in range(0, 16, 2):
            I("v_pk_fma_f32", vr(ACC + q, 2), vr(T + q, 2), vr(NMU, 2), vr(ACC + q, 2), mods="op_sel_hi:[1,0,1]")
        w = [lambda q=q: I("ds_write_b128", v(vS[1]), vr(ACC2 + 4 * q, 4), mods="offset:%d" % (1024 * q)) for q in range(4)]
        w.append(lambda: arrive(aH, vCW))
        p = {}
        if sg == 1:
            def late():
                verify(p[0], aFIN, 8)
                init(1)
                for i in range(IE2, IE2 + PD):
                    ard(i)
            ng = max(OPT.get("gm", 8) - nxt[0], 0)
            w += [gload] * ng + [lambda: None] * max(7 - ng, 0) + [lambda: p.__setitem__(0, peek(aFIN)), lambda: None, late]
        with Inject(w, 1, 4):
            gelu(ACC, 16, T, K0, K1, RI, T + 8, True)
        def f(m):
            r = None
            for u in range(2):
                r = I("buffer_store_dwordx4", vr(T + 8 + 4 * u, 4), v(vG[2 * sg]), SRD_WS, sE,
                      mods="offen" + (" offset:512" if u else "") + (" " + m if m else ""))
            return r
        if sg == 1:
            init(0)
        gst[sg] = moded(f)
        A.wait_lg_all(force=True)
        stamp("a_g%d" % (2 * sg))
    at(pos[(0, 28)], lambda: mid(0))
    at(pos[(0, 56)], lambda: mid(1))
    at(pos[(0, 28 + OPT.get("f0", 13))], lambda: prog(0, gst[0]))
    at(pos[(0, 56 + OPT.get("f2", 12))], lambda: prog(1, gst[1]))
    for r, n in enumerate((OPT.get("k0", 51), OPT.get("k1", 58), OPT.get("k2", 76), OPT.get("k3", 90))):
        at(pos[(0, n)] - OPT.get("pg%d" % r, (8, 3, 8, 8)[r]), lambda r=r: pissue(r))
        at(pos[(0, n)], lambda r=r: chk(r))
    SND, RCV, W, o0 = 64, 120, 96, 104
    t0, t1 = TMP + 8, TMP + 9
    rp = {}
    def fin_setup():
        for q in range(16):
            I("v_mov_b32", v(SND + 2 * q + 1), vTAG)
        I("v_lshrrev_b32", v(t0), 1, vTOK)
        I("v_lshrrev_b32", v(t1), 5, vLANE)
        I("v_xor_b32", v(t0), v(t0), v(t1))
        I("v_lshlrev_b32", v(t0), 4, v(t0))
        I("v_and_b32", v(t1), 31, vLANE)
        I("v_lshl_add_u32", v(t0), v(t1), 7, v(t0))
        I("s_lshl_b32", sE, sLW, 12)
        I("s_add_u32", sE, sE, hx(slot(4)))
        I("v_add_u32", v(W), sE, v(t0))
        for n in range(1, 4):
            I("v_xor_b32", v(W + n), hx(32 * n), v(W))
        I("v_lshrrev_b32", v(o0), 3, vLANE)
        I("v_and_b32", v(t1), 7, vLANE)
        I("v_xor_b32", v(t1), v(t1), vQ4)
        I("v_mul_u32_u24", v(o0), hx(896), v(o0))
        I("v_lshl_add_u32", v(o0), v(t1), 4, v(o0))
        I("v_xor_b32", v(t1), 4, v(t1))
        I("v_lshrrev_b32", v(o0 + 1), 3, vLANE)
        I("v_mul_u32_u24", v(o0 + 1), hx(896), v(o0 + 1))
        I("v_lshl_add_u32", v(o0 + 1), v(t1), 4, v(o0 + 1))
        I("v_add_u32", v(o0 + 2), hx(16 * TB), vL16)
        I("s_lshl_b32", sE, sX, 4)
        I("s_add_u32", sE, sE, sTE)
        I("s_mul_i32", sB, sE, hx(16 * 896))
        I("s_add_u32", sB, sB, sJ128)
        for n in range(4):
            I("s_add_u32", "s%d" % (4 + n), sC, hx(TB * n))
            I("s_add_u32", "s%d" % (8 + n), sC2, hx(TB * n))
            I("s_add_u32", "s%d" % (12 + n), sB, hx(8 * 896 * n))
    fs = rec(fin_setup)
    i1 = pos[(1, 56 + 42)] + 1
    for q, th in enumerate(fs):
        at(i1 + q // 3, th)
    assert i1 + len(fs) // 3 < pos[(0, 111)]
    check_at(pos[(0, 110)], bR, 3, vCW, move=-1)
    def finish():
        lown, lend = A.newlabel("Lown"), A.newlabel("Lend")
        sv = (A.vm, A.vm_done, A.lg, A.lg_done)
        I("s_cmp_eq_u32", sG, 0)
        I("s_cbranch_scc1", lown)
        def snd(m):
            for n in range(8):
                for e in range(2):
                    q = 2 * n + e
                    I("v_cvt_pk_bf16_f32", v(SND + 2 * q), v(ACH[q // 8] + 2 * (q % 8)), v(ACH[q // 8] + 2 * (q % 8) + 1))
                I("buffer_store_dwordx4", vr(SND + 4 * n, 4), v(o0 + 2) if n & 1 else vL16, SRD_WS, "s%d" % (4 + n // 2),
                  mods="offen" + (" " + m if m else ""))
        moded(snd)
        stamp("x_sent")
        I("s_branch", lend)
        A.label(lown)
        l0, d0 = A.newlabel("Lpoll"), A.newlabel("Lpd")
        I("s_mov_b32", sCNT, hx(40000))
        I("s_mov_b64", "exec", 1)
        A.label(l0)
        I("buffer_load_dword", v(t0), "off", SRD_WS, "s%d" % (8 + OPT.get("wp", 2) // 2), mods="offset:4 sc1")
        I("s_sub_u32", sCNT, sCNT, 1)
        I("s_waitcnt", "vmcnt(0)")
        I("v_cmp_ne_u32", "vcc", sTAG, v(t0))
        I("s_cbranch_vccz", d0)
        I("s_cmp_lg_u32", sCNT, 0)
        I("s_cbranch_scc1", l0)
        A.label(d0)
        I("s_mov_b64", "exec", -1)
        lp, dn = A.newlabel("Lpoll"), A.newlabel("Lpd")
        A.label(lp)
        for n in range(8):
            I("buffer_load_dwordx4", vr(RCV + 4 * n, 4), v(o0 + 2) if n & 1 else vL16, SRD_WS, "s%d" % (8 + n // 2),
              mods="offen sc1")
        I("v_mov_b32", v(t0), vTAG)
        I("v_mov_b32", v(t1), vTAG)
        I("s_sub_u32", sCNT, sCNT, 1)
        for k, n in enumerate(range(8)):
            I("s_waitcnt", "vmcnt(%d)" % (7 - k))
            I("v_min3_u32", v(t0), v(t0), v(RCV + 4 * n + 1), v(RCV + 4 * n + 3))
            I("v_max3_u32", v(t1), v(t1), v(RCV + 4 * n + 1), v(RCV + 4 * n + 3))
            for e in range(2):
                q = 2 * n + e
                I("v_and_b32", v(RCV + 2 * q + 1), hx(0xffff0000), v(RCV + 2 * q))
                I("v_lshlrev_b32", v(RCV + 2 * q), 16, v(RCV + 2 * q))
        I("v_cmp_ne_u32", "vcc", v(t0), v(t1))
        I("s_cbranch_vccz", dn)
        I("s_cmp_gt_i32", sCNT, 0)
        I("s_cbranch_scc1", lp)
        A.label(dn)
        stamp("x_recv")
        for n in range(4):
            ac = ACH[n // 2] + 8 * (n % 2)
            for e in range(0, 8, 2):
                I("v_pk_add_f32", vr(ac + e, 2), vr(ac + e, 2), vr(RCV + 8 * n + e, 2))
            pack(SND + 4 * n, ac, 8)
            I("ds_write_b128", v(W + n), vr(SND + 4 * n, 4))
        rr = [I("ds_read_b128", vr(ACC + 4 * n, 4), v(vS[1]), mods="offset:%d" % (1024 * n)) for n in range(4)]
        for n in range(4):
            A.wait(lg=rr[n])
            I("buffer_store_dwordx4", vr(ACC + 4 * n, 4), v(o0 + (n & 1)), SRD_OUT, "s%d" % (12 + n), mods="offen" + (" sc1" if OPT.get("outsc1") else "") + (" nt" if OPT.get("outnt") else ""))
        A.label(lend)
        A.vm, A.vm_done, A.lg, A.lg_done = sv
    zn = [NP]
    for i, (b, n) in enumerate(seq):
        if OPT.get("fine") and i % 8 == 0 and i >= OPT["fine"]:
            fstamp("op%03d" % i)
        for fn in ev.get(i, ()):
            fn()
        key = n if n < 28 else (n if n >= 56 else None)
        A.wait(vm=bl[key] if (b == 0 and key is not None) else None, lg=rd[(i | 1) if (i | 1) in rd else i])
        m32(ACH[b], AR + 4 * (i % NR), ZB + 4 * (n % 28), n in (0, 28))
        cur[0] = i + 1
        done1 = max([m for (bb, m) in seq[:i + 1] if bb == 1], default=-1)
        if zn[0] < 28:
            if b == 0:
                zload(zn[0]); zn[0] += 1
        elif nxt[0] < lim[0] and nxt[0] + 28 <= done1 and (b == 0 or (n >= 56 and nxt[0] + 56 < n + OPT.get("ah", 10))):
            gload()
        elif wq:
            wq.pop(0)()
        if i + PD < len(seq) and not (i < IE2 <= i + PD):
            ard(i + PD)
    assert not wq and nxt[0] == 56
    stamp("e2_mfma")
    finish()
    stamp("end")

def e_helper_setup():
    vS0, vS1, vRC, RT, vFL, vSO, vSO3, vW3 = 28, 29, 30, 31, 32, 33, 34, 35
    I("v_lshrrev_b32", v(vCS), 5, vLANE)
    I("v_lshlrev_b32", v(vCS), 6, v(vCS))
    I("v_add_u32", v(vCS), hx(131072), v(vCS))
    bf_lane(vBF)
    I("s_lshl_b32", sA, sLW, 12)
    I("s_add_u32", sB, sA, hx(L_STG))
    I("v_add_u32", v(vS0), sB, vL16)
    I("s_add_u32", sB, sA, hx(slot(4)))
    I("v_add_u32", v(vS1), sB, vL16)
    I("s_lshl_b32", sA, sJP, 10)
    tile_off(sC, R_G[1], TB, tl=sTE, extra=sA)
    I("s_lshr_b32", sB, sTE, 1)
    tile_off(sG, R_FG, 128, tl=sB)
    I("s_lshl_b32", sA, sJP, 2)
    I("s_add_u32", sD, sG, sA)
    I("s_and_b32", sE, sTG, 1)
    I("s_mul_i32", sE, sE, 28)
    I("s_and_b32", sB, sB, 4)
    tile_off(sA, R_FG, 128, tl=sB, extra=sE)
    I("v_min_u32", v(38), 6, vTOK)
    I("v_lshl_add_u32", v(38), v(38), 2, sA)
    I("v_lshl_add_u32", v(38), vQ4, 7, v(38))
    I("v_lshrrev_b32", v(TMP), 5, vLANE)
    I("v_mul_u32_u24", v(TMP), 3, v(TMP))
    I("s_sub_u32", sA, sTE, 1)
    I("v_add_u32", v(TMP), sA, v(TMP))
    I("v_max_i32", v(TMP), 0, v(TMP))
    I("v_min_i32", v(TMP), 15, v(TMP))
    I("v_min_u32", v(TMP + 1), 6, vTOK)
    I("v_lshlrev_b32", v(TMP + 1), 8, v(TMP + 1))
    I("v_lshl_add_u32", v(TMP), v(TMP), 11, v(TMP + 1))
    I("s_add_u32", sA, sPAGE, hx(R_SX + 4))
    I("v_add_u32", v(vRC), sA, v(TMP))
    I("s_lshl_b32", sF, sLW, 10)
    tile_off(sSP, R_SX, 2048, tl=sTE)
    I("v_and_b32", v(vSO3), 1, vQ4)
    I("v_lshlrev_b32", v(vSO3), 11, v(vSO3))
    I("v_lshl_add_u32", v(vSO3), vTOK, 4, v(vSO3))
    I("v_lshrrev_b32", v(TMP), 5, vLANE)
    I("v_lshl_add_u32", v(vSO), v(TMP), 8, v(vSO3))
    I("v_cvt_f32_u32", v(vW3), v(TMP))
    I("v_sub_f32", v(vW3), 1.0, v(vW3))

def e_helper():
    A.cmt("---- E (B: activation)")
    X, CS, GT = 64, 96, 48
    NMU, K0, K1, RI = 20, 21, 22, 23
    vS0, vS1, vRC, RT, vFL, vSO, vSO3, vW3 = 28, 29, 30, 31, 32, 33, 34, 35
    I("v_mov_b32", v(40), vD3584)
    I("s_add_u32", "s43", sE, hx(224 * 3584 + 128))
    e_helper_setup()
    cnt_setup([16, 17, 18])
    spin(bAB, 4, 1)
    for n in range(8):
        I("ds_read_b128", vr(CS + 4 * n, 4), v(vCS), mods="offset:%d" % (L_CS3 - 131072 + 128 + 256 * (n // 4) + 16 * (n % 4)))
    vCW = 19
    I("s_lshl_b32", sA, sLW, 2)
    I("v_add_u32", v(vCW), sA, v(CNR[0]))
    spin(aDP, 4, 1)
    A.wait_vm_all()
    arrive(bW3)
    stamp("b_r5")
    spin(aH, 1, 2, vCW)
    stamp("b_r6")
    rc = I("buffer_load_dword", v(RT), v(vRC), SRD_WS, 0, mods="offen sc1")
    lp, dn = A.newlabel("Lpoll"), A.newlabel("Lpd")
    G = X
    I("s_mov_b32", sCNT, hx(40000))
    A.label(lp)
    for q in range(3):
        I("buffer_load_dwordx4", vr(G + 4 * q, 4), v(vSO), SRD_WS, sSP, mods="offen offset:%d sc1" % (512 * q))
    I("buffer_load_dwordx4", vr(G + 12, 4), v(vSO3), SRD_WS, sSP, mods="offen offset:1536 sc1")
    I("s_sub_u32", sCNT, sCNT, 1)
    A.wait_vm_all(force=True)
    I("v_mov_b32", v(TMP), vTAG)
    I("v_mov_b32", v(TMP + 1), vTAG)
    for q in range(4):
        I("v_min3_u32", v(TMP), v(TMP), v(G + 4 * q + 1), v(G + 4 * q + 3))
        I("v_max3_u32", v(TMP + 1), v(TMP + 1), v(G + 4 * q + 1), v(G + 4 * q + 3))
    I("v_cmp_ne_u32", "vcc", v(TMP), v(TMP + 1))
    I("s_cbranch_vccz", dn)
    I("s_cmp_lg_u32", sCNT, 0)
    I("s_cbranch_scc1", lp)
    A.label(dn)
    for o in (0, 2):
        I("v_add_f32", v(G + o), v(G + o), v(G + 4 + o))
        I("v_add_f32", v(G + o), v(G + o), v(G + 8 + o))
        I("v_fmac_f32", v(G + o), v(G + 12 + o), v(vW3))
        I("v_mov_b32", v(G + o + 1), v(G + o))
        I("v_permlane32_swap_b32", v(G + o), v(G + o + 1))
        I("v_add_f32", v(G + o), v(G + o), v(G + o + 1))
    mean_var(G, G + 2, NMU, TMP + 7)
    rstd(TMP + 8, TMP + 7)
    I("v_sub_f32", v(NMU), 0, v(NMU))
    gelu_prep(TMP + 8, K0, K1, RI)
    I("s_add_u32", sA, sF, hx(slot(4) + 16384))
    I("v_add_u32", v(TMP), sA, vL16)
    I("ds_write_b128", v(TMP), vr(NMU, 4))
    cls_check(rc, RT, vRC, 0, sleep=1)
    arrive(bR, vCW)
    stamp("b_ready")
    def fetch(sg):
        spin(aH, sg + 2, 1, vCW)
        stamp("b_h%d" % sg)
        for q in range(4):
            I("ds_read_b128", vr(X + 4 * q, 4), v(vS1), mods="offset:%d" % (1024 * q))
    def act(sg):
        A.wait_lg_all()
        for i in range(16):
            I("v_fmac_f32", v(X + i), v(CS + 16 * sg + i), v(NMU))
        gelu(X, 16, GT, K0, K1, RI, TMP, False)
    def put(sg):
        r = None
        for u in range(2):
            r = I("buffer_store_dwordx4", vr(TMP + 4 * u, 4), v(vBF), SRD_WS, sC, mods="offen" + (" offset:512" if u else "") + " sc1")
        stamp("b_g%d" % sg)
        return r
    def flag(c, st):
        I("v_add_u32", v(vFL), c, vTAG)
        A.wait(vm=st)
        def f(m):
            I("s_mov_b64", "exec", 1)
            I("buffer_store_dword", v(vFL), "off", SRD_WS, sD, mods=m)
            I("s_mov_b64", "exec", -1)
        moded(f)
    spin(aZ, OPT.get("trgz", 4), 1)
    for th in w4_park(0) + w4_park(1):
        th()
    fetch(0)
    arrive(bR, vCW)
    pk = w4_park(2) + w4_park(3)
    NI = OPT.get("ni", 7)
    U0 = OPT.get("u0", 0)
    if U0:
        spin(aF1, 4, 1)
        w4_unpark(0)
    with Inject(pk[:NI], 2, OPT.get("iv", 6)):
        act(0)
    st0 = put(0)
    if not U0:
        spin(aF1, 4, 1)
    w4_unpark(U0)
    I("s_add_u32", sC, sC, hx(R_G[3] - R_G[1]))
    if U0:
        arrive(aFIN)
    flag(0, st0)
    stamp("b_f0")
    for th in pk[NI:]:
        th()
    if not U0:
        w4_unpark(1)
        arrive(aFIN)
    fetch(1)
    U2 = OPT.get("u2", 0)
    if U2:
        spin(aF3, 4, 1)
        w4_unpark(2)
    act(1)
    st1 = put(1)
    if not U2:
        spin(aF3, 4, 1)
    w4_unpark(2 + U2)
    if U2:
        arrive(aL3)
    flag(1, st1)
    if not U2:
        w4_unpark(3)
        arrive(aL3)
    stamp("b_f1")
    spin(aH, 4, 1, vCW)
    flag(2, None)
    rc = I("buffer_load_dword", v(RT), v(38), SRD_WS, 0, mods="offen sc1")
    cls_check(rc, RT, 38, 2, sleep=1)
    arrive(bR, vCW)
    A.wait_lg_all()

def dump_stamps():
    if not OPT["stamp"]:
        return
    A.wait_vm_all(force=True)
    stamp("drained")
    I("s_memrealtime", sST)
    A.wait_lg_all(force=True)
    I("v_writelane_b32", vSTAMP, "s98", 1)
    I("s_lshl_b32", sA, "s2", 3)
    I("s_add_u32", sA, sA, sW)
    I("s_lshl_b32", sA, sA, 8)
    I("s_add_u32", sA, sA, hx(OFF_STAMP))
    I("v_lshlrev_b32", v(TMP), 2, vLANE)
    I("buffer_store_dword", vSTAMP, v(TMP), SRD_WS, sA, mods="offen")

def epoch_update():
    l = A.newlabel("Lep")
    I("s_cmp_lg_u32", "s2", hx(255))
    I("s_cbranch_scc1", l)
    I("s_cmp_lg_u32", sW, 0)
    I("s_cbranch_scc1", l)
    lp, dn = A.newlabel("Lpoll"), A.newlabel("Lpd")
    I("v_lshrrev_b32", v(TMP), 3, vLANE)
    I("v_lshlrev_b32", v(TMP), PSH, v(TMP))
    I("v_and_b32", v(TMP + 1), 7, vLANE)
    I("v_lshl_add_u32", v(TMP), v(TMP + 1), 7, v(TMP))
    I("s_mov_b32", sA, hx(R_XCC))
    I("s_mov_b32", sCNT, hx(40000))
    A.label(lp)
    for i in range(4):
        I("buffer_load_dword", v(TMP + 4 + i), v(TMP), SRD_WS, sA, mods="offen offset:%d sc1" % (1024 * i))
    A.wait_vm_all(force=True)
    for i in range(4):
        I("v_subrev_u32", v(TMP + 4 + i), sTAG, v(TMP + 4 + i))
    I("v_max_u32", v(TMP + 4), v(TMP + 4), v(TMP + 5))
    I("v_max3_u32", v(TMP + 4), v(TMP + 4), v(TMP + 6), v(TMP + 7))
    I("v_cmp_le_u32", "vcc", 16, v(TMP + 4))
    I("s_cbranch_vccz", dn)
    I("s_sleep", 2)
    I("s_sub_u32", sCNT, sCNT, 1)
    I("s_cmp_lg_u32", sCNT, 0)
    I("s_cbranch_scc1", lp)
    A.label(dn)
    I("s_mov_b32", sA, hx(OFF_EPOCH))
    flag_store(sA)
    A.label(l)

def touch(srd, base, nbytes, mods=""):
    n = -(-nbytes // (32 * 8192))
    if isinstance(base, int):
        I("s_mov_b32", sA, hx(base))
    else:
        I("s_mov_b32", sA, base)
    lim = None
    for i in range(n):
        rem = nbytes - i * 32 * 8192
        if rem < 32 * 8192:
            I("v_cmp_gt_u32", "vcc", hx(rem), v(TMP + 8))
            I("v_cndmask_b32", v(TMP + 10), v(TMP + 9), v(TMP + 8), "vcc")
            va = v(TMP + 10)
        else:
            va = v(TMP + 8)
        I("buffer_load_dword", v(TMP + 11), va, srd, sA, mods="offen" + (" " + mods if mods else ""))
        if i + 1 < n:
            I("s_add_u32", sA, sA, hx(32 * 8192))

def touch_setup():
    I("s_sub_u32", sA, sLI, 28)
    I("s_lshl_b32", sB, sW, 2)
    I("s_add_u32", sA, sA, sB)
    I("s_lshl_b32", sA, sA, 13)
    I("v_lshl_add_u32", v(TMP + 8), vLANE, 7, sA)
    I("v_mov_b32", v(TMP + 9), hx(OOB))

def spare_pre():
    A.cmt("---- spare CU: prefetch")
    I("v_mov_b32", v(TMP + 4), 0)
    I("v_and_b32", vTOK, 15, vLANE)
    touch_setup()
    I("s_getpc_b64", "s[64:65]")
    A.label("L_pc")
    I("s_sub_u32", "s64", "s64", "L_pc-%s_kernel" % NAME)
    I("s_subb_u32", "s65", "s65", 0)
    I("s_and_b32", "s65", "s65", hx(0xffff))
    I("s_mov_b32", "s66", "L_codeend-%s_kernel" % NAME)
    I("s_mov_b32", "s67", hx(0x20000))
    I("s_sub_u32", sA, sLI, 28)
    I("s_lshl_b32", sB, sW, 2)
    I("s_add_u32", sA, sA, sB)
    I("s_lshl_b32", sD, sA, 11)
    I("v_lshlrev_b32", v(TMP + 12), 7, vTOK)
    touch1(SRD_BG, v(TMP + 12), sD)
    A.wait_lg_all(force=True)
    epoch_load()
    srds([60, 8, 4, 12, 16, 20, 24, 28, 32])
    I("v_lshlrev_b32", v(TMP + 11), 7, vLANE)
    def mall(items, off):
        for srd, n in items:
            l = A.newlabel("Lml")
            I("s_sub_u32", sA, sE, hx(off))
            I("s_and_b32", sA, sA, hx(255))
            I("s_cmp_ge_u32", sA, hx(n))
            I("s_cbranch_scc1", l)
            I("s_lshl_b32", sA, sA, 13)
            touch1(srd, v(TMP + 11), sA)
            A.label(l)
            off += n
        return off
    I("s_sub_u32", sA, 31, sLI)
    I("s_lshl_b32", sA, sA, 3)
    I("s_add_u32", sA, sA, sX)
    I("s_lshl_b32", sB, sW, 5)
    I("s_add_u32", sE, sA, sB)
    if OPT.get("mq", 1) == 2:
        l = A.newlabel("Lmq")
        I("s_cmp_ge_u32", sE, hx(98))
        I("s_cbranch_scc1", l)
        I("s_lshl_b32", sA, sE, 6)
        I("v_add_u32", v(TMP + 10), sA, vLANE)
        I("v_mul_u32_u24", v(TMP + 13), hx(4682), v(TMP + 10))
        I("v_lshrrev_b32", v(TMP + 13), 16, v(TMP + 13))
        I("v_mul_u32_u24", v(TMP + 13), 7, v(TMP + 13))
        I("v_add_u32", v(TMP + 10), v(TMP + 10), v(TMP + 13))
        I("v_lshlrev_b32", v(TMP + 10), 7, v(TMP + 10))
        I("s_mov_b32", sA, hx(1792))
        touch1(SRD_WQKV, v(TMP + 10), sA)
        A.label(l)
        off = mall([(SRD_W2, 49), (SRD_WO, 49), (SRD_W1, 49)], 98)
    else:
        off = mall(([(SRD_WQKV, 147)] if OPT.get("mq", 1) else []) + [(SRD_WO, 49), (SRD_W1, 49)], 0)
    I("s_lshl_b32", sG, sD, 2)
    I("s_add_u32", sG, sG, sPAGE)
    I("s_mov_b32", sA, sG)
    I("s_cmp_ge_u32", sD, hx(28 << 11))
    I("s_cmov_b32", sA, hx(OOB))
    I("s_add_u32", sB, sPAGE, hx(R_LOC))
    I("s_cmp_eq_u32", sD, hx(31 << 11))
    I("s_cmov_b32", sA, sB)
    touch1(SRD_WS, v(TMP + 11), sA)
    tag_publish()
    late_consts()
    dma_lane_consts()
    barrier()
    tag_read_finish(tag_read_issue())
    if OPT.get("mq", 1) != 2:
        off = mall([(SRD_W2, 49)], off)
    if not OPT.get("r2late", 0):
        r2_touch()
    if not OPT["alias"]:
        I("s_add_u32", sB, sPAGE, hx(1 << 21))
        touch(SRD_WS, sB, 112 * TB)
    if OPT["mall"] > 1:
        off = mall([(SRD_W3, 196)], off)
    mode_issue()
    A.wait_vm_all(force=True)
    stamp("sp_mall")
    att_ids()

def r2_touch():
    I("s_sub_u32", sA, sLI, 28)
    I("s_lshl_b32", sB, sW, 2)
    I("s_add_u32", sA, sA, sB)
    I("s_lshl_b32", sD, sA, 11)
    I("s_lshl_b32", sG, sD, 2)
    I("s_add_u32", sG, sG, sPAGE)
    I("v_lshlrev_b32", v(TMP + 11), 7, vLANE)
    I("s_add_u32", sA, sG, hx(R_2))
    if OPT.get("r2m", 0):
        I("s_mov_b32", sA, hx(OOB))
    I("s_add_u32", sB, sG, hx(R_SH - 28 * 8192))
    I("s_cmp_ge_u32", sD, hx(28 << 11))
    I("s_cmov_b32", sA, sB)
    touch1(SRD_WS, v(TMP + 11), sA)
    I("s_add_u32", sA, sB, hx(32768))
    I("s_cmp_lt_u32", sD, hx(28 << 11))
    I("s_cmov_b32", sA, hx(OOB))
    touch1(SRD_WS, v(TMP + 11), sA)

def spare_att(n0, n1):
    I("s_sub_u32", sE, sLI, 28)
    I("s_lshl_b32", sE, sE, 3)
    I("s_add_u32", sE, sE, sX)
    I("s_lshl_b32", sE, sE, 7)
    l = A.newlabel("Lsa")
    I("s_cmp_ge_u32", sE, hx(28 * 128))
    I("s_cbranch_scc1", l)
    I("s_mov_b32", sK, n0)
    dma_seq(SRD_W3, 3584, slot(3), (sE, 0), n1 - n0, start="cont")
    A.label(l)

def spare_colsum():
    l = A.newlabel("Lsc")
    I("s_cmp_ge_u32", sE, hx(28 * 128))
    I("s_cbranch_scc1", l)
    cl_lane()
    t0 = TMP
    I("v_add_u32", v(t0), hx(slot(3)), v(vCL))
    for s_ in range(14):
        I("ds_read_b64_tr_b16", vr(AREG + 4 * s_, 2), v(t0), mods="offset:%d" % (4096 * s_))
        I("ds_read_b64_tr_b16", vr(AREG + 4 * s_ + 2, 2), v(t0), mods="offset:%d" % (4096 * s_ + 1024))
    I("v_lshlrev_b32", v(TMP + 1), 5, vQ4)
    I("v_lshl_add_u32", v(TMP + 1), vTOK, 4, v(TMP + 1))
    I("s_lshl_b32", sA, sE, 2)
    I("s_lshl_b32", sB, sLW, 7)
    I("s_add_u32", sA, sA, sB)
    I("s_add_u32", sA, sA, hx(OFF_CSG))
    I("v_mov_b32", v(TMP + 5), vTAG)
    I("v_mov_b32", v(TMP + 7), vTAG)
    I("v_cmp_eq_u32", "vcc", 0, vTOK)
    A.wait_lg_all()
    for s_ in range(14):
        m16(ACC, AREG + 4 * s_, ONES, s_ == 0)
    I("v_cndmask_b32", v(TMP + 4), v(ACC + 2), v(ACC), "vcc")
    I("v_cndmask_b32", v(TMP + 6), v(ACC + 3), v(ACC + 1), "vcc")
    I("s_mov_b32", "exec_lo", hx(0x30003))
    I("s_mov_b32", "exec_hi", hx(0x30003))
    I("buffer_store_dwordx4", vr(TMP + 4, 4), v(TMP + 1), SRD_WS, sA, mods="offen sc1")
    I("s_mov_b64", "exec", -1)
    A.label(l)

def cl_lane():
    t0, t1, t2 = TMP, TMP + 1, TMP + 2
    I("v_bfe_u32", v(t0), vLANE, 2, 2)
    I("v_and_b32", v(t1), 1, vQ4)
    I("v_lshl_add_u32", v(t1), v(t1), 2, v(t0))
    I("v_lshrrev_b32", v(t2), 1, vQ4)
    I("v_lshl_add_u32", v(t1), v(t2), 4, v(t1))
    I("v_and_b32", v(t0), 2, v(t0))
    I("v_lshlrev_b32", v(t0), 5, v(t0))
    I("s_lshl_b32", sA, sLW, 5)
    I("v_xor_b32", v(t0), sA, v(t0))
    I("v_lshl_add_u32", v(t0), v(t1), 7, v(t0))
    I("v_and_b32", v(t1), 3, vLANE)
    I("v_lshl_add_u32", v(vCL), v(t1), 3, v(t0))

def spare_post():
    if OPT.get("r2late", 0):
        r2_touch()
    if OPT["warm"]:
        touch_setup()
        I("v_lshlrev_b32", v(TMP + 10), 1, v(TMP + 8))
        I("v_cmp_gt_u32", "vcc", hx(17 * 16384), v(TMP + 10))
        I("v_cndmask_b32", v(TMP + 12), v(TMP + 9), v(TMP + 10), "vcc")
        def w4mall():
            I("s_sub_u32", sA, sLI, 28)
            I("s_lshl_b32", sA, sA, 3)
            I("s_add_u32", sA, sA, sX)
            I("s_lshl_b32", sB, sW, 5)
            I("s_add_u32", sA, sA, sB)
            I("s_lshl_b32", sA, sA, 13)
            I("v_lshlrev_b32", v(TMP + 13), 7, vLANE)
            touch1(SRD_W4, v(TMP + 13), sA)
        for qn, (sg, hi) in enumerate(((0, 0), (0, 1), (1, 0), (1, 1))[:OPT.get("nq", 4)]):
            if OPT.get("rel", 6) >> qn & 1:
                l = A.newlabel("Lrl")
                I("s_cmp_lg_u32", sLI, 31)
                I("s_cbranch_scc1", l)
                I("s_and_b32", sA, sW, 1)
                I("s_lshl_b32", sB, sA, 13)
                I("s_add_u32", sB, sB, hx(OFF_CSG))
                I("s_cmp_lt_u32", sW, 6)
                I("s_cselect_b32", sA, hx(OOB), sB)
                I("v_lshlrev_b32", v(TMP + 13), 7, vLANE)
                touch1(SRD_WS, v(TMP + 13), sA, "sc1")
                A.label(l)
            if qn == OPT.get("w4m", 0):
                w4mall()
            I("s_mov_b32", sA, hx(128 * sg + hi * 224 * 3584))
            touch1(SRD_W3, v(TMP + 10), sA)
            I("s_add_u32", sA, sA, hx(32 * 16384))
            touch1(SRD_W3, v(TMP + 12), sA)
            barrier()
        if OPT.get("w4m", 0) == OPT.get("nq", 4):
            w4mall()
            I("s_waitcnt", "vmcnt(0)")
            barrier()
        stamp("sp_w3")
        I("s_sub_u32", sB, sLI, 28)
        I("s_lshl_b32", sB, sB, 3)
        I("s_add_u32", sB, sB, sW)
        I("v_lshlrev_b32", v(TMP + 10), 7, vLANE)
        def kvr():
            I("s_add_u32", sA, sPAGE, hx(R_K))
            touch1(SRD_WS, v(TMP + 8), sA)
            I("s_add_u32", sA, sA, hx(32 * TB - 32 * 8192))
            touch1(SRD_WS, v(TMP + 8), sA)
        for sg in range(2):
            if OPT.get("kvr", 0) >> sg & 1:
                kvr()
            for i in range(4):
                I("s_add_u32", sC, sB, 32 * i)
                I("s_mul_i32", sD, sC, hx(147))
                I("s_lshr_b32", sD, sD, 10)
                I("s_mul_i32", sA, sD, hx(128 * 896 - 7 * 8192))
                I("s_lshl_b32", sC, sC, 13)
                I("s_add_u32", sA, sA, sC)
                if sg:
                    I("s_add_u32", sA, sA, hx(64 * 896))
                touch1(SRD_W4, v(TMP + 10), sA)
                if (i & 1 and OPT.get("sb", 1)) or (i == 3 and sg == 0):
                    barrier()
        if OPT.get("kvr", 0) & 4:
            kvr()
        A.wait_vm_all(force=True)
        stamp("sp_w4")

def reset():
    A.vm = A.vm_done = A.lg = A.lg_done = 0

prologue()
I("s_cmp_ge_u32", sLI, 28)
I("s_cbranch_scc1", "L_spare")
I("s_cmp_ge_u32", sW, 4)
I("s_cbranch_scc1", "L_aload")
phase_a_compute()
A.label("L_att")
reset()
att_a()
I("s_cmp_ge_u32", sLI, 28)
I("s_cbranch_scc1", "L_spare2a")
st = c_compute()
e_compute(st)
dump_stamps()
I("s_endpgm")
for f_ in TAILS:
    f_()
A.label("L_spare")
reset()
spare_pre()
I("s_cmp_ge_u32", sW, 4)
I("s_cbranch_scc1", "L_sp4")
att_consts()
I("s_branch", "L_att")
A.label("L_sp4")
mode_check()
att_consts_b()
kv_poll_off(TMP + 4, 0)
I("s_branch", "L_attpre")
A.label("L_aload")
ROLE[0] = "B"
reset()
phase_a_loader()
A.label("L_attpre")
att_loader_pre()
att_b()
A.label("L_cload")
c_loader()
e_helper()
dump_stamps()
I("s_endpgm")
A.label("L_spare2a")
ROLE[0] = "A"
reset()
o_flag()
epoch_update()
I("s_waitcnt", "vmcnt(0)")
barrier()
A.label("L_spare2")
spare_post()
dump_stamps()
A.label("L_end")
I("s_endpgm")
A.label("L_codeend")

body = A.finalize()
hdr = open("cdna_kernels/%s.s.ref" % NAME).read().split("; Override launch")[0]
out = hdr + "; @launch grid=(256,1,1) block=(512,1,1) lds=%d\n" % LDS_SIZE
out += """.amdgcn_target "amdgcn-amd-amdhsa--gfx950"
.text
.globl %s_kernel
.p2align 8
.type %s_kernel,@function
%s_kernel:
""" % (NAME, NAME, NAME)
out += body
out += """.section .rodata,"a"
.p2align 6
.amdhsa_kernel %s_kernel
  .amdhsa_next_free_vgpr 256
  .amdhsa_next_free_sgpr 102
  .amdhsa_accum_offset 256
  .amdhsa_group_segment_fixed_size 0
  .amdhsa_kernarg_size 88
  .amdhsa_user_sgpr_count 2
  .amdhsa_user_sgpr_kernarg_segment_ptr 1
  .amdhsa_system_sgpr_workgroup_id_x 1
.end_amdhsa_kernel
""" % NAME
open(sys.argv[1], "w").write(out)
json.dump(dict(stamps=stamp_names, stamps_b=stamp_names_b, PSH=PSH, v5=1, OFF=dict(Q=R_Q, K=R_K, V=R_V, O=R_O, H=R_H, HH=R_HH, X1=R_X1, G=R_G[0],
               STAMP=OFF_STAMP, WS=WS_SIZE)), open(sys.argv[1] + ".json", "w"))
```
